```python
import torch

def _softmax(x, axis=-1):
    return torch.softmax(x, dim=axis)
def _gelu(x):
    return torch.nn.functional.gelu(x, approximate="tanh")
def _silu(x):
    return torch.nn.functional.silu(x)
def _sigmoid(x):
    return torch.sigmoid(x)
def _layernorm(x, axis=-1, eps=1e-5):
    m = x.mean(dim=axis, keepdim=True)
    v = x.var(dim=axis, keepdim=True, unbiased=False)
    return (x - m) / torch.sqrt(v + eps)
def _scatter_add(tgt, idx, src, axis=0):
    return tgt.clone().index_add_(axis, idx, src)
def _segment_sum(src, seg, n):
    out = torch.zeros((n,) + src.shape[1:], dtype=src.dtype)
    return out.index_add_(0, seg, src)
def _pad(x, pw):
    flat = tuple(v for pair in reversed(pw) for v in pair)
    return torch.nn.functional.pad(x, flat)

kernel_name = 'sequential_preLN__ssm_conv_s4d__glu_gated_swiglu__prompt'

def setup_inputs():

    _w = (lambda a: (lambda t: t.to(torch.bfloat16) if t.is_floating_point() else t)(torch.as_tensor(a)))
    def _A_setup():
        Bsz, L, D, N = 1, 2048, 640, 192
        return {
            "u": _w((lambda *s: torch.randn(*s, dtype=torch.bfloat16) * 0.05)(Bsz, L, D)),
            "log_A_real": _w((lambda *s: torch.randn(*s, dtype=torch.bfloat16) * 6.4)(D, N) * 0.5),
            "A_imag": _w((lambda *s: torch.randn(*s, dtype=torch.bfloat16) * 0.05)(D, N) * 3.14),
            "C_real": _w((lambda *s: torch.randn(*s, dtype=torch.bfloat16) * 0.05)(D, N) / N ** 0.5),
            "C_imag": _w((lambda *s: torch.randn(*s, dtype=torch.bfloat16) * 0.05)(D, N) / N ** 0.5),
            "log_dt": _w((lambda *s: torch.randn(*s, dtype=torch.bfloat16) * 0.05)(D) * 0.5 - 4.0),
            "D_skip": _w((lambda *s: torch.randn(*s, dtype=torch.bfloat16) * 0.05)(D)),
        }
    _A_in = _A_setup()

    def _B_setup():
        B, S, D, F = 1, 2048, 640, 1536
        return {
            "x": _w((lambda *s: torch.randn(*s, dtype=torch.bfloat16) * 0.05)(B, S, D)),
            "w1": _w((lambda *s: torch.randn(*s, dtype=torch.bfloat16) * 0.4)(D, F) * (2.0 / D) ** 0.5),
            "w3": _w((lambda *s: torch.randn(*s, dtype=torch.bfloat16) * 0.4)(D, F) * (2.0 / D) ** 0.5),
            "w2": _w((lambda *s: torch.randn(*s, dtype=torch.bfloat16) * 0.4)(F, D) * (2.0 / F) ** 0.5),
        }
    _B_in = _B_setup()

    return {
        "A_u": _A_in["u"],
        "A_log_A_real": _A_in["log_A_real"],
        "A_A_imag": _A_in["A_imag"],
        "A_C_real": _A_in["C_real"],
        "A_C_imag": _A_in["C_imag"],
        "A_log_dt": _A_in["log_dt"],
        "A_D_skip": _A_in["D_skip"],
        "B_x": _B_in["x"],
        "B_w1": _B_in["w1"],
        "B_w3": _B_in["w3"],
        "B_w2": _B_in["w2"],
    }

def reference(A_u, A_log_A_real, A_A_imag, A_C_real, A_C_imag, A_log_dt, A_D_skip, B_x, B_w1, B_w3, B_w2):
    def _A_ref(u, log_A_real, A_imag, C_real, C_imag, log_dt, D_skip):
        L = u.shape[1]
        dt = torch.exp(log_dt)
        A = -torch.exp(log_A_real) + 1j * A_imag
        C = (C_real + 1j * C_imag) * dt[:, None]
        pos = (lambda x, dt: x.to(dt))(torch.arange(L), log_dt.dtype)
        P = torch.exp((A * dt[:, None])[:, :, None] * pos[None, None, :])
        K = 2.0 * torch.einsum("dn,dnl->dl", C, P).real
        L2 = 2 * L
        u_t = (lambda x, *d: x.permute(*d))(u, 0, 2, 1)
        Kf = (lambda x, *a, **k: torch.fft.rfft(x.float(), *a, **k))(K, L2)
        Uf = (lambda x, *a, **k: torch.fft.rfft(x.float(), *a, **k))(u_t, L2)
        y = (lambda x, *a, **k: torch.fft.irfft(x, *a, **k).to(torch.bfloat16))(Uf * Kf[None, :, :], L2)[:, :, :L]
        y = (lambda x, *d: x.permute(*d))(y, 0, 2, 1)
        return y + u * D_skip[None, None, :]

    def _B_ref(x, w1, w3, w2):
        gate = torch.einsum("bsd,df->bsf", x, w1)
        up = torch.einsum("bsd,df->bsf", x, w3)
        h = _silu(gate) * up
        out = torch.einsum("bsf,fd->bsd", h, w2)
        return out

    x = A_u
    h = x + _A_ref(_layernorm(x, axis=-1), A_log_A_real, A_A_imag, A_C_real, A_C_imag, A_log_dt, A_D_skip)
    h2 = h + _B_ref(_layernorm(h, axis=-1), B_w1, B_w3, B_w2)
    return h2
```

```python
import re

TRANS = ("v_exp_f32", "v_log_f32", "v_rcp_f32", "v_rsq_f32", "v_sqrt_f32", "v_sin_f32", "v_cos_f32")
REG_RE = re.compile(r"\b([vas])(\d+)\b|\b([vas])\[(\d+):(\d+)\]|\b(vcc|exec|m0)\b")

def regs_of(tok):
    out = set()
    for m in REG_RE.finditer(tok):
        if m.group(1):
            out.add((m.group(1), int(m.group(2))))
        elif m.group(3):
            for i in range(int(m.group(4)), int(m.group(5)) + 1):
                out.add((m.group(3), i))
        else:
            out.add((m.group(6), 0))
    return out

def split_ops(s):
    ops, depth, cur = [], 0, ""
    for ch in s:
        if ch == "[": depth += 1
        if ch == "]": depth -= 1
        if ch == "," and depth == 0:
            ops.append(cur.strip()); cur = ""
        else:
            cur += ch
    if cur.strip(): ops.append(cur.strip())
    return ops

class Ins:
    def __init__(self, text):
        self.text = text
        t = text.split(";")[0].strip()
        parts = t.split(None, 1)
        self.op = parts[0]
        rest = parts[1] if len(parts) > 1 else ""
        ops = split_ops(rest)
        mods = ""
        if ops:
            lp = ops[-1].split(None, 1)
            if len(lp) > 1 and not ops[-1].startswith("abs") :
                ops[-1] = lp[0]; mods = lp[1]
        self.ops = ops; self.mods = mods
        op = self.op
        self.kind = "other"
        self.w = set(); self.r = set(); self.srcc = set(); self.ab = set()
        R = [regs_of(o) for o in ops]
        allr = set().union(*R) if R else set()
        if op.startswith("v_mfma"):
            self.kind = "mfma"
            self.w = R[0]; self.ab = R[1] | R[2]; self.srcc = R[3]; self.r = self.ab | self.srcc
            self.passes = 4 if "16x16x32" in op else 8
        elif op.startswith("v_"):
            self.kind = "valu"
            self.trans = op.replace("_e32", "").replace("_e64", "") in TRANS
            self.dpp = ("dpp" in op) or any(k in mods for k in ("quad_perm", "row_", "wave_"))
            self.dot = op.startswith("v_dot")
            self.perml = op.startswith("v_permlane")
            self.rdlane = op.startswith("v_readlane") or op.startswith("v_readfirstlane")
            self.wrlane = op.startswith("v_writelane")
            if self.perml:
                self.w = R[0] | R[1]; self.r = R[0] | R[1]
            elif op.startswith("v_cmp"):
                self.w = R[0]; self.r = set().union(*R[1:])
            elif op.startswith(("v_add_co", "v_sub_co", "v_addc_co", "v_subb_co")):
                self.w = R[0] | R[1]; self.r = set().union(*R[2:])
            else:
                self.w = R[0]; self.r = set().union(*R[1:]) if len(R) > 1 else set()
                if op.startswith(("v_fmac", "v_dot2c", "v_writelane")) or self.dpp:
                    self.r |= R[0]
                if op.startswith("v_cndmask") and len(R) == 3:
                    self.r |= {("vcc", 0)}
            if op.startswith("v_accvgpr"):
                pass
        elif op.startswith("ds_"):
            self.kind = "ds"
            if op.startswith("ds_read") or op.startswith("ds_bpermute") or op.startswith("ds_swizzle") or op.startswith("ds_permute"):
                self.w = R[0]; self.r = set().union(*R[1:])
                if "d16" in op: self.r |= R[0]
            else:
                self.r = allr
        elif op.startswith(("buffer_", "global_")):
            self.kind = "vmem"
            self.lds = " lds" in (" " + mods)
            if "load" in op and not self.lds:
                self.w = R[0]; self.r = set().union(*R[1:])
            else:
                self.r = allr
                if "atomic" in op and "sc0" in mods: self.w = R[0] if op.startswith("buffer") else R[0]
            self.wide_store = ("store" in op) and ("x3" in op or "x4" in op)
            if self.wide_store:
                self.sdata = R[0] if op.startswith("buffer") else R[1]
            if self.lds: self.r |= {("m0", 0)}
        elif op.startswith("s_"):
            self.kind = "salu"
            if op.startswith(("s_branch", "s_cbranch", "s_endpgm", "s_barrier", "s_waitcnt", "s_nop", "s_sleep", "s_setprio", "s_cmp", "s_bitcmp")):
                self.r = allr
            else:
                self.w = R[0] if R else set(); self.r = set().union(*R[1:]) if len(R) > 1 else set()
                if "saveexec" in op: self.w = self.w | {("exec", 0)}
        self.states = 1
        if op == "s_nop":
            self.states = int(ops[0], 0) + 1

def vg(s):
    return {x for x in s if x[0] in "va"}
def sg(s):
    return {x for x in s if x[0] == "s" or x[0] == "vcc"}

def need(p, c):
    n = 0
    if p.kind == "valu":
        pw = vg(p.w); ps = sg(p.w)
        if c.kind == "mfma" and pw & c.r: n = max(n, 2)
        if c.kind == "valu":
            if p.trans and not c.trans and pw & c.r: n = max(n, 1)
            if p.trans and c.trans and pw & c.r: n = max(n, 1)
            if c.dpp and pw & c.r: n = max(n, 2)
            if c.perml and pw & c.r: n = max(n, 2)
            if c.rdlane and pw & c.r: n = max(n, 1)
            if ps & c.r:
                n = max(n, 4 if (c.rdlane or c.wrlane) else 2)
            if p.dot and (pw & (c.r | c.w)):
                same_acc = c.dot and c.op == p.op and not (pw & (regs_of(c.ops[1]) | regs_of(c.ops[2])))
                if not same_acc: n = max(n, 3)
        if p.dot and c.kind in ("ds", "vmem", "mfma") and pw & c.r: n = max(n, 3)
        if c.kind == "vmem" and ps & c.r: n = max(n, 5)
        if c.kind == "salu" and ps & c.r: n = max(n, 1)
    if p.kind == "mfma":
        big = 8 if p.passes == 4 else 12
        if c.kind == "mfma":
            if p.w & c.ab: n = max(n, big)
            if p.w & c.srcc and c.srcc != p.w: n = max(n, big - 2)
            if p.w & c.w and c.srcc != p.w: n = max(n, big - 2)
        elif c.kind in ("valu", "ds", "vmem"):
            if p.w & (c.r | c.w): n = max(n, big)
        if c.kind == "valu" and p.srcc & c.w: n = max(n, 3 if p.passes == 4 else 7)
    if p.kind == "vmem" and getattr(p, "wide_store", False):
        if p.sdata & c.w: n = max(n, 2 if c.kind in ("valu", "mfma") else 1)
    if p.kind == "salu" and ("m0", 0) in p.w and c.kind == "vmem" and c.lds: n = max(n, 1)
    return n

class Asm:
    def __init__(self):
        self.lines = []
        self.win = []
        self.nops = 0
    def raw(self, text):
        self.lines.append(text)
    def flush_hazards(self, n=12):
        dist = 0; worst = 0
        for p in reversed(self.win):
            lim = 0
            if p.kind == "mfma": lim = 8 if p.passes == 4 else 12
            elif p.kind == "valu": lim = 5 if sg(p.w) else (3 if p.dot else 2)
            elif p.kind == "vmem" and getattr(p, "wide_store", False): lim = 2
            elif p.kind == "salu" and ("m0", 0) in p.w: lim = 1
            worst = max(worst, lim - dist)
            dist += p.states
        if worst > 0:
            self._emit(Ins(f"s_nop {worst-1}"))
        self.win = []
    def label(self, name):
        self.flush_hazards()
        self.lines.append(f"{name}:")
    def _emit(self, ins):
        self.lines.append("  " + ins.text)
        self.win.append(ins)
        if len(self.win) > 24: self.win.pop(0)
    def __call__(self, text):
        for t in text.strip().split("\n"):
            t = t.strip()
            if not t or t.startswith(";"):
                if t: self.lines.append("  " + t)
                continue
            ins = Ins(t)
            if getattr(self, "drop", None) and any(ins.op.startswith(d) for d in self.drop): continue
            if ins.op.startswith(("s_branch", "s_cbranch")):
                self.flush_hazards()
                self._emit(ins); continue
            dist = 0; pad = 0
            for p in reversed(self.win):
                pad = max(pad, need(p, ins) - dist)
                dist += p.states
                if dist > 13: break
            if pad > 0:
                self._emit(Ins(f"s_nop {pad-1}")); self.nops += pad
            self._emit(ins)
    def text(self):
        return "\n".join(self.lines) + "\n"

def kernel_header(name):
    return f""".globl {name}
.p2align 8
.type {name},@function
{name}:"""

def kernel_desc(name, vgpr, sgpr, accum):
    return f""".p2align 6
.amdhsa_kernel {name}
  .amdhsa_next_free_vgpr {vgpr}
  .amdhsa_next_free_sgpr {sgpr}
  .amdhsa_accum_offset {accum}
  .amdhsa_group_segment_fixed_size 0
  .amdhsa_kernarg_size 112
  .amdhsa_user_sgpr_count 2
  .amdhsa_user_sgpr_kernarg_segment_ptr 1
  .amdhsa_system_sgpr_workgroup_id_x 1
.end_amdhsa_kernel"""

import os
PROF = bool(int(os.environ.get("PROF", "0")))
def stamp(a, i):
    if PROF:
        a(f"{'s_memtime' if os.environ.get('PROFCLK') else 's_memrealtime'} s[{76+2*i}:{77+2*i}]")
        a("s_waitcnt lgkmcnt(0)")

class Cnt:
    def __init__(self, a, name, maxn):
        self.a = a; self.name = name; self.q = []; self.maxn = maxn
    def issue(self, tag=None):
        self.q.append(tag)
    def wait(self, tag):
        if tag not in self.q: return
        idx = len(self.q) - 1 - self.q[::-1].index(tag)
        n = len(self.q) - 1 - idx
        n = min(n, self.maxn)
        self.a(f"s_waitcnt {self.name}({n})")
        self.q = self.q[len(self.q) - n:] if n else []
    def wait_all(self):
        self.a(f"s_waitcnt {self.name}(0)"); self.q = []
```

```python
from asmlib import *
from layout import *

N_B, N_A, N_PACK = 128, 640, 480
ID_A = 0; ID_B = N_A; K1_GRID = N_A + N_B
K1_LDS = 27648 + 8192
PK = 27648

def srd(a, r, base, off, size):
    if off:
        a(f"s_add_u32 s{r}, s{base}, {off:#x}")
        a(f"s_addc_u32 s{r+1}, s{base+1}, 0")
    else:
        a(f"s_mov_b32 s{r}, s{base}")
        a(f"s_mov_b32 s{r+1}, s{base+1}")
    a(f"s_mov_b32 s{r+2}, {size:#x}")
    a(f"s_mov_b32 s{r+3}, 0x20000")

def cmul(a, d, x, y):
    a(f"v_pk_mul_f32 v[{d}:{d+1}], v[{x}:{x+1}], v[{y}:{y+1}] op_sel:[0,0] op_sel_hi:[0,1]")
    a(f"v_pk_fma_f32 v[{d}:{d+1}], v[{x}:{x+1}], v[{y}:{y+1}], v[{d}:{d+1}] op_sel:[1,1,0] op_sel_hi:[1,0,1] neg_lo:[1,0,0]")

def interleave(*seqs):
    out = []; seqs = [list(s) for s in seqs]
    while any(seqs):
        for s in seqs:
            if s: out.append(s.pop(0))
    return out

class Rec:
    def __init__(self): self.l = []
    def __call__(self, t): self.l.append(t)

def wave_reduce_sum(a, regs):
    for ctl in ("row_shr:1", "row_shr:2", "row_shr:4", "row_shr:8"):
        for r in regs:
            a(f"v_add_f32_dpp v{r}, v{r}, v{r} {ctl} row_mask:0xf bank_mask:0xf bound_ctrl:0")
    for r in regs:
        a(f"v_add_f32_dpp v{r}, v{r}, v{r} row_bcast:15 row_mask:0xa bank_mask:0xf")
    for r in regs:
        a(f"v_add_f32_dpp v{r}, v{r}, v{r} row_bcast:31 row_mask:0xc bank_mask:0xf")

def transpose8(a, src, dst_fn):
    for c in range(8):
        d, cb = dst_fn(c)
        sel = "s90" if c % 2 == 0 else "s91"
        for i in range(4):
            a(f"v_perm_b32 v{d+i}, v{src[2*i+1] + c//2}, v{src[2*i] + c//2}, {sel}")
        cb()

def gen_k1(a):
    a.raw(kernel_header("prep_kernel"))
    a(f"s_cmp_ge_u32 s2, {K1_GRID}")
    a("s_cbranch_scc1 K1_END")
    a("s_load_dwordx16 s[16:31], s[0:1], 0")
    a("s_load_dwordx8 s[32:39], s[0:1], 64")
    a("s_load_dwordx2 s[40:41], s[0:1], 104")
    a("v_lshrrev_b32 v2, 6, v0")
    a("v_and_b32 v1, 63, v0")
    a("s_mov_b32 s90, 0x05040100")
    a("v_readfirstlane_b32 s3, v2")
    a("s_mov_b32 s91, 0x07060302")
    a(f"s_cmp_lt_u32 s2, {ID_B}")
    a("s_cbranch_scc1 K1_A")
    import os
    only = os.environ.get("K1_ONLY", "AB")
    for nm, fn in (("B", role_b), ("A", role_a)):
        if nm != "B": a.label("K1_" + nm)
        if nm not in only: a("s_endpgm")
        else: fn(a)
    a.label("K1_END")
    a("s_endpgm")

def pack13_ids(a):
    m24 = magic(24, 480, 16)
    a(f"s_mul_i32 s65, s2, {m24}")
    a("s_lshr_b32 s65, s65, 16")
    a("s_mul_i32 s66, s65, 24")
    a("s_sub_u32 s66, s2, s66")

def pack13_dma_setup(a):
    a("v_lshrrev_b32 v111, 3, v1")
    a("v_mul_u32_u24 v111, 3072, v111")
    a("v_and_b32 v112, 7, v1")
    a("v_lshl_add_u32 v111, v112, 4, v111")
    a("s_mul_i32 s67, s65, 98304")
    a("s_lshl_b32 s68, s66, 7")
    a("s_add_u32 s67, s67, s68")
    a("s_cmp_eq_u32 s3, 0")
    a("s_cselect_b32 s48, s32, s34")
    a("s_cselect_b32 s49, s33, s35")
    a("s_mov_b32 s50, 1966080")
    a("s_mov_b32 s51, 0x20000")
    a("s_lshl_b32 s68, s3, 12")
    a(f"s_add_u32 s68, s68, {PK}")

def pack13_dma(a):
    for r in range(4):
        a(f"s_add_u32 m0, s68, {r*1024}")
        a(f"s_add_u32 s69, s67, {r*8*3072}")
        a(f"buffer_load_dwordx4 v111, s[48:51], s69 offen lds")

def pack13_out_setup(a):
    a("v_lshrrev_b32 v6, 4, v1")
    a("v_bfe_u32 v7, v1, 2, 2")
    a("v_lshl_add_u32 v6, v6, 3, v7")
    a("v_lshlrev_b32 v6, 7, v6")
    a("v_and_b32 v7, 1, v1")
    a("v_lshl_add_u32 v6, v7, 12, v6")
    a("v_bfe_u32 v7, v1, 1, 1")
    a("v_lshl_add_u32 v6, v7, 3, v6")
    a("v_bfe_u32 v8, v1, 3, 1")
    a("v_lshlrev_b32 v8, 3, v8")
    a("v_bfe_u32 v9, v1, 1, 1")
    a("v_lshl_add_u32 v8, v9, 2, v8")
    a("v_and_b32 v9, 1, v1")
    a("v_add_u32 v8, v8, v9")
    a("v_bfe_u32 v9, v1, 2, 1")
    a("v_lshl_add_u32 v8, v9, 1, v8")
    a("v_lshrrev_b32 v9, 4, v1")
    a("v_lshlrev_b32 v9, 8, v9")
    a("v_lshl_add_u32 v8, v8, 4, v9")
    m3 = magic(3, 256, 16)
    a("s_lshl_b32 s11, s66, 3")
    a("s_mul_i32 s14, s65, 3072")
    for i in range(8):
        a(f"s_add_u32 s12, s11, {i}")
        a(f"s_mul_i32 s13, s12, {m3}")
        a("s_lshr_b32 s13, s13, 16")
        a("s_mul_i32 s13, s13, 58368")
        a("s_lshl_b32 s12, s12, 10")
        a("s_add_u32 s13, s13, s12")
        a(f"s_add_u32 s{56+i}, s13, s14")
    srd(a, 52, 40, W13_OFF, 3932160)

def pack13_out(a):
    for i in range(8):
        for h in range(2):
            a(f"ds_read_b64_tr_b16 v[{16+4*i+2*h}:{17+4*i+2*h}], v6 offset:{PK + h*512 + i*16}")
    for i in range(8):
        a(f"s_waitcnt lgkmcnt({14-2*i})")
        a(f"buffer_store_dwordx4 v[{16+4*i}:{19+4*i}], v8, s[52:55], s{56+i} offen")

def role_d(a):
    a(f"s_sub_u32 s4, s2, {ID_D}")
    a("s_lshl_b32 s4, s4, 2")
    a("s_add_u32 s4, s4, s3")
    m5 = magic(5, 240, 16); m3 = magic(3, 64, 16)
    a(f"s_mul_i32 s5, s4, {m5}")
    a("s_lshr_b32 s5, s5, 16")
    a("s_mul_i32 s6, s5, 5")
    a("s_sub_u32 s6, s4, s6")
    a(f"s_mul_i32 s7, s5, {m3}")
    a("s_lshr_b32 s7, s7, 16")
    a("s_mul_i32 s8, s7, 3")
    a("s_sub_u32 s8, s5, s8")
    a("v_lshrrev_b32 v3, 4, v1")
    a("v_and_b32 v4, 1, v3")
    a("v_lshrrev_b32 v3, 1, v3")
    a("v_lshl_add_u32 v5, v3, 3, v4")
    a("s_mul_i32 s9, s8, 24")
    a("s_lshl_b32 s10, s8, 3")
    a("s_add_u32 s10, s10, 72")
    a("s_add_u32 s11, s9, 16")
    a("v_mov_b32 v6, s11")
    a("v_mov_b32 v7, s10")
    a("v_cmp_eq_u32 vcc, 0, v3")
    a("v_add_u32 v5, s9, v5")
    a("v_cndmask_b32 v6, v7, v6, vcc")
    a("v_add_u32 v6, v6, v4")
    a("v_and_b32 v7, 15, v1")
    a("v_lshlrev_b32 v7, 4, v7")
    a("v_mul_u32_u24 v5, 1280, v5")
    a("v_mul_u32_u24 v6, 1280, v6")
    a("v_add_u32 v5, v5, v7")
    a("v_add_u32 v6, v6, v7")
    a("s_mul_i32 s12, s7, 122880")
    a("s_lshl_b32 s13, s6, 8")
    a("s_add_u32 s12, s12, s13")
    a("s_lshl_b32 s9, s3, 13")
    a("v_lshrrev_b32 v8, 4, v1")
    a("v_bfe_u32 v9, v1, 2, 2")
    a("v_lshl_add_u32 v8, v8, 3, v9")
    a("v_lshlrev_b32 v8, 8, v8")
    a("v_and_b32 v9, 3, v1")
    a("v_lshl_add_u32 v8, v9, 3, v8")
    a("v_add_u32 v8, s9, v8")
    a("v_lshlrev_b32 v9, 4, v1")
    a("s_lshl_b32 s10, s6, 3")
    a("s_mul_i32 s11, s5, 5120")
    for i in range(8):
        a(f"s_add_u32 s13, s10, {i}")
        a(f"s_mul_i32 s14, s13, {m5}")
        a("s_lshr_b32 s14, s14, 16")
        a(f"s_mul_i32 s14, s14, {245760 - 5120}")
        a("s_lshl_b32 s13, s13, 10")
        a("s_add_u32 s14, s14, s13")
        a(f"s_add_u32 s{60+i}, s14, s11")
    a("s_waitcnt lgkmcnt(0)")
    srd(a, 44, 36, 0, 1966080); srd(a, 48, 40, W2_OFF, 1966080)
    for i in range(8):
        a(f"s_add_u32 m0, s9, {i*1024}")
        a(f"s_add_u32 s13, s12, {(i>>1)*2*1280}")
        a(f"buffer_load_dwordx4 v{5 + (i&1)}, s[44:47], s13 offen lds")
    a("s_waitcnt vmcnt(0)")
    stamp(a, 1)
    for i in range(8):
        for h in range(2):
            a(f"ds_read_b64_tr_b16 v[{16+4*i+2*h}:{17+4*i+2*h}], v8 offset:{h*1024 + i*32}")
    for i in range(8):
        a(f"s_waitcnt lgkmcnt({14-2*i})")
        a(f"buffer_store_dwordx4 v[{16+4*i}:{19+4*i}], v9, s[48:51], s{60+i} offen")
    a("s_endpgm")

def role_b(a):
    a(f"s_sub_u32 s4, s2, {ID_B}")
    a("s_lshl_b32 s4, s4, 2")
    a("s_add_u32 s4, s4, s3")
    a("s_mul_i32 s5, s4, 5120")
    a("v_lshlrev_b32 v2, 2, v1")
    a("v_add_u32 v3, 2560, v2")
    a("s_lshr_b32 s8, s4, 2")
    a("s_waitcnt lgkmcnt(0)")
    srd(a, 44, 16, 0, SZ_X); srd(a, 48, 40, U_OFF, SZ_X)
    for i in range(4):
        for q in range(5):
            a(f"buffer_load_dword v{8+5*i+q}, v{2 if i < 2 else 3}, s[44:47], s5 offen offset:{(i%2)*1280 + q*256}")
    a("v_add_u32 v4, s8, v1")
    a("v_and_b32 v4, 3, v4")
    a("v_lshrrev_b32 v6, 2, v1")
    a("v_lshlrev_b32 v6, 15, v6")
    a("v_lshl_add_u32 v4, v4, 4, v6")
    a("s_lshl_b32 s9, s4, 6")
    for q in range(5):
        a(f"s_add_u32 s{60+q}, s9, {q*16*32768}")
    a(f"v_mov_b32 v7, {f2u(1.0/640):#x}")
    X = lambda i, q: 32 + 2 * (5 * i + q)
    for i in range(4):
        a(f"s_waitcnt vmcnt({15 - 5*i})")
        for q in range(5):
            a(f"v_lshlrev_b32 v{X(i,q)}, 16, v{8+5*i+q}")
            a(f"v_and_b32 v{X(i,q)+1}, 0xffff0000, v{8+5*i+q}")
        s = 72 + 2 * i
        a(f"v_pk_add_f32 v[{s}:{s+1}], v[{X(i,0)}:{X(i,0)+1}], v[{X(i,1)}:{X(i,1)+1}]")
        for q in range(2, 5):
            a(f"v_pk_add_f32 v[{s}:{s+1}], v[{s}:{s+1}], v[{X(i,q)}:{X(i,q)+1}]")
        a(f"v_add_f32 v{s}, v{s}, v{s+1}")
    stamp(a, 1)
    wave_reduce_sum(a, [72, 74, 76, 78])
    for i in range(4):
        a(f"v_readlane_b32 s{70+i}, v{72+2*i}, 63")
    for i in range(4):
        a(f"v_mul_f32 v{80+2*i}, s{70+i}, v7")
    for i in range(4):
        a(f"v_cvt_pk_bf16_f32 v{8+2*i}, v{80+2*i}, v{80+2*i}")
    for i in range(4):
        a(f"v_lshlrev_b32 v{8+2*i}, 16, v{8+2*i}")
    for i in range(4):
        a(f"v_sub_f32 v{81+2*i}, v{80+2*i}, v{8+2*i}")
    for i in range(4):
        m = 8 + 2 * i
        for q in range(5):
            x = X(i, q)
            a(f"v_pk_add_f32 v[{x}:{x+1}], v[{x}:{x+1}], v[{m}:{m+1}] op_sel_hi:[1,0] neg_lo:[0,1] neg_hi:[0,1]")
        s = 72 + 2 * i
        x = X(i, 0)
        a(f"v_pk_mul_f32 v[{s}:{s+1}], v[{x}:{x+1}], v[{x}:{x+1}]")
        for q in range(1, 5):
            x = X(i, q)
            a(f"v_pk_fma_f32 v[{s}:{s+1}], v[{x}:{x+1}], v[{x}:{x+1}], v[{s}:{s+1}]")
        a(f"v_add_f32 v{s}, v{s}, v{s+1}")
    wave_reduce_sum(a, [72, 74, 76, 78])
    for i in range(4):
        a(f"v_readlane_b32 s{70+i}, v{72+2*i}, 63")
    R = lambda i: 16 + 2 * i
    steps = [
        lambda i: f"v_mul_f32 v{R(i)}, s{70+i}, v7",
        lambda i: f"v_fma_f32 v{R(i)}, -v{81+2*i}, v{81+2*i}, v{R(i)}",
        lambda i: f"v_cvt_pk_bf16_f32 v{R(i)}, v{R(i)}, v{R(i)}",
        lambda i: f"v_lshlrev_b32 v{R(i)}, 16, v{R(i)}",
        lambda i: f"v_add_f32 v{R(i)}, {f2u(1e-5):#x}, v{R(i)}",
        lambda i: f"v_cvt_pk_bf16_f32 v{R(i)}, v{R(i)}, v{R(i)}",
        lambda i: f"v_lshlrev_b32 v{R(i)}, 16, v{R(i)}",
        lambda i: f"v_sqrt_f32 v{R(i)}, v{R(i)}",
        lambda i: f"v_cvt_pk_bf16_f32 v{R(i)}, v{R(i)}, v{R(i)}",
        lambda i: f"v_lshlrev_b32 v{R(i)}, 16, v{R(i)}",
        lambda i: f"v_rcp_f32 v{R(i)}, v{R(i)}",
    ]
    for st in steps:
        for i in range(4): a(st(i))
    stamp(a, 2)
    for q in range(5):
        for i in range(4):
            x = X(i, q)
            a(f"v_pk_mul_f32 v[{x}:{x+1}], v[{x}:{x+1}], v[{R(i)}:{R(i)+1}] op_sel_hi:[1,0]")
        for e in range(2):
            d = 88 + 4 * (q % 2) + 2 * e
            a(f"v_cvt_pk_bf16_f32 v{d}, v{X(0,q)+e}, v{X(1,q)+e}")
            a(f"v_cvt_pk_bf16_f32 v{d+1}, v{X(2,q)+e}, v{X(3,q)+e}")
        d = 88 + 4 * (q % 2)
        a(f"buffer_store_dwordx4 v[{d}:{d+3}], v4, s[48:51], s{60+q} offen")
    a("s_endpgm")

RS = 4352; ROWP = 272; WREG = 2 * RS; TAB = 3 * WREG

def role_a(a):
    a(f"s_sub_u32 s4, s2, {ID_A}")
    a("s_mul_i32 s5, s4, 384")
    a("v_lshlrev_b32 v2, 1, v0")
    a("v_add_u32 v2, s5, v2")
    a("s_lshr_b32 s6, s4, 1")
    a("s_lshl_b32 s6, s6, 2")
    a("s_waitcnt lgkmcnt(0)")
    stamp(a, 0)
    a("s_load_dword s7, s[26:27], s6")
    srd(a, 44, 40, K_OFF, SZ_X)
    a("s_cmp_eq_u32 s3, 3")
    a("s_cbranch_scc1 K1_A_IDX")
    a("global_load_ushort v10, v2, s[18:19]")
    a("global_load_ushort v11, v2, s[20:21]")
    a("global_load_ushort v12, v2, s[22:23]")
    a("global_load_ushort v13, v2, s[24:25]")
    a.label("K1_A_IDX")
    a("v_lshlrev_b32 v3, 3, v0")
    a("v_cvt_f32_u32 v4, v3")
    a("v_cmp_gt_u32 vcc, 16, v0")
    for p in range(4):
        a(f"v_add_f32 v5, {f2u(float(2*p)):#x}, v4")
        a(f"v_add_f32 v6, {f2u(float(2*p+1)):#x}, v4")
        a("v_cvt_pk_bf16_f32 v5, v5, v6")
        a("v_subrev_u32 v5, 0x42804280, v5")
        a("v_and_b32 v6, 0xffff, v5")
        a("v_lshrrev_b32 v5, 16, v5")
        a(f"v_add_u32 v7, {2*p}, v3")
        a(f"v_add_u32 v8, {2*p+1}, v3")
        a("v_cndmask_b32 v6, v6, v7, vcc")
        a("v_cndmask_b32 v5, v5, v8, vcc")
        a(f"v_lshlrev_b32 v{100+2*p}, 1, v6")
        a(f"v_lshlrev_b32 v{101+2*p}, 1, v5")
    a("v_lshlrev_b32 v108, 4, v0")
    a("s_lshl_b32 s10, s4, 12")
    pack13_ids(a)
    a("s_cmp_lg_u32 s3, 3")
    a("s_cbranch_scc1 K1_A_MAIN")
    pack13_out_setup(a)
    a("s_barrier")
    a(f"s_cmp_ge_u32 s2, {N_PACK}")
    a("s_cbranch_scc1 K1_A_BAR2")
    pack13_out(a)
    a("s_branch K1_A_BAR2")
    a.label("K1_A_MAIN")
    pack13_dma_setup(a)
    a(f"s_mul_i32 s8, s3, {WREG}")
    a("v_lshlrev_b32 v3, 2, v1")
    a("v_add_u32 v3, s8, v3")
    a("v_and_b32 v4, 15, v1")
    a(f"v_mul_u32_u24 v4, {ROWP}, v4")
    a("v_lshrrev_b32 v5, 4, v1")
    a("v_lshl_add_u32 v4, v5, 4, v4")
    a("v_add_u32 v4, s8, v4")
    a("v_lshlrev_b32 v9, 4, v1")
    a("v_add_u32 v109, s8, v9")
    a("s_waitcnt lgkmcnt(0)")
    a("s_lshl_b32 s9, s7, 16")
    a("s_and_b32 s7, s7, 0xffff0000")
    a("s_bitcmp1_b32 s4, 0")
    a("s_cselect_b32 s7, s7, s9")
    a(f"v_mov_b32 v15, {f2u(LOG2E):#x}")
    a("v_mul_f32 v14, s7, v15")
    a("v_exp_f32 v14, v14")
    a("v_cvt_pk_bf16_f32 v14, v14, v14")
    a("v_lshlrev_b32 v14, 16, v14")
    a("s_waitcnt vmcnt(0)")
    stamp(a, 1)
    a(f"s_cmp_ge_u32 s2, {N_PACK}")
    a("s_cbranch_scc1 K1_A_NODMA")
    a("s_cmp_eq_u32 s3, 2")
    a("s_cbranch_scc1 K1_A_NODMA")
    pack13_dma(a)
    a.label("K1_A_NODMA")
    for r in (10, 11, 12, 13):
        a(f"v_lshlrev_b32 v{r}, 16, v{r}")
    a("v_mul_f32 v10, v10, v15")
    a("v_exp_f32 v10, v10")
    a("v_mul_f32 v11, v11, v14")
    a("v_cvt_pk_bf16_f32 v10, v10, v10")
    a("v_lshlrev_b32 v10, 16, v10")
    a("v_mul_f32 v10, v10, v14")
    a("v_mul_f32 v10, v10, v15")
    a(f"v_mul_f32 v11, {f2u(INV2PI):#x}, v11")
    a("v_add_f32 v14, v14, v14")
    Q0 = 40
    a(f"v_mul_f32 v{Q0}, v12, v14")
    a(f"v_mul_f32 v{Q0+1}, v13, v14")
    for k, p in enumerate((1.0, 8.0, 128.0)):
        a(f"v_mul_f32 v{24+k}, {f2u(-p):#x}, v10")
        a(f"v_mul_f32 v{28+k}, {f2u(p):#x}, v11")
    for k in range(3):
        a(f"v_exp_f32 v{24+k}, v{24+k}")
        a(f"v_fract_f32 v{28+k}, v{28+k}")
    for k in range(3):
        a(f"v_cos_f32 v{16+2*k}, v{28+k}")
        a(f"v_sin_f32 v{17+2*k}, v{28+k}")
    for k in range(3):
        a(f"v_mul_f32 v{16+2*k}, v{16+2*k}, v{24+k}")
        a(f"v_mul_f32 v{17+2*k}, v{17+2*k}, v{24+k}")
    W1, W8, W128 = 16, 18, 20
    tmp = [24, 25, 26, 27]
    tctr = [0]
    def put(r, reg, row, val, neg=False):
        t = tmp[tctr[0] % 4]; tctr[0] += 1
        r(f"v_cvt_pk_bf16_f32 v{t}, v{val}, {'-' if neg else ''}v{val+1}")
        r(f"ds_write_b32 v3, v{t} offset:{reg*RS + row*ROWP}")
    rb = Rec()
    rb("v_mov_b32 v27, 0x3f80"); rb(f"ds_write_b32 v3, v27 offset:0")
    W16 = 22
    cmul(rb, W16, W8, W8)
    put(rb, 0, 1, W8, True); put(rb, 0, 2, W16, True)
    ring = {1: W8, 2: W16}
    slots = [28, 30, 32, 34]
    for b in range(3, 16):
        d = slots[b % 4]
        cmul(rb, d, ring[b-2], W16); ring[b] = d
        put(rb, 0, b, d, True)
    wc = {1: W1}
    rw = Rec()
    for c, (x, y) in ((2, (1, 1)), (3, (2, 1)), (4, (2, 2)), (5, (4, 1)), (6, (4, 2)), (7, (4, 3))):
        wc[c] = 72 + 2 * (c - 2); cmul(rw, wc[c], wc[x], wc[y])
    rq = Rec()
    Q = {0: Q0}
    for q in range(1, 17):
        Q[q] = Q0 + 2 * q if q < 16 else 84
        cmul(rq, Q[q], Q[q-1], W128)
    for t in interleave(rb.l, rw.l + rq.l): a(t)
    pr = [28, 30, 32, 34]; pc = [0]
    def prod(reg, row, x, y):
        if y is None:
            put(a, reg, row, x); return
        d = pr[pc[0] % 4]; pc[0] += 1
        return (d, x, y, reg, row)
    def run(jobs):
        jobs = [j for j in jobs if j]
        for i, j in enumerate(jobs):
            cmul(a, j[0], j[1], j[2])
            if i: p = jobs[i-1]; put(a, p[3], p[4], p[0])
        p = jobs[-1]; put(a, p[3], p[4], p[0])
    run([prod(1, 8*ap + c, Q[ap], wc[c] if c else None) for ap in range(2) for c in range(8)])
    FB, F0, F1, F2 = 86, 110, 40, 72
    FB = 110
    FA = 86
    FA0 = 8
    return_regs = None
    for s in range(4):
        a(f"ds_read_b128 v[{FB+4*s}:{FB+4*s+3}], v4 offset:{s*64}")
    jobs = []
    for ap in range(2):
        for c in range(4):
            jobs.append(prod(0, 4*ap + c, Q[2+ap], wc[2*c] if c else None))
    for ap in range(4):
        for c in range(2):
            jobs.append(prod(0, 8 + 2*ap + c, Q[4+ap], wc[4] if c else None))
    run(jobs)
    FT0 = 40; FT1 = 8
    for s in range(4):
        a(f"ds_read_b128 v[{FT0+4*s}:{FT0+4*s+3}], v4 offset:{RS + s*64}")
    for s in range(4):
        a(f"ds_read_b128 v[{FT1+4*s}:{FT1+4*s+3}], v4 offset:{s*64}")
    for q in range(8, 17):
        put(a, 1, q - 8, Q[q])
    FT2 = 56
    for s in range(4):
        a(f"ds_read_b128 v[{FT2+4*s}:{FT2+4*s+3}], v4 offset:{RS + s*64}")
    ACC = 86
    a("s_waitcnt lgkmcnt(0)")
    for s in range(4):
        for t, F in enumerate((FT0, FT1, FT2)):
            c = f"v[{ACC+4*t}:{ACC+4*t+3}]"
            a(f"v_mfma_f32_16x16x32_bf16 {c}, v[{F+4*s}:{F+4*s+3}], v[{FB+4*s}:{FB+4*s+3}], {c if s else 0}")
    for t in range(3):
        a(f"ds_write_b128 v109, v[{ACC+4*t}:{ACC+4*t+3}] offset:{t*1024}")
    a("s_waitcnt vmcnt(0) lgkmcnt(0)")
    stamp(a, 2)
    a("s_barrier")
    a("s_lshl_b32 s8, s3, 10")
    a("v_lshlrev_b32 v5, 4, v1")
    a("v_add_u32 v5, s8, v5")
    for w in range(3):
        a(f"ds_read_b128 v[{8+4*w}:{11+4*w}], v5 offset:{w*WREG}")
    a("v_and_b32 v24, 15, v1")
    a("v_lshrrev_b32 v25, 4, v1")
    a("s_waitcnt lgkmcnt(0)")
    for j in (0, 2):
        a(f"v_pk_add_f32 v[{8+j}:{9+j}], v[{8+j}:{9+j}], v[{12+j}:{13+j}]")
    for j in (0, 2):
        a(f"v_pk_add_f32 v[{8+j}:{9+j}], v[{8+j}:{9+j}], v[{16+j}:{17+j}]")
    a("v_cvt_pk_bf16_f32 v20, v8, v9")
    a("v_cvt_pk_bf16_f32 v21, v10, v11")
    a("s_cmp_eq_u32 s3, 1")
    a("s_cbranch_scc1 K1_A_T1")
    a("s_cmp_eq_u32 s3, 2")
    a("s_cbranch_scc1 K1_A_T2")
    a("v_lshrrev_b32 v26, 1, v25")
    a("v_lshlrev_b32 v26, 8, v26")
    a("v_and_b32 v27, 1, v25")
    a("v_lshl_add_u32 v26, v27, 3, v26")
    a("v_lshl_add_u32 v26, v24, 4, v26")
    a(f"ds_write_b64 v26, v[20:21] offset:{TAB}")
    a("s_branch K1_A_W")
    a.label("K1_A_T1")
    a("v_cmp_gt_u32 vcc, 2, v25")
    a("v_lshlrev_b32 v26, 3, v24")
    a("v_lshlrev_b32 v27, 2, v24")
    a("v_mov_b32 v28, 64")
    a("v_cndmask_b32 v26, v27, v26, vcc")
    a("v_cndmask_b32 v28, v28, 4, vcc")
    a("v_lshl_add_u32 v26, v25, 7, v26")
    a("v_add_u32 v28, v28, v26")
    a(f"ds_write_b32 v26, v20 offset:{TAB + 512}")
    a(f"ds_write_b32 v28, v21 offset:{TAB + 512}")
    a("s_branch K1_A_W")
    a.label("K1_A_T2")
    a("v_lshlrev_b32 v26, 1, v24")
    a("v_lshl_add_u32 v26, v25, 7, v26")
    a(f"ds_write_b16 v26, v20 offset:{TAB + 1024}")
    a(f"ds_write_b16_d16_hi v26, v20 offset:{TAB + 1024 + 32}")
    a(f"ds_write_b16 v26, v21 offset:{TAB + 1024 + 64}")
    a(f"ds_write_b16_d16_hi v26, v21 offset:{TAB + 1024 + 96}")
    a.label("K1_A_W")
    a("s_waitcnt lgkmcnt(0)")
    a.label("K1_A_BAR2")
    a("s_barrier")
    stamp(a, 3)
    for p in range(4):
        a(f"ds_read_u16 v{8+p}, v{100+2*p} offset:{TAB}")
        a(f"ds_read_u16_d16_hi v{12+p}, v{101+2*p} offset:{TAB}")
    a("s_waitcnt lgkmcnt(0)")
    for p in range(4):
        a(f"v_or_b32 v{8+p}, v{8+p}, v{12+p}")
    a("buffer_store_dwordx4 v[8:11], v108, s[44:47], s10 offen")
    a("s_endpgm")
```

```python
from asmlib import *
from layout import *
from k1 import srd
import k1

PARTS = [(0, 16), (16, 25), (25, 32)]
N_CONV = 240; ID_CS = 240; K2_GRID = 256; K2_BLOCK = 576
UB = 0; UPAD = 2048; KB = UPAD + 32768; KP = 4416
PKB = KB + 8 * KP
K2_LDS = PKB + 8192
K2_VGPR = 160

def gen_k2(a):
    a.raw(kernel_header("conv_kernel"))
    a(f"s_cmp_ge_u32 s2, {K2_GRID}")
    a("s_cbranch_scc1 K2_END")
    a("s_load_dwordx2 s[16:17], s[0:1], 0")
    a("s_load_dwordx2 s[28:29], s[0:1], 48")
    a("s_load_dwordx2 s[36:37], s[0:1], 80")
    a("s_load_dwordx2 s[40:41], s[0:1], 104")
    a("v_lshrrev_b32 v2, 6, v0")
    a("v_and_b32 v1, 63, v0")
    a("v_readfirstlane_b32 s3, v2")
    a(f"s_cmp_ge_u32 s2, {ID_CS}")
    a("s_cbranch_scc1 K2_CS")
    a("s_cmp_eq_u32 s3, 8")
    a("s_cbranch_scc1 K2_W2")
    a("s_cmp_ge_u32 s2, 80")
    a("s_cselect_b32 s7, 1, 0")
    a("s_cmp_ge_u32 s2, 160")
    a("s_cselect_b32 s6, 2, s7")
    a("s_mul_i32 s5, s6, 80")
    a("s_sub_u32 s4, s2, s5")
    a("s_and_b32 s5, s4, 7")
    a("s_mul_i32 s5, s5, 10")
    a("s_lshr_b32 s4, s4, 3")
    a("s_add_u32 s4, s4, s5")
    a("v_lshlrev_b32 v2, 4, v1")
    a("v_lshrrev_b32 v3, 4, v1")
    a("v_bfe_u32 v4, v1, 2, 2")
    a("v_and_b32 v5, 3, v1")
    a(f"s_mul_i32 s8, s3, {KP}")
    a(f"s_add_u32 s8, s8, {KB}")
    a("s_lshl_b32 s9, s4, 4")
    a("s_lshl_b32 s10, s4, 3")
    a("s_add_u32 s10, s10, s3")
    a("s_lshl_b32 s10, s10, 12")
    a("s_lshl_b32 s11, s4, 15")
    a("s_lshl_b32 s12, s3, 10")
    a("s_add_u32 s11, s11, s12")
    a(f"s_add_u32 s12, s12, {UB + UPAD}")
    a("s_add_u32 m0, s8, 128")
    a("s_waitcnt lgkmcnt(0)")
    srd(a, 44, 40, K_OFF, SZ_X); srd(a, 48, 40, U_OFF, SZ_X)
    a("s_load_dwordx4 s[60:63], s[28:29], s9")
    a("s_cmp_eq_u32 s6, 1")
    a("s_cbranch_scc1 K2_P1")
    a("s_cmp_eq_u32 s6, 2")
    a("s_cbranch_scc1 K2_P2")
    for p in range(3):
        if p: a.label(f"K2_P{p}")
        conv_part(a, p)
    a.label("K2_CS"); role_cs(a)
    a.label("K2_W2"); role_w2(a)
    a.label("K2_END")
    a("s_endpgm")

def conv_part(a, p):
    Ts, Te = PARTS[p]; Tf = max(Ts - 1, 0)
    Qmax = (Te - 1) // 2
    nK = -(-(Qmax + 1) * 256 // 1024); nU = -(-Te // 8); nX = -(-(Te - Ts) // 8)
    vm = Cnt(a, "vmcnt", 63); ds = Cnt(a, "lgkmcnt", 15)
    for i in range(nK):
        a(f"buffer_load_dwordx4 v2, s[44:47], s10 offen offset:{i*1024} lds"); vm.issue("K")
    for k in range(nU):
        a(f"s_add_u32 m0, s12, {k*8192}")
        a(f"s_add_u32 s13, s11, {k*8192}")
        a(f"buffer_load_dwordx4 v2, s[48:51], s13 offen lds"); vm.issue("U")
    srd(a, 52, 16, 0, SZ_X); srd(a, 56, 40, H_OFF, SZ_X)
    XR = 8
    a("v_mul_u32_u24 v6, 1280, v1")
    a("s_mul_i32 s13, s3, 81920")
    a("s_add_u32 s13, s13, s9")
    for i in range(nX):
        a(f"s_add_u32 s14, s13, {(Ts + 8*i) * 81920}")
        a(f"buffer_load_dwordx4 v[{XR+4*i}:{XR+4*i+3}], v6, s[52:55], s14 offen"); vm.issue("X")
    a("v_mov_b32 v7, 0")
    a("v_and_b32 v6, 31, v1")
    a("v_lshlrev_b32 v6, 2, v6")
    a("v_add_u32 v6, s8, v6")
    a("ds_write_b32 v6, v7")
    a("v_lshlrev_b32 v6, 2, v0")
    a(f"ds_write_b32 v6, v7 offset:{UB}")
    a("v_lshlrev_b32 v16, 6, v3")
    a("v_lshl_add_u32 v16, v4, 3, v16")
    a("v_lshl_add_u32 v16, v5, 5, v16")
    a("v_add_u32 v16, s8, v16")
    a("s_lshr_b32 s14, s3, 1")
    a("s_and_b32 s15, s3, 1")
    a("s_lshl_b32 s15, s15, 3")
    for h in range(2):
        a(f"v_add_u32 v6, {44 - 4*h}, v5")
        a("v_sub_u32 v6, v6, v4")
        a("v_lshlrev_b32 v7, 3, v3")
        a("v_sub_u32 v6, v6, v7")
        a("v_lshrrev_b32 v7, 2, v6")
        a("v_add_u32 v7, s14, v7")
        a("v_and_b32 v7, 3, v7")
        a("v_lshlrev_b32 v6, 6, v6")
        a("v_lshl_add_u32 v6, v7, 4, v6")
        a(f"v_add_u32 v{17+h}, s15, v6")
    a("v_lshlrev_b32 v19, 1, v1")
    a("v_add_u32 v19, s8, v19")
    a("s_mov_b32 s70, 0"); a("s_mov_b32 s71, 0x80000000")
    a("s_mov_b32 s72, 0"); a("s_mov_b32 s73, 0xc0000000")
    a("s_mov_b32 s74, 0"); a("s_mov_b32 s75, 0xe0000000")
    FR = 24; GR = FR + 4 * (Qmax + 1); NG = 8; AR = GR + 4 * NG
    TR = 20
    acc = lambda T: AR + 4 * (T - Tf)
    assert acc(Te - 1) + 3 < K2_VGPR - 8
    T2 = K2_VGPR - 8
    vm.wait("K")
    for Q in range(Qmax, -1, -1):
        for h in range(2):
            a(f"ds_read_b64_tr_b16 v[{FR+4*Q+2*h}:{FR+4*Q+2*h+1}], v16 offset:{32 + 256*Q + 32*h}"); ds.issue(("F", Q))
    vm.wait("U")
    stamp(a, 0)
    a("s_waitcnt lgkmcnt(0)"); ds.q = []
    a("s_barrier")
    stamp(a, 1)
    def gread(d):
        g = GR + 4 * (d % NG)
        for h in range(2):
            a(f"ds_read_b64_tr_b16 v[{g+2*h}:{g+2*h+1}], v{17+h} offset:{UB + 1024*d}"); ds.issue(("G", d))
    PD = 6
    for d in range(min(PD, Te)): gread(d)
    started = set()
    pend = []
    def combine(T):
        t = T2 + 4 * (T % 2); D = acc(T)
        out = []
        for e, m in ((3, 74), (2, 72), (1, 70)):
            prev = f"v{acc(T-1)+e}" if T > 0 else "0"
            out.append(f"v_cndmask_b32 v{t+e}, v{D+e}, {prev}, s[{m}:{m+1}]")
        out.append(f"v_add_f32_dpp v{t+2}, v{t+3}, v{t+2} wave_ror:1 row_mask:0xf bank_mask:0xf")
        out.append(f"v_add_f32_dpp v{t+1}, v{t+2}, v{t+1} wave_ror:1 row_mask:0xf bank_mask:0xf")
        out.append(f"v_add_f32_dpp v{t}, v{t+1}, v{D} wave_ror:1 row_mask:0xf bank_mask:0xf")
        out.append(f"v_cvt_pk_bf16_f32 v{t}, v{t}, v{t}")
        out.append(f"ds_write_b16 v19, v{t} offset:{128 + (T-Ts)*128}")
        return out
    def side(n):
        for _ in range(n):
            if pend:
                t = pend.pop(0); a(t)
                if t.startswith("ds_"): ds.issue("Y")
    for d in range(Te):
        ds.wait(("G", d))
        g = GR + 4 * (d % NG)
        Ts_here = [T for T in range(max(d, Tf), Te) if (T - d) % 2 == 0]
        for T in Ts_here:
            Q = (T - d) // 2
            c = f"v[{acc(T)}:{acc(T)+3}]"
            a(f"v_mfma_f32_16x16x32_bf16 {c}, v[{FR+4*Q}:{FR+4*Q+3}], v[{g}:{g+3}], {c if T in started else 0}")
            started.add(T)
            side(2)
        if d + PD < Te: gread(d + PD)
        if d - 1 >= Ts: pend += combine(d - 1)
    pend += combine(Te - 1)
    side(100)
    a("s_waitcnt lgkmcnt(0)")
    stamp(a, 2)
    a("s_barrier")
    for i in range(4):
        a(f"s_lshl_b32 s{64+2*i}, s{60+i}, 16")
        a(f"s_and_b32 s{65+2*i}, s{60+i}, 0xffff0000")
    a(f"v_mul_u32_u24 v16, {KP}, v4")
    a("v_lshl_add_u32 v16, v3, 5, v16")
    a("v_lshl_add_u32 v16, v5, 3, v16")
    a("s_lshl_b32 s13, s3, 7")
    a("v_add_u32 v16, s13, v16")
    a("v_lshl_add_u32 v6, v3, 2, v5")
    a("v_lshlrev_b32 v6, 6, v6")
    a("v_and_b32 v7, 1, v4")
    a("v_lshl_add_u32 v6, v7, 3, v6")
    a("v_add_u32 v6, s12, v6")
    a("v_lshrrev_b32 v7, 1, v4")
    a("v_add_u32 v7, v7, v3")
    for h in range(2):
        a(f"v_add_u32 v19, {2*h}, v7")
        a("v_and_b32 v19, 3, v19")
        a(f"v_lshl_add_u32 v{17+h}, v19, 4, v6")
    a("v_mul_u32_u24 v19, 20480, v3")
    a("v_and_b32 v6, 15, v1")
    a("v_lshl_add_u32 v19, v6, 4, v19")
    a("s_mul_i32 s13, s3, 81920")
    a("s_lshl_b32 s14, s4, 8")
    a("s_add_u32 s13, s13, s14")
    for i in range(nX):
        lim = Te - Ts - 8 * i
        if lim < 8:
            a(f"s_cmp_ge_u32 s3, {lim}")
            a("s_cbranch_scc1 K2_END")
        Y = 24 + 32 * i; U = Y + 4; A = Y + 8; B = Y + 16; O = Y + 24
        for h in range(2):
            a(f"ds_read_b64_tr_b16 v[{Y+2*h}:{Y+2*h+1}], v16 offset:{KB + 128 + h*4*KP + i*1024}")
        for h in range(2):
            a(f"ds_read_b64_tr_b16 v[{U+2*h}:{U+2*h+1}], v{17+h} offset:{(Ts + 8*i)*1024}")
        a(f"s_add_u32 s14, s13, {(Ts + 8*i) * 81920}")
        a(f"s_waitcnt vmcnt({nX-1-i + i})")
        X = XR + 4 * i
        for q in range(4):
            a(f"v_lshlrev_b32 v{B+2*q}, 16, v{X+q}")
            a(f"v_and_b32 v{B+2*q+1}, 0xffff0000, v{X+q}")
        a("s_waitcnt lgkmcnt(2)")
        for q in range(4):
            a(f"v_lshlrev_b32 v{A+2*q}, 16, v{Y+q}")
            a(f"v_and_b32 v{A+2*q+1}, 0xffff0000, v{Y+q}")
        for q in range(4):
            a(f"v_pk_add_f32 v[{B+2*q}:{B+2*q+1}], v[{B+2*q}:{B+2*q+1}], v[{A+2*q}:{A+2*q+1}]")
        a("s_waitcnt lgkmcnt(0)")
        for q in range(4):
            a(f"v_lshlrev_b32 v{A+2*q}, 16, v{U+q}")
            a(f"v_and_b32 v{A+2*q+1}, 0xffff0000, v{U+q}")
        for q in range(4):
            a(f"v_pk_fma_f32 v[{B+2*q}:{B+2*q+1}], v[{A+2*q}:{A+2*q+1}], s[{64+2*q}:{65+2*q}], v[{B+2*q}:{B+2*q+1}]")
        for q in range(4):
            a(f"v_cvt_pk_bf16_f32 v{O+q}, v{B+2*q}, v{B+2*q+1}")
        a(f"buffer_store_dwordx4 v[{O}:{O+3}], v19, s[56:59], s14 offen")
    a("s_endpgm")

def role_cs(a):
    a("s_cmp_ge_u32 s3, 8")
    a("s_cbranch_scc1 K2_END")
    a(f"s_sub_u32 s4, s2, {ID_CS}")
    a("s_lshl_b32 s4, s4, 2")
    a("s_and_b32 s7, s3, 3")
    a("s_add_u32 s4, s4, s7")
    a("s_lshr_b32 s8, s3, 2")
    a("s_mul_i32 s5, s4, 61440")
    a("s_mul_i32 s6, s8, 30720")
    a("s_add_u32 s5, s5, s6")
    a("v_lshlrev_b32 v2, 4, v1")
    for i in range(4): a(f"v_mov_b32 v{4+i}, 0x3f803f80")
    a("s_waitcnt lgkmcnt(0)")
    srd(a, 44, 40, W13_OFF, 3932160); srd(a, 48, 40, CS_OFF, 64*48*4)
    NB = 30
    for i in range(NB):
        if i % 4 == 0: a(f"s_add_u32 s6, s5, {i*1024}")
        a(f"buffer_load_dwordx4 v[{24+4*i}:{27+4*i}], v2, s[44:47], s6 offen offset:{(i%4)*1024}")
    a("s_mul_i32 s9, s7, 3072")
    a("v_add_u32 v2, s9, v2")
    for i in range(NB):
        t = i % 3
        a(f"s_waitcnt vmcnt({NB-1-i})")
        c = f"v[{8+4*t}:{11+4*t}]"
        a(f"v_mfma_f32_16x16x32_bf16 {c}, v[{24+4*i}:{27+4*i}], v[4:7], {c if i >= 3 else 0}")
    a("s_cmp_eq_u32 s8, 0")
    a("s_cbranch_scc1 K2_CS_LO")
    for t in range(3):
        a(f"ds_write_b128 v2, v[{8+4*t}:{11+4*t}] offset:{t*1024}")
    a("s_waitcnt lgkmcnt(0)")
    a("s_barrier")
    a("s_endpgm")
    a.label("K2_CS_LO")
    a("s_barrier")
    for t in range(3):
        a(f"ds_read_b128 v[{24+4*t}:{27+4*t}], v2 offset:{t*1024}")
    a("v_lshrrev_b32 v3, 4, v1")
    a("v_lshlrev_b32 v3, 4, v3")
    a("s_mul_i32 s5, s4, 192")
    a("s_mov_b32 s6, 0x00010001")
    a("s_mov_b32 s7, 0x00010001")
    a("s_waitcnt lgkmcnt(0)")
    for i in range(6):
        a(f"v_pk_add_f32 v[{8+2*i}:{9+2*i}], v[{8+2*i}:{9+2*i}], v[{24+2*i}:{25+2*i}]")
    a("s_mov_b64 exec, s[6:7]")
    for t in range(3):
        a(f"buffer_store_dwordx4 v[{8+4*t}:{11+4*t}], v3, s[48:51], s5 offen offset:{t*64}")
    a("s_endpgm")

def role_w2(a):
    a("s_mov_b32 s4, s2")
    m5 = magic(5, 240, 16); m3 = magic(3, 64, 16)
    a(f"s_mul_i32 s5, s4, {m5}")
    a("s_lshr_b32 s5, s5, 16")
    a("s_mul_i32 s6, s5, 5")
    a("s_sub_u32 s6, s4, s6")
    a(f"s_mul_i32 s7, s5, {m3}")
    a("s_lshr_b32 s7, s7, 16")
    a("s_mul_i32 s8, s7, 3")
    a("s_sub_u32 s8, s5, s8")
    a("v_lshrrev_b32 v3, 4, v1")
    a("v_and_b32 v4, 1, v3")
    a("v_lshrrev_b32 v3, 1, v3")
    a("v_lshl_add_u32 v5, v3, 3, v4")
    a("s_mul_i32 s9, s8, 24")
    a("s_lshl_b32 s10, s8, 3")
    a("s_add_u32 s10, s10, 72")
    a("s_add_u32 s11, s9, 16")
    a("v_mov_b32 v6, s11")
    a("v_mov_b32 v7, s10")
    a("v_cmp_eq_u32 vcc, 0, v3")
    a("v_add_u32 v5, s9, v5")
    a("v_cndmask_b32 v6, v7, v6, vcc")
    a("v_add_u32 v6, v6, v4")
    a("v_and_b32 v7, 15, v1")
    a("v_lshlrev_b32 v7, 4, v7")
    a("v_mul_u32_u24 v5, 1280, v5")
    a("v_mul_u32_u24 v6, 1280, v6")
    a("v_add_u32 v5, v5, v7")
    a("v_add_u32 v6, v6, v7")
    a("s_mul_i32 s12, s7, 122880")
    a("s_lshl_b32 s13, s6, 8")
    a("s_add_u32 s12, s12, s13")
    a(f"s_mov_b32 s9, {PKB}")
    a("v_lshrrev_b32 v8, 4, v1")
    a("v_bfe_u32 v9, v1, 2, 2")
    a("v_lshl_add_u32 v8, v8, 3, v9")
    a("v_lshlrev_b32 v8, 8, v8")
    a("v_and_b32 v9, 3, v1")
    a("v_lshl_add_u32 v8, v9, 3, v8")
    a("v_add_u32 v8, s9, v8")
    a("v_lshlrev_b32 v9, 4, v1")
    a("s_lshl_b32 s10, s6, 3")
    a("s_mul_i32 s11, s5, 5120")
    for i in range(8):
        a(f"s_add_u32 s13, s10, {i}")
        a(f"s_mul_i32 s14, s13, {m5}")
        a("s_lshr_b32 s14, s14, 16")
        a(f"s_mul_i32 s14, s14, {245760 - 5120}")
        a("s_lshl_b32 s13, s13, 10")
        a("s_add_u32 s14, s14, s13")
        a(f"s_add_u32 s{60+i}, s14, s11")
    a("s_waitcnt lgkmcnt(0)")
    srd(a, 44, 36, 0, 1966080); srd(a, 48, 40, W2_OFF, 1966080)
    for i in range(8):
        a(f"s_add_u32 m0, s9, {i*1024}")
        a(f"s_add_u32 s13, s12, {(i>>1)*2*1280}")
        a(f"buffer_load_dwordx4 v{5 + (i&1)}, s[44:47], s13 offen lds")
    a("s_barrier")
    a("s_waitcnt vmcnt(0)")
    for i in range(8):
        for h in range(2):
            a(f"ds_read_b64_tr_b16 v[{16+4*i+2*h}:{17+4*i+2*h}], v8 offset:{h*1024 + i*32}")
    for i in range(8):
        a(f"s_waitcnt lgkmcnt({14-2*i})")
        a(f"buffer_store_dwordx4 v[{16+4*i}:{19+4*i}], v9, s[48:51], s{60+i} offen")
    a("s_endpgm")
```

```python
from asmlib import *
from layout import *
from k1 import srd
import os
K3_LDS = 163840
STATS_INLOOP = int(os.environ.get("K3_STATS", "1"))

def gen_k3(a):
    a.raw(kernel_header("gemm1_kernel"))
    a("s_cmp_ge_u32 s2, 256")
    a("s_cbranch_scc1 K3_END")
    a("s_load_dwordx2 s[40:41], s[0:1], 104")
    a("v_lshrrev_b32 v2, 6, v0")
    a("v_and_b32 v1, 63, v0")
    a("v_readfirstlane_b32 s3, v2")
    a("v_lshlrev_b32 v2, 4, v1")
    a("s_bfe_u32 s4, s2, 0x20001")
    a("s_lshl_b32 s4, s4, 2")
    a("s_bfe_u32 s5, s2, 0x20003")
    a("s_add_u32 s4, s4, s5")
    a("s_and_b32 s5, s2, 1")
    a("s_lshl_b32 s5, s5, 3")
    a("s_lshr_b32 s6, s2, 5")
    a("s_add_u32 s5, s5, s6")
    a("s_mul_i32 s6, s3, 40960")
    a("s_mul_i32 s7, s4, 163840")
    a("s_add_u32 s7, s7, s6")
    a("s_lshl_b32 s8, s5, 2")
    a("s_add_u32 s8, s8, s3")
    a("s_mul_i32 s9, s8, 61440")
    a("s_waitcnt lgkmcnt(0)")
    srd(a, 44, 40, H_OFF, SZ_X); srd(a, 48, 40, W13_OFF, 3932160)
    vm = Cnt(a, "vmcnt", 63); ds = Cnt(a, "lgkmcnt", 15)
    def issue(s):
        for i in range(2):
            off = i * 20480 + (s & ~3) * 1024
            a(f"s_add_u32 m0, s6, {off}")
            a(f"s_add_u32 s10, s7, {off}")
            a(f"buffer_load_dwordx4 v2, s[44:47], s10 offen offset:{(s&3)*1024} lds"); vm.issue(s)
        for t in range(3):
            idx = 3 * s + t
            if t == 0 or idx % 4 == 0:
                a(f"s_add_u32 s11, s9, {(idx & ~3) * 1024}")
            a(f"buffer_load_dwordx4 a[{4*idx}:{4*idx+3}], v2, s[48:51], s11 offen offset:{(idx&3)*1024}"); vm.issue(s)
    for s in range(12): issue(s)
    srd(a, 52, 40, CS_OFF, 64*48*4); srd(a, 56, 40, HM_OFF, 6291456)
    a("s_lshl_b32 s12, s3, 1")
    a("s_lshl_b32 s15, s4, 3")
    for i in range(8):
        a(f"s_add_u32 s13, s12, {i}")
        a("s_and_b32 s13, s13, 7")
        a("s_mul_i32 s14, s13, 20480")
        a(f"v_add_u32 v{8+i}, s14, v2")
        a("s_add_u32 s13, s13, s15")
        a("s_mul_i32 s13, s13, 49152")
        a("s_mul_i32 s14, s8, 768")
        a(f"s_add_u32 s{60+i}, s13, s14")
    ACC = 32; HB = 128; CSR = 16; STR = 192
    acc = lambda i, t: ACC + 4 * (3 * i + t)
    hb = lambda s, i: HB + 32 * (s & 1) + 4 * i
    a("s_mov_b32 s16, 0x3f803f80")
    for r in range(4): a(f"v_mov_b32 v{28+r}, 0")
    def hread(s, i):
        a(f"ds_read_b128 v[{hb(s,i)}:{hb(s,i)+3}], v{8+i} offset:{s*1024}"); ds.issue((s, i))
    vm.wait(0)
    stamp(a, 0)
    a("s_barrier")
    for i in range(8): hread(0, i)
    nxt = 12
    for s in range(20):
        if s + 1 < 20:
            vm.wait(s + 1)
            a("s_barrier")
        side = []
        if s + 1 < 20:
            side += [("h", i) for i in range(8)]
        n_issue = 2 if s == 0 else 1
        todo = []
        for _ in range(n_issue):
            if nxt < 20: todo.append(nxt); nxt += 1
        if s == 8:
            todo.append("cs")
        stat = []
        if STATS_INLOOP:
            for i in range(2):
                for r in range(4):
                    stat.append(f"v_dot2_f32_bf16 v{28+2*i}, v{hb(s,i)+r}, s16, v{28+2*i}")
                    stat.append(f"v_dot2_f32_bf16 v{29+2*i}, v{hb(s,i)+r}, v{hb(s,i)+r}, v{29+2*i}")
        k = 0
        for i in range(8):
            ds.wait((s, i))
            for t in range(3):
                c = f"v[{acc(i,t)}:{acc(i,t)+3}]"; w = 4 * (3 * s + t)
                a(f"v_mfma_f32_16x16x32_bf16 {c}, a[{w}:{w+3}], v[{hb(s,i)}:{hb(s,i)+3}], {c if s else 0}")
                if t == 0 and side:
                    hread(s + 1, side.pop(0)[1])
                elif i >= 2 and stat:
                    a(stat.pop(0))
                    if len(stat) > (7 - i) * 2 + (2 - t): a(stat.pop(0))
            if i == 1 and todo:
                for x in todo:
                    if x == "cs":
                        a("v_lshrrev_b32 v3, 4, v1")
                        a("v_lshlrev_b32 v3, 4, v3")
                        a("s_mul_i32 s13, s8, 192")
                        for t in range(3):
                            a(f"buffer_load_dwordx4 v[{CSR+4*t}:{CSR+4*t+3}], v3, s[52:55], s13 offen offset:{t*64}"); vm.issue("cs")
                    else:
                        issue(x)
        while stat: a(stat.pop(0))
    stamp(a, 1)
    T = HB
    for sw in ("v_permlane32_swap_b32", "v_permlane16_swap_b32"):
        for r in range(4): a(f"v_mov_b32 v{T+r}, v{28+r}")
        for r in range(4): a(f"{sw} v{28+r}, v{T+r}")
        for r in range(4): a(f"v_add_f32 v{28+r}, v{28+r}, v{T+r}")
    a(f"v_mov_b32 v{T+8}, {f2u(1.0/640):#x}")
    steps = [
        lambda m, q, t: f"v_mul_f32 v{m}, v{m}, v{T+8}",
        lambda m, q, t: f"v_mul_f32 v{q}, v{q}, v{T+8}",
        lambda m, q, t: f"v_fma_f32 v{q}, -v{m}, v{m}, v{q}",
        lambda m, q, t: f"v_max_f32 v{q}, 0, v{q}",
        lambda m, q, t: f"v_cvt_pk_bf16_f32 v{t}, v{m}, v{q}",
        lambda m, q, t: f"v_lshlrev_b32 v{m}, 16, v{t}",
        lambda m, q, t: f"v_and_b32 v{q}, 0xffff0000, v{t}",
        lambda m, q, t: f"v_add_f32 v{q}, {f2u(1e-5):#x}, v{q}",
        lambda m, q, t: f"v_cvt_pk_bf16_f32 v{q}, v{q}, v{q}",
        lambda m, q, t: f"v_lshlrev_b32 v{q}, 16, v{q}",
        lambda m, q, t: f"v_sqrt_f32 v{q}, v{q}",
        lambda m, q, t: f"v_cvt_pk_bf16_f32 v{q}, v{q}, v{q}",
        lambda m, q, t: f"v_lshlrev_b32 v{q}, 16, v{q}",
    ]
    for st in steps:
        for i in range(2): a(st(28 + 2*i, 29 + 2*i, T + i))
    for i in range(2):
        a(f"ds_write_b64 v{8+i}, v[{28+2*i}:{29+2*i}]")
    a("s_waitcnt lgkmcnt(0)")
    a("s_barrier")
    for i in range(8):
        a(f"ds_read_b64 v[{STR+4*i}:{STR+4*i+1}], v{8+i}")
    a("v_mul_u32_u24 v3, 12, v1")
    a(f"v_mov_b32 v4, {f2u(-LOG2E):#x}")
    a("s_waitcnt vmcnt(0) lgkmcnt(0)")
    stamp(a, 2)
    for i in range(8): a(f"v_rcp_f32 v{STR+4*i+2}, v{STR+4*i+1}")
    for i in range(8): a(f"v_mul_f32 v{STR+4*i+1}, v{STR+4*i+1}, v{STR+4*i+1}")
    for i in range(8): a(f"v_mul_f32 v{STR+4*i+2}, v{STR+4*i+2}, v4")
    E = HB
    for i in range(8):
        S = STR + 4 * i; O = 224 + 4 * (i % 4)
        seqs = []
        for t in range(3):
            c = acc(i, t); e = E + 4 * t + 12 * (i % 2); cs = CSR + 4 * t
            seqs.append([
                f"v_pk_fma_f32 v[{c}:{c+1}], v[{cs}:{cs+1}], v[{S}:{S+1}], v[{c}:{c+1}] op_sel_hi:[1,0,1] neg_lo:[0,1,0] neg_hi:[0,1,0]",
                f"v_pk_fma_f32 v[{c+2}:{c+3}], v[{cs+2}:{cs+3}], v[{S}:{S+1}], v[{c+2}:{c+3}] op_sel_hi:[1,0,1] neg_lo:[0,1,0] neg_hi:[0,1,0]",
                f"v_pk_mul_f32 v[{e}:{e+1}], v[{c}:{c+1}], v[{S+2}:{S+3}] op_sel_hi:[1,0]",
                f"v_exp_f32 v{e}, v{e}",
                f"v_exp_f32 v{e+1}, v{e+1}",
                f"v_pk_mul_f32 v[{c}:{c+1}], v[{c}:{c+1}], v[{c+2}:{c+3}]",
                f"v_pk_fma_f32 v[{e}:{e+1}], v[{e}:{e+1}], v[{S}:{S+1}], v[{S}:{S+1}] op_sel:[0,1,1] op_sel_hi:[1,1,1]",
                f"v_rcp_f32 v{e}, v{e}",
                f"v_rcp_f32 v{e+1}, v{e+1}",
                f"v_pk_mul_f32 v[{c}:{c+1}], v[{c}:{c+1}], v[{e}:{e+1}]",
                f"v_cvt_pk_bf16_f32 v{O+t}, v{c}, v{c+1}",
            ])
        for j in range(len(seqs[0])):
            for sq in seqs: a(sq[j])
        a(f"buffer_store_dwordx3 v[{O}:{O+2}], v3, s[56:59], s{60+i} offen")
    a.label("K3_END")
    a("s_endpgm")
```

```python
from asmlib import *
from layout import *
from k1 import srd
K4_LDS = 61440

def gen_k4(a):
    a.raw(kernel_header("gemm2_kernel"))
    a("s_cmp_ge_u32 s2, 256")
    a("s_cbranch_scc1 K4_END")
    a("s_load_dwordx2 s[38:39], s[0:1], 88")
    a("s_load_dwordx2 s[40:41], s[0:1], 104")
    a("v_lshrrev_b32 v2, 6, v0")
    a("v_and_b32 v1, 63, v0")
    a("v_readfirstlane_b32 s3, v2")
    a("v_lshlrev_b32 v2, 4, v1")
    a("v_mul_u32_u24 v3, 12, v1")
    a("s_and_b32 s4, s2, 7")
    a("s_lshl_b32 s4, s4, 2")
    a("s_bfe_u32 s5, s2, 0x20003")
    a("s_add_u32 s4, s4, s5")
    a("s_lshr_b32 s5, s2, 5")
    a("s_mul_i32 s6, s4, 196608")
    a("s_mul_i32 s7, s3, 12288")
    a("s_add_u32 s6, s6, s7")
    a("s_mul_i32 s7, s5, 245760")
    a("s_mul_i32 s8, s3, 61440")
    a("s_add_u32 s7, s7, s8")
    a("s_waitcnt lgkmcnt(0)")
    srd(a, 44, 40, HM_OFF, 6291456); srd(a, 48, 40, W2_OFF, 1966080)
    vm = Cnt(a, "vmcnt", 63)
    ACC = 16; HM = 96
    acc = lambda rt, t: ACC + 4 * (5 * rt + t)
    hm = lambda b, rt: HM + 64 * (b & 1) + 16 * rt
    wreg = lambda b, phi, t: 4 * (15 * b + 5 * phi + t)
    def ld_hm(b, rt, wc):
        a(f"s_add_u32 s10, s6, {rt*49152 + b*3072}")
        r = hm(b, rt) + 4 * wc
        a(f"buffer_load_dwordx3 v[{r}:{r+2}], v3, s[44:47], s10 offen offset:{wc*768}"); vm.issue(("h", b, rt, wc))
    def ld_w(b, phi, t):
        idx = 15 * b + 5 * phi + t
        a(f"s_add_u32 s11, s7, {(idx & ~3) * 1024}")
        a(f"buffer_load_dwordx4 a[{4*idx}:{4*idx+3}], v2, s[48:51], s11 offen offset:{(idx&3)*1024}"); vm.issue(("w", b, phi, t))
    def ld_block(b):
        for rt in range(4): ld_hm(b, rt, 3)
        for phi in range(3):
            for t in range(5): ld_w(b, phi, t)
            for rt in range(4): ld_hm(b, rt, phi)
    ld_block(0); ld_block(1)
    srd(a, 52, 40, H_OFF, SZ_X); srd(a, 56, 38, 0, SZ_X)
    HR = 224
    first = True
    for b in range(4):
        pend = []
        for phi in range(3):
            vm.wait(("h", b, 3, phi))
            if b == 0 and phi == 0: stamp(a, 0)
            if phi == 0:
                for rt in range(4):
                    for q in range(3):
                        a(f"v_mov_b32 v{hm(b,rt)+4*q+3}, v{hm(b,rt)+12+q}")
                if b + 2 < 4:
                    pend += [("h", rt, 3) for rt in range(4)]
            if b + 2 < 4:
                pend += [("w", phi, t) for t in range(5)]
            for rt in range(4):
                f = hm(b, rt) + 4 * phi
                for t in range(5):
                    c = f"v[{acc(rt,t)}:{acc(rt,t)+3}]"; w = wreg(b, phi, t)
                    a(f"v_mfma_f32_16x16x32_bf16 {c}, a[{w}:{w+3}], v[{f}:{f+3}], {0 if (b == 0 and phi == 0) else c}")
                    if pend and t % 2 == 1:
                        k, x, y = pend.pop(0)
                        (ld_hm if k == "h" else ld_w)(b + 2, x, y)
                if b + 2 < 4: pend.append(("h", rt, phi))
        while pend:
            k, x, y = pend.pop(0)
            (ld_hm if k == "h" else ld_w)(b + 2, x, y)
        if b == 1:
            a("v_lshrrev_b32 v4, 5, v1")
            a("v_lshlrev_b32 v4, 8, v4")
            a("v_and_b32 v5, 15, v1")
            a("v_lshl_add_u32 v4, v5, 4, v4")
            a("v_bfe_u32 v5, v1, 4, 1")
            a("v_lshl_add_u32 v4, v5, 3, v4")
            a("s_lshl_b32 s12, s4, 2")
            a("s_add_u32 s12, s12, s3")
            a("s_mul_i32 s13, s12, 20480")
            a("s_mul_i32 s14, s5, 2560")
            a("s_add_u32 s13, s13, s14")
            for t in range(5):
                a(f"buffer_load_dwordx2 v[{HR+2*t}:{HR+2*t+1}], v4, s[52:55], s13 offen offset:{t*512}"); vm.issue("res")
    stamp(a, 1)
    for k in range(1, 4):
        pass
    a("s_cmp_eq_u32 s3, 1"); a("s_cbranch_scc1 K4_W1")
    a("s_cmp_eq_u32 s3, 2"); a("s_cbranch_scc1 K4_W2")
    a("s_cmp_eq_u32 s3, 3"); a("s_cbranch_scc1 K4_W3")
    for w in range(4):
        if w: a.label(f"K4_W{w}")
        for rt in range(4):
            if rt == w: continue
            sl = (w - rt - 1) & 3
            for t in range(5):
                a(f"ds_write_b128 v2, v[{acc(rt,t)}:{acc(rt,t)+3}] offset:{(rt*3 + sl)*5120 + t*1024}")
        for r in range(0, 20, 2):
            a(f"v_pk_add_f32 v[{96+r}:{97+r}], v[{acc(w,0)+r}:{acc(w,0)+r+1}], 0")
        if w < 3: a("s_branch K4_RED")
    a.label("K4_RED")
    a("s_mul_i32 s13, s3, 15360")
    a("v_add_u32 v6, s13, v2")
    a("s_waitcnt lgkmcnt(0)")
    a("s_barrier")
    R = 128
    for i in range(15):
        a(f"ds_read_b128 v[{R+4*i}:{R+4*i+3}], v6 offset:{i*1024}")
    a("v_and_b32 v5, 15, v1")
    a("v_mul_u32_u24 v5, 1280, v5")
    a("v_lshrrev_b32 v7, 4, v1")
    a("v_lshl_add_u32 v5, v7, 3, v5")
    a("s_mul_i32 s13, s12, 20480")
    a("s_mul_i32 s14, s5, 160")
    a("s_add_u32 s13, s13, s14")
    a("s_waitcnt vmcnt(0)")
    for t in range(5):
        for q in range(2):
            a(f"v_lshlrev_b32 v{16+4*t+2*q}, 16, v{HR+2*t+q}")
            a(f"v_and_b32 v{17+4*t+2*q}, 0xffff0000, v{HR+2*t+q}")
    for sl in range(3):
        a(f"s_waitcnt lgkmcnt({10 - 5*sl})")
        for r in range(0, 20, 2):
            a(f"v_pk_add_f32 v[{96+r}:{97+r}], v[{96+r}:{97+r}], v[{R+20*sl+r}:{R+20*sl+r+1}]")
    for t in range(5):
        for q in range(2):
            a(f"v_cvt_pk_bf16_f32 v{40+2*t+q}, v{96+4*t+2*q}, v{97+4*t+2*q}")
    for t in range(5):
        for q in range(2):
            a(f"v_lshlrev_b32 v{96+4*t+2*q}, 16, v{40+2*t+q}")
            a(f"v_and_b32 v{97+4*t+2*q}, 0xffff0000, v{40+2*t+q}")
    for r in range(0, 20, 2):
        a(f"v_pk_add_f32 v[{96+r}:{97+r}], v[{96+r}:{97+r}], v[{16+r}:{17+r}]")
    for t in range(5):
        for q in range(2):
            a(f"v_cvt_pk_bf16_f32 v{40+2*t+q}, v{96+4*t+2*q}, v{97+4*t+2*q}")
        a(f"buffer_store_dwordx2 v[{40+2*t}:{41+2*t}], v5, s[56:59], s13 offen offset:{t*32}")
    a.label("K4_END")
    a("s_endpgm")
```

```python
U_OFF   = 0x000000
K_OFF   = 0x280000
H_OFF   = 0x500000
W13_OFF = 0x780000
W2_OFF  = 0xB40000
HM_OFF  = 0xD20000
CS_OFF  = 0x1320000
ST_OFF  = 0x1324000
CNT_OFF = 0x1328000
CSP_OFF = 0x1330000
WS_END  = 0x1370000
SZ_X = 2621440
LOG2E = 1.4426950408889634
INV2PI = 0.15915494309189535
import struct
def f2u(x): return struct.unpack("<I", struct.pack("<f", x))[0]
def magic(div, maxn, shift):
    m = -(-(1 << shift) // div)
    for n in range(maxn):
        assert (n * m) >> shift == n // div, (div, n)
    assert maxn * m < (1 << 32) and m < (1 << 24)
    return m
```

```python
import sys
from asmlib import *
from layout import *
import k1
HEADER = open("sequential_preLN__ssm_conv_s4d__glu_gated_swiglu__prompt.s.ref").read().split("; Override launch")[0]
def build(kernels):
    a = Asm()
    launches = []; descs = []
    for k in kernels:
        if k == 1:
            k1.gen_k1(a); launches.append(f"; @launch kernel=prep_kernel grid=({k1.K1_GRID},1,1) block=(256,1,1) lds={k1.K1_LDS}")
            descs.append(kernel_desc("prep_kernel", 128, 96, 128))
        if k == 2:
            import k2
            k2.gen_k2(a); launches.append(f"; @launch kernel=conv_kernel grid=({k2.K2_GRID},1,1) block=({k2.K2_BLOCK},1,1) lds={k2.K2_LDS}")
            descs.append(kernel_desc("conv_kernel", k2.K2_VGPR, 96, k2.K2_VGPR))
        if k == 3:
            import k3
            k3.gen_k3(a); launches.append(f"; @launch kernel=gemm1_kernel grid=(256,1,1) block=(256,1,1) lds={k3.K3_LDS}")
            descs.append(kernel_desc("gemm1_kernel", 512, 96, 256))
        if k == 4:
            import k4
            k4.gen_k4(a); launches.append(f"; @launch kernel=gemm2_kernel grid=(256,1,1) block=(256,1,1) lds={k4.K4_LDS}")
            descs.append(kernel_desc("gemm2_kernel", 512, 96, 256))
        a.win = []
    return HEADER + "\n".join(launches) + '\n.amdgcn_target "amdgcn-amd-amdhsa--gfx950"\n.text\n' + a.text() + '.section .rodata,"a"\n' + "\n".join(descs) + "\n"
PROF_OFF = 0x2000000
def add_prof(text):
    import re
    out = []; kidx = -1; cur = None
    for line in text.split("\n"):
        m = re.match(r"^(\w+_kernel):", line)
        if m:
            kidx += 1; cur = m.group(1)
            out.append(line)
            out.append("  s_memrealtime s[96:97]")
            out.append("  s_mov_b64 s[98:99], s[0:1]")
            out.append("  s_mov_b32 s100, s2")
            for q in range(76, 84): out.append(f"  s_mov_b32 s{q}, 0")
            out.append("  v_readfirstlane_b32 s101, v0")
            continue
        if line.strip() == "s_endpgm":
            out.append(f"  s_branch PROF_{cur}")
            continue
        if line.startswith(".globl") or line.startswith(".section .rodata"):
            if cur:
                out.append(f"""PROF_{cur}:
  s_waitcnt vmcnt(0) lgkmcnt(0)
  s_memrealtime s[4:5]
  s_load_dwordx2 s[8:9], s[98:99], 104
  s_getreg_b32 s6, hwreg(HW_REG_XCC_ID)
  s_getreg_b32 s7, hwreg(HW_REG_HW_ID)
  s_mov_b64 exec, 1
  s_lshr_b32 s101, s101, 6
  s_lshl_b32 s100, s100, 4
  s_add_u32 s100, s100, s101
  s_lshl_b32 s100, s100, 5
  s_waitcnt lgkmcnt(0)
  s_add_u32 s8, s8, {PROF_OFF + kidx * 0x100000:#x}
  s_addc_u32 s9, s9, 0
  s_mov_b32 s10, 0x100000
  s_mov_b32 s11, 0x20000
  v_mov_b32 v0, s96
  v_mov_b32 v1, s4
  v_mov_b32 v2, s6
  v_mov_b32 v3, s7
  v_mov_b32 v4, s100
  buffer_store_dwordx4 v[0:3], v4, s[8:11], 0 offen
  v_mov_b32 v6, s76
  v_mov_b32 v7, s78
  v_mov_b32 v8, s80
  v_mov_b32 v9, s82
  buffer_store_dwordx4 v[6:9], v4, s[8:11], 0 offen offset:16
  s_endpgm""")
                cur = None
        out.append(line)
    return "\n".join(out).replace("next_free_sgpr 96", "next_free_sgpr 102")
if __name__ == "__main__":
    ks = [int(c) for c in sys.argv[1]]
    t = build(ks)
    if PROF: t = add_prof(t)
    open(sys.argv[2], "w").write(t)
```

```python
from asmlib import *
from layout import *
import os

N_B, N_A, N_PACK = 128, 640, 480
ID_A = 0; ID_B = N_A; K1_GRID = N_A + N_B
K1_LDS = 27648 + 8192
PK = 27648

def srd(a, r, base, off, size):
    if off:
        a(f"s_add_u32 s{r}, s{base}, {off:#x}")
        a(f"s_addc_u32 s{r+1}, s{base+1}, 0")
    else:
        a(f"s_mov_b32 s{r}, s{base}")
        a(f"s_mov_b32 s{r+1}, s{base+1}")
    a(f"s_mov_b32 s{r+2}, {size:#x}")
    a(f"s_mov_b32 s{r+3}, 0x20000")

def cmul(a, d, x, y):
    a(f"v_pk_mul_f32 v[{d}:{d+1}], v[{x}:{x+1}], v[{y}:{y+1}] op_sel:[0,0] op_sel_hi:[0,1]")
    a(f"v_pk_fma_f32 v[{d}:{d+1}], v[{x}:{x+1}], v[{y}:{y+1}], v[{d}:{d+1}] op_sel:[1,1,0] op_sel_hi:[1,0,1] neg_lo:[1,0,0]")

def interleave(*seqs):
    out = []; seqs = [list(s) for s in seqs]
    while any(seqs):
        for s in seqs:
            if s: out.append(s.pop(0))
    return out

class Rec:
    def __init__(self): self.l = []
    def __call__(self, t): self.l.append(t)

def wave_reduce_sum(a, regs):
    for ctl in ("row_shr:1", "row_shr:2", "row_shr:4", "row_shr:8"):
        for r in regs:
            a(f"v_add_f32_dpp v{r}, v{r}, v{r} {ctl} row_mask:0xf bank_mask:0xf bound_ctrl:0")
    for r in regs:
        a(f"v_add_f32_dpp v{r}, v{r}, v{r} row_bcast:15 row_mask:0xa bank_mask:0xf")
    for r in regs:
        a(f"v_add_f32_dpp v{r}, v{r}, v{r} row_bcast:31 row_mask:0xc bank_mask:0xf")

def transpose8(a, src, dst_fn):
    for c in range(8):
        d, cb = dst_fn(c)
        sel = "s90" if c % 2 == 0 else "s91"
        for i in range(4):
            a(f"v_perm_b32 v{d+i}, v{src[2*i+1] + c//2}, v{src[2*i] + c//2}, {sel}")
        cb()

def gen_k1(a):
    a.raw(kernel_header("prep_kernel"))
    a(f"s_cmp_ge_u32 s2, {K1_GRID}")
    a("s_cbranch_scc1 K1_END")
    a("s_load_dwordx16 s[16:31], s[0:1], 0")
    a("s_load_dwordx8 s[32:39], s[0:1], 64")
    a("s_load_dwordx2 s[40:41], s[0:1], 104")
    a("v_lshrrev_b32 v2, 6, v0")
    a("v_and_b32 v1, 63, v0")
    a("s_mov_b32 s90, 0x05040100")
    a("v_readfirstlane_b32 s3, v2")
    a("s_mov_b32 s91, 0x07060302")
    a(f"s_cmp_lt_u32 s2, {ID_B}")
    a("s_cbranch_scc1 K1_A")
    import os
    only = os.environ.get("K1_ONLY", "AB")
    for nm, fn in (("B", role_b), ("A", role_a)):
        if nm != "B": a.label("K1_" + nm)
        if nm not in only: a("s_endpgm")
        else: fn(a)
    a.label("K1_END")
    a("s_endpgm")

def pack13_ids(a):
    m24 = magic(24, 480, 16)
    a(f"s_mul_i32 s65, s2, {m24}")
    a("s_lshr_b32 s65, s65, 16")
    a("s_mul_i32 s66, s65, 24")
    a("s_sub_u32 s66, s2, s66")

def pack13_dma_setup(a):
    a("v_lshrrev_b32 v111, 3, v1")
    a("v_mul_u32_u24 v111, 3072, v111")
    a("v_and_b32 v112, 7, v1")
    a("v_lshl_add_u32 v111, v112, 4, v111")
    a("s_mul_i32 s67, s65, 98304")
    a("s_lshl_b32 s68, s66, 7")
    a("s_add_u32 s67, s67, s68")
    a("s_cmp_eq_u32 s3, 0")
    a("s_cselect_b32 s48, s32, s34")
    a("s_cselect_b32 s49, s33, s35")
    a("s_mov_b32 s50, 1966080")
    a("s_mov_b32 s51, 0x20000")
    a("s_lshl_b32 s68, s3, 12")
    a(f"s_add_u32 s68, s68, {PK}")

def pack13_dma(a):
    for r in range(4):
        a(f"s_add_u32 m0, s68, {r*1024}")
        a(f"s_add_u32 s69, s67, {r*8*3072}")
        a(f"buffer_load_dwordx4 v111, s[48:51], s69 offen lds")

def pack13_out_setup(a):
    a("v_lshrrev_b32 v6, 4, v1")
    a("v_bfe_u32 v7, v1, 2, 2")
    a("v_lshl_add_u32 v6, v6, 3, v7")
    a("v_lshlrev_b32 v6, 7, v6")
    a("v_and_b32 v7, 1, v1")
    a("v_lshl_add_u32 v6, v7, 12, v6")
    a("v_bfe_u32 v7, v1, 1, 1")
    a("v_lshl_add_u32 v6, v7, 3, v6")
    a("v_bfe_u32 v8, v1, 3, 1")
    a("v_lshlrev_b32 v8, 3, v8")
    a("v_bfe_u32 v9, v1, 1, 1")
    a("v_lshl_add_u32 v8, v9, 2, v8")
    a("v_and_b32 v9, 1, v1")
    a("v_add_u32 v8, v8, v9")
    a("v_bfe_u32 v9, v1, 2, 1")
    a("v_lshl_add_u32 v8, v9, 1, v8")
    a("v_lshrrev_b32 v9, 4, v1")
    a("v_lshlrev_b32 v9, 8, v9")
    a("v_lshl_add_u32 v8, v8, 4, v9")
    m3 = magic(3, 256, 16)
    a("s_lshl_b32 s11, s66, 3")
    a("s_mul_i32 s14, s65, 3072")
    for i in range(8):
        a(f"s_add_u32 s12, s11, {i}")
        a(f"s_mul_i32 s13, s12, {m3}")
        a("s_lshr_b32 s13, s13, 16")
        a("s_mul_i32 s13, s13, 58368")
        a("s_lshl_b32 s12, s12, 10")
        a("s_add_u32 s13, s13, s12")
        a(f"s_add_u32 s{56+i}, s13, s14")
    srd(a, 52, 40, W13_OFF, 3932160)
    srd(a, 48, 40, CSP_OFF, 20*192*64)
    a("v_lshrrev_b32 v9, 5, v1")
    a("v_lshlrev_b32 v9, 5, v9")
    a("v_bfe_u32 v10, v1, 4, 1")
    a("v_lshl_add_u32 v9, v10, 3, v9")
    a("s_mul_i32 s64, s65, 12288")
    a("s_lshl_b32 s12, s66, 9")
    a("s_add_u32 s64, s64, s12")
    for i in range(4): a(f"v_mov_b32 v{12+i}, 0x3f803f80")

def pack13_out(a):
    for i in range(8):
        for h in range(2):
            a(f"ds_read_b64_tr_b16 v[{16+4*i+2*h}:{17+4*i+2*h}], v6 offset:{PK + h*512 + i*16}")
    for i in range(8):
        a(f"s_waitcnt lgkmcnt({14-2*i})")
        a(f"buffer_store_dwordx4 v[{16+4*i}:{19+4*i}], v8, s[52:55], s{56+i} offen")
        a(f"v_mfma_f32_16x16x32_bf16 v[{48+4*i}:{51+4*i}], v[{16+4*i}:{19+4*i}], v[12:15], 0")
    a("s_mov_b32 s12, 0x00010001")
    a("s_mov_b32 s13, 0x00010001")
    a("s_mov_b64 exec, s[12:13]")
    for i in range(8):
        a(f"buffer_store_dwordx2 v[{48+4*i}:{49+4*i}], v9, s[48:51], s64 offen offset:{i*64}")
        a(f"buffer_store_dwordx2 v[{50+4*i}:{51+4*i}], v9, s[48:51], s64 offen offset:{i*64+16}")
    a("s_mov_b64 exec, -1")

def role_d(a):
    a(f"s_sub_u32 s4, s2, {ID_D}")
    a("s_lshl_b32 s4, s4, 2")
    a("s_add_u32 s4, s4, s3")
    m5 = magic(5, 240, 16); m3 = magic(3, 64, 16)
    a(f"s_mul_i32 s5, s4, {m5}")
    a("s_lshr_b32 s5, s5, 16")
    a("s_mul_i32 s6, s5, 5")
    a("s_sub_u32 s6, s4, s6")
    a(f"s_mul_i32 s7, s5, {m3}")
    a("s_lshr_b32 s7, s7, 16")
    a("s_mul_i32 s8, s7, 3")
    a("s_sub_u32 s8, s5, s8")
    a("v_lshrrev_b32 v3, 4, v1")
    a("v_and_b32 v4, 1, v3")
    a("v_lshrrev_b32 v3, 1, v3")
    a("v_lshl_add_u32 v5, v3, 3, v4")
    a("s_mul_i32 s9, s8, 24")
    a("s_lshl_b32 s10, s8, 3")
    a("s_add_u32 s10, s10, 72")
    a("s_add_u32 s11, s9, 16")
    a("v_mov_b32 v6, s11")
    a("v_mov_b32 v7, s10")
    a("v_cmp_eq_u32 vcc, 0, v3")
    a("v_add_u32 v5, s9, v5")
    a("v_cndmask_b32 v6, v7, v6, vcc")
    a("v_add_u32 v6, v6, v4")
    a("v_and_b32 v7, 15, v1")
    a("v_lshlrev_b32 v7, 4, v7")
    a("v_mul_u32_u24 v5, 1280, v5")
    a("v_mul_u32_u24 v6, 1280, v6")
    a("v_add_u32 v5, v5, v7")
    a("v_add_u32 v6, v6, v7")
    a("s_mul_i32 s12, s7, 122880")
    a("s_lshl_b32 s13, s6, 8")
    a("s_add_u32 s12, s12, s13")
    a("s_lshl_b32 s9, s3, 13")
    a("v_lshrrev_b32 v8, 4, v1")
    a("v_bfe_u32 v9, v1, 2, 2")
    a("v_lshl_add_u32 v8, v8, 3, v9")
    a("v_lshlrev_b32 v8, 8, v8")
    a("v_and_b32 v9, 3, v1")
    a("v_lshl_add_u32 v8, v9, 3, v8")
    a("v_add_u32 v8, s9, v8")
    a("v_lshlrev_b32 v9, 4, v1")
    a("s_lshl_b32 s10, s6, 3")
    a("s_mul_i32 s11, s5, 5120")
    for i in range(8):
        a(f"s_add_u32 s13, s10, {i}")
        a(f"s_mul_i32 s14, s13, {m5}")
        a("s_lshr_b32 s14, s14, 16")
        a(f"s_mul_i32 s14, s14, {245760 - 5120}")
        a("s_lshl_b32 s13, s13, 10")
        a("s_add_u32 s14, s14, s13")
        a(f"s_add_u32 s{60+i}, s14, s11")
    a("s_waitcnt lgkmcnt(0)")
    srd(a, 44, 36, 0, 1966080); srd(a, 48, 40, W2_OFF, 1966080)
    for i in range(8):
        a(f"s_add_u32 m0, s9, {i*1024}")
        a(f"s_add_u32 s13, s12, {(i>>1)*2*1280}")
        a(f"buffer_load_dwordx4 v{5 + (i&1)}, s[44:47], s13 offen lds")
    a("s_waitcnt vmcnt(0)")
    stamp(a, 1)
    for i in range(8):
        for h in range(2):
            a(f"ds_read_b64_tr_b16 v[{16+4*i+2*h}:{17+4*i+2*h}], v8 offset:{h*1024 + i*32}")
    for i in range(8):
        a(f"s_waitcnt lgkmcnt({14-2*i})")
        a(f"buffer_store_dwordx4 v[{16+4*i}:{19+4*i}], v9, s[48:51], s{60+i} offen")
    a("s_endpgm")

def role_b(a):
    a(f"s_sub_u32 s4, s2, {ID_B}")
    a("s_lshl_b32 s4, s4, 2")
    a("s_add_u32 s4, s4, s3")
    a("s_mul_i32 s5, s4, 5120")
    a("v_lshlrev_b32 v2, 2, v1")
    a("v_add_u32 v3, 2560, v2")
    a("s_lshr_b32 s8, s4, 2")
    a("s_waitcnt lgkmcnt(0)")
    srd(a, 44, 16, 0, SZ_X); srd(a, 48, 40, U_OFF, SZ_X)
    for i in range(4):
        for q in range(5):
            a(f"buffer_load_dword v{8+5*i+q}, v{2 if i < 2 else 3}, s[44:47], s5 offen offset:{(i%2)*1280 + q*256}")
    if os.environ.get("CODEPF", "1") == "1":
        a("s_getpc_b64 s[56:57]")
        a.raw("K1_PC:")
        a("s_add_u32 s56, s56, CODE_BEG-K1_PC")
        a("s_addc_u32 s57, s57, 0")
        a(f"s_sub_u32 s58, s2, {ID_B}")
        a("s_lshr_b32 s58, s58, 3")
        a("s_lshl_b32 s58, s58, 2")
        a("s_add_u32 s58, s58, s3")
        a("s_lshl_b32 s58, s58, 11")
        a("v_lshlrev_b32 v100, 4, v1")
        a("v_add_u32 v100, s58, v100")
        a("v_mov_b32 v101, CODE_END-CODE_BEG-16")
        a("v_min_u32 v102, v100, v101")
        a("v_add_u32 v100, 1024, v100")
        a("v_min_u32 v103, v100, v101")
        a("global_load_dwordx4 v[104:107], v102, s[56:57]")
        a("global_load_dwordx4 v[108:111], v103, s[56:57]")
    srd(a, 52, 40, ST_OFF, 0x4000 + 128*128)
    a("v_mov_b32 v7, 0")
    a("s_lshl_b32 s9, s4, 5")
    a("s_lshl_b32 s10, s4, 7")
    a("s_add_u32 s10, s10, 0x4000")
    a("s_mov_b64 exec, 0xff")
    a("buffer_store_dword v7, v2, s[52:55], s9 offen")
    a("buffer_store_dword v7, v2, s[52:55], s10 offen")
    a("s_mov_b64 exec, -1")
    a("v_add_u32 v4, s8, v1")
    a("v_and_b32 v4, 3, v4")
    a("v_lshrrev_b32 v6, 2, v1")
    a("v_lshlrev_b32 v6, 15, v6")
    a("v_lshl_add_u32 v4, v4, 4, v6")
    a("s_lshl_b32 s9, s4, 6")
    for q in range(5):
        a(f"s_add_u32 s{60+q}, s9, {q*16*32768}")
    a(f"v_mov_b32 v7, {f2u(1.0/640):#x}")
    X = lambda i, q: 32 + 2 * (5 * i + q)
    for i in range(4):
        a(f"s_waitcnt vmcnt({17 + (2 if os.environ.get('CODEPF', '1') == '1' else 0) - 5*i})")
        for q in range(5):
            a(f"v_lshlrev_b32 v{X(i,q)}, 16, v{8+5*i+q}")
            a(f"v_and_b32 v{X(i,q)+1}, 0xffff0000, v{8+5*i+q}")
        s = 72 + 2 * i
        a(f"v_pk_add_f32 v[{s}:{s+1}], v[{X(i,0)}:{X(i,0)+1}], v[{X(i,1)}:{X(i,1)+1}]")
        for q in range(2, 5):
            a(f"v_pk_add_f32 v[{s}:{s+1}], v[{s}:{s+1}], v[{X(i,q)}:{X(i,q)+1}]")
        a(f"v_add_f32 v{s}, v{s}, v{s+1}")
    stamp(a, 1)
    wave_reduce_sum(a, [72, 74, 76, 78])
    for i in range(4):
        a(f"v_readlane_b32 s{70+i}, v{72+2*i}, 63")
    for i in range(4):
        a(f"v_mul_f32 v{80+2*i}, s{70+i}, v7")
    for i in range(4):
        a(f"v_cvt_pk_bf16_f32 v{8+2*i}, v{80+2*i}, v{80+2*i}")
    for i in range(4):
        a(f"v_lshlrev_b32 v{8+2*i}, 16, v{8+2*i}")
    for i in range(4):
        a(f"v_sub_f32 v{81+2*i}, v{80+2*i}, v{8+2*i}")
    for i in range(4):
        m = 8 + 2 * i
        for q in range(5):
            x = X(i, q)
            a(f"v_pk_add_f32 v[{x}:{x+1}], v[{x}:{x+1}], v[{m}:{m+1}] op_sel_hi:[1,0] neg_lo:[0,1] neg_hi:[0,1]")
        s = 72 + 2 * i
        x = X(i, 0)
        a(f"v_pk_mul_f32 v[{s}:{s+1}], v[{x}:{x+1}], v[{x}:{x+1}]")
        for q in range(1, 5):
            x = X(i, q)
            a(f"v_pk_fma_f32 v[{s}:{s+1}], v[{x}:{x+1}], v[{x}:{x+1}], v[{s}:{s+1}]")
        a(f"v_add_f32 v{s}, v{s}, v{s+1}")
    wave_reduce_sum(a, [72, 74, 76, 78])
    for i in range(4):
        a(f"v_readlane_b32 s{70+i}, v{72+2*i}, 63")
    R = lambda i: 16 + 2 * i
    steps = [
        lambda i: f"v_mul_f32 v{R(i)}, s{70+i}, v7",
        lambda i: f"v_fma_f32 v{R(i)}, -v{81+2*i}, v{81+2*i}, v{R(i)}",
        lambda i: f"v_cvt_pk_bf16_f32 v{R(i)}, v{R(i)}, v{R(i)}",
        lambda i: f"v_lshlrev_b32 v{R(i)}, 16, v{R(i)}",
        lambda i: f"v_add_f32 v{R(i)}, {f2u(1e-5):#x}, v{R(i)}",
        lambda i: f"v_cvt_pk_bf16_f32 v{R(i)}, v{R(i)}, v{R(i)}",
        lambda i: f"v_lshlrev_b32 v{R(i)}, 16, v{R(i)}",
        lambda i: f"v_sqrt_f32 v{R(i)}, v{R(i)}",
        lambda i: f"v_cvt_pk_bf16_f32 v{R(i)}, v{R(i)}, v{R(i)}",
        lambda i: f"v_lshlrev_b32 v{R(i)}, 16, v{R(i)}",
        lambda i: f"v_rcp_f32 v{R(i)}, v{R(i)}",
    ]
    for st in steps:
        for i in range(4): a(st(i))
    stamp(a, 2)
    for q in range(5):
        for i in range(4):
            x = X(i, q)
            a(f"v_pk_mul_f32 v[{x}:{x+1}], v[{x}:{x+1}], v[{R(i)}:{R(i)+1}] op_sel_hi:[1,0]")
        for e in range(2):
            d = 88 + 4 * (q % 2) + 2 * e
            a(f"v_cvt_pk_bf16_f32 v{d}, v{X(0,q)+e}, v{X(1,q)+e}")
            a(f"v_cvt_pk_bf16_f32 v{d+1}, v{X(2,q)+e}, v{X(3,q)+e}")
        d = 88 + 4 * (q % 2)
        a(f"buffer_store_dwordx4 v[{d}:{d+3}], v4, s[48:51], s{60+q} offen")
    a("s_endpgm")

RS = 4352; ROWP = 272; WREG = 2 * RS; TAB = 3 * WREG

def role_a(a):
    a(f"s_sub_u32 s4, s2, {ID_A}")
    a("s_mul_i32 s5, s4, 384")
    a("v_lshlrev_b32 v2, 1, v0")
    a("v_add_u32 v2, s5, v2")
    a("s_lshr_b32 s6, s4, 1")
    a("s_lshl_b32 s6, s6, 2")
    a("s_waitcnt lgkmcnt(0)")
    stamp(a, 0)
    a("s_load_dword s7, s[26:27], s6")
    srd(a, 44, 40, K_OFF, SZ_X)
    a("s_cmp_eq_u32 s3, 3")
    a("s_cbranch_scc1 K1_A_IDX")
    a("global_load_ushort v10, v2, s[18:19]")
    a("global_load_ushort v11, v2, s[20:21]")
    a("global_load_ushort v12, v2, s[22:23]")
    a("global_load_ushort v13, v2, s[24:25]")
    a.label("K1_A_IDX")
    a("v_lshlrev_b32 v3, 3, v0")
    a("v_cvt_f32_u32 v4, v3")
    a("v_cmp_gt_u32 vcc, 16, v0")
    for p in range(4):
        a(f"v_add_f32 v5, {f2u(float(2*p)):#x}, v4")
        a(f"v_add_f32 v6, {f2u(float(2*p+1)):#x}, v4")
        a("v_cvt_pk_bf16_f32 v5, v5, v6")
        a("v_subrev_u32 v5, 0x42804280, v5")
        a("v_and_b32 v6, 0xffff, v5")
        a("v_lshrrev_b32 v5, 16, v5")
        a(f"v_add_u32 v7, {2*p}, v3")
        a(f"v_add_u32 v8, {2*p+1}, v3")
        a("v_cndmask_b32 v6, v6, v7, vcc")
        a("v_cndmask_b32 v5, v5, v8, vcc")
        a(f"v_lshlrev_b32 v{100+2*p}, 1, v6")
        a(f"v_lshlrev_b32 v{101+2*p}, 1, v5")
    a("v_lshlrev_b32 v108, 4, v0")
    a("s_lshl_b32 s10, s4, 12")
    pack13_ids(a)
    a("s_cmp_lg_u32 s3, 3")
    a("s_cbranch_scc1 K1_A_MAIN")
    pack13_out_setup(a)
    a("s_barrier")
    a(f"s_cmp_ge_u32 s2, {N_PACK}")
    a("s_cbranch_scc1 K1_A_BAR2")
    pack13_out(a)
    a("s_branch K1_A_BAR2")
    a.label("K1_A_MAIN")
    pack13_dma_setup(a)
    a(f"s_mul_i32 s8, s3, {WREG}")
    a("v_lshlrev_b32 v3, 2, v1")
    a("v_add_u32 v3, s8, v3")
    a("v_and_b32 v4, 15, v1")
    a(f"v_mul_u32_u24 v4, {ROWP}, v4")
    a("v_lshrrev_b32 v5, 4, v1")
    a("v_lshl_add_u32 v4, v5, 4, v4")
    a("v_add_u32 v4, s8, v4")
    a("v_lshlrev_b32 v9, 4, v1")
    a("v_add_u32 v109, s8, v9")
    a("s_waitcnt lgkmcnt(0)")
    a("s_lshl_b32 s9, s7, 16")
    a("s_and_b32 s7, s7, 0xffff0000")
    a("s_bitcmp1_b32 s4, 0")
    a("s_cselect_b32 s7, s7, s9")
    a(f"v_mov_b32 v15, {f2u(LOG2E):#x}")
    a("v_mul_f32 v14, s7, v15")
    a("v_exp_f32 v14, v14")
    a("v_cvt_pk_bf16_f32 v14, v14, v14")
    a("v_lshlrev_b32 v14, 16, v14")
    a("s_waitcnt vmcnt(0)")
    stamp(a, 1)
    a(f"s_cmp_ge_u32 s2, {N_PACK}")
    a("s_cbranch_scc1 K1_A_NODMA")
    a("s_cmp_eq_u32 s3, 2")
    a("s_cbranch_scc1 K1_A_NODMA")
    pack13_dma(a)
    a.label("K1_A_NODMA")
    for r in (10, 11, 12, 13):
        a(f"v_lshlrev_b32 v{r}, 16, v{r}")
    a("v_mul_f32 v10, v10, v15")
    a("v_exp_f32 v10, v10")
    a("v_mul_f32 v11, v11, v14")
    a("v_cvt_pk_bf16_f32 v10, v10, v10")
    a("v_lshlrev_b32 v10, 16, v10")
    a("v_mul_f32 v10, v10, v14")
    a("v_mul_f32 v10, v10, v15")
    a(f"v_mul_f32 v11, {f2u(INV2PI):#x}, v11")
    a("v_add_f32 v14, v14, v14")
    Q0 = 40
    a(f"v_mul_f32 v{Q0}, v12, v14")
    a(f"v_mul_f32 v{Q0+1}, v13, v14")
    for k, p in enumerate((1.0, 8.0, 128.0)):
        a(f"v_mul_f32 v{24+k}, {f2u(-p):#x}, v10")
        a(f"v_mul_f32 v{28+k}, {f2u(p):#x}, v11")
    for k in range(3):
        a(f"v_exp_f32 v{24+k}, v{24+k}")
        a(f"v_fract_f32 v{28+k}, v{28+k}")
    for k in range(3):
        a(f"v_cos_f32 v{16+2*k}, v{28+k}")
        a(f"v_sin_f32 v{17+2*k}, v{28+k}")
    for k in range(3):
        a(f"v_mul_f32 v{16+2*k}, v{16+2*k}, v{24+k}")
        a(f"v_mul_f32 v{17+2*k}, v{17+2*k}, v{24+k}")
    W1, W8, W128 = 16, 18, 20
    tmp = [24, 25, 26, 27]
    tctr = [0]
    def put(r, reg, row, val, neg=False):
        t = tmp[tctr[0] % 4]; tctr[0] += 1
        r(f"v_cvt_pk_bf16_f32 v{t}, v{val}, {'-' if neg else ''}v{val+1}")
        r(f"ds_write_b32 v3, v{t} offset:{reg*RS + row*ROWP}")
    rb = Rec()
    rb("v_mov_b32 v27, 0x3f80"); rb(f"ds_write_b32 v3, v27 offset:0")
    W16 = 22
    cmul(rb, W16, W8, W8)
    put(rb, 0, 1, W8, True); put(rb, 0, 2, W16, True)
    ring = {1: W8, 2: W16}
    slots = [28, 30, 32, 34]
    for b in range(3, 16):
        d = slots[b % 4]
        cmul(rb, d, ring[b-2], W16); ring[b] = d
        put(rb, 0, b, d, True)
    wc = {1: W1}
    rw = Rec()
    for c, (x, y) in ((2, (1, 1)), (3, (2, 1)), (4, (2, 2)), (5, (4, 1)), (6, (4, 2)), (7, (4, 3))):
        wc[c] = 72 + 2 * (c - 2); cmul(rw, wc[c], wc[x], wc[y])
    rq = Rec()
    Q = {0: Q0}
    for q in range(1, 17):
        Q[q] = Q0 + 2 * q if q < 16 else 84
        cmul(rq, Q[q], Q[q-1], W128)
    for t in interleave(rb.l, rw.l + rq.l): a(t)
    pr = [28, 30, 32, 34]; pc = [0]
    def prod(reg, row, x, y):
        if y is None:
            put(a, reg, row, x); return
        d = pr[pc[0] % 4]; pc[0] += 1
        return (d, x, y, reg, row)
    def run(jobs):
        jobs = [j for j in jobs if j]
        for i, j in enumerate(jobs):
            cmul(a, j[0], j[1], j[2])
            if i: p = jobs[i-1]; put(a, p[3], p[4], p[0])
        p = jobs[-1]; put(a, p[3], p[4], p[0])
    run([prod(1, 8*ap + c, Q[ap], wc[c] if c else None) for ap in range(2) for c in range(8)])
    FB, F0, F1, F2 = 86, 110, 40, 72
    FB = 110
    FA = 86
    FA0 = 8
    return_regs = None
    for s in range(4):
        a(f"ds_read_b128 v[{FB+4*s}:{FB+4*s+3}], v4 offset:{s*64}")
    jobs = []
    for ap in range(2):
        for c in range(4):
            jobs.append(prod(0, 4*ap + c, Q[2+ap], wc[2*c] if c else None))
    for ap in range(4):
        for c in range(2):
            jobs.append(prod(0, 8 + 2*ap + c, Q[4+ap], wc[4] if c else None))
    run(jobs)
    FT0 = 40; FT1 = 8
    for s in range(4):
        a(f"ds_read_b128 v[{FT0+4*s}:{FT0+4*s+3}], v4 offset:{RS + s*64}")
    for s in range(4):
        a(f"ds_read_b128 v[{FT1+4*s}:{FT1+4*s+3}], v4 offset:{s*64}")
    for q in range(8, 17):
        put(a, 1, q - 8, Q[q])
    FT2 = 56
    for s in range(4):
        a(f"ds_read_b128 v[{FT2+4*s}:{FT2+4*s+3}], v4 offset:{RS + s*64}")
    ACC = 86
    a("s_waitcnt lgkmcnt(0)")
    for s in range(4):
        for t, F in enumerate((FT0, FT1, FT2)):
            c = f"v[{ACC+4*t}:{ACC+4*t+3}]"
            a(f"v_mfma_f32_16x16x32_bf16 {c}, v[{F+4*s}:{F+4*s+3}], v[{FB+4*s}:{FB+4*s+3}], {c if s else 0}")
    for t in range(3):
        a(f"ds_write_b128 v109, v[{ACC+4*t}:{ACC+4*t+3}] offset:{t*1024}")
    a("s_waitcnt vmcnt(0) lgkmcnt(0)")
    stamp(a, 2)
    a("s_barrier")
    a("s_lshl_b32 s8, s3, 10")
    a("v_lshlrev_b32 v5, 4, v1")
    a("v_add_u32 v5, s8, v5")
    for w in range(3):
        a(f"ds_read_b128 v[{8+4*w}:{11+4*w}], v5 offset:{w*WREG}")
    a("v_and_b32 v24, 15, v1")
    a("v_lshrrev_b32 v25, 4, v1")
    a("s_waitcnt lgkmcnt(0)")
    for j in (0, 2):
        a(f"v_pk_add_f32 v[{8+j}:{9+j}], v[{8+j}:{9+j}], v[{12+j}:{13+j}]")
    for j in (0, 2):
        a(f"v_pk_add_f32 v[{8+j}:{9+j}], v[{8+j}:{9+j}], v[{16+j}:{17+j}]")
    a("v_cvt_pk_bf16_f32 v20, v8, v9")
    a("v_cvt_pk_bf16_f32 v21, v10, v11")
    a("s_cmp_eq_u32 s3, 1")
    a("s_cbranch_scc1 K1_A_T1")
    a("s_cmp_eq_u32 s3, 2")
    a("s_cbranch_scc1 K1_A_T2")
    a("v_lshrrev_b32 v26, 1, v25")
    a("v_lshlrev_b32 v26, 8, v26")
    a("v_and_b32 v27, 1, v25")
    a("v_lshl_add_u32 v26, v27, 3, v26")
    a("v_lshl_add_u32 v26, v24, 4, v26")
    a(f"ds_write_b64 v26, v[20:21] offset:{TAB}")
    a("s_branch K1_A_W")
    a.label("K1_A_T1")
    a("v_cmp_gt_u32 vcc, 2, v25")
    a("v_lshlrev_b32 v26, 3, v24")
    a("v_lshlrev_b32 v27, 2, v24")
    a("v_mov_b32 v28, 64")
    a("v_cndmask_b32 v26, v27, v26, vcc")
    a("v_cndmask_b32 v28, v28, 4, vcc")
    a("v_lshl_add_u32 v26, v25, 7, v26")
    a("v_add_u32 v28, v28, v26")
    a(f"ds_write_b32 v26, v20 offset:{TAB + 512}")
    a(f"ds_write_b32 v28, v21 offset:{TAB + 512}")
    a("s_branch K1_A_W")
    a.label("K1_A_T2")
    a("v_lshlrev_b32 v26, 1, v24")
    a("v_lshl_add_u32 v26, v25, 7, v26")
    a(f"ds_write_b16 v26, v20 offset:{TAB + 1024}")
    a(f"ds_write_b16_d16_hi v26, v20 offset:{TAB + 1024 + 32}")
    a(f"ds_write_b16 v26, v21 offset:{TAB + 1024 + 64}")
    a(f"ds_write_b16_d16_hi v26, v21 offset:{TAB + 1024 + 96}")
    a.label("K1_A_W")
    a("s_waitcnt lgkmcnt(0)")
    a.label("K1_A_BAR2")
    a("s_barrier")
    stamp(a, 3)
    for p in range(4):
        a(f"ds_read_u16 v{8+p}, v{100+2*p} offset:{TAB}")
        a(f"ds_read_u16_d16_hi v{12+p}, v{101+2*p} offset:{TAB}")
    a("s_waitcnt lgkmcnt(0)")
    for p in range(4):
        a(f"v_or_b32 v{8+p}, v{8+p}, v{12+p}")
    a("buffer_store_dwordx4 v[8:11], v108, s[44:47], s10 offen")
    a("s_endpgm")
```

```python
from asmlib import *
from layout import *
from k1 import srd
import k1

PARTS = [(0, 16), (16, 25), (25, 32)]
N_CONV = 240; ID_CS = 240; K2_GRID = 256; K2_BLOCK = 576
UB = 0; UPAD = 2048; KB = UPAD + 32768; KP = 4416
PKB = KB + 8 * KP
K2_LDS = PKB + 8192
K2_VGPR = 160

def gen_k2(a):
    a.raw(kernel_header("conv_kernel"))
    a(f"s_cmp_ge_u32 s2, {K2_GRID}")
    a("s_cbranch_scc1 K2_END")
    a("s_load_dwordx2 s[16:17], s[0:1], 0")
    a("s_load_dwordx2 s[28:29], s[0:1], 48")
    a("s_load_dwordx2 s[36:37], s[0:1], 80")
    a("s_load_dwordx2 s[40:41], s[0:1], 104")
    a("v_lshrrev_b32 v2, 6, v0")
    a("v_and_b32 v1, 63, v0")
    a("v_readfirstlane_b32 s3, v2")
    a(f"s_cmp_ge_u32 s2, {ID_CS}")
    a("s_cbranch_scc1 K2_CS")
    a("s_cmp_eq_u32 s3, 8")
    a("s_cbranch_scc1 K2_W2")
    a("s_cmp_ge_u32 s2, 80")
    a("s_cselect_b32 s7, 1, 0")
    a("s_cmp_ge_u32 s2, 160")
    a("s_cselect_b32 s6, 2, s7")
    a("s_mul_i32 s5, s6, 80")
    a("s_sub_u32 s4, s2, s5")
    a("s_and_b32 s5, s4, 7")
    a("s_mul_i32 s5, s5, 10")
    a("s_lshr_b32 s4, s4, 3")
    a("s_add_u32 s4, s4, s5")
    a("v_lshlrev_b32 v2, 4, v1")
    a("v_lshrrev_b32 v3, 4, v1")
    a("v_bfe_u32 v4, v1, 2, 2")
    a("v_and_b32 v5, 3, v1")
    a(f"s_mul_i32 s8, s3, {KP}")
    a(f"s_add_u32 s8, s8, {KB}")
    a("s_lshl_b32 s9, s4, 4")
    a("s_lshl_b32 s10, s4, 3")
    a("s_add_u32 s10, s10, s3")
    a("s_lshl_b32 s10, s10, 12")
    a("s_lshl_b32 s11, s4, 15")
    a("s_lshl_b32 s12, s3, 10")
    a("s_add_u32 s11, s11, s12")
    a(f"s_add_u32 s12, s12, {UB + UPAD}")
    a("s_add_u32 m0, s8, 128")
    a("s_waitcnt lgkmcnt(0)")
    srd(a, 44, 40, K_OFF, SZ_X); srd(a, 48, 40, U_OFF, SZ_X)
    a("s_load_dwordx4 s[60:63], s[28:29], s9")
    a("s_cmp_eq_u32 s6, 1")
    a("s_cbranch_scc1 K2_P1")
    a("s_cmp_eq_u32 s6, 2")
    a("s_cbranch_scc1 K2_P2")
    for p in range(3):
        if p: a.label(f"K2_P{p}")
        conv_part(a, p)
    a.label("K2_CS"); role_cs(a)
    a.label("K2_W2"); role_w2(a)
    a.label("K2_END")
    a("s_endpgm")

def conv_part(a, p):
    Ts, Te = PARTS[p]; Tf = max(Ts - 1, 0)
    Qmax = (Te - 1) // 2
    nK = -(-(Qmax + 1) * 256 // 1024); nU = -(-Te // 8); nX = -(-(Te - Ts) // 8)
    vm = Cnt(a, "vmcnt", 63); ds = Cnt(a, "lgkmcnt", 15)
    for i in range(nK):
        a(f"buffer_load_dwordx4 v2, s[44:47], s10 offen offset:{i*1024} lds"); vm.issue("K")
    for k in range(nU):
        a(f"s_add_u32 m0, s12, {k*8192}")
        a(f"s_add_u32 s13, s11, {k*8192}")
        a(f"buffer_load_dwordx4 v2, s[48:51], s13 offen lds"); vm.issue("U")
    srd(a, 52, 16, 0, SZ_X); srd(a, 56, 40, H_OFF, SZ_X)
    XR = 8
    a("v_mul_u32_u24 v6, 1280, v1")
    a("s_mul_i32 s13, s3, 81920")
    a("s_add_u32 s13, s13, s9")
    for i in range(nX):
        a(f"s_add_u32 s14, s13, {(Ts + 8*i) * 81920}")
        a(f"buffer_load_dwordx4 v[{XR+4*i}:{XR+4*i+3}], v6, s[52:55], s14 offen"); vm.issue("X")
    a("v_mov_b32 v7, 0")
    a("v_and_b32 v6, 31, v1")
    a("v_lshlrev_b32 v6, 2, v6")
    a("v_add_u32 v6, s8, v6")
    a("ds_write_b32 v6, v7")
    a("v_lshlrev_b32 v6, 2, v0")
    a(f"ds_write_b32 v6, v7 offset:{UB}")
    a("v_lshlrev_b32 v16, 6, v3")
    a("v_lshl_add_u32 v16, v4, 3, v16")
    a("v_lshl_add_u32 v16, v5, 5, v16")
    a("v_add_u32 v16, s8, v16")
    a("s_lshr_b32 s14, s3, 1")
    a("s_and_b32 s15, s3, 1")
    a("s_lshl_b32 s15, s15, 3")
    for h in range(2):
        a(f"v_add_u32 v6, {44 - 4*h}, v5")
        a("v_sub_u32 v6, v6, v4")
        a("v_lshlrev_b32 v7, 3, v3")
        a("v_sub_u32 v6, v6, v7")
        a("v_lshrrev_b32 v7, 2, v6")
        a("v_add_u32 v7, s14, v7")
        a("v_and_b32 v7, 3, v7")
        a("v_lshlrev_b32 v6, 6, v6")
        a("v_lshl_add_u32 v6, v7, 4, v6")
        a(f"v_add_u32 v{17+h}, s15, v6")
    a("v_lshlrev_b32 v19, 1, v1")
    a("v_add_u32 v19, s8, v19")
    a("s_mov_b32 s70, 0"); a("s_mov_b32 s71, 0x80000000")
    a("s_mov_b32 s72, 0"); a("s_mov_b32 s73, 0xc0000000")
    a("s_mov_b32 s74, 0"); a("s_mov_b32 s75, 0xe0000000")
    FR = 24; GR = FR + 4 * (Qmax + 1); NG = 8; AR = GR + 4 * NG
    TR = 20
    acc = lambda T: AR + 4 * (T - Tf)
    assert acc(Te - 1) + 3 < K2_VGPR - 8
    T2 = K2_VGPR - 8
    vm.wait("K")
    for Q in range(Qmax, -1, -1):
        for h in range(2):
            a(f"ds_read_b64_tr_b16 v[{FR+4*Q+2*h}:{FR+4*Q+2*h+1}], v16 offset:{32 + 256*Q + 32*h}"); ds.issue(("F", Q))
    vm.wait("U")
    stamp(a, 0)
    a("s_waitcnt lgkmcnt(0)"); ds.q = []
    a("s_barrier")
    stamp(a, 1)
    def gread(d):
        g = GR + 4 * (d % NG)
        for h in range(2):
            a(f"ds_read_b64_tr_b16 v[{g+2*h}:{g+2*h+1}], v{17+h} offset:{UB + 1024*d}"); ds.issue(("G", d))
    PD = 6
    for d in range(min(PD, Te)): gread(d)
    started = set()
    pend = []
    def combine(T):
        t = T2 + 4 * (T % 2); D = acc(T)
        out = []
        for e, m in ((3, 74), (2, 72), (1, 70)):
            prev = f"v{acc(T-1)+e}" if T > 0 else "0"
            out.append(f"v_cndmask_b32 v{t+e}, v{D+e}, {prev}, s[{m}:{m+1}]")
        out.append(f"v_add_f32_dpp v{t+2}, v{t+3}, v{t+2} wave_ror:1 row_mask:0xf bank_mask:0xf")
        out.append(f"v_add_f32_dpp v{t+1}, v{t+2}, v{t+1} wave_ror:1 row_mask:0xf bank_mask:0xf")
        out.append(f"v_add_f32_dpp v{t}, v{t+1}, v{D} wave_ror:1 row_mask:0xf bank_mask:0xf")
        out.append(f"v_cvt_pk_bf16_f32 v{t}, v{t}, v{t}")
        out.append(f"ds_write_b16 v19, v{t} offset:{128 + (T-Ts)*128}")
        return out
    def side(n):
        for _ in range(n):
            if pend:
                t = pend.pop(0); a(t)
                if t.startswith("ds_"): ds.issue("Y")
    for d in range(Te):
        ds.wait(("G", d))
        g = GR + 4 * (d % NG)
        Ts_here = [T for T in range(max(d, Tf), Te) if (T - d) % 2 == 0]
        for T in Ts_here:
            Q = (T - d) // 2
            c = f"v[{acc(T)}:{acc(T)+3}]"
            a(f"v_mfma_f32_16x16x32_bf16 {c}, v[{FR+4*Q}:{FR+4*Q+3}], v[{g}:{g+3}], {c if T in started else 0}")
            started.add(T)
            side(2)
        if d + PD < Te: gread(d + PD)
        if d - 1 >= Ts: pend += combine(d - 1)
    pend += combine(Te - 1)
    side(100)
    a("s_waitcnt lgkmcnt(0)")
    stamp(a, 2)
    a("s_barrier")
    for i in range(4):
        a(f"s_lshl_b32 s{64+2*i}, s{60+i}, 16")
        a(f"s_and_b32 s{65+2*i}, s{60+i}, 0xffff0000")
    a(f"v_mul_u32_u24 v16, {KP}, v4")
    a("v_lshl_add_u32 v16, v3, 5, v16")
    a("v_lshl_add_u32 v16, v5, 3, v16")
    a("s_lshl_b32 s13, s3, 7")
    a("v_add_u32 v16, s13, v16")
    a("v_lshl_add_u32 v6, v3, 2, v5")
    a("v_lshlrev_b32 v6, 6, v6")
    a("v_and_b32 v7, 1, v4")
    a("v_lshl_add_u32 v6, v7, 3, v6")
    a("v_add_u32 v6, s12, v6")
    a("v_lshrrev_b32 v7, 1, v4")
    a("v_add_u32 v7, v7, v3")
    for h in range(2):
        a(f"v_add_u32 v19, {2*h}, v7")
        a("v_and_b32 v19, 3, v19")
        a(f"v_lshl_add_u32 v{17+h}, v19, 4, v6")
    a("v_mul_u32_u24 v19, 20480, v3")
    a("v_and_b32 v6, 15, v1")
    a("v_lshl_add_u32 v19, v6, 4, v19")
    a("s_mul_i32 s13, s3, 81920")
    a("s_lshl_b32 s14, s4, 8")
    a("s_add_u32 s13, s13, s14")
    for i in range(nX):
        lim = Te - Ts - 8 * i
        if lim < 8:
            a(f"s_cmp_ge_u32 s3, {lim}")
            a("s_cbranch_scc1 K2_END")
        Y = 24 + 32 * i; U = Y + 4; A = Y + 8; B = Y + 16; O = Y + 24
        for h in range(2):
            a(f"ds_read_b64_tr_b16 v[{Y+2*h}:{Y+2*h+1}], v16 offset:{KB + 128 + h*4*KP + i*1024}")
        for h in range(2):
            a(f"ds_read_b64_tr_b16 v[{U+2*h}:{U+2*h+1}], v{17+h} offset:{(Ts + 8*i)*1024}")
        a(f"s_add_u32 s14, s13, {(Ts + 8*i) * 81920}")
        a(f"s_waitcnt vmcnt({nX-1-i + i})")
        X = XR + 4 * i
        for q in range(4):
            a(f"v_lshlrev_b32 v{B+2*q}, 16, v{X+q}")
            a(f"v_and_b32 v{B+2*q+1}, 0xffff0000, v{X+q}")
        a("s_waitcnt lgkmcnt(2)")
        for q in range(4):
            a(f"v_lshlrev_b32 v{A+2*q}, 16, v{Y+q}")
            a(f"v_and_b32 v{A+2*q+1}, 0xffff0000, v{Y+q}")
        for q in range(4):
            a(f"v_pk_add_f32 v[{B+2*q}:{B+2*q+1}], v[{B+2*q}:{B+2*q+1}], v[{A+2*q}:{A+2*q+1}]")
        a("s_waitcnt lgkmcnt(0)")
        for q in range(4):
            a(f"v_lshlrev_b32 v{A+2*q}, 16, v{U+q}")
            a(f"v_and_b32 v{A+2*q+1}, 0xffff0000, v{U+q}")
        for q in range(4):
            a(f"v_pk_fma_f32 v[{B+2*q}:{B+2*q+1}], v[{A+2*q}:{A+2*q+1}], s[{64+2*q}:{65+2*q}], v[{B+2*q}:{B+2*q+1}]")
        for q in range(4):
            a(f"v_cvt_pk_bf16_f32 v{O+q}, v{B+2*q}, v{B+2*q+1}")
        a(f"buffer_store_dwordx4 v[{O}:{O+3}], v19, s[56:59], s14 offen")
    a("s_endpgm")

def role_cs(a):
    a("s_cmp_ge_u32 s3, 3")
    a("s_cbranch_scc1 K2_END")
    a(f"s_sub_u32 s4, s2, {ID_CS}")
    a("s_mul_i32 s4, s4, 768")
    a("v_lshlrev_b32 v2, 2, v0")
    a("s_waitcnt lgkmcnt(0)")
    srd(a, 44, 40, CSP_OFF, 20*12288); srd(a, 48, 40, CS_OFF, 12288)
    for i in range(20):
        a(f"s_add_u32 s6, s4, {i*12288}")
        a(f"buffer_load_dword v{8+i}, v2, s[44:47], s6 offen")
    a("s_waitcnt vmcnt(0)")
    n = 20
    while n > 1:
        h = n // 2
        for i in range(h):
            a(f"v_add_f32 v{8+i}, v{8+i}, v{8+n-1-i}")
        n -= h
    a("buffer_store_dword v8, v2, s[48:51], s4 offen")
    a("s_endpgm")

def role_w2(a):
    a("s_mov_b32 s4, s2")
    m5 = magic(5, 240, 16); m3 = magic(3, 64, 16)
    a(f"s_mul_i32 s5, s4, {m5}")
    a("s_lshr_b32 s5, s5, 16")
    a("s_mul_i32 s6, s5, 5")
    a("s_sub_u32 s6, s4, s6")
    a(f"s_mul_i32 s7, s5, {m3}")
    a("s_lshr_b32 s7, s7, 16")
    a("s_mul_i32 s8, s7, 3")
    a("s_sub_u32 s8, s5, s8")
    a("v_lshrrev_b32 v3, 4, v1")
    a("v_and_b32 v4, 1, v3")
    a("v_lshrrev_b32 v3, 1, v3")
    a("v_lshl_add_u32 v5, v3, 3, v4")
    a("s_mul_i32 s9, s8, 24")
    a("s_lshl_b32 s10, s8, 3")
    a("s_add_u32 s10, s10, 72")
    a("s_add_u32 s11, s9, 16")
    a("v_mov_b32 v6, s11")
    a("v_mov_b32 v7, s10")
    a("v_cmp_eq_u32 vcc, 0, v3")
    a("v_add_u32 v5, s9, v5")
    a("v_cndmask_b32 v6, v7, v6, vcc")
    a("v_add_u32 v6, v6, v4")
    a("v_and_b32 v7, 15, v1")
    a("v_lshlrev_b32 v7, 4, v7")
    a("v_mul_u32_u24 v5, 1280, v5")
    a("v_mul_u32_u24 v6, 1280, v6")
    a("v_add_u32 v5, v5, v7")
    a("v_add_u32 v6, v6, v7")
    a("s_mul_i32 s12, s7, 122880")
    a("s_lshl_b32 s13, s6, 8")
    a("s_add_u32 s12, s12, s13")
    a(f"s_mov_b32 s9, {PKB}")
    a("v_lshrrev_b32 v8, 4, v1")
    a("v_bfe_u32 v9, v1, 2, 2")
    a("v_lshl_add_u32 v8, v8, 3, v9")
    a("v_lshlrev_b32 v8, 8, v8")
    a("v_and_b32 v9, 3, v1")
    a("v_lshl_add_u32 v8, v9, 3, v8")
    a("v_add_u32 v8, s9, v8")
    a("v_lshlrev_b32 v9, 4, v1")
    a("s_lshl_b32 s10, s6, 3")
    a("s_mul_i32 s11, s5, 5120")
    for i in range(8):
        a(f"s_add_u32 s13, s10, {i}")
        a(f"s_mul_i32 s14, s13, {m5}")
        a("s_lshr_b32 s14, s14, 16")
        a(f"s_mul_i32 s14, s14, {245760 - 5120}")
        a("s_lshl_b32 s13, s13, 10")
        a("s_add_u32 s14, s14, s13")
        a(f"s_add_u32 s{60+i}, s14, s11")
    a("s_waitcnt lgkmcnt(0)")
    srd(a, 44, 36, 0, 1966080); srd(a, 48, 40, W2_OFF, 1966080)
    for i in range(8):
        a(f"s_add_u32 m0, s9, {i*1024}")
        a(f"s_add_u32 s13, s12, {(i>>1)*2*1280}")
        a(f"buffer_load_dwordx4 v{5 + (i&1)}, s[44:47], s13 offen lds")
    a("s_barrier")
    a("s_waitcnt vmcnt(0)")
    for i in range(8):
        for h in range(2):
            a(f"ds_read_b64_tr_b16 v[{16+4*i+2*h}:{17+4*i+2*h}], v8 offset:{h*1024 + i*32}")
    for i in range(8):
        a(f"s_waitcnt lgkmcnt({14-2*i})")
        a(f"buffer_store_dwordx4 v[{16+4*i}:{19+4*i}], v9, s[48:51], s{60+i} offen")
    a("s_endpgm")
```

```python
from asmlib import *
from layout import *
from k1 import srd
import os
K3_LDS = 163840
STATS_INLOOP = int(os.environ.get("K3_STATS", "1"))

def gen_k3(a):
    a.raw(kernel_header("gemm1_kernel"))
    a("s_cmp_ge_u32 s2, 256")
    a("s_cbranch_scc1 K3_END")
    a("s_load_dwordx2 s[40:41], s[0:1], 104")
    a("v_lshrrev_b32 v2, 6, v0")
    a("v_and_b32 v1, 63, v0")
    a("v_readfirstlane_b32 s3, v2")
    a("v_lshlrev_b32 v2, 4, v1")
    a("s_bfe_u32 s4, s2, 0x20001")
    a("s_lshl_b32 s4, s4, 2")
    a("s_bfe_u32 s5, s2, 0x20003")
    a("s_add_u32 s4, s4, s5")
    a("s_and_b32 s5, s2, 1")
    a("s_lshl_b32 s5, s5, 3")
    a("s_lshr_b32 s6, s2, 5")
    a("s_add_u32 s5, s5, s6")
    a("s_mul_i32 s6, s3, 40960")
    a("s_mul_i32 s7, s4, 163840")
    a("s_add_u32 s7, s7, s6")
    a("s_lshl_b32 s8, s5, 2")
    a("s_add_u32 s8, s8, s3")
    a("s_mul_i32 s9, s8, 61440")
    a("s_waitcnt lgkmcnt(0)")
    srd(a, 44, 40, H_OFF, SZ_X); srd(a, 48, 40, W13_OFF, 3932160)
    vm = Cnt(a, "vmcnt", 63); ds = Cnt(a, "lgkmcnt", 15)
    items = []
    for s in range(20):
        items += [("h", s, 0), ("w", s, 0), ("w", s, 1), ("h", s, 1), ("w", s, 2)]
        if s == 14: items.append(("cs", 0, 0))
    CSR = 16
    def issue_item():
        if not items: return
        kd, s, x = items.pop(0)
        if os.environ.get("K3_NOLOAD", "-") .find(kd[0]) >= 0: return
        if kd == "h":
            off = x * 20480 + (s & ~3) * 1024
            a(f"s_add_u32 m0, s6, {off}")
            a(f"s_add_u32 s10, s7, {off}")
            a(f"buffer_load_dwordx4 v2, s[44:47], s10 offen offset:{(s&3)*1024} lds"); vm.issue(s)
        elif kd == "w":
            idx = 3 * s + x
            a(f"s_add_u32 s11, s9, {(idx & ~3) * 1024}")
            a(f"buffer_load_dwordx4 a[{4*idx}:{4*idx+3}], v2, s[48:51], s11 offen offset:{(idx&3)*1024}"); vm.issue(s)
        else:
            for t in range(3):
                a(f"buffer_load_dwordx4 v[{CSR+4*t}:{CSR+4*t+3}], v3, s[52:55], s17 offen offset:{t*64}"); vm.issue("cs")
    PRO = int(os.environ.get("K3_PRO", "25")); GAP = int(os.environ.get("K3_GAP", "4")); BARK = int(os.environ.get("K3_BARK", "1"))
    for _ in range(PRO): issue_item()
    a("v_lshrrev_b32 v3, 4, v1")
    a("v_lshlrev_b32 v3, 4, v3")
    a("s_mul_i32 s17, s8, 192")
    srd(a, 52, 40, CS_OFF, 64*48*4); srd(a, 56, 40, HM_OFF, 6291456)
    a("s_lshl_b32 s12, s3, 1")
    a("s_lshl_b32 s15, s4, 3")
    for i in range(8):
        a(f"s_add_u32 s13, s12, {i}")
        a("s_and_b32 s13, s13, 7")
        a("s_mul_i32 s14, s13, 20480")
        a(f"v_add_u32 v{8+i}, s14, v2")
        a("s_add_u32 s13, s13, s15")
        a("s_mul_i32 s13, s13, 49152")
        a("s_mul_i32 s14, s8, 768")
        a(f"s_add_u32 s{60+i}, s13, s14")
    ACC = 32; HB = 128; STR = 192
    acc = lambda i, t: ACC + 4 * (3 * i + t)
    hb = lambda s, i: HB + 32 * (s & 1) + 4 * i
    a("s_mov_b32 s16, 0x3f803f80")
    for r in range(4): a(f"v_mov_b32 v{28+r}, 0")
    def hread(s, i):
        if os.environ.get("K3_NODS"): return
        a(f"ds_read_b128 v[{hb(s,i)}:{hb(s,i)+3}], v{8+i} offset:{s*1024}"); ds.issue((s, i))
    vm.wait(0)
    stamp(a, 0)
    a("s_barrier")
    for i in range(8): hread(0, i)
    cnt = 0
    for s in range(20):
        if s + 1 < 20 and s % BARK == 0:
            vm.wait(min(s + BARK, 19))
            a("s_barrier")
        side = list(range(8)) if s + 1 < 20 else []
        for i in range(8):
            ds.wait((s, i))
            for t in range(3):
                c = f"v[{acc(i,t)}:{acc(i,t)+3}]"; w = 4 * (3 * s + t)
                if not os.environ.get("K3_NOMFMA"):
                    a(f"v_mfma_f32_16x16x32_bf16 {c}, a[{w}:{w+3}], v[{hb(s,i)}:{hb(s,i)+3}], {c if s else 0}")
                cnt += 1
                if t == 0 and side:
                    hread(s + 1, side.pop(0))
                if cnt % GAP == GAP - 1 and len(vm.q) < 60:
                    issue_item()
    assert not items
    if STATS_INLOOP:
        for s in range(20):
            for i in range(2):
                r0 = HB + 4 * ((2 * s + i) % 16)
                a(f"ds_read_b128 v[{r0}:{r0+3}], v{8+i} offset:{s*1024}"); ds.issue(("st", s, i))
            if s >= 6:
                for i in range(2):
                    ds.wait(("st", s - 6, i)); r0 = HB + 4 * ((2 * (s - 6) + i) % 16)
                    for r in range(4):
                        a(f"v_dot2_f32_bf16 v{28+2*i}, v{r0+r}, s16, v{28+2*i}")
                        a(f"v_dot2_f32_bf16 v{29+2*i}, v{r0+r}, v{r0+r}, v{29+2*i}")
        for s in range(14, 20):
            for i in range(2):
                ds.wait(("st", s, i)); r0 = HB + 4 * ((2 * s + i) % 16)
                for r in range(4):
                    a(f"v_dot2_f32_bf16 v{28+2*i}, v{r0+r}, s16, v{28+2*i}")
                    a(f"v_dot2_f32_bf16 v{29+2*i}, v{r0+r}, v{r0+r}, v{29+2*i}")
        a("s_barrier")
    stamp(a, 1)
    T = HB
    for sw in ("v_permlane32_swap_b32", "v_permlane16_swap_b32"):
        for r in range(4): a(f"v_mov_b32 v{T+r}, v{28+r}")
        for r in range(4): a(f"{sw} v{28+r}, v{T+r}")
        for r in range(4): a(f"v_add_f32 v{28+r}, v{28+r}, v{T+r}")
    a(f"v_mov_b32 v{T+8}, {f2u(1.0/640):#x}")
    steps = [
        lambda m, q, t: f"v_mul_f32 v{m}, v{m}, v{T+8}",
        lambda m, q, t: f"v_mul_f32 v{q}, v{q}, v{T+8}",
        lambda m, q, t: f"v_fma_f32 v{q}, -v{m}, v{m}, v{q}",
        lambda m, q, t: f"v_max_f32 v{q}, 0, v{q}",
        lambda m, q, t: f"v_cvt_pk_bf16_f32 v{t}, v{m}, v{q}",
        lambda m, q, t: f"v_lshlrev_b32 v{m}, 16, v{t}",
        lambda m, q, t: f"v_and_b32 v{q}, 0xffff0000, v{t}",
        lambda m, q, t: f"v_add_f32 v{q}, {f2u(1e-5):#x}, v{q}",
        lambda m, q, t: f"v_cvt_pk_bf16_f32 v{q}, v{q}, v{q}",
        lambda m, q, t: f"v_lshlrev_b32 v{q}, 16, v{q}",
        lambda m, q, t: f"v_sqrt_f32 v{q}, v{q}",
        lambda m, q, t: f"v_cvt_pk_bf16_f32 v{q}, v{q}, v{q}",
        lambda m, q, t: f"v_lshlrev_b32 v{q}, 16, v{q}",
    ]
    for st in steps:
        for i in range(2): a(st(28 + 2*i, 29 + 2*i, T + i))
    for i in range(2):
        a(f"ds_write_b64 v{8+i}, v[{28+2*i}:{29+2*i}]")
    a("s_waitcnt lgkmcnt(0)")
    a("s_barrier")
    for i in range(8):
        a(f"ds_read_b64 v[{STR+4*i}:{STR+4*i+1}], v{8+i}")
    a("v_mul_u32_u24 v3, 12, v1")
    a(f"v_mov_b32 v4, {f2u(-LOG2E):#x}")
    a("s_waitcnt vmcnt(0) lgkmcnt(0)")
    stamp(a, 2)
    for i in range(8): a(f"v_rcp_f32 v{STR+4*i+2}, v{STR+4*i+1}")
    for i in range(8): a(f"v_mul_f32 v{STR+4*i+1}, v{STR+4*i+1}, v{STR+4*i+1}")
    for i in range(8): a(f"v_mul_f32 v{STR+4*i+2}, v{STR+4*i+2}, v4")
    E = HB
    for i in range(8):
        S = STR + 4 * i; O = 224 + 4 * (i % 4)
        seqs = []
        for t in range(3):
            c = acc(i, t); e = E + 4 * t + 12 * (i % 2); cs = CSR + 4 * t
            seqs.append([
                f"v_pk_fma_f32 v[{c}:{c+1}], v[{cs}:{cs+1}], v[{S}:{S+1}], v[{c}:{c+1}] op_sel_hi:[1,0,1] neg_lo:[0,1,0] neg_hi:[0,1,0]",
                f"v_pk_fma_f32 v[{c+2}:{c+3}], v[{cs+2}:{cs+3}], v[{S}:{S+1}], v[{c+2}:{c+3}] op_sel_hi:[1,0,1] neg_lo:[0,1,0] neg_hi:[0,1,0]",
                f"v_pk_mul_f32 v[{e}:{e+1}], v[{c}:{c+1}], v[{S+2}:{S+3}] op_sel_hi:[1,0]",
                f"v_exp_f32 v{e}, v{e}",
                f"v_exp_f32 v{e+1}, v{e+1}",
                f"v_pk_mul_f32 v[{c}:{c+1}], v[{c}:{c+1}], v[{c+2}:{c+3}]",
                f"v_pk_fma_f32 v[{e}:{e+1}], v[{e}:{e+1}], v[{S}:{S+1}], v[{S}:{S+1}] op_sel:[0,1,1] op_sel_hi:[1,1,1]",
                f"v_rcp_f32 v{e}, v{e}",
                f"v_rcp_f32 v{e+1}, v{e+1}",
                f"v_pk_mul_f32 v[{c}:{c+1}], v[{c}:{c+1}], v[{e}:{e+1}]",
                f"v_cvt_pk_bf16_f32 v{O+t}, v{c}, v{c+1}",
            ])
        for j in range(len(seqs[0])):
            for sq in seqs: a(sq[j])
        a(f"buffer_store_dwordx3 v[{O}:{O+2}], v3, s[56:59], s{60+i} offen")
    a.label("K3_END")
    a("s_endpgm")
```

```python
from asmlib import *
from layout import *
from k1 import srd
import os
K34_LDS = 163840
HMSC = os.environ.get("K3_HMSC", "")
ENV = lambda k, d: int(os.environ.get(k, d))

def stat_finalize_steps(T):
    return [
        lambda m, q, t: f"v_mul_f32 v{m}, v{m}, v{T}",
        lambda m, q, t: f"v_mul_f32 v{q}, v{q}, v{T}",
        lambda m, q, t: f"v_fma_f32 v{q}, -v{m}, v{m}, v{q}",
        lambda m, q, t: f"v_max_f32 v{q}, 0, v{q}",
        lambda m, q, t: f"v_cvt_pk_bf16_f32 v{t}, v{m}, v{q}",
        lambda m, q, t: f"v_lshlrev_b32 v{m}, 16, v{t}",
        lambda m, q, t: f"v_and_b32 v{q}, 0xffff0000, v{t}",
        lambda m, q, t: f"v_add_f32 v{q}, {f2u(1e-5):#x}, v{q}",
        lambda m, q, t: f"v_cvt_pk_bf16_f32 v{q}, v{q}, v{q}",
        lambda m, q, t: f"v_lshlrev_b32 v{q}, 16, v{q}",
        lambda m, q, t: f"v_sqrt_f32 v{q}, v{q}",
        lambda m, q, t: f"v_cvt_pk_bf16_f32 v{q}, v{q}, v{q}",
        lambda m, q, t: f"v_lshlrev_b32 v{q}, 16, v{q}",
    ]

def gen_k34(a):
    a.raw(kernel_header("mlp_kernel"))
    a("s_cmp_ge_u32 s2, 256")
    a("s_cbranch_scc1 K3_END")
    a("s_load_dwordx2 s[38:39], s[0:1], 88")
    a("s_load_dwordx2 s[40:41], s[0:1], 104")
    a("v_lshrrev_b32 v2, 6, v0")
    a("v_and_b32 v1, 63, v0")
    a("v_readfirstlane_b32 s3, v2")
    a("v_lshlrev_b32 v2, 4, v1")
    a("s_bfe_u32 s4, s2, 0x20001")
    a("s_lshl_b32 s4, s4, 2")
    a("s_bfe_u32 s5, s2, 0x20003")
    a("s_add_u32 s4, s4, s5")
    a("s_lshr_b32 s18, s2, 5")
    a("s_and_b32 s19, s2, 1")
    a("s_lshl_b32 s5, s18, 1")
    a("s_add_u32 s5, s5, s19")
    a("s_mul_i32 s6, s3, 40960")
    a("s_mul_i32 s20, s4, 163840")
    a("s_add_u32 s7, s20, s6")
    a("s_lshl_b32 s8, s5, 2")
    a("s_add_u32 s8, s8, s3")
    a("s_mul_i32 s9, s8, 61440")
    a("s_mul_i32 s21, s18, 20480")
    a("s_add_u32 s21, s21, s20")
    a("s_mul_i32 s10, s3, 5120")
    a("s_add_u32 s21, s21, s10")
    a("s_mul_i32 s22, s18, 245760")
    a("s_mul_i32 s10, s3, 61440")
    a("s_add_u32 s22, s22, s10")
    a("s_waitcnt lgkmcnt(0)")
    srd(a, 44, 40, H_OFF, SZ_X); srd(a, 48, 40, W13_OFF, 3932160)
    vm = Cnt(a, "vmcnt", 63); ds = Cnt(a, "lgkmcnt", 15)
    ACC = 32; HB = 128; STR = 192; CSR = 16; CSP = 224
    acc = lambda i, t: ACC + 4 * (3 * i + t)
    hb = lambda s, i: HB + 32 * (s & 1) + 4 * i
    SF = HB + 32
    for i in range(5):
        if i == 4: a("s_add_u32 s21, s21, 4096")
        a(f"buffer_load_dwordx4 v[{SF+4*i}:{SF+4*i+3}], v2, s[44:47], s21 offen offset:{(i%4)*1024}"); vm.issue("sf")
    items = []
    for s in range(20):
        items += [("h", s, 0), ("w", s, 0), ("w", s, 1), ("h", s, 1), ("w", s, 2)]
        if s == 6: items.append(("cs", 0, 0))
        if s == ENV("K3_STPOS", 19): items.append(("st", 0, 0))
    for i in range(60): items.append(("w2", i, 0))
    w2lim = [ENV("K3_W2A", 40)]
    cur = [-1]
    def issue_item():
        if not items or len(vm.q) >= 60: return False
        kd, s, x = items[0]
        if kd == "w2" and (s // 3 > cur[0] or cur[0] < ENV("K3_W2START", 0) or s >= w2lim[0]): return False
        items.pop(0)
        if kd == "h":
            off = x * 20480 + (s & ~3) * 1024
            a(f"s_add_u32 m0, s6, {off}")
            a(f"s_add_u32 s10, s7, {off}")
            a(f"buffer_load_dwordx4 v2, s[44:47], s10 offen offset:{(s&3)*1024} lds"); vm.issue(s)
        elif kd == "w":
            idx = 3 * s + x
            a(f"s_add_u32 s11, s9, {(idx & ~3) * 1024}")
            a(f"buffer_load_dwordx4 a[{4*idx}:{4*idx+3}], v2, s[48:51], s11 offen offset:{(idx&3)*1024}"); vm.issue(s)
        elif kd == "w2":
            a(f"s_add_u32 s11, s22, {(s & ~3) * 1024}")
            a(f"buffer_load_dwordx4 a[{4*s}:{4*s+3}], v2, s[68:71], s11 offen offset:{(s&3)*1024}"); vm.issue(("w2", s))
        elif kd == "cs":
            for t in range(3):
                a(f"buffer_load_dwordx4 v[{CSR+4*t}:{CSR+4*t+3}], v3, s[52:55], s17 offen offset:{t*64}"); vm.issue("cs")
        elif kd == "st":
            st_loads()
        return True
    def st_loads():
        for i in range(8):
            a(f"buffer_load_dwordx2 v[{STR+4*i}:{STR+4*i+1}], v5, s[72:75], s{24+i} offen sc1"); vm.issue("st")
    PRO = ENV("K3_PRO", 12); GAP = ENV("K3_GAP", 4)
    for _ in range(PRO): issue_item()
    srd(a, 52, 40, CS_OFF, 64*192); srd(a, 56, 40, HM_OFF, 6291456)
    srd(a, 68, 40, W2_OFF, 1966080); srd(a, 72, 40, ST_OFF, 0x4000 + 64*128)
    a("v_and_b32 v6, 15, v1")
    a("v_lshrrev_b32 v7, 4, v1")
    a("v_lshlrev_b32 v3, 4, v7")
    a("s_mul_i32 s17, s8, 192")
    a("v_lshlrev_b32 v5, 3, v6")
    a("s_lshl_b32 s12, s3, 1")
    a("s_lshl_b32 s15, s4, 3")
    for i in range(8):
        a(f"s_add_u32 s13, s12, {i}")
        a("s_and_b32 s13, s13, 7")
        a("s_mul_i32 s14, s13, 20480")
        a(f"v_add_u32 v{8+i}, s14, v2")
        a("s_add_u32 s13, s13, s15")
        a(f"s_lshl_b32 s{24+i}, s13, 7")
    a("s_mov_b32 s16, 0x3f803f80")
    SCR = 7 * 20480 + 19 * 1024
    a("s_lshl_b32 s13, s3, 7")
    a("v_add_u32 v6, s13, v5")
    vm.wait("sf")
    for r in range(20):
        for k in range(2):
            d = 28 + 2 * (r % 2) + k
            src2 = "s16" if k == 0 else f"v{SF+r}"
            a(f"v_dot2_f32_bf16 v{d}, v{SF+r}, {src2}, {'0' if r < 2 else 'v%d' % d}")
        if r % 2 == 1: issue_item()
    a("v_pk_add_f32 v[28:29], v[28:29], v[30:31]")
    for sw in ("v_permlane32_swap_b32", "v_permlane16_swap_b32"):
        for r in range(2): a(f"v_mov_b32 v{30+r}, v{28+r}")
        for r in range(2): a(f"{sw} v{28+r}, v{30+r}")
        a("v_pk_add_f32 v[28:29], v[28:29], v[30:31]")
    a(f"ds_write_b64 v6, v[28:29] offset:{SCR - 65536*2}") if False else None
    a(f"v_add_u32 v6, {SCR}, v6")
    a(f"v_add_u32 v7, {SCR}, v5")
    a("ds_write_b64 v6, v[28:29]")
    a("s_waitcnt lgkmcnt(0)")
    def hread(s, i):
        a(f"ds_read_b128 v[{hb(s,i)}:{hb(s,i)+3}], v{8+i} offset:{s*1024}"); ds.issue((s, i))
    vm.wait(0)
    stamp(a, 0)
    a("s_barrier")
    for i in range(8): hread(0, i)
    P = 240
    side = [("ds", f"ds_read_b64 v[{P+2*i}:{P+2*i+1}], v7 offset:{i*128}") for i in range(4)]
    side += [("v", f"v_mov_b32 v{P+8}, {f2u(1.0/640):#x}"),
             ("v", "s_lshl_b32 s13, s19, 3"), ("v", "s_lshl_b32 s14, s3, 1"), ("v", "s_add_u32 s13, s13, s14"),
             ("v", "s_lshl_b64 s[32:33], 3, s13"),
             ("v", "s_lshl_b32 s13, s4, 3"), ("v", "s_add_u32 s13, s13, s18"), ("v", "s_lshl_b32 s34, s13, 7"),
             ("w", None),
             ("v", f"v_add_f32 v{P}, v{P}, v{P+2}"), ("v", f"v_add_f32 v{P+1}, v{P+1}, v{P+3}"),
             ("v", f"v_add_f32 v{P+4}, v{P+4}, v{P+6}"), ("v", f"v_add_f32 v{P+5}, v{P+5}, v{P+7}"),
             ("v", f"v_add_f32 v{P}, v{P}, v{P+4}"), ("v", f"v_add_f32 v{P+1}, v{P+1}, v{P+5}")]
    side += [("v", st(P, P + 1, P + 2)) for st in stat_finalize_steps(P + 8)]
    side += [("x", None)]
    def do_side():
        if not side: return
        k, t = side.pop(0)
        if k == "ds": a(t); ds.issue("sp")
        elif k == "w": ds.wait("sp")
        elif k == "v": a(t)
        else:
            a("s_mov_b64 exec, s[32:33]")
            a(f"buffer_store_dwordx2 v[{P}:{P+1}], v5, s[72:75], s34 offen sc1"); vm.issue("gs")
            a("s_mov_b64 exec, -1")
    KM = ENV("K3_KM", 12); PK = ENV("K3_PK", 0)
    for s in range(KM):
        assert not any(kd in "hw" and x == s + 1 for kd, x, _ in items)
        if s + 1 < KM:
            vm.wait(s + 1)
            a("s_barrier")
        nxt = list(range(8)) if s + 1 < KM else []
        for i in range(8):
            ds.wait((s, i))
            for t in range(3):
                c = f"v[{acc(i,t)}:{acc(i,t)+3}]"; w = 4 * (3 * s + t)
                a(f"v_mfma_f32_16x16x32_bf16 {c}, a[{w}:{w+3}], v[{hb(s,i)}:{hb(s,i)+3}], {c if s else 0}")
                if t == 0 and nxt: hread(s + 1, nxt.pop(0))
                elif t == 1 and (i % GAP != GAP - 1) and issue_item(): pass
                else: do_side()
        cur[0] = s
    while side: do_side()
    while items[0][0] != "w2": assert issue_item()
    stamp(a, 1)
    a("s_mov_b32 s35, 0")
    a.label("K3_STCHK")
    vm.wait("st")
    saved_q = list(vm.q)
    a(f"v_min_u32 v6, v{STR+1}, v{STR+5}")
    for i in range(2, 8): a(f"v_min_u32 v6, v6, v{STR+4*i+1}")
    a("v_cmp_eq_u32 vcc, 0, v6")
    a("s_cbranch_vccz K3_STOK")
    a("s_add_u32 s35, s35, 1")
    a("s_cmp_ge_u32 s35, 0x4000")
    a("s_cbranch_scc1 K3_STOK")
    a("s_sleep 4")
    st_loads()
    a("s_waitcnt vmcnt(0)")
    a("s_branch K3_STCHK")
    a.label("K3_STOK")
    vm.q = saved_q
    if KM < 20: a("s_barrier")
    a("s_lshl_b32 s13, s3, 10")
    order = [(s, i) for i in range(8) for s in range(KM, 20)]
    ring = lambda n: HB + 4 * (n % 14)
    def rread(n):
        s, i = order[n]
        a(f"ds_read_b128 v[{ring(n)}:{ring(n)+3}], v{8+i} offset:{s*1024}"); ds.issue(("r", n))
    def epi(i, var):
        S = STR + 4 * i; O = 224 + 4 * (i % 2); out = []
        seqs = []
        for t in range(3):
            c = acc(i, t); e = 232 + 2 * t if True else 0; cs = CSR + 4 * t
            if PK:
                seqs.append([
                f"v_pk_fma_f32 v[{c}:{c+1}], v[{cs}:{cs+1}], v[{S}:{S+1}], v[{c}:{c+1}] op_sel_hi:[1,0,1] neg_lo:[0,1,0] neg_hi:[0,1,0]",
                f"v_pk_fma_f32 v[{c+2}:{c+3}], v[{cs+2}:{cs+3}], v[{S}:{S+1}], v[{c+2}:{c+3}] op_sel_hi:[1,0,1] neg_lo:[0,1,0] neg_hi:[0,1,0]",
                f"v_pk_mul_f32 v[{e}:{e+1}], v[{c}:{c+1}], v[{S+2}:{S+3}] op_sel_hi:[1,0]",
                f"v_exp_f32 v{e}, v{e}",
                f"v_exp_f32 v{e+1}, v{e+1}",
                f"v_pk_mul_f32 v[{c}:{c+1}], v[{c}:{c+1}], v[{c+2}:{c+3}]",
                f"v_pk_fma_f32 v[{e}:{e+1}], v[{e}:{e+1}], v[{S}:{S+1}], v[{S}:{S+1}] op_sel:[0,1,1] op_sel_hi:[1,1,1]",
                f"v_rcp_f32 v{e}, v{e}",
                f"v_rcp_f32 v{e+1}, v{e+1}",
                f"v_pk_mul_f32 v[{c}:{c+1}], v[{c}:{c+1}], v[{e}:{e+1}]",
                f"v_cvt_pk_bf16_f32 v{O+t}, v{c}, v{c+1}"])
            else:
                seqs.append(
                [f"v_fma_f32 v{c+r}, -v{S}, v{cs+r}, v{c+r}" for r in range(2)] +
                [f"v_mul_f32 v{e+r}, v{c+r}, v{S+2}" for r in range(2)] +
                [f"v_exp_f32 v{e}, v{e}", f"v_fma_f32 v{c+2}, -v{S}, v{cs+2}, v{c+2}",
                 f"v_exp_f32 v{e+1}, v{e+1}", f"v_fma_f32 v{c+3}, -v{S}, v{cs+3}, v{c+3}"] +
                [f"v_mul_f32 v{c+r}, v{c+r}, v{c+2+r}" for r in range(2)] +
                [f"v_fma_f32 v{e+r}, v{e+r}, v{S+1}, v{S+1}" for r in range(2)] +
                [f"v_rcp_f32 v{e+r}, v{e+r}" for r in range(2)] +
                [f"v_mul_f32 v{c+r}, v{c+r}, v{e+r}" for r in range(2)] +
                [f"v_cvt_pk_bf16_f32 v{O+t}, v{c}, v{c+1}"])
        for j in range(len(seqs[0])):
            for sq in seqs: out.append(sq[j])
        if var == 0:
            out.append(f"v_add_u32 v6, s13, v{8+i}")
            out.append(f"ds_write_b96 v6, v[{O}:{O+2}]")
        else:
            out += [f"ds_write_b32 v{8+i}, v{O+t} offset:{t*1024 + 12}" for t in range(3)]
        return out
    pre = [f"v_mov_b32 v4, {f2u(-LOG2E):#x}"]
    pre += [f"v_rcp_f32 v{STR+4*i+2}, v{STR+4*i+1}" for i in range(8)]
    pre += [f"v_mul_f32 v{STR+4*i+1}, v{STR+4*i+1}, v{STR+4*i+1}" for i in range(8)]
    pre += [f"v_mul_f32 v{STR+4*i+2}, v{STR+4*i+2}, v4" for i in range(8)]
    PD = 6
    for n in range(min(PD, len(order))): rread(n)
    items_save = list(items); q_save = list(vm.q); dq_save = list(ds.q); cur_save = cur[0]
    a("s_cmp_eq_u32 s3, 3")
    a("s_cbranch_scc1 K3_EPI3")
    for var in range(2):
        if var:
            a.label("K3_EPI3")
            items[:] = items_save; vm.q = list(q_save); ds.q = list(dq_save); cur[0] = cur_save
        sj = list(pre)
        def emit_side(budget):
            while sj and budget > 0:
                t = sj.pop(0); a(t)
                if t.startswith("ds_"): ds.issue("e")
                budget -= 8 if t.split()[0] in TRANS else 4
        nm = len(order) * 3; m = 0
        for n, (s, i) in enumerate(order):
            ds.wait(("r", n))
            for t in range(3):
                c = f"v[{acc(i,t)}:{acc(i,t)+3}]"; w = 4 * (3 * s + t)
                a(f"v_mfma_f32_16x16x32_bf16 {c}, a[{w}:{w+3}], v[{ring(n)}:{ring(n)+3}], {c}")
                if t == 0 and n + PD < len(order):
                    rread(n + PD); emit_side(ENV("K3_B0", 4))
                elif t == 1 and n % 2 == 0 and issue_item(): emit_side(4)
                else: emit_side(ENV("K3_B1", 12))
            if s == KM and i > 0:
                sj += epi(i - 1, var)
        cur[0] = 19
        for i in range(8) if KM == 20 else [7]: sj += epi(i, var)
        while sj:
            emit_side(ENV("K3_EB", 40)); issue_item()
        while issue_item(): pass
        if var == 0: a("s_branch K3_EPIDONE")
    a.label("K3_EPIDONE")
    a("s_waitcnt lgkmcnt(0)")
    a("s_barrier")
    stamp(a, 2)
    for i in range(2):
        for ph in range(3):
            a(f"ds_read_b128 v[{HB+4*(3*i+ph)}:{HB+4*(3*i+ph)+3}], v{8+i} offset:{ph*1024}")
    a("s_lshl_b32 s13, s4, 3")
    a("s_lshl_b32 s14, s3, 1")
    a("s_add_u32 s13, s13, s14")
    a("s_mul_i32 s13, s13, 49152")
    a("s_mul_i32 s14, s5, 3072")
    a("s_add_u32 s13, s13, s14")
    a("s_add_u32 s14, s13, 49152")
    for i in range(2):
        for ph in range(3):
            a(f"s_waitcnt lgkmcnt({5 - 3*i - ph})")
            a(f"buffer_store_dwordx4 v[{HB+4*(3*i+ph)}:{HB+4*(3*i+ph)+3}], v2, s[56:59], s{13+i} offen offset:{ph*1024} sc1"); vm.issue("hs")
    a("s_lshl_b32 s23, s4, 1")
    a("s_add_u32 s23, s23, s19")
    a("s_mul_i32 s6, s23, 196608")
    a("s_mul_i32 s7, s3, 12288")
    a("s_add_u32 s6, s6, s7")
    a("s_lshl_b32 s13, s4, 2")
    a("s_lshr_b32 s14, s5, 2")
    a("s_add_u32 s14, s14, s13")
    a("s_lshl_b32 s14, s14, 7")
    a("s_add_u32 s14, s14, 0x4000")
    a("s_add_u32 s13, s13, s3")
    a("s_lshl_b32 s13, s13, 7")
    a("s_add_u32 s13, s13, 0x4000")
    for j in range(4):
        a(f"s_add_u32 s15, s3, {1+j}")
        a("s_and_b32 s15, s15, 3")
        a("s_mul_i32 s16, s15, 49152")
        a(f"s_add_u32 s{24+j}, s6, s16")
        if j < 3:
            a("s_mul_i32 s16, s15, 15360")
            a(f"s_add_u32 s16, s16, {(2-j)*5120}")
            a(f"v_add_u32 v{8+j}, s16, v2")
    a("v_mov_b32 v6, 1")
    a("v_mov_b32 v7, 0")
    stamp(a, 3)
    vm.wait("hs")
    stamp(a, 4)
    a("s_barrier")
    a("s_cmp_lg_u32 s3, 0")
    a("s_cbranch_scc1 K3_NOSIG")
    a("s_mov_b64 exec, 1")
    a("buffer_atomic_add v6, v7, s[72:75], s14 offen sc1")
    a("s_mov_b64 exec, -1")
    a.label("K3_NOSIG")
    w2lim[0] = 60; vm.q = []
    while items: assert issue_item()
    HR = 240
    a("v_lshrrev_b32 v4, 5, v1")
    a("v_lshlrev_b32 v4, 8, v4")
    a("v_and_b32 v5, 15, v1")
    a("v_lshl_add_u32 v4, v5, 4, v4")
    a("v_bfe_u32 v5, v1, 4, 1")
    a("v_lshl_add_u32 v4, v5, 3, v4")
    a("s_lshl_b32 s12, s23, 2")
    a("s_add_u32 s12, s12, s3")
    a("s_mul_i32 s15, s12, 20480")
    a("s_mul_i32 s14, s18, 2560")
    a("s_add_u32 s15, s15, s14")
    for t in range(5):
        a(f"buffer_load_dwordx2 v[{HR+2*t}:{HR+2*t+1}], v4, s[44:47], s15 offen offset:{t*512}")
    a("s_mov_b32 s35, 0")
    a.label("K3_POLL")
    a("buffer_load_dword v6, v7, s[72:75], s13 offen sc1")
    a("s_waitcnt vmcnt(0)")
    a("v_readfirstlane_b32 s14, v6")
    a("s_add_u32 s35, s35, 1")
    a("s_cmp_ge_u32 s14, 4")
    a("s_cbranch_scc1 K3_GO")
    a("s_cmp_lt_u32 s35, 0x8000")
    a("s_cbranch_scc1 K3_POLL")
    a.label("K3_GO")
    stamp(a, 5)
    A2 = 16; HM = 96; NH = 36
    acc2 = lambda j, t: A2 + 4 * (5 * j + t)
    hm = lambda j, k: HM + 4 * ((12 * j + k) % NH)
    def ld_hm(j, k):
        a(f"s_add_u32 s10, s{24+j}, {(k & ~3)*1024}")
        a(f"buffer_load_dwordx4 v[{hm(j,k)}:{hm(j,k)+3}], v2, s[56:59], s10 offen offset:{(k&3)*1024}{HMSC}"); vm.issue((j, k))
    hq = [(j, k) for j in range(4) for k in range(12)]
    for _ in range(ENV("K3_HPRO", 20)): ld_hm(*hq.pop(0))
    wr = []
    for j in range(4):
        for k in range(12):
            vm.wait((j, k))
            for t in range(5):
                c = f"v[{acc2(j,t)}:{acc2(j,t)+3}]"; w = 4 * (5 * k + t)
                a(f"v_mfma_f32_16x16x32_bf16 {c}, a[{w}:{w+3}], v[{hm(j,k)}:{hm(j,k)+3}], {c if k else 0}")
                if t == 2 and wr and k >= 1: a(wr.pop(0))
            for _ in range(2):
                if hq and (12 * hq[0][0] + hq[0][1]) - NH <= 12 * j + k: ld_hm(*hq.pop(0))
        if j < 3:
            wr += [f"ds_write_b128 v{8+j}, v[{acc2(j,t)}:{acc2(j,t)+3}] offset:{t*1024}" for t in range(5)]
    stamp(a, 6)
    a("s_mul_i32 s13, s3, 15360")
    a("v_add_u32 v6, s13, v2")
    srd(a, 56, 38, 0, SZ_X)
    a("s_waitcnt lgkmcnt(0)")
    a("s_barrier")
    R = 128
    for i in range(15):
        a(f"ds_read_b128 v[{R+4*i}:{R+4*i+3}], v6 offset:{i*1024}")
    a("v_and_b32 v5, 15, v1")
    a("v_mul_u32_u24 v5, 1280, v5")
    a("v_lshrrev_b32 v7, 4, v1")
    a("v_lshl_add_u32 v5, v7, 3, v5")
    a("s_mul_i32 s13, s12, 20480")
    a("s_mul_i32 s14, s18, 160")
    a("s_add_u32 s13, s13, s14")
    for t in range(5):
        for q in range(2):
            a(f"v_lshlrev_b32 v{16+4*t+2*q}, 16, v{HR+2*t+q}")
            a(f"v_and_b32 v{17+4*t+2*q}, 0xffff0000, v{HR+2*t+q}")
    for sl in range(3):
        a(f"s_waitcnt lgkmcnt({10 - 5*sl})")
        for r in range(0, 20, 2):
            src = 96 + r if sl else acc2(3, 0) + r
            a(f"v_pk_add_f32 v[{96+r}:{97+r}], v[{src}:{src+1}], v[{R+20*sl+r}:{R+20*sl+r+1}]")
    for t in range(5):
        for q in range(2):
            a(f"v_cvt_pk_bf16_f32 v{40+2*t+q}, v{96+4*t+2*q}, v{97+4*t+2*q}")
    for t in range(5):
        for q in range(2):
            a(f"v_lshlrev_b32 v{96+4*t+2*q}, 16, v{40+2*t+q}")
            a(f"v_and_b32 v{97+4*t+2*q}, 0xffff0000, v{40+2*t+q}")
    for r in range(0, 20, 2):
        a(f"v_pk_add_f32 v[{96+r}:{97+r}], v[{96+r}:{97+r}], v[{16+r}:{17+r}]")
    for t in range(5):
        for q in range(2):
            a(f"v_cvt_pk_bf16_f32 v{40+2*t+q}, v{96+4*t+2*q}, v{97+4*t+2*q}")
        a(f"buffer_store_dwordx2 v[{40+2*t}:{41+2*t}], v5, s[56:59], s13 offen offset:{t*32}")
    a.label("K3_END")
    a("s_endpgm")
```

```python
import os
from asmlib import *
from layout import *
from k1 import srd
from k34 import stat_finalize_steps
import asmlib
BST = os.environ.get("K3_BST") if "os" in dir() else None
K35_LDS = 163840
ENV = lambda k, d: int(os.environ.get(k, d))

_stamp = stamp
def stamp(a, i, alt=None):
    if (alt or "") == (BST or ""): _stamp(a, i)
    elif alt is None and i < 2 and BST == "B": _stamp(a, i)

def gen_k35(a):
    a.raw(kernel_header("mlp_kernel"))
    if os.environ.get("K3_DROP"): a.drop = os.environ["K3_DROP"].split(",")
    a("s_cmp_ge_u32 s2, 256")
    a("s_cbranch_scc1 K3_END")
    a("s_load_dwordx2 s[38:39], s[0:1], 88")
    a("s_load_dwordx2 s[40:41], s[0:1], 104")
    a("v_lshrrev_b32 v2, 6, v0")
    a("v_and_b32 v1, 63, v0")
    a("v_readfirstlane_b32 s3, v2")
    a("v_lshlrev_b32 v2, 4, v1")
    a("s_bfe_u32 s4, s2, 0x20001")
    a("s_lshl_b32 s4, s4, 2")
    a("s_bfe_u32 s5, s2, 0x20003")
    a("s_add_u32 s4, s4, s5")
    a("s_lshr_b32 s18, s2, 5")
    a("s_and_b32 s19, s2, 1")
    a("s_lshl_b32 s5, s18, 1")
    a("s_add_u32 s5, s5, s19")
    a("s_mul_i32 s6, s3, 20480")
    a("s_mul_i32 s20, s4, 163840")
    a("s_add_u32 s7, s20, s6")
    a("s_lshl_b32 s8, s5, 2")
    a("s_add_u32 s8, s8, s3")
    a("s_mul_i32 s9, s8, 61440")
    a("s_mul_i32 s21, s18, 20480")
    a("s_add_u32 s21, s21, s20")
    a("s_mul_i32 s10, s3, 5120")
    a("s_add_u32 s21, s21, s10")
    a("s_mul_i32 s22, s18, 245760")
    a("s_mul_i32 s10, s3, 61440")
    a("s_add_u32 s22, s22, s10")
    a("s_waitcnt lgkmcnt(0)")
    srd(a, 44, 40, H_OFF, SZ_X); srd(a, 48, 40, W13_OFF, 3932160)
    vm = Cnt(a, "vmcnt", 63); ds = Cnt(a, "lgkmcnt", 15)
    ACC = 32; HB = 128; STR = 192; CSR = 16
    acc = lambda i, t: ACC + 4 * (3 * i + t)
    hb = lambda n, i: HB + 16 * (n & 1) + 4 * i
    SF = 160
    for i in range(5):
        if i == 4: a("s_add_u32 s21, s21, 4096")
        a(f"buffer_load_dwordx4 v[{SF+4*i}:{SF+4*i+3}], v2, s[44:47], s21 offen offset:{(i%4)*1024}"); vm.issue("sf")
    items = []
    for s in range(20):
        items += [("h", s, 0), ("w", s, 0), ("w", s, 1), ("w", s, 2)]
        if s == 10: items.append(("cs", 0, 0))
        if s == ENV("K3_STPOS", 17): items.append(("st", 0, 0))
    HBE = ENV("K3_HBE", 7)
    for s in range(HBE): items.append(("h", 20 + s, 1))
    for s in range(20):
        if s + HBE < 20: items.append(("h", 20 + s + HBE, 1))
        items += [("w2", 3 * s + t, 0) for t in range(3)]
    cur = [-1]
    def issue_item():
        if not items or len(vm.q) >= 60: return False
        kd, s, x = items[0]
        if kd == "w2" and s // 3 > cur[0]: return False
        items.pop(0)
        if kd == "h":
            ss = s % 20
            off = x * 81920 + (ss & ~3) * 1024
            if ss % 4 == 0:
                a(f"s_add_u32 m0, s6, {off}")
                a(f"s_add_u32 s10, s7, {off}")
            a(f"buffer_load_dwordx4 v2, s[44:47], s10 offen offset:{(ss&3)*1024} lds"); vm.issue(s)
        elif kd == "w":
            idx = 3 * s + x
            if idx % 4 == 0: a(f"s_add_u32 s11, s9, {(idx & ~3) * 1024}")
            a(f"buffer_load_dwordx4 a[{4*idx}:{4*idx+3}], v2, s[48:51], s11 offen offset:{(idx&3)*1024}"); vm.issue(s)
        elif kd == "w2" and os.environ.get("K3_NOW2"): pass
        elif kd == "w2":
            if s % 4 == 0: a(f"s_add_u32 s11, s22, {(s & ~3) * 1024}")
            a(f"buffer_load_dwordx4 a[{4*s}:{4*s+3}], v2, s[68:71], s11 offen offset:{(s&3)*1024}"); vm.issue(("w2", s))
        elif kd == "cs":
            a(f"buffer_load_dwordx4 v[180:183], v2, s[52:55], s17 offen"); vm.issue("cs")
        elif kd == "st":
            st_loads()
        return True
    def st_loads():
        a(f"buffer_load_dwordx4 v[176:179], v2, s[72:75], s24 offen sc1"); vm.issue("st")
    for _ in range(ENV("K3_PRO", 14)): issue_item()
    srd(a, 52, 40, CS_OFF, 64*192); srd(a, 56, 40, HM_OFF, 6291456)
    srd(a, 68, 40, W2_OFF, 1966080); srd(a, 72, 40, ST_OFF, 0x4000 + 128*128)
    a("v_and_b32 v6, 15, v1")
    a("v_lshrrev_b32 v7, 4, v1")
    a("v_lshlrev_b32 v3, 4, v7")
    a("s_mul_i32 s17, s8, 192")
    a("v_lshlrev_b32 v5, 3, v6")
    a("s_lshl_b32 s24, s4, 10")
    a("v_add_u32 v3, s6, v3")
    a("v_add_u32 v184, s6, v5")
    for i in range(8):
        a(f"s_add_u32 s13, s3, {i}")
        a("s_and_b32 s13, s13, 3")
        if i >= 4: a("s_add_u32 s13, s13, 4")
        a("s_mul_i32 s14, s13, 20480")
        a(f"v_add_u32 v{8+i}, s14, v2")
    a("s_mov_b32 s16, 0x3f803f80")
    SCR = 7 * 20480 + 19 * 1024
    a("s_lshl_b32 s13, s3, 7")
    a("v_add_u32 v6, s13, v5")
    vm.wait("sf")
    for r in range(20):
        for k in range(2):
            d = 28 + 2 * (r % 2) + k
            src2 = "s16" if k == 0 else f"v{SF+r}"
            a(f"v_dot2_f32_bf16 v{d}, v{SF+r}, {src2}, {'0' if r < 2 else 'v%d' % d}")
        if r % 2 == 1: issue_item()
    a("v_pk_add_f32 v[28:29], v[28:29], v[30:31]")
    for sw in ("v_permlane32_swap_b32", "v_permlane16_swap_b32"):
        for r in range(2): a(f"v_mov_b32 v{30+r}, v{28+r}")
        for r in range(2): a(f"{sw} v{28+r}, v{30+r}")
        a("v_pk_add_f32 v[28:29], v[28:29], v[30:31]")
    a(f"v_add_u32 v6, {SCR}, v6")
    a(f"v_add_u32 v7, {SCR}, v5")
    a("ds_write_b64 v6, v[28:29]")
    a("s_waitcnt lgkmcnt(0)")
    def hread(n, i):
        sl = i + 4 * (n // 20)
        a(f"ds_read_b128 v[{hb(n,i)}:{hb(n,i)+3}], v{8+sl} offset:{(n%20)*1024}"); ds.issue((n, i))
    vm.wait(0)
    stamp(a, 0)
    a("s_barrier")
    for i in range(4): hread(0, i)
    P = 240
    side = [("ds", f"ds_read_b64 v[{P+2*i}:{P+2*i+1}], v7 offset:{i*128}") for i in range(4)]
    side += [("v", f"v_mov_b32 v{P+8}, {f2u(1.0/640):#x}"),
             ("v", "s_lshl_b32 s13, s19, 3"), ("v", "s_lshl_b32 s14, s3, 1"), ("v", "s_add_u32 s13, s13, s14"),
             ("v", "s_lshl_b64 s[32:33], 3, s13"),
             ("v", "s_lshl_b32 s13, s4, 3"), ("v", "s_add_u32 s13, s13, s18"), ("v", "s_lshl_b32 s34, s13, 7"),
             ("w", None),
             ("v", f"v_add_f32 v{P}, v{P}, v{P+2}"), ("v", f"v_add_f32 v{P+1}, v{P+1}, v{P+3}"),
             ("v", f"v_add_f32 v{P+4}, v{P+4}, v{P+6}"), ("v", f"v_add_f32 v{P+5}, v{P+5}, v{P+7}"),
             ("v", f"v_add_f32 v{P}, v{P}, v{P+4}"), ("v", f"v_add_f32 v{P+1}, v{P+1}, v{P+5}")]
    side += [("v", st(P, P + 1, P + 2)) for st in stat_finalize_steps(P + 8)]
    side += [("x", None)]
    prep = []
    prep += ["s_lshl_b32 s13, s4, 3", "s_add_u32 s13, s13, s3", "s_mul_i32 s13, s13, 49152", "s_mul_i32 s14, s5, 3072",
             "s_add_u32 s60, s13, s14", "s_add_u32 s61, s60, 196608"]
    prep += ["s_lshl_b32 s13, s4, 2", "s_lshr_b32 s14, s5, 2", "s_add_u32 s14, s14, s13", "s_lshl_b32 s14, s14, 8",
             "s_add_u32 s62, s14, 0x4000",
             "s_add_u32 s13, s13, s3", "s_lshl_b32 s13, s13, 8", "s_add_u32 s63, s13, 0x4000"]
    prep += ["s_lshl_b32 s13, s4, 3", "s_lshl_b32 s14, s19, 1", "s_add_u32 s23, s13, s14",
             "s_mul_i32 s13, s23, 49152", "s_mul_i32 s14, s3, 12288", "s_add_u32 s64, s13, s14",
             "s_add_u32 s65, s64, 49152", "s_add_u32 s66, s64, 196608", "s_add_u32 s67, s64, 245760",
             "s_lshl_b32 s36, s3, 10"]
    side += [("v", t) for t in prep]
    def do_side():
        if not side: return False
        k, t = side.pop(0)
        if k == "ds": a(t); ds.issue("sp")
        elif k == "w": ds.wait("sp")
        elif k == "v": a(t)
        else:
            a("s_mov_b64 exec, s[32:33]")
            a(f"buffer_store_dwordx2 v[{P}:{P+1}], v5, s[72:75], s34 offen sc1"); vm.issue("gs")
            a("s_mov_b64 exec, -1")
        return True
    def mfma(i, t, s, n, first):
        c = f"v[{acc(i,t)}:{acc(i,t)+3}]"; w = 4 * (3 * s + t)
        a(f"v_mfma_f32_16x16x32_bf16 {c}, a[{w}:{w+3}], v[{hb(n,i%4)}:{hb(n,i%4)+3}], {0 if first else c}")
    def phase_a(var):
        for s in range(20):
            if s % 3 == 0: stamp(a, s // 3, "A")
            assert not any(kd in "hw" and x == s + 1 for kd, x, _ in items), s
            vm.wait(s + 1)
            a("s_barrier")
            ds.wait((s, 3))
            nl = 5 if s % ENV("K3_AX", 2) == 0 else 4
            for i in range(4):
                for t in range(3):
                    mfma(i, t, s, s, s == 0)
                    if t == 0: hread(s + 1, i)
                    if i == var:
                        for _ in range(2 if t or nl == 5 and False else 1):
                            if nl: issue_item(); nl -= 1
                    elif t: do_side(); do_side()
            if s == ENV("K3_STCHK", 17):
                while side: do_side()
                a("s_mov_b32 s35, 0")
                a.label(f"K3_STCHK{var}")
                vm.wait("st")
                saved_q = list(vm.q)
                a("v_min_u32 v6, v177, v179")
                a("v_cmp_eq_u32 vcc, 0, v6")
                a(f"s_cbranch_vccz K3_STOK{var}")
                a("s_add_u32 s35, s35, 1")
                a("s_cmp_ge_u32 s35, 0x4000")
                a(f"s_cbranch_scc1 K3_STOK{var}")
                a("s_sleep 2")
                st_loads()
                a("s_waitcnt vmcnt(0)")
                a(f"s_branch K3_STCHK{var}")
                a.label(f"K3_STOK{var}")
                vm.q = saved_q
                side.extend([("ds", "ds_write_b128 v8, v[176:179] offset:4096"), ("ds", "ds_write_b128 v8, v[180:183] offset:5120")])
                for i in range(8):
                    rt = ((var + i) & 3) + 4 * (i >> 2)
                    side.append(("ds", f"ds_read_b64 v[{STR+4*i}:{STR+4*i+1}], v184 offset:{4096 + rt*128}"))
                side.extend(("ds", f"ds_read_b128 v[{CSR+4*t}:{CSR+4*t+3}], v3 offset:{5120 + t*64}") for t in range(3))
                side.extend([("v", "v_mov_b32 v28, 1"), ("v", "v_mov_b32 v29, 0"), ("w", None)])
                side.extend(("v", t) for t in pre)
        while side: do_side()
        stamp(a, 1)
    PK = ENV("K3_PK", 0)
    def epi(i, var, pk):
        S = STR + 4 * i; O = 224 + 4 * (i % 2); out = []; seqs = []
        for t in range(3):
            c = acc(i, t); e = 232 + 2 * t; cs = CSR + 4 * t
            if pk:
                seqs.append([
                f"v_pk_fma_f32 v[{c}:{c+1}], v[{cs}:{cs+1}], v[{S}:{S+1}], v[{c}:{c+1}] op_sel_hi:[1,0,1] neg_lo:[0,1,0] neg_hi:[0,1,0]",
                f"v_pk_fma_f32 v[{c+2}:{c+3}], v[{cs+2}:{cs+3}], v[{S}:{S+1}], v[{c+2}:{c+3}] op_sel_hi:[1,0,1] neg_lo:[0,1,0] neg_hi:[0,1,0]",
                f"v_pk_mul_f32 v[{e}:{e+1}], v[{c}:{c+1}], v[{S+2}:{S+3}] op_sel_hi:[1,0]",
                f"v_exp_f32 v{e}, v{e}",
                f"v_exp_f32 v{e+1}, v{e+1}",
                f"v_pk_mul_f32 v[{c}:{c+1}], v[{c}:{c+1}], v[{c+2}:{c+3}]",
                f"v_pk_fma_f32 v[{e}:{e+1}], v[{e}:{e+1}], v[{S}:{S+1}], v[{S}:{S+1}] op_sel:[0,1,1] op_sel_hi:[1,1,1]",
                f"v_rcp_f32 v{e}, v{e}",
                f"v_rcp_f32 v{e+1}, v{e+1}",
                f"v_pk_mul_f32 v[{c}:{c+1}], v[{c}:{c+1}], v[{e}:{e+1}]",
                f"v_cvt_pk_bf16_f32 v{O+t}, v{c}, v{c+1}"])
            else:
                seqs.append(
                [f"v_fma_f32 v{c+r}, -v{S}, v{cs+r}, v{c+r}" for r in range(2)] +
                [f"v_mul_f32 v{e+r}, v{c+r}, v{S+2}" for r in range(2)] +
                [f"v_exp_f32 v{e}, v{e}", f"v_fma_f32 v{c+2}, -v{S}, v{cs+2}, v{c+2}",
                 f"v_exp_f32 v{e+1}, v{e+1}", f"v_fma_f32 v{c+3}, -v{S}, v{cs+3}, v{c+3}"] +
                [f"v_mul_f32 v{c+r}, v{c+r}, v{c+2+r}" for r in range(2)] +
                [f"v_fma_f32 v{e+r}, v{e+r}, v{S+1}, v{S+1}" for r in range(2)] +
                [f"v_rcp_f32 v{e+r}, v{e+r}" for r in range(2)] +
                [f"v_mul_f32 v{c+r}, v{c+r}, v{e+r}" for r in range(2)] +
                [f"v_cvt_pk_bf16_f32 v{O+t}, v{c}, v{c+1}"])
        for j in range(len(seqs[0])):
            for sq in seqs:
                if not os.environ.get("K3_NOEPI"): out.append(sq[j])
        if var < 3:
            out.append(f"ds_write_b96 v{8+i}, v[{O}:{O+2}] offset:{var*1024}")
        else:
            out += [f"ds_write_b32 v{8+i}, v{O+t} offset:{t*1024 + 12}" for t in range(3)]
        return out
    pre = [f"v_mov_b32 v4, {f2u(-LOG2E):#x}"]
    pre += [f"v_rcp_f32 v{STR+4*i+2}, v{STR+4*i+1}" for i in range(8)]
    pre += [f"v_mul_f32 v{STR+4*i+1}, v{STR+4*i+1}, v{STR+4*i+1}" for i in range(8)]
    pre += [f"v_mul_f32 v{STR+4*i+2}, v{STR+4*i+2}, v4" for i in range(8)]
    PB = 160
    def signal(hf):
        if signal.var < 4:
            if signal.var == 0:
                a("s_mov_b64 exec, 1")
                a(f"buffer_atomic_add v28, v29, s[72:75], s62 offen offset:{hf*128} sc1"); vm.issue("sig")
                a("s_mov_b64 exec, -1")
            return
        a("s_cmp_lg_u32 s3, 0")
        lab = f"K3_NOSIG{hf}_{signal.var}"
        a(f"s_cbranch_scc1 {lab}")
        a("s_mov_b64 exec, 1")
        a(f"buffer_atomic_add v28, v29, s[72:75], s62 offen offset:{hf*128} sc1")
        a("s_mov_b64 exec, -1")
        a.label(lab)
        vm.q.append("sig")
        vm.q.pop()
    A2 = 80; HR = 224
    acc2 = lambda j, t: A2 + 4 * (5 * j + t)
    HMR = [32 + 4 * i for i in range(12)] + [160 + 4 * i for i in range(8)] + [240 + 4 * i for i in range(4)]
    hm = lambda j, k: HMR[12 * (j % 2) + k]
    hq = []
    def ld_hm(j, k):
        if k % 4 == 0: a(f"s_add_u32 s10, s{64+j}, {(k & ~3)*1024}")
        a(f"buffer_load_dwordx4 v[{hm(j,k)}:{hm(j,k)+3}], v2, s[56:59], s10 offen offset:{(k&3)*1024}{os.environ.get('K3_HMSC', ' sc1')}"); vm.issue((j, k))
    saves = (list(items), list(vm.q), list(ds.q), list(side))
    for w in range(1, 4):
        a(f"s_cmp_eq_u32 s3, {w}")
        a(f"s_cbranch_scc1 K3_VAR{w}")
    for var in range(4):
        if var:
            a.label(f"K3_VAR{var}")
            items[:] = saves[0]; vm.q = list(saves[1]); ds.q = list(saves[2]); cur[0] = -1; side[:] = saves[3]
        signal.var = var
        phase_a(var)
        sj = []
        for i in range(4): sj += epi(i, var, PK)
        def emit_side(budget):
            while sj and budget > 0:
                t = sj.pop(0); a(t)
                if t.startswith("ds_"): ds.issue("e")
                budget -= 8 if t.split()[0] in TRANS else 4
        state = 0
        for s in range(20):
            n = 20 + s
            if s % 4 == 3: stamp(a, 2 + s // 4, "B")
            if s + 1 < 20:
                assert not any(kd == "h" and x == n + 1 for kd, x, _ in items)
                vm.wait(n + 1)
            if state == 0 and not sj and not hasattr(emit_side, "nat"):
                emit_side.nat = s; print("epilogue A natural finish at step", s, "var", var)
            if state == 0 and s == ENV("K3_SA", 11):
                emit_side(100000)
                ds.wait("e"); state = 1
                a("s_barrier")
                for ph in range(3):
                    a(f"ds_read_b128 v[{PB+4*ph}:{PB+4*ph+3}], v8 offset:{ph*1024}"); ds.issue("pb")
            elif state == 1:
                a("s_barrier")
                ds.wait("pb")
                for ph in range(3):
                    a(f"buffer_store_dwordx4 v[{PB+4*ph}:{PB+4*ph+3}], v2, s[56:59], s60 offen offset:{ph*1024} sc1"); vm.issue("hsA")
                state = 2; s_st = s
            elif state == 2 and (s >= s_st + ENV("K3_DRAIN", 4) or s == 19):
                vm.wait("hsA")
                a("s_barrier")
                signal(0); state = 4
                stamp(a, 2)
            elif s + 1 < 20:
                a("s_barrier")
            ds.wait((n, 3))
            for i in range(4):
                for t in range(3):
                    mfma(4 + i, t, s, n, s == 0)
                    if t == 0 and s + 1 < 20: hread(n + 1, i)
                    if i == var:
                        issue_item()
                        if t == 2 and ENV("K3_BN", 3) == 4: issue_item()
                    else: emit_side(ENV("K3_B0", 8) if t == 0 else ENV("K3_B1", 12))
            cur[0] = s
            if s == ENV("K3_PAS", 18):
                a(f"buffer_load_dword v30, v29, s[72:75], s63 offen sc1"); vm.issue("pA")
        assert state == 4, state
        for i in range(4, 8): sj += epi(i, var, 1)
        while items:
            emit_side(ENV("K3_EB", 64)); assert issue_item()
        vm.wait("pA")
        a("s_mov_b32 s35, 0")
        a(f"s_branch K3_PA_CHK{var}")
        a.label(f"K3_PA{var}")
        a(f"buffer_load_dword v30, v29, s[72:75], s63 offen sc1")
        a("s_waitcnt vmcnt(0)")
        a.label(f"K3_PA_CHK{var}")
        a("v_readfirstlane_b32 s14, v30")
        a("s_add_u32 s35, s35, 1")
        a("s_cmp_ge_u32 s14, 4")
        a(f"s_cbranch_scc1 K3_GOA{var}")
        a("s_cmp_lt_u32 s35, 0x8000")
        a(f"s_cbranch_scc1 K3_PA{var}")
        a.label(f"K3_GOA{var}")
        stamp(a, 3)
        hq[:] = [(j, k) for j in range(2) for k in range(12)]
        nh = 0
        while sj:
            emit_side(ENV("K3_EB", 64))
            if nh < ENV("K3_HEB", 4): ld_hm(*hq.pop(0)); nh += 1
        while nh < ENV("K3_HEB", 4): ld_hm(*hq.pop(0)); nh += 1
        if var < 3: a("s_branch K3_EPIDONE")
    a.label("K3_EPIDONE")
    a("s_waitcnt lgkmcnt(0)"); ds.q = []
    a("s_barrier")
    PB2 = 192
    for ph in range(3):
        a(f"ds_read_b128 v[{PB2+4*ph}:{PB2+4*ph+3}], v12 offset:{ph*1024}")
    a("s_mul_i32 s13, s3, 5120")
    a("v_add_u32 v8, s13, v2")
    a("v_add_u32 v9, 40960, v8")
    a("v_lshrrev_b32 v4, 5, v1")
    a("v_lshlrev_b32 v4, 8, v4")
    a("v_and_b32 v5, 15, v1")
    a("v_lshl_add_u32 v4, v5, 4, v4")
    a("v_bfe_u32 v6, v1, 4, 1")
    a("v_lshl_add_u32 v4, v6, 3, v4")
    a("v_mul_u32_u24 v5, 1280, v5")
    a("v_lshrrev_b32 v7, 4, v1")
    a("v_lshl_add_u32 v5, v7, 3, v5")
    a("s_mul_i32 s16, s18, 2560")
    a("s_mul_i32 s17, s18, 160")
    for q in range(3):
        a(f"s_add_u32 s12, s3, {4*q}")
        if q == 2:
            a("s_cmp_ge_u32 s12, 10")
            a("s_cselect_b32 s13, 2, 0")
            a("s_sub_u32 s12, s12, s13")
        a("s_cmp_ge_u32 s12, 5")
        a("s_cselect_b32 s13, 1, 0")
        a("s_mul_i32 s14, s13, 5")
        a("s_sub_u32 s12, s12, s14")
        a("s_mul_i32 s14, s13, 20480")
        a("s_lshl_b32 s15, s12, 10")
        a("s_add_u32 s15, s15, s14")
        a(f"v_add_u32 v{10+q}, s15, v2") if q < 2 else a("v_add_u32 v13, s15, v2")
        a("s_add_u32 s13, s13, s23")
        a("s_mul_i32 s13, s13, 20480")
        a("s_lshl_b32 s14, s12, 9")
        a("s_add_u32 s14, s14, s16")
        a(f"s_add_u32 s{24+q}, s13, s14")
        a("s_lshl_b32 s14, s12, 5")
        a("s_add_u32 s14, s14, s17")
        a(f"s_add_u32 s{28+q}, s13, s14")
    srd(a, 52, 38, 0, SZ_X)
    for ph in range(3):
        a(f"s_waitcnt lgkmcnt({2-ph})")
        a(f"buffer_store_dwordx4 v[{PB2+4*ph}:{PB2+4*ph+3}], v2, s[56:59], s61 offen offset:{ph*1024} sc1"); vm.issue("hsB")
    while hq: ld_hm(*hq.pop(0))
    for hf in range(2):
        for q in range(3):
            if hf: a(f"s_add_u32 s{24+q}, s{24+q}, 81920")
            a(f"buffer_load_dwordx2 v[{HR+6*hf+2*q}:{HR+6*hf+2*q+1}], v4, s[44:47], s{24+q} offen"); vm.issue("res")
    stamp(a, 4)
    wr = []
    def g2tile(j, hook=None):
        for k in range(12):
            vm.wait((j, k))
            for t in range(5):
                c = f"v[{acc2(j,t)}:{acc2(j,t)+3}]"; w = 4 * (5 * k + t)
                a(f"v_mfma_f32_16x16x32_bf16 {c}, a[{w}:{w+3}], v[{hm(j,k)}:{hm(j,k)+3}], {c if k else 0}")
                if t == 2 and wr and k >= 1: a(wr.pop(0))
                if t in (0, 3) and hq: ld_hm(*hq.pop(0))
            if hook: hook(k)
        wr.extend(f"ds_write_b128 v{8 + j//2}, v[{acc2(j,t)}:{acc2(j,t)+3}] offset:{(j%2)*20480 + t*1024}" for t in range(5))
    def hookA(k):
        if k == ENV("K3_SBK", 5):
            vm.wait("hsB")
            a("s_barrier")
            signal.var = 9; signal(1)
    g2tile(0, hookA)
    def hookB(k):
        if k == ENV("K3_PBK", 8):
            a(f"buffer_load_dword v30, v29, s[72:75], s63 offen offset:128 sc1"); vm.issue("pB")
    g2tile(1, hookB)
    stamp(a, 5)
    a("s_mov_b32 s35, 0")
    vm.wait("pB")
    a("s_branch K3_PB_CHK")
    a.label("K3_PB")
    a(f"buffer_load_dword v30, v29, s[72:75], s63 offen offset:128 sc1")
    a("s_waitcnt vmcnt(0)")
    a.label("K3_PB_CHK")
    a("v_readfirstlane_b32 s14, v30")
    a("s_add_u32 s35, s35, 1")
    a("s_cmp_ge_u32 s14, 4")
    a("s_cbranch_scc1 K3_GOB")
    a("s_cmp_lt_u32 s35, 0x8000")
    a("s_cbranch_scc1 K3_PB")
    a.label("K3_GOB")
    stamp(a, 6)
    hq += [(j, k) for j in range(2, 4) for k in range(12)]
    RD = [10, 11, 13]
    def finalize(hf, R, U):
        out = []
        for q in range(3):
            for w in range(4):
                out.append(f"ds_read_b128 v[{R+16*q+4*w}:{R+16*q+4*w+3}], v{RD[q]} offset:{hf*40960 + w*5120}")
        for q in range(3):
            for e in range(2):
                out.append(f"v_lshlrev_b32 v{U+4*q+2*e}, 16, v{HR+6*hf+2*q+e}")
                out.append(f"v_and_b32 v{U+4*q+2*e+1}, 0xffff0000, v{HR+6*hf+2*q+e}")
            if hf: out.append(f"s_add_u32 s{28+q}, s{28+q}, 81920")
        for q in range(3):
            b = R + 16 * q
            out.append(f"s_waitcnt lgkmcnt({8 - 4*q})")
            for e in (0, 2):
                out.append(f"v_pk_add_f32 v[{b+e}:{b+e+1}], v[{b+e}:{b+e+1}], v[{b+4+e}:{b+5+e}]")
                out.append(f"v_pk_add_f32 v[{b+8+e}:{b+9+e}], v[{b+8+e}:{b+9+e}], v[{b+12+e}:{b+13+e}]")
            for e in (0, 2):
                out.append(f"v_pk_add_f32 v[{b+e}:{b+e+1}], v[{b+e}:{b+e+1}], v[{b+8+e}:{b+9+e}]")
            for e in range(2):
                out.append(f"v_cvt_pk_bf16_f32 v{b+4+e}, v{b+2*e}, v{b+2*e+1}")
            for e in range(2):
                out.append(f"v_lshlrev_b32 v{b+2*e}, 16, v{b+4+e}")
                out.append(f"v_and_b32 v{b+2*e+1}, 0xffff0000, v{b+4+e}")
            for e in (0, 2):
                out.append(f"v_pk_add_f32 v[{b+e}:{b+e+1}], v[{b+e}:{b+e+1}], v[{U+4*q+e}:{U+4*q+e+1}]")
            for e in range(2):
                out.append(f"v_cvt_pk_bf16_f32 v{b+4+e}, v{b+2*e}, v{b+2*e+1}")
            out.append(f"buffer_store_dwordx2 v[{b+4}:{b+5}], v5, s[52:55], s{28+q} offen")
        return out
    for _ in range(ENV("K3_HB2", 12)):
        ld_hm(*hq.pop(0))
        if wr: a(wr.pop(0))
    while wr: a(wr.pop(0))
    a("s_waitcnt lgkmcnt(0)")
    a("s_barrier")
    for t in finalize(0, 80, 16):
        a(t)
        if t.startswith("buffer"): vm.issue("o")
        if t.startswith("v_pk") and hq: ld_hm(*hq.pop(0))
    while hq: ld_hm(*hq.pop(0))
    g2tile(2); g2tile(3)
    while wr: a(wr.pop(0))
    a("s_waitcnt lgkmcnt(0)")
    a("s_barrier")
    for t in finalize(1, 32, 16): a(t)
    a.label("K3_END")
    a("s_endpgm")
```

```python
from asmlib import *
from layout import *
from k1 import srd
import os
def gen_pf(a):
    a.raw(kernel_header("pf_kernel"))
    a("s_cmp_ge_u32 s2, 256")
    a("s_cbranch_scc1 PF_END")
    a("s_load_dwordx2 s[40:41], s[0:1], 104")
    a("v_lshrrev_b32 v2, 6, v0")
    a("v_and_b32 v1, 63, v0")
    a("v_readfirstlane_b32 s3, v2")
    a("v_lshlrev_b32 v2, 4, v1")
    a("s_lshr_b32 s4, s2, 3")
    a("s_mul_i32 s5, s4, 61440")
    a("s_mul_i32 s6, s3, 15360")
    a("s_add_u32 s5, s5, s6")
    a("s_lshr_b32 s7, s4, 2")
    a("s_lshl_b32 s7, s7, 1")
    a("s_and_b32 s8, s2, 1")
    a("s_add_u32 s7, s7, s8")
    a("s_lshl_b32 s7, s7, 2")
    a("s_and_b32 s8, s4, 3")
    a("s_add_u32 s7, s7, s8")
    a("s_mul_i32 s7, s7, 61440")
    a("s_add_u32 s7, s7, s6")
    a("s_waitcnt lgkmcnt(0)")
    srd(a, 44, 40, W2_OFF, 1966080); srd(a, 48, 40, W13_OFF, 3932160)
    for b, so in (((44, 5), (48, 7)) if os.environ.get("PF_W2") else ((48, 7),)):
        for i in range(15):
            a(f"s_add_u32 s10, s{so}, {i*1024}")
            a(f"buffer_load_dwordx4 v[{8+4*i}:{11+4*i}], v2, s[{b}:{b+3}], s10 offen")
    a("s_waitcnt vmcnt(0)")
    a.label("PF_END")
    a("s_endpgm")
```

```python
import sys
from asmlib import *
from layout import *
import k1
HEADER = open("sequential_preLN__ssm_conv_s4d__glu_gated_swiglu__prompt.s.ref").read().split("; Override launch")[0]
def build(kernels):
    a = Asm()
    launches = []; descs = []
    for k in kernels:
        if k == 1:
            k1.gen_k1(a); launches.append(f"; @launch kernel=prep_kernel grid=({k1.K1_GRID},1,1) block=(256,1,1) lds={k1.K1_LDS}")
            descs.append(kernel_desc("prep_kernel", 128, 96, 128))
        if k == 2:
            a.raw(".p2align 8\nCODE_BEG:")
            import k2
            k2.gen_k2(a); launches.append(f"; @launch kernel=conv_kernel grid=({k2.K2_GRID},1,1) block=({k2.K2_BLOCK},1,1) lds={k2.K2_LDS}")
            descs.append(kernel_desc("conv_kernel", k2.K2_VGPR, 96, k2.K2_VGPR))
        if k == 3:
            import k3
            k3.gen_k3(a); launches.append(f"; @launch kernel=gemm1_kernel grid=(256,1,1) block=(256,1,1) lds={k3.K3_LDS}")
            descs.append(kernel_desc("gemm1_kernel", 512, 96, 256))
        if k == 4:
            import k4
            k4.gen_k4(a); launches.append(f"; @launch kernel=gemm2_kernel grid=(256,1,1) block=(256,1,1) lds={k4.K4_LDS}")
            descs.append(kernel_desc("gemm2_kernel", 512, 96, 256))
        if k == 5:
            import k34
            k34.gen_k34(a); launches.append(f"; @launch kernel=mlp_kernel grid=(256,1,1) block=(256,1,1) lds={k34.K34_LDS}")
            descs.append(kernel_desc("mlp_kernel", 512, 96, 256))
        if k == 6:
            import k35
            k35.gen_k35(a); launches.append(f"; @launch kernel=mlp_kernel grid=(256,1,1) block=(256,1,1) lds={k35.K35_LDS}")
            descs.append(kernel_desc("mlp_kernel", 512, 96, 256))
        if k == 9:
            import kpf
            kpf.gen_pf(a); launches.append(f"; @launch kernel=pf_kernel grid=(256,1,1) block=(256,1,1) lds=0")
            descs.append(kernel_desc("pf_kernel", 128, 96, 128))
        a.win = []
    a.raw("CODE_END:")
    return HEADER + "\n".join(launches) + '\n.amdgcn_target "amdgcn-amd-amdhsa--gfx950"\n.text\n' + a.text() + '.section .rodata,"a"\n' + "\n".join(descs) + "\n"
PROF_OFF = 0x2000000
def add_prof(text):
    import re
    out = []; kidx = -1; cur = None
    for line in text.split("\n"):
        m = re.match(r"^(\w+_kernel):", line)
        if m:
            kidx += 1; cur = m.group(1)
            out.append(line)
            out.append("  s_memrealtime s[96:97]")
            out.append("  s_mov_b64 s[98:99], s[0:1]")
            out.append("  s_mov_b32 s100, s2")
            for q in range(76, 90): out.append(f"  s_mov_b32 s{q}, 0")
            out.append("  v_readfirstlane_b32 s101, v0")
            continue
        if line.strip() == "s_endpgm":
            out.append(f"  s_branch PROF_{cur}")
            continue
        if line.startswith(".globl") or line.startswith(".section .rodata"):
            if cur:
                out.append(f"""PROF_{cur}:
  s_waitcnt vmcnt(0) lgkmcnt(0)
  s_memrealtime s[4:5]
  s_load_dwordx2 s[8:9], s[98:99], 104
  s_getreg_b32 s6, hwreg(HW_REG_XCC_ID)
  s_getreg_b32 s7, hwreg(HW_REG_HW_ID)
  s_mov_b64 exec, 1
  s_lshr_b32 s101, s101, 6
  s_lshl_b32 s100, s100, 4
  s_add_u32 s100, s100, s101
  s_lshl_b32 s100, s100, 6
  s_waitcnt lgkmcnt(0)
  s_add_u32 s8, s8, {PROF_OFF + kidx * 0x100000:#x}
  s_addc_u32 s9, s9, 0
  s_mov_b32 s10, 0x100000
  s_mov_b32 s11, 0x20000
  v_mov_b32 v0, s96
  v_mov_b32 v1, s4
  v_mov_b32 v2, s6
  v_mov_b32 v3, s7
  v_mov_b32 v4, s100
  buffer_store_dwordx4 v[0:3], v4, s[8:11], 0 offen
  v_mov_b32 v6, s76
  v_mov_b32 v7, s78
  v_mov_b32 v8, s80
  v_mov_b32 v9, s82
  buffer_store_dwordx4 v[6:9], v4, s[8:11], 0 offen offset:16
  v_mov_b32 v10, s84
  v_mov_b32 v11, s86
  v_mov_b32 v12, s88
  v_mov_b32 v13, s88
  buffer_store_dwordx4 v[10:13], v4, s[8:11], 0 offen offset:32
  s_endpgm""")
                cur = None
        out.append(line)
    return "\n".join(out).replace("next_free_sgpr 96", "next_free_sgpr 102")
if __name__ == "__main__":
    ks = [int(c) for c in sys.argv[1]]
    t = build(ks)
    if PROF: t = add_prof(t)
    open(sys.argv[2], "w").write(t)
```

```python
import os
from asmlib import *
from layout import *
from k1 import srd, cmul, interleave, Rec, wave_reduce_sum
ENV = lambda k, d: int(os.environ.get(k, d))
N_LN = 96; F_GRID = 256; F_BLOCK = 768; F_VGPR = 168
UB = 0; UPAD = 2048; KB = UPAD + 32768; KP = 4416; TB = KB + 4 * KP; SB = TB + 4 * 1536
RS = 4352; ROWP = 272; WREG = 2 * RS
F_LDS = SB + 12 * WREG
assert F_LDS <= 163840
PARTS = [(0, 16), (16, 25), (25, 32)]

def gen_front(a):
    a.raw(kernel_header("front_kernel"))
    a(f"s_cmp_ge_u32 s2, {F_GRID}")
    a("s_cbranch_scc1 F_END")
    a("s_load_dwordx16 s[16:31], s[0:1], 0")
    a("s_load_dwordx8 s[32:39], s[0:1], 64")
    a("s_load_dwordx4 s[40:43], s[0:1], 96")
    a("v_lshrrev_b32 v2, 6, v0")
    a("v_and_b32 v1, 63, v0")
    a("v_readfirstlane_b32 s3, v2")
    a(f"s_cmp_lt_u32 s2, {N_LN}")
    a("s_cbranch_scc1 F_LN")
    conv_wg(a)
    a.label("F_LN")
    a("s_cmp_ge_u32 s3, 8")
    a("s_cbranch_scc1 F_PACK")
    a("s_cmp_ge_u32 s2, 64")
    a("s_cbranch_scc1 F_IDLE")
    role_ln(a)
    a.label("F_PACK")
    a("s_cmp_lt_u32 s3, 11")
    a("s_cbranch_scc1 F_W2")
    role_misc(a)
    a.label("F_W2"); ln_w2_tile(a)
    a.label("F_IDLE")
    a("s_waitcnt lgkmcnt(0)")
    srd(a, 48, 40, 0, 256)
    a("v_mov_b32 v6, 0")
    a("s_barrier")
    a("s_barrier")
    a.label("F_W13"); ln_w13(a)
    a.label("F_END")
    a("s_endpgm")
WS = 42

STG = 98304; STP = 400; XB = 16384; XP = 272
def pub_setup(a):
    m24 = magic(24, 768, 16)
    a(f"v_mul_u32_u24 v122, {m24}, v0")
    a("v_lshrrev_b32 v122, 16, v122")
    a("v_mul_u32_u24 v123, 24, v122")
    a("v_sub_u32 v123, v0, v123")
    a(f"v_mul_u32_u24 v120, {STP}, v122")
    a("v_lshl_add_u32 v120, v123, 4, v120")
    a(f"v_add_u32 v120, {STG}, v120")
    a("v_lshlrev_b32 v121, 15, v122")
    a("v_lshl_add_u32 v121, v123, 4, v121")
    a("s_mul_i32 s68, s2, 6")
    a("v_lshrrev_b32 v123, 2, v123")
    a("v_add_u32 v123, s68, v123")
    a("v_cmp_gt_u32 vcc, 512, v123")
    a("v_mov_b32 v122, 0x7ffffff0")
    a("s_lshl_b32 s68, s68, 6")
    a("v_cndmask_b32 v121, v122, v121, vcc")
    srd(a, 92, WS, UR_OFF, SZ_UR)

def publish(a):
    a("s_barrier")
    for k in range(10):
        a(f"ds_read_b128 v[{32+4*k}:{35+4*k}], v120 offset:{k*16*STP}")
    for k in range(10):
        a(f"s_add_u32 s69, s68, {k*16*32768}")
        a(f"s_waitcnt lgkmcnt({9-k})")
        a(f"buffer_store_dwordx4 v[{32+4*k}:{35+4*k}], v121, s[92:95], s69 offen sc1")
    stamp(a, 2)
    a("s_waitcnt vmcnt(0)")
    stamp(a, 3)
    a("s_barrier")

def role_misc(a):
    a("s_memrealtime s[60:61]")
    a("v_lshlrev_b32 v2, 4, v1")
    for i in range(4): a(f"v_mov_b32 v{4+i}, 0")
    a("s_waitcnt lgkmcnt(0)")
    if ENV("F_TLB", 1):
        srd(a, 64, WS, 0, 0x1A00000)
        a(f"v_mul_u32_u24 v30, {ENV('F_TLBS', 0x68000)}, v1")
        a("buffer_load_dword v31, v30, s[64:67], 0 offen")
    a("s_cmp_lg_u32 s2, 0")
    a("s_cbranch_scc1 F_NOEP")
    srd(a, 48, 40, 0, 8)
    a("s_or_b32 s60, s60, 1")
    a("v_mov_b32 v8, s60")
    a("v_mov_b32 v9, s61")
    a("buffer_store_dwordx2 v[8:9], v2, s[48:51], 0 offen sc1")
    a.label("F_NOEP")
    a("s_lshl_b32 s4, s2, 10")
    a("s_getpc_b64 s[56:57]")
    a.raw("F_PC:")
    a("s_add_u32 s56, s56, CODE_BEG-F_PC")
    a("s_addc_u32 s57, s57, 0")
    a("s_lshr_b32 s5, s2, 3")
    a("s_mul_i32 s5, s5, 4096")
    a("v_add_u32 v8, s5, v2")
    a("v_mov_b32 v9, CODE_END-CODE_BEG-16")
    a("s_waitcnt lgkmcnt(0)")
    srd(a, 44, WS, ST_OFF, 0x8000)
    a("buffer_store_dwordx4 v[4:7], v2, s[44:47], s4 offen")
    a("s_barrier")
    for i in range(4):
        a(f"v_add_u32 v10, {i*1024}, v8")
        a("v_min_u32 v10, v10, v9")
        a(f"global_load_dwordx4 v[{12+4*i}:{15+4*i}], v10, s[56:57]")
    a("s_endpgm")

def role_ln(a):
    a("s_lshl_b32 s4, s2, 3")
    a("s_add_u32 s4, s4, s3")
    a("s_mul_i32 s5, s4, 5120")
    a("v_lshlrev_b32 v4, 2, v1")
    a("v_add_u32 v5, 2560, v4")
    a("s_waitcnt lgkmcnt(0)")
    srd(a, 44, 16, 0, SZ_X)
    for i in range(4):
        for q in range(5):
            a(f"buffer_load_dword v{8+5*i+q}, v{4 if i < 2 else 5}, s[44:47], s5 offen offset:{(i%2)*1280 + q*256}")
    srd(a, 48, 40, 0, 256); srd(a, 52, WS, S1_OFF, 16384); srd(a, 92, WS, UR_OFF, 160*16384)
    a("s_mov_b32 s10, 0x05040100")
    a("s_mov_b32 s11, 0x07060302")
    a("v_lshrrev_b32 v104, 1, v1")
    a(f"v_mul_u32_u24 v104, {XP}, v104")
    a("v_and_b32 v105, 1, v1")
    a("v_lshl_add_u32 v104, v105, 4, v104")
    a("s_lshl_b32 s9, s3, 5")
    a(f"s_add_u32 s9, s9, {STG}")
    a("v_add_u32 v104, s9, v104")
    a("v_lshrrev_b32 v107, 4, v0")
    a("v_and_b32 v108, 15, v0")
    a(f"v_mul_u32_u24 v105, {XP}, v107")
    a("v_lshl_add_u32 v105, v108, 4, v105")
    a(f"v_add_u32 v105, {STG}, v105")
    a("v_lshlrev_b32 v106, 14, v107")
    a("v_lshl_add_u32 v106, v108, 4, v106")
    a("s_lshl_b32 s68, s2, 8")
    a("s_lshl_b32 s6, s4, 5")
    a("v_mov_b32 v6, 0")
    a(f"v_mov_b32 v7, {f2u(1.0/640):#x}")
    X = lambda i, q: 32 + 2 * (5 * i + q)
    a("s_waitcnt vmcnt(0)")
    stamp(a, 0)
    a("buffer_load_dwordx2 v[98:99], v6, s[48:51], 0 offen sc1")
    for q in range(5):
        d = 112 + 4 * q
        a(f"v_perm_b32 v{d}, v{13+q}, v{8+q}, s10")
        a(f"v_perm_b32 v{d+1}, v{23+q}, v{18+q}, s10")
        a(f"v_perm_b32 v{d+2}, v{13+q}, v{8+q}, s11")
        a(f"v_perm_b32 v{d+3}, v{23+q}, v{18+q}, s11")
        a(f"ds_write_b128 v104, v[{d}:{d+3}] offset:{q*32*XP}")
    a("s_waitcnt lgkmcnt(0)")
    a("s_barrier")
    for kk in range(5):
        a(f"ds_read_b128 v[{112+4*kk}:{115+4*kk}], v105 offset:{kk*32*XP}")
    for kk in range(5):
        a(f"s_add_u32 s69, s68, {kk*32*16384}")
        a(f"s_waitcnt lgkmcnt({4-kk})")
        a(f"buffer_store_dwordx4 v[{112+4*kk}:{115+4*kk}], v106, s[92:95], s69 offen sc1")
    stamp(a, 2)
    for i in range(4):
        for q in range(5):
            a(f"v_lshlrev_b32 v{X(i,q)}, 16, v{8+5*i+q}")
            a(f"v_and_b32 v{X(i,q)+1}, 0xffff0000, v{8+5*i+q}")
        s = 72 + 2 * i
        a(f"v_pk_add_f32 v[{s}:{s+1}], v[{X(i,0)}:{X(i,0)+1}], v[{X(i,1)}:{X(i,1)+1}]")
        for q in range(2, 5):
            a(f"v_pk_add_f32 v[{s}:{s+1}], v[{s}:{s+1}], v[{X(i,q)}:{X(i,q)+1}]")
        a(f"v_add_f32 v{s}, v{s}, v{s+1}")
    wave_reduce_sum(a, [72, 74, 76, 78])
    for i in range(4): a(f"v_readlane_b32 s{70+i}, v{72+2*i}, 63")
    for i in range(4): a(f"v_mul_f32 v{80+2*i}, s{70+i}, v7")
    for i in range(4):
        m = 80 + 2 * i
        for q in range(5):
            x = X(i, q)
            a(f"v_pk_add_f32 v[{x}:{x+1}], v[{x}:{x+1}], v[{m}:{m+1}] op_sel_hi:[1,0] neg_lo:[0,1] neg_hi:[0,1]")
        s = 72 + 2 * i
        x = X(i, 0)
        a(f"v_pk_mul_f32 v[{s}:{s+1}], v[{x}:{x+1}], v[{x}:{x+1}]")
        for q in range(1, 5):
            x = X(i, q)
            a(f"v_pk_fma_f32 v[{s}:{s+1}], v[{x}:{x+1}], v[{x}:{x+1}], v[{s}:{s+1}]")
        a(f"v_add_f32 v{s}, v{s}, v{s+1}")
    wave_reduce_sum(a, [72, 74, 76, 78])
    for i in range(4): a(f"v_readlane_b32 s{70+i}, v{72+2*i}, 63")
    R = lambda i: 16 + 2 * i
    steps = [
        lambda i: f"v_mul_f32 v{R(i)}, s{70+i}, v7",
        lambda i: f"v_cvt_pk_bf16_f32 v{R(i)}, v{R(i)}, v{R(i)}",
        lambda i: f"v_lshlrev_b32 v{R(i)}, 16, v{R(i)}",
        lambda i: f"v_add_f32 v{R(i)}, {f2u(1e-5):#x}, v{R(i)}",
        lambda i: f"v_cvt_pk_bf16_f32 v{R(i)}, v{R(i)}, v{R(i)}",
        lambda i: f"v_lshlrev_b32 v{R(i)}, 16, v{R(i)}",
        lambda i: f"v_sqrt_f32 v{R(i)}, v{R(i)}",
        lambda i: f"v_cvt_pk_bf16_f32 v{(96, 97, 100, 101)[i]}, v{80+2*i}, v{R(i)}",
    ]
    for st in steps:
        for i in range(4): a(st(i))
    stamp(a, 1)
    a("s_mov_b32 s8, 0")
    a("s_waitcnt vmcnt(5)")
    a.label("F_EPW")
    a("v_readfirstlane_b32 s7, v98")
    a("s_cmp_lg_u32 s7, 0")
    a("s_cbranch_scc1 F_EPOK")
    a("s_add_u32 s8, s8, 1")
    a("s_cmp_ge_u32 s8, 0x8000")
    a("s_cbranch_scc1 F_EPOK")
    a("buffer_load_dwordx2 v[98:99], v6, s[48:51], 0 offen sc1")
    a("s_waitcnt vmcnt(0)")
    a("s_branch F_EPW")
    a.label("F_EPOK")
    a("v_mov_b32 v102, v98")
    a("v_mov_b32 v103, v99")
    a("s_mov_b64 exec, 1")
    a("buffer_store_dwordx4 v[96:99], v6, s[52:55], s6 offen sc1")
    a("buffer_store_dwordx4 v[100:103], v6, s[52:55], s6 offen offset:16 sc1")
    a("v_mov_b32 v8, 1")
    a("s_waitcnt vmcnt(2)")
    stamp(a, 3)
    a("s_barrier")
    a("s_cmp_lg_u32 s3, 0")
    a("s_cbranch_scc1 F_LNX")
    a("buffer_atomic_add v8, v6, s[48:51], 0 offen offset:64 sc0 sc1")
    a("s_waitcnt vmcnt(0)")
    a("v_readfirstlane_b32 s9, v8")
    a("s_cmp_lg_u32 s9, 63")
    a("s_cbranch_scc1 F_LNX")
    a("v_mov_b32 v8, 1")
    a("buffer_store_dword v8, v6, s[48:51], 0 offen offset:128 sc1")
    a.label("F_LNX")
    a("s_mov_b64 exec, -1")
    a("s_branch F_W13")

NK = 5; NP = 4
def flag_wait(a, tag, voff):
    a("s_mov_b32 s10, 0")
    a.label(f"F_FW{tag}")
    a("s_sleep 8")
    a(f"buffer_load_dword v3, v{voff}, s[48:51], 0 offen offset:128 sc1")
    a("s_waitcnt vmcnt(0)")
    a("v_readfirstlane_b32 s11, v3")
    a("s_add_u32 s10, s10, 1")
    a("s_cmp_ge_u32 s10, 0x4000")
    a(f"s_cbranch_scc1 F_FG{tag}")
    a("s_cmp_eq_u32 s11, 0")
    a(f"s_cbranch_scc1 F_FW{tag}")
    a.label(f"F_FG{tag}")

def ln_w13(a):
    a("s_lshr_b32 s62, s2, 2")
    a("s_and_b32 s63, s2, 3")
    w13_setup(a, 3, 62, 63, 0)
    a("s_lshl_b32 s61, s3, 10")
    for i in range(4): a(f"v_mov_b32 v{8+i}, 0x3f803f80")
    a("s_mov_b32 s62, 0x00010001")
    a("s_mov_b32 s63, 0x00010001")
    if ENV("F_PWAIT", 0):
        a("s_cmp_lg_u32 s3, 7")
        a("s_cbranch_scc1 F_W13B")
        flag_wait(a, "A", 6)
        if ENV("F_PDELAY", 0): a(f"s_sleep {ENV('F_PDELAY', 0)}")
        a.label("F_W13B")
    a("s_barrier")
    for n in range(NK):
        a(f"s_add_u32 m0, s61, {n*8192}")
        a("buffer_load_dwordx4 v135, s[32:35], s52 offen lds")
        if n < NK - 1: a("s_add_u32 s52, s52, s53")
    a("s_waitcnt vmcnt(0)")
    a("s_barrier")
    for n in range(NK):
        for h in range(2):
            a(f"ds_read_b64_tr_b16 v[{80+4*n+2*h}:{81+4*n+2*h}], v{136+h} offset:{n*8192}")
    PSC = " sc1" if ENV("F_PSC", 1) else ""
    for n in range(NK):
        a(f"s_waitcnt lgkmcnt({2*(NK-1-n)})")
        a(f"buffer_store_dwordx4 v[{80+4*n}:{83+4*n}], v138, s[88:91], s54 offen{PSC}")
        a(f"v_mfma_f32_16x16x32_bf16 v[12:15], v[{80+4*n}:{83+4*n}], v[8:11], {'v[12:15]' if n else 0}")
        if n < NK - 1: a("s_add_u32 s54, s54, s55")
    a("s_mov_b64 exec, s[62:63]")
    a("buffer_store_dwordx2 v[12:13], v139, s[92:95], s60 offen")
    a("buffer_store_dwordx2 v[14:15], v139, s[92:95], s60 offen offset:16")
    a("s_endpgm")

def w13_setup(a, sj, scg, skq, lbase):
    a("v_lshrrev_b32 v135, 3, v1")
    a("v_mul_u32_u24 v135, 3072, v135")
    a("v_and_b32 v136, 7, v1")
    a("v_lshl_add_u32 v135, v136, 4, v135")
    a(f"s_mul_i32 s52, s{skq}, {NK*98304}")
    a(f"s_lshl_b32 s53, s{scg}, 7")
    a("s_add_u32 s52, s52, s53")
    a(f"s_and_b32 s53, s{sj}, 3")
    a("s_mul_i32 s53, s53, 24576")
    a("s_add_u32 s52, s52, s53")
    a("s_mov_b32 s53, 98304")
    a(f"s_cmp_lt_u32 s{sj}, 4")
    a("s_cselect_b32 s32, s32, s34")
    a("s_cselect_b32 s33, s33, s35")
    a("s_mov_b32 s34, 1966080")
    a("s_mov_b32 s35, 0x20000")
    a("v_lshrrev_b32 v136, 4, v1")
    a("v_bfe_u32 v137, v1, 2, 2")
    a("v_lshl_add_u32 v136, v136, 3, v137")
    a("v_lshlrev_b32 v136, 7, v136")
    a("v_and_b32 v137, 1, v1")
    a("v_lshl_add_u32 v136, v137, 12, v136")
    a("v_bfe_u32 v137, v1, 1, 1")
    a("v_lshl_add_u32 v136, v137, 3, v136")
    a(f"s_lshl_b32 s54, s{sj}, 4")
    a(f"s_add_u32 s54, s54, {lbase}")
    a("v_add_u32 v136, s54, v136")
    a("v_add_u32 v137, 512, v136")
    a("v_bfe_u32 v138, v1, 3, 1")
    a("v_lshlrev_b32 v138, 3, v138")
    a("v_bfe_u32 v139, v1, 1, 1")
    a("v_lshl_add_u32 v138, v139, 2, v138")
    a("v_and_b32 v139, 1, v1")
    a("v_add_u32 v138, v138, v139")
    a("v_bfe_u32 v139, v1, 2, 1")
    a("v_lshl_add_u32 v138, v139, 1, v138")
    a("v_lshrrev_b32 v139, 4, v1")
    a("v_lshlrev_b32 v139, 8, v139")
    a("v_lshl_add_u32 v138, v138, 4, v139")
    a("v_lshrrev_b32 v139, 5, v1")
    a("v_lshlrev_b32 v139, 5, v139")
    a("v_bfe_u32 v140, v1, 4, 1")
    a("v_lshl_add_u32 v139, v140, 3, v139")
    m3 = magic(3, 256, 16)
    a(f"s_lshl_b32 s54, s{scg}, 3")
    a(f"s_add_u32 s54, s54, s{sj}")
    a(f"s_mul_i32 s55, s54, {m3}")
    a("s_lshr_b32 s55, s55, 16")
    a(f"s_mul_i32 s60, s55, {NP*192 - 192}")
    a("s_lshl_b32 s61, s54, 6")
    a("s_add_u32 s60, s60, s61")
    a(f"s_mul_i32 s61, s{skq}, 192")
    a("s_add_u32 s60, s60, s61")
    a("s_mul_i32 s55, s55, 58368")
    a("s_lshl_b32 s54, s54, 10")
    a("s_add_u32 s54, s54, s55")
    a(f"s_mul_i32 s55, s{skq}, {NK*3072}")
    a("s_add_u32 s54, s54, s55")
    a("s_mov_b32 s55, 3072")
    srd(a, 88, WS, W13_OFF, 3932160); srd(a, 92, WS, CS_OFF, 64*NP*192)

def w2_setup(a, sG, lbase, sj=None):
    m15 = magic(15, 64, 16); m5 = magic(5, 64, 16)
    a(f"s_mul_i32 s61, s{sG}, {m15}")
    a("s_lshr_b32 s61, s61, 16")
    a("s_mul_i32 s62, s61, 15")
    a(f"s_sub_u32 s62, s{sG}, s62")
    a(f"s_mul_i32 s63, s62, {m5}")
    a("s_lshr_b32 s63, s63, 16")
    a("s_mul_i32 s52, s63, 5")
    a("s_sub_u32 s62, s62, s52")
    a("v_lshrrev_b32 v136, 4, v1")
    a("v_and_b32 v137, 1, v136")
    a("v_lshrrev_b32 v136, 1, v136")
    a("v_lshl_add_u32 v135, v136, 3, v137")
    a("s_mul_i32 s52, s63, 24")
    a("s_lshl_b32 s53, s63, 3")
    a("s_add_u32 s53, s53, 72")
    a("s_add_u32 s54, s52, 16")
    a("v_mov_b32 v140, s54")
    a("v_mov_b32 v138, s53")
    a("v_cmp_eq_u32 vcc, 0, v136")
    a("v_add_u32 v135, s52, v135")
    a("v_cndmask_b32 v140, v138, v140, vcc")
    a("v_add_u32 v140, v140, v137")
    a("v_and_b32 v138, 15, v1")
    a("v_lshlrev_b32 v138, 4, v138")
    a("v_mul_u32_u24 v135, 1280, v135")
    a("v_mul_u32_u24 v140, 1280, v140")
    a("v_add_u32 v135, v135, v138")
    a("v_add_u32 v140, v140, v138")
    a("s_mul_i32 s52, s61, 491520")
    a("s_lshl_b32 s53, s62, 8")
    a("s_add_u32 s52, s52, s53")
    a("s_mov_b32 s53, 122880")
    a("v_lshrrev_b32 v136, 4, v1")
    a("v_bfe_u32 v137, v1, 2, 2")
    a("v_lshl_add_u32 v136, v136, 3, v137")
    a("v_lshlrev_b32 v136, 8, v136")
    a("v_and_b32 v137, 3, v1")
    a("v_lshl_add_u32 v136, v137, 3, v136")
    a(f"v_add_u32 v136, {lbase}, v136")
    a("v_lshlrev_b32 v138, 4, v1")
    a("s_mul_i32 s55, s61, 12")
    a("s_add_u32 s55, s55, s63")
    a("s_mul_i32 s63, s55, 5120")
    a("s_lshl_b32 s62, s62, 3")
    if sj is not None:
        a(f"s_bitcmp1_b32 s{sj}, 0")
        a("s_cselect_b64 vcc, -1, 0")
        a("v_cndmask_b32 v135, v135, v140, vcc")
        a(f"s_lshr_b32 s54, s{sj}, 1")
        a("s_mul_i32 s54, s54, 2560")
        a("s_add_u32 s52, s52, s54")
        a(f"s_lshl_b32 s54, s{sj}, 5")
        a("v_add_u32 v136, s54, v136")
        a(f"s_add_u32 s62, s62, s{sj}")
        a(f"s_mul_i32 s54, s62, {m5}")
        a("s_lshr_b32 s54, s54, 16")
        a(f"s_mul_i32 s54, s54, {245760 - 5120}")
        a("s_lshl_b32 s62, s62, 10")
        a("s_add_u32 s54, s54, s62")
        a("s_add_u32 s54, s54, s63")
        a("s_mov_b32 s55, 15360")
        a("s_mov_b32 s60, 0")
        a("v_mov_b32 v139, 0")
        srd(a, 92, WS, CS_OFF, 0)
    a("v_add_u32 v137, 1024, v136")
    srd(a, 84, 36, 0, 1966080); srd(a, 88, WS, W2_OFF, 1966080)

def ln_w2_tile(a):
    a("s_cmp_ge_u32 s2, 80")
    a("s_cbranch_scc1 F_END")
    a("s_mul_i32 s9, s2, 3")
    a("s_add_u32 s9, s9, s3")
    a("s_sub_u32 s9, s9, 8")
    a("s_lshr_b32 s10, s9, 2")
    a("s_waitcnt lgkmcnt(0)")
    w2_setup(a, 10, 0)
    a("s_lshl_b32 s8, s3, 13")
    a("v_add_u32 v136, s8, v136")
    a("v_add_u32 v137, s8, v137")
    a("s_and_b32 s10, s9, 3")
    a("s_mul_i32 s11, s10, 122880")
    a("s_add_u32 s52, s52, s11")
    a("s_mul_i32 s11, s10, 15360")
    a("s_add_u32 s63, s63, s11")
    a("s_barrier")
    a("s_barrier")
    a("s_barrier")
    for i in range(8):
        a(f"s_add_u32 m0, s8, {i*1024}")
        a(f"s_add_u32 s13, s52, {(i>>1)*2560}")
        a(f"buffer_load_dwordx4 v{140 if i & 1 else 135}, s[84:87], s13 offen lds")
    a("s_barrier")
    m5 = magic(5, 64, 16)
    for i in range(8):
        a(f"s_add_u32 s13, s62, {i}")
        a(f"s_mul_i32 s14, s13, {m5}")
        a("s_lshr_b32 s14, s14, 16")
        a(f"s_mul_i32 s14, s14, {245760 - 5120}")
        a("s_lshl_b32 s13, s13, 10")
        a("s_add_u32 s14, s14, s13")
        a(f"s_add_u32 s{64+i}, s14, s63")
    a("s_waitcnt vmcnt(0)")
    for i in range(8):
        for h in range(2):
            a(f"ds_read_b64_tr_b16 v[{16+4*i+2*h}:{17+4*i+2*h}], v{136+h} offset:{i*32}")
    for i in range(8):
        a(f"s_waitcnt lgkmcnt({14-2*i})")
        a(f"buffer_store_dwordx4 v[{16+4*i}:{19+4*i}], v138, s[88:91], s{64+i} offen{' sc1' if ENV('F_PSC', 1) else ''}")
    a("s_endpgm")

def gather_addrs(a, base, unit, lowcheck):
    a(f"v_lshlrev_b32 v3, 3, v{unit}")
    a("v_cvt_f32_u32 v4, v3")
    if lowcheck: a(f"v_cmp_gt_u32 vcc, 16, v{unit}")
    for p in range(4):
        a(f"v_add_f32 v5, {f2u(float(2*p)):#x}, v4")
        a(f"v_add_f32 v6, {f2u(float(2*p+1)):#x}, v4")
        a("v_cvt_pk_bf16_f32 v5, v5, v6")
        a("v_subrev_u32 v5, 0x42804280, v5")
        a("v_and_b32 v6, 0xffff, v5")
        a("v_lshrrev_b32 v5, 16, v5")
        if lowcheck:
            a(f"v_add_u32 v7, {2*p}, v3")
            a(f"v_add_u32 v8, {2*p+1}, v3")
            a("v_cndmask_b32 v6, v6, v7, vcc")
            a("v_cndmask_b32 v5, v5, v8, vcc")
        a(f"v_lshl_add_u32 v{base+2*p}, v6, 1, s11")
        a(f"v_lshl_add_u32 v{base+2*p+1}, v5, 1, s11")

def conv_wg(a):
    a(f"s_sub_u32 s4, s2, {N_LN}")
    a("s_and_b32 s5, s4, 7")
    a("s_mul_i32 s5, s5, 20")
    a("s_lshr_b32 s4, s4, 3")
    a("s_add_u32 s4, s4, s5")
    a("s_and_b32 s5, s3, 3")
    a("s_lshr_b32 s6, s3, 2")
    a("s_lshl_b32 s7, s4, 2")
    a("s_add_u32 s7, s7, s5")
    a("s_mul_i32 s8, s7, 384")
    a("s_lshl_b32 s9, s6, 7")
    a("s_add_u32 s8, s8, s9")
    a("v_lshlrev_b32 v2, 1, v1")
    a("v_add_u32 v2, s8, v2")
    a("s_lshr_b32 s9, s7, 1")
    a("s_lshl_b32 s9, s9, 2")
    a("s_waitcnt lgkmcnt(0)")
    a("s_load_dword s10, s[26:27], s9")
    a("global_load_ushort v10, v2, s[18:19]")
    a("global_load_ushort v11, v2, s[20:21]")
    a("global_load_ushort v12, v2, s[22:23]")
    a("global_load_ushort v13, v2, s[24:25]")
    a("s_lshl_b32 s9, s4, 3")
    a("s_load_dwordx2 s[68:69], s[28:29], s9")
    srd(a, 48, 40, 0, 256); srd(a, 56, WS, H_OFF, SZ_X)
    a("s_mul_i32 s11, s5, 1536")
    a(f"s_add_u32 s11, s11, {TB}")
    a("s_lshl_b32 s12, s6, 6")
    a("v_add_u32 v9, s12, v1")
    gather_addrs(a, 100, 9, True)
    a(f"s_mul_i32 s13, s5, {KP}")
    a(f"s_add_u32 s13, s13, {KB}")
    a("v_lshlrev_b32 v108, 4, v9")
    a("v_add_u32 v108, s13, v108")
    a("v_add_u32 v9, 192, v1")
    gather_addrs(a, 126, 9, False)
    a("v_lshlrev_b32 v134, 4, v9")
    a("v_add_u32 v134, s13, v134")
    a(f"s_mul_i32 s8, s3, {WREG}")
    a(f"s_add_u32 s8, s8, {SB}")
    a("v_lshlrev_b32 v3, 2, v1")
    a("v_add_u32 v3, s8, v3")
    a("v_and_b32 v4, 15, v1")
    a(f"v_mul_u32_u24 v4, {ROWP}, v4")
    a("v_lshrrev_b32 v5, 4, v1")
    a("v_lshl_add_u32 v4, v5, 4, v4")
    a("v_add_u32 v4, s8, v4")
    a("v_lshlrev_b32 v9, 4, v1")
    a("v_add_u32 v109, s8, v9")
    a("v_mov_b32 v7, 0")
    a("v_lshlrev_b32 v6, 2, v0")
    a("v_and_b32 v6, 0x7ff, v6")
    a(f"ds_write_b32 v6, v7 offset:{UB}")
    a("v_and_b32 v6, 31, v1")
    a("v_lshlrev_b32 v6, 2, v6")
    a("v_add_u32 v6, s13, v6")
    a("ds_write_b32 v6, v7")
    a("s_waitcnt lgkmcnt(0)")
    a("s_lshl_b32 s9, s10, 16")
    a("s_and_b32 s10, s10, 0xffff0000")
    a("s_bitcmp1_b32 s7, 0")
    a("s_cselect_b32 s10, s10, s9")
    a(f"v_mov_b32 v15, {f2u(LOG2E):#x}")
    a("v_mul_f32 v14, s10, v15")
    a("v_exp_f32 v14, v14")
    a("v_cvt_pk_bf16_f32 v14, v14, v14")
    a("v_lshlrev_b32 v14, 16, v14")
    a("s_waitcnt vmcnt(0)")
    stamp(a, 0)
    for r in (10, 11, 12, 13): a(f"v_lshlrev_b32 v{r}, 16, v{r}")
    a("v_mul_f32 v10, v10, v15")
    a("v_exp_f32 v10, v10")
    a("v_mul_f32 v11, v11, v14")
    a("v_cvt_pk_bf16_f32 v10, v10, v10")
    a("v_lshlrev_b32 v10, 16, v10")
    a("v_mul_f32 v10, v10, v14")
    a("v_mul_f32 v10, v10, v15")
    a(f"v_mul_f32 v11, {f2u(INV2PI):#x}, v11")
    a("v_add_f32 v14, v14, v14")
    Q0 = 40
    a(f"v_mul_f32 v{Q0}, v12, v14")
    a(f"v_mul_f32 v{Q0+1}, v13, v14")
    for k, p in enumerate((1.0, 8.0, 128.0)):
        a(f"v_mul_f32 v{24+k}, {f2u(-p):#x}, v10")
        a(f"v_mul_f32 v{28+k}, {f2u(p):#x}, v11")
    for k in range(3):
        a(f"v_exp_f32 v{24+k}, v{24+k}")
        a(f"v_fract_f32 v{28+k}, v{28+k}")
    for k in range(3):
        a(f"v_cos_f32 v{16+2*k}, v{28+k}")
        a(f"v_sin_f32 v{17+2*k}, v{28+k}")
    for k in range(3):
        a(f"v_mul_f32 v{16+2*k}, v{16+2*k}, v{24+k}")
        a(f"v_mul_f32 v{17+2*k}, v{17+2*k}, v{24+k}")
    W1, W8, W128, W16 = 16, 18, 20, 22
    tmp = [24, 25, 26, 27]; tctr = [0]
    def put(r, reg, row, val, neg=False):
        t = tmp[tctr[0] % 4]; tctr[0] += 1
        r(f"v_cvt_pk_bf16_f32 v{t}, v{val}, {'-' if neg else ''}v{val+1}")
        r(f"ds_write_b32 v3, v{t} offset:{reg*RS + row*ROWP}")
    rb = Rec()
    rb("v_mov_b32 v27, 0x3f80"); rb("ds_write_b32 v3, v27 offset:0")
    cmul(rb, W16, W8, W8)
    put(rb, 0, 1, W8, True); put(rb, 0, 2, W16, True)
    ring = {1: W8, 2: W16}; slots = [28, 30, 32, 34]
    for b in range(3, 16):
        d = slots[b % 4]
        cmul(rb, d, ring[b-2], W16); ring[b] = d
        put(rb, 0, b, d, True)
    wc = {1: W1}; rw = Rec()
    for c, (x, y) in ((2, (1, 1)), (3, (2, 1)), (4, (2, 2)), (5, (4, 1)), (6, (4, 2)), (7, (4, 3))):
        wc[c] = 72 + 2 * (c - 2); cmul(rw, wc[c], wc[x], wc[y])
    rq = Rec(); Q = {0: Q0}
    for q in range(1, 17):
        Q[q] = Q0 + 2 * q if q < 16 else 84
        cmul(rq, Q[q], Q[q-1], W128)
    for t in interleave(rb.l, rw.l + rq.l): a(t)
    pr = [28, 30, 32, 34]; pc = [0]
    def prod(reg, row, x, y):
        if y is None:
            put(a, reg, row, x); return
        d = pr[pc[0] % 4]; pc[0] += 1
        return (d, x, y, reg, row)
    def run(jobs):
        jobs = [j for j in jobs if j]
        for i, j in enumerate(jobs):
            cmul(a, j[0], j[1], j[2])
            if i: p = jobs[i-1]; put(a, p[3], p[4], p[0])
        p = jobs[-1]; put(a, p[3], p[4], p[0])
    run([prod(1, 8*ap + c, Q[ap], wc[c] if c else None) for ap in range(2) for c in range(8)])
    FB = 110
    for s in range(4): a(f"ds_read_b128 v[{FB+4*s}:{FB+4*s+3}], v4 offset:{s*64}")
    jobs = []
    for ap in range(2):
        for c in range(4): jobs.append(prod(0, 4*ap + c, Q[2+ap], wc[2*c] if c else None))
    for ap in range(4):
        for c in range(2): jobs.append(prod(0, 8 + 2*ap + c, Q[4+ap], wc[4] if c else None))
    run(jobs)
    FT0 = 40; FT1 = 8; FT2 = 56
    for s in range(4): a(f"ds_read_b128 v[{FT0+4*s}:{FT0+4*s+3}], v4 offset:{RS + s*64}")
    for s in range(4): a(f"ds_read_b128 v[{FT1+4*s}:{FT1+4*s+3}], v4 offset:{s*64}")
    for q in range(8, 17): put(a, 1, q - 8, Q[q])
    for s in range(4): a(f"ds_read_b128 v[{FT2+4*s}:{FT2+4*s+3}], v4 offset:{RS + s*64}")
    ACC = 86
    a("s_waitcnt lgkmcnt(0)")
    for s in range(4):
        for t, F in enumerate((FT0, FT1, FT2)):
            c = f"v[{ACC+4*t}:{ACC+4*t+3}]"
            a(f"v_mfma_f32_16x16x32_bf16 {c}, v[{F+4*s}:{F+4*s+3}], v[{FB+4*s}:{FB+4*s+3}], {c if s else 0}")
    for t in range(3):
        a(f"ds_write_b128 v109, v[{ACC+4*t}:{ACC+4*t+3}] offset:{t*1024}")
    a(f"s_mul_i32 s8, s5, {WREG}")
    a("s_lshl_b32 s9, s6, 10")
    a("s_add_u32 s8, s8, s9")
    a(f"s_add_u32 s8, s8, {SB}")
    a("v_lshlrev_b32 v2, 4, v1")
    a("v_add_u32 v5, s8, v2")
    a(f"v_add_u32 v6, {8*WREG}, v5")
    a("v_lshlrev_b32 v142, 5, v0")
    a("v_mov_b32 v143, 0")
    srd(a, 44, WS, S1_OFF, 16384)
    a("s_waitcnt lgkmcnt(0)")
    stamp(a, 1)
    a("s_barrier")
    a("ds_read_b128 v[8:11], v5")
    a(f"ds_read_b128 v[12:15], v5 offset:{4*WREG}")
    a("ds_read_b128 v[16:19], v6")
    a("v_and_b32 v24, 15, v1")
    a("v_lshrrev_b32 v25, 4, v1")
    a("s_waitcnt lgkmcnt(0)")
    for j in (0, 2): a(f"v_pk_add_f32 v[{8+j}:{9+j}], v[{8+j}:{9+j}], v[{12+j}:{13+j}]")
    for j in (0, 2): a(f"v_pk_add_f32 v[{8+j}:{9+j}], v[{8+j}:{9+j}], v[{16+j}:{17+j}]")
    a("v_cvt_pk_bf16_f32 v20, v8, v9")
    a("v_cvt_pk_bf16_f32 v21, v10, v11")
    a("s_cmp_eq_u32 s6, 1")
    a("s_cbranch_scc1 F_T1")
    a("s_cmp_eq_u32 s6, 2")
    a("s_cbranch_scc1 F_T2")
    a("v_lshrrev_b32 v26, 1, v25")
    a("v_lshlrev_b32 v26, 8, v26")
    a("v_and_b32 v27, 1, v25")
    a("v_lshl_add_u32 v26, v27, 3, v26")
    a("v_lshl_add_u32 v26, v24, 4, v26")
    a("v_add_u32 v26, s11, v26")
    a("ds_write_b64 v26, v[20:21]")
    a("s_branch F_TW")
    a.label("F_T1")
    a("v_cmp_gt_u32 vcc, 2, v25")
    a("v_lshlrev_b32 v26, 3, v24")
    a("v_lshlrev_b32 v27, 2, v24")
    a("v_mov_b32 v28, 64")
    a("v_cndmask_b32 v26, v27, v26, vcc")
    a("v_cndmask_b32 v28, v28, 4, vcc")
    a("v_lshl_add_u32 v26, v25, 7, v26")
    a("v_add_u32 v26, s11, v26")
    a("v_add_u32 v28, v28, v26")
    a("ds_write_b32 v26, v20 offset:512")
    a("ds_write_b32 v28, v21 offset:512")
    a("s_branch F_TW")
    a.label("F_T2")
    a("v_lshlrev_b32 v26, 1, v24")
    a("v_lshl_add_u32 v26, v25, 7, v26")
    a("v_add_u32 v26, s11, v26")
    a("ds_write_b16 v26, v20 offset:1024")
    a("ds_write_b16_d16_hi v26, v20 offset:1056")
    a("ds_write_b16 v26, v21 offset:1088")
    a("ds_write_b16_d16_hi v26, v21 offset:1120")
    a.label("F_TW")
    a("s_waitcnt lgkmcnt(0)")
    a("s_barrier")
    for p in range(4):
        a(f"ds_read_u16 v{8+p}, v{100+2*p}")
        a(f"ds_read_u16_d16_hi v{12+p}, v{101+2*p}")
    a("s_cmp_lg_u32 s6, 0")
    a("s_cbranch_scc1 F_G1")
    for p in range(4):
        a(f"ds_read_u16 v{16+p}, v{126+2*p}")
        a(f"ds_read_u16_d16_hi v{20+p}, v{127+2*p}")
    a("s_waitcnt lgkmcnt(0)")
    for p in range(4): a(f"v_or_b32 v{16+p}, v{16+p}, v{20+p}")
    a("ds_write_b128 v134, v[16:19] offset:128")
    a.label("F_G1")
    a("s_waitcnt lgkmcnt(0)")
    for p in range(4): a(f"v_or_b32 v{8+p}, v{8+p}, v{12+p}")
    a("ds_write_b128 v108, v[8:11] offset:128")
    a("v_lshrrev_b32 v3, 4, v1")
    a("v_bfe_u32 v4, v1, 2, 2")
    a("v_and_b32 v5, 3, v1")
    a("v_lshlrev_b32 v16, 6, v3")
    a("v_lshl_add_u32 v16, v4, 3, v16")
    a("v_lshl_add_u32 v16, v5, 5, v16")
    a("v_add_u32 v16, s13, v16")
    a("s_lshr_b32 s14, s5, 1")
    a("s_and_b32 s15, s5, 1")
    a("s_lshl_b32 s15, s15, 3")
    for h in range(2):
        a(f"v_add_u32 v6, {44 - 4*h}, v5")
        a("v_sub_u32 v6, v6, v4")
        a("v_lshlrev_b32 v7, 3, v3")
        a("v_sub_u32 v6, v6, v7")
        a("v_lshrrev_b32 v7, 2, v6")
        a("v_add_u32 v7, s14, v7")
        a("v_and_b32 v7, 3, v7")
        a("v_lshlrev_b32 v6, 6, v6")
        a("v_lshl_add_u32 v6, v7, 4, v6")
        a(f"v_add_u32 v{17+h}, s15, v6")
    a("v_lshlrev_b32 v19, 1, v1")
    a("v_add_u32 v19, s13, v19")
    a("s_mov_b32 s70, 0"); a("s_mov_b32 s71, 0x80000000")
    a("s_mov_b32 s72, 0"); a("s_mov_b32 s73, 0xc0000000")
    a("s_mov_b32 s74, 0"); a("s_mov_b32 s75, 0xe0000000")
    a("s_lshl_b32 s12, s3, 10")
    a(f"s_add_u32 s12, s12, {UB + UPAD}")
    for e in range(2):
        a(f"s_lshl_b32 s{64+2*e}, s{68+e}, 16")
        a(f"s_and_b32 s{65+2*e}, s{68+e}, 0xffff0000")
    a("v_lshrrev_b32 v6, 2, v0")
    a("v_lshlrev_b32 v7, 6, v0")
    a(f"v_add_u32 v7, {UB + UPAD}, v7")
    for n in range(4):
        a(f"v_add_u32 v8, {n}, v6")
        a("v_and_b32 v8, 3, v8")
        a(f"v_lshl_add_u32 v{NB+28+n}, v8, 4, v7")
    srd(a, 36, WS, UR_OFF, 160*16384)
    a("s_lshl_b32 s9, s4, 14")
    a("s_cmp_lg_u32 s3, 0")
    a("s_cbranch_scc1 F_GO")
    a("s_mov_b32 s10, 0")
    a.label("F_POLL")
    a("buffer_load_dword v31, v143, s[48:51], 0 offen offset:128 sc1")
    a("s_waitcnt vmcnt(0)")
    a("v_readfirstlane_b32 s11, v31")
    a("s_cmp_lg_u32 s11, 0")
    a("s_cbranch_scc1 F_GO")
    a("s_sleep 2")
    a("s_add_u32 s10, s10, 1")
    a("s_cmp_lt_u32 s10, 0x8000")
    a("s_cbranch_scc1 F_POLL")
    a.label("F_GO")
    a("s_waitcnt lgkmcnt(0)")
    stamp(a, 5)
    a("s_barrier")
    a("s_cmp_ge_u32 s3, 8")
    a("s_cbranch_scc1 F_NOXQ")
    a("buffer_load_dwordx4 v[144:147], v142, s[36:39], s9 offen sc1")
    a("buffer_load_dwordx4 v[148:151], v142, s[36:39], s9 offen offset:16 sc1")
    st_loads(a)
    a.label("F_NOXQ")
    a("s_cmp_eq_u32 s6, 1")
    a("s_cbranch_scc1 F_P1")
    a("s_cmp_eq_u32 s6, 2")
    a("s_cbranch_scc1 F_P2")
    for p in range(3):
        if p: a.label(f"F_P{p}")
        conv_part(a, p)
        if p < 2: a("s_branch F_FIN")
    a.label("F_FIN")
    a("s_waitcnt lgkmcnt(0)")
    stamp(a, 4)
    a("s_barrier")
    a(f"v_mul_u32_u24 v16, {KP}, v4")
    a("v_lshl_add_u32 v16, v3, 5, v16")
    a("v_lshl_add_u32 v16, v5, 3, v16")
    a("s_lshl_b32 s13, s3, 7")
    a("v_add_u32 v16, s13, v16")
    a("v_lshl_add_u32 v6, v3, 2, v5")
    a("v_lshlrev_b32 v6, 6, v6")
    a("v_and_b32 v7, 1, v4")
    a("v_lshl_add_u32 v6, v7, 3, v6")
    a("v_add_u32 v6, s12, v6")
    a("v_lshrrev_b32 v7, 1, v4")
    a("v_add_u32 v7, v7, v3")
    a("v_add_u32 v7, 2, v7")
    a("v_and_b32 v7, 3, v7")
    a("v_lshl_add_u32 v17, v7, 4, v6")
    for i in range(3):
        a(f"ds_read_b64_tr_b16 v[{24+4*i}:{25+4*i}], v16 offset:{KB + 128 + i*1536}")
        a(f"ds_read_b64_tr_b16 v[{26+4*i}:{27+4*i}], v17 offset:{i*12288}")
    a("v_mul_u32_u24 v19, 20480, v3")
    a("v_and_b32 v6, 15, v1")
    a("v_lshl_add_u32 v19, v6, 4, v19")
    a("s_mul_i32 s13, s3, 81920")
    a("s_lshl_b32 s14, s4, 7")
    a("s_lshr_b32 s14, s4, 1")
    a("s_lshl_b32 s14, s14, 8")
    a("s_and_b32 s15, s4, 1")
    a("s_lshl_b32 s15, s15, 3")
    a("s_add_u32 s14, s14, s15")
    a("s_add_u32 s13, s13, s14")
    for i in range(3):
        Y = 24 + 4 * i; A = 40 + 8 * i
        a(f"s_waitcnt lgkmcnt({4 - 2*i})")
        for q in range(2):
            a(f"v_lshlrev_b32 v{A+2*q}, 16, v{Y+q}")
            a(f"v_and_b32 v{A+2*q+1}, 0xffff0000, v{Y+q}")
            a(f"v_lshlrev_b32 v{A+4+2*q}, 16, v{Y+2+q}")
            a(f"v_and_b32 v{A+4+2*q+1}, 0xffff0000, v{Y+2+q}")
        for q in range(2):
            a(f"v_pk_add_f32 v[{A+2*q}:{A+2*q+1}], v[{A+2*q}:{A+2*q+1}], v[{A+4+2*q}:{A+4+2*q+1}]")
        for q in range(2):
            a(f"v_cvt_pk_bf16_f32 v{Y+q}, v{A+2*q}, v{A+2*q+1}")
        a(f"s_add_u32 s14, s13, {i*12*81920}")
        a(f"buffer_store_dwordx2 v[{Y}:{Y+1}], v19, s[56:59], s14 offen{' sc1' if ENV('F_HSC', 0) else ''}")
    a("s_endpgm")

def normalise(a, p):
    a("s_mov_b32 s67x, 0".replace("s67x", "s9"))
    a.label(f"F_STW{p}")
    a("s_waitcnt vmcnt(0)")
    a(f"v_cmp_ne_u64 vcc, v[{NB+0}:{NB+1}], v[{NB+6}:{NB+7}]")
    a(f"v_cmp_ne_u64 s[14:15], v[{NB+0}:{NB+1}], v[{NB+10}:{NB+11}]")
    a(f"v_cmp_eq_u32 s[10:11], 0, v{NB}")
    a("s_or_b64 vcc, vcc, s[14:15]")
    a("s_or_b64 vcc, vcc, s[10:11]")
    a(f"s_cbranch_vccz F_STOK{p}")
    a("s_add_u32 s9, s9, 1")
    a("s_cmp_ge_u32 s9, 0x8000")
    a(f"s_cbranch_scc1 F_STOK{p}")
    a("s_sleep 2")
    st_loads(a)
    a(f"s_branch F_STW{p}")
    a.label(f"F_STOK{p}")
    stamp(a, 2)
    G = [NB + 4, NB + 5, NB + 8, NB + 9]
    RSr = NB + 32; NM = NB + 36
    X = lambda c, h: NB + 12 + 4 * c + 2 * h
    U = lambda c, h: NB + 40 + 4 * c + 2 * h
    for i in range(4): a(f"v_and_b32 v{RSr+i}, 0xffff0000, v{G[i]}")
    for i in range(4): a(f"v_rcp_f32 v{RSr+i}, v{RSr+i}")
    for i in range(4): a(f"v_lshlrev_b32 v{NM+i}, 16, v{G[i]}")
    for c in range(4):
        for h in range(2):
            a(f"v_lshlrev_b32 v{X(c,h)}, 16, v{144+2*c+h}")
            a(f"v_and_b32 v{X(c,h)+1}, 0xffff0000, v{144+2*c+h}")
    for i in range(4): a(f"v_mul_f32 v{NM+i}, -v{NM+i}, v{RSr+i}")
    O = NB
    for c in range(4):
        for h in range(2):
            a(f"v_pk_fma_f32 v[{U(c,h)}:{U(c,h)+1}], v[{X(c,h)}:{X(c,h)+1}], v[{RSr+2*h}:{RSr+2*h+1}], v[{NM+2*h}:{NM+2*h+1}]")
    for c in range(4):
        for h in range(2):
            a(f"v_cvt_pk_bf16_f32 v{O+2*c+h}, v{U(c,h)}, v{U(c,h)+1}")
        if c % 2: a(f"ds_write_b128 v{NB+28+c//2}, v[{O+2*c-2}:{O+2*c+1}]")
    for c in range(4):
        o = c % 2
        for h in range(2):
            a(f"v_pk_fma_f32 v[{X(c,h)}:{X(c,h)+1}], v[{U(c,h)}:{U(c,h)+1}], s[{64+2*(c//2)}:{65+2*(c//2)}], v[{X(c,h)}:{X(c,h)+1}] op_sel:[0,{o},0] op_sel_hi:[1,{o},1]")
    for c in range(4):
        for h in range(2):
            a(f"v_cvt_pk_bf16_f32 v{144+2*c+h}, v{X(c,h)}, v{X(c,h)+1}")
        if c % 2: a(f"ds_write_b128 v{NB+30+c//2}, v[{144+2*c-2}:{144+2*c+1}]")

NB = 80
def st_loads(a):
    a(f"buffer_load_dwordx2 v[{NB}:{NB+1}], v143, s[48:51], 0 offen sc1")
    a(f"buffer_load_dwordx4 v[{NB+4}:{NB+7}], v142, s[44:47], 0 offen sc1")
    a(f"buffer_load_dwordx4 v[{NB+8}:{NB+11}], v142, s[44:47], 0 offen offset:16 sc1")

def conv_part(a, p):
    Ts, Te = PARTS[p]; Tf = max(Ts - 1, 0)
    Qmax = (Te - 1) // 2
    ds = Cnt(a, "lgkmcnt", 15)
    FR = 24; GR = FR + 4 * (Qmax + 1); NG = 8; AR = GR + 4 * NG
    acc = lambda T: AR + 4 * (T - Tf)
    T2 = 152
    assert acc(Te - 1) + 3 < T2
    for Q in range(Qmax, -1, -1):
        for h in range(2):
            a(f"ds_read_b64_tr_b16 v[{FR+4*Q+2*h}:{FR+4*Q+2*h+1}], v16 offset:{32 + 256*Q + 32*h}")
    if p < 2: normalise(a, p)
    a("s_waitcnt lgkmcnt(0)")
    stamp(a, 3)
    a("s_barrier")
    def gread(d):
        g = GR + 4 * (d % NG)
        for h in range(2):
            a(f"ds_read_b64_tr_b16 v[{g+2*h}:{g+2*h+1}], v{17+h} offset:{UB + 1024*d}"); ds.issue(("G", d))
    PD = 6
    for d in range(min(PD, Te)): gread(d)
    started = set(); pend = []
    def combine(T):
        t = T2 + 4 * (T % 2); D = acc(T); out = []
        for e, m in ((3, 74), (2, 72), (1, 70)):
            prev = f"v{acc(T-1)+e}" if T > 0 else "0"
            out.append(f"v_cndmask_b32 v{t+e}, v{D+e}, {prev}, s[{m}:{m+1}]")
        out.append(f"v_add_f32_dpp v{t+2}, v{t+3}, v{t+2} wave_ror:1 row_mask:0xf bank_mask:0xf")
        out.append(f"v_add_f32_dpp v{t+1}, v{t+2}, v{t+1} wave_ror:1 row_mask:0xf bank_mask:0xf")
        out.append(f"v_add_f32_dpp v{t}, v{t+1}, v{D} wave_ror:1 row_mask:0xf bank_mask:0xf")
        out.append(f"v_cvt_pk_bf16_f32 v{t}, v{t}, v{t}")
        out.append(f"ds_write_b16 v19, v{t} offset:{128 + T*128}")
        return out
    def side(n):
        for _ in range(n):
            if pend:
                t = pend.pop(0); a(t)
                if t.startswith("ds_"): ds.issue("Y")
    for d in range(Te):
        ds.wait(("G", d))
        g = GR + 4 * (d % NG)
        for T in [T for T in range(max(d, Tf), Te) if (T - d) % 2 == 0]:
            Q = (T - d) // 2
            c = f"v[{acc(T)}:{acc(T)+3}]"
            a(f"v_mfma_f32_16x16x32_bf16 {c}, v[{FR+4*Q}:{FR+4*Q+3}], v[{g}:{g+3}], {c if T in started else 0}")
            started.add(T)
            side(2)
        if d + PD < Te: gread(d + PD)
        if d - 1 >= Ts: pend += combine(d - 1)
    pend += combine(Te - 1)
    side(100)
```

```python
import os
from asmlib import *
from layout import *
from k1 import srd
from k34 import stat_finalize_steps
import asmlib
BST = os.environ.get("K3_BST") if "os" in dir() else None
K35_LDS = 163840
ENV = lambda k, d: int(os.environ.get(k, d))

_stamp = stamp
def stamp(a, i, alt=None):
    if (alt or "") == (BST or ""): _stamp(a, i)
    elif alt is None and i < 2 and BST == "B": _stamp(a, i)

def gen_k35(a):
    a.raw(kernel_header("mlp_kernel"))
    if os.environ.get("K3_DROP"): a.drop = os.environ["K3_DROP"].split(",")
    a("s_cmp_ge_u32 s2, 256")
    a("s_cbranch_scc1 K3_END")
    a("s_load_dwordx2 s[38:39], s[0:1], 88")
    a("s_load_dwordx2 s[40:41], s[0:1], 104")
    a("v_lshrrev_b32 v2, 6, v0")
    a("v_and_b32 v1, 63, v0")
    a("v_readfirstlane_b32 s3, v2")
    a("v_lshlrev_b32 v2, 4, v1")
    a("s_bfe_u32 s4, s2, 0x20001")
    a("s_lshl_b32 s4, s4, 2")
    a("s_bfe_u32 s5, s2, 0x20003")
    a("s_add_u32 s4, s4, s5")
    a("s_lshr_b32 s18, s2, 5")
    a("s_and_b32 s19, s2, 1")
    a("s_lshl_b32 s5, s18, 1")
    a("s_add_u32 s5, s5, s19")
    a("s_mul_i32 s6, s3, 20480")
    a("s_mul_i32 s20, s4, 163840")
    a("s_add_u32 s7, s20, s6")
    a("s_lshl_b32 s8, s5, 2")
    a("s_add_u32 s8, s8, s3")
    a("s_mul_i32 s9, s8, 61440")
    a("s_mul_i32 s21, s18, 20480")
    a("s_add_u32 s21, s21, s20")
    a("s_mul_i32 s10, s3, 5120")
    a("s_add_u32 s21, s21, s10")
    a("s_mul_i32 s22, s18, 245760")
    a("s_mul_i32 s10, s3, 61440")
    a("s_add_u32 s22, s22, s10")
    a("s_waitcnt lgkmcnt(0)")
    srd(a, 44, 40, H_OFF, SZ_X); srd(a, 48, 40, W13_OFF, 3932160)
    vm = Cnt(a, "vmcnt", 63); ds = Cnt(a, "lgkmcnt", 15)
    ACC = 32; HB = 128; STR = 192; CSR = 16
    acc = lambda i, t: ACC + 4 * (3 * i + t)
    hb = lambda n, i: HB + 16 * (n & 1) + 4 * i
    SF = 160
    for i in range(5):
        if i == 4: a("s_add_u32 s21, s21, 4096")
        a(f"buffer_load_dwordx4 v[{SF+4*i}:{SF+4*i+3}], v2, s[44:47], s21 offen offset:{(i%4)*1024}"); vm.issue("sf")
    items = []
    for s in range(20):
        items += [("h", s, 0), ("w", s, 0), ("w", s, 1), ("w", s, 2)]
        if s == 10: items.append(("cs", 0, 0))
        if s == ENV("K3_STPOS", 16): items.append(("st", 0, 0))
    HBE = ENV("K3_HBE", 7)
    for s in range(HBE): items.append(("h", 20 + s, 1))
    for s in range(20):
        if s + HBE < 20: items.append(("h", 20 + s + HBE, 1))
        items += [("w2", 3 * s + t, 0) for t in range(3)]
    cur = [-1]
    def issue_item():
        if not items or len(vm.q) >= 60: return False
        kd, s, x = items[0]
        if kd == "w2" and s // 3 > cur[0]: return False
        items.pop(0)
        if kd == "h":
            ss = s % 20
            off = x * 81920 + (ss & ~3) * 1024
            if ss % 4 == 0:
                a(f"s_add_u32 m0, s6, {off}")
                a(f"s_add_u32 s10, s7, {off}")
            a(f"buffer_load_dwordx4 v2, s[44:47], s10 offen offset:{(ss&3)*1024} lds"); vm.issue(s)
        elif kd == "w":
            idx = 3 * s + x
            if idx % 4 == 0: a(f"s_add_u32 s11, s9, {(idx & ~3) * 1024}")
            a(f"buffer_load_dwordx4 a[{4*idx}:{4*idx+3}], v2, s[48:51], s11 offen offset:{(idx&3)*1024}"); vm.issue(s)
        elif kd == "w2" and os.environ.get("K3_NOW2"): pass
        elif kd == "w2":
            if s % 4 == 0: a(f"s_add_u32 s11, s22, {(s & ~3) * 1024}")
            a(f"buffer_load_dwordx4 a[{4*s}:{4*s+3}], v2, s[68:71], s11 offen offset:{(s&3)*1024}"); vm.issue(("w2", s))
        elif kd == "cs":
            a(f"buffer_load_dwordx4 v[180:183], v2, s[52:55], s17 offen"); vm.issue("cs")
        elif kd == "st":
            st_loads()
        return True
    def st_loads():
        a(f"buffer_load_dwordx4 v[176:179], v2, s[72:75], s24 offen sc1"); vm.issue("st")
    for _ in range(ENV("K3_PRO", 14)): issue_item()
    srd(a, 52, 40, CS_OFF, 64*768); srd(a, 56, 40, HM_OFF, 6291456)
    srd(a, 68, 40, W2_OFF, 1966080); srd(a, 72, 40, ST_OFF, 0x4000 + 128*128)
    a("v_and_b32 v6, 15, v1")
    a("v_lshrrev_b32 v7, 4, v1")
    a("v_lshlrev_b32 v3, 4, v7")
    a("s_mul_i32 s17, s8, 768")
    a("v_lshlrev_b32 v5, 3, v6")
    a("s_lshl_b32 s24, s4, 10")
    a("v_add_u32 v3, s6, v3")
    a("v_add_u32 v184, s6, v5")
    for i in range(8):
        a(f"s_add_u32 s13, s3, {i}")
        a("s_and_b32 s13, s13, 3")
        if i >= 4: a("s_add_u32 s13, s13, 4")
        a("s_mul_i32 s14, s13, 20480")
        a(f"v_add_u32 v{8+i}, s14, v2")
    a("s_mov_b32 s16, 0x3f803f80")
    SCR = 7 * 20480 + 19 * 1024
    a("s_lshl_b32 s13, s3, 7")
    a("v_add_u32 v6, s13, v5")
    vm.wait("sf")
    for r in range(20):
        for k in range(2):
            d = 28 + 2 * (r % 2) + k
            src2 = "s16" if k == 0 else f"v{SF+r}"
            a(f"v_dot2_f32_bf16 v{d}, v{SF+r}, {src2}, {'0' if r < 2 else 'v%d' % d}")
        if r % 2 == 1: issue_item()
    a("v_pk_add_f32 v[28:29], v[28:29], v[30:31]")
    for sw in ("v_permlane32_swap_b32", "v_permlane16_swap_b32"):
        for r in range(2): a(f"v_mov_b32 v{30+r}, v{28+r}")
        for r in range(2): a(f"{sw} v{28+r}, v{30+r}")
        a("v_pk_add_f32 v[28:29], v[28:29], v[30:31]")
    a(f"v_add_u32 v6, {SCR}, v6")
    a(f"v_add_u32 v7, {SCR}, v5")
    a("ds_write_b64 v6, v[28:29]")
    a("s_waitcnt lgkmcnt(0)")
    def hread(n, i):
        sl = i + 4 * (n // 20)
        a(f"ds_read_b128 v[{hb(n,i)}:{hb(n,i)+3}], v{8+sl} offset:{(n%20)*1024}"); ds.issue((n, i))
    vm.wait(0)
    stamp(a, 0)
    a("s_barrier")
    for i in range(4): hread(0, i)
    P = 240
    side = [("ds", f"ds_read_b64 v[{P+2*i}:{P+2*i+1}], v7 offset:{i*128}") for i in range(4)]
    side += [("v", f"v_mov_b32 v{P+8}, {f2u(1.0/640):#x}"),
             ("v", "s_lshl_b32 s13, s19, 3"), ("v", "s_lshl_b32 s14, s3, 1"), ("v", "s_add_u32 s13, s13, s14"),
             ("v", "s_lshl_b64 s[32:33], 3, s13"),
             ("v", "s_lshl_b32 s13, s4, 3"), ("v", "s_add_u32 s13, s13, s18"), ("v", "s_lshl_b32 s34, s13, 7"),
             ("w", None),
             ("v", f"v_add_f32 v{P}, v{P}, v{P+2}"), ("v", f"v_add_f32 v{P+1}, v{P+1}, v{P+3}"),
             ("v", f"v_add_f32 v{P+4}, v{P+4}, v{P+6}"), ("v", f"v_add_f32 v{P+5}, v{P+5}, v{P+7}"),
             ("v", f"v_add_f32 v{P}, v{P}, v{P+4}"), ("v", f"v_add_f32 v{P+1}, v{P+1}, v{P+5}")]
    side += [("v", st(P, P + 1, P + 2)) for st in stat_finalize_steps(P + 8)]
    side += [("x", None)]
    prep = []
    prep += ["s_lshl_b32 s13, s4, 3", "s_add_u32 s13, s13, s3", "s_mul_i32 s13, s13, 49152", "s_mul_i32 s14, s5, 3072",
             "s_add_u32 s60, s13, s14", "s_add_u32 s61, s60, 196608"]
    prep += ["s_lshl_b32 s13, s4, 2", "s_lshr_b32 s14, s5, 2", "s_add_u32 s14, s14, s13", "s_lshl_b32 s14, s14, 8",
             "s_add_u32 s62, s14, 0x4000",
             "s_add_u32 s13, s13, s3", "s_lshl_b32 s13, s13, 8", "s_add_u32 s63, s13, 0x4000"]
    prep += ["s_lshl_b32 s13, s4, 3", "s_lshl_b32 s14, s19, 1", "s_add_u32 s23, s13, s14",
             "s_mul_i32 s13, s23, 49152", "s_mul_i32 s14, s3, 12288", "s_add_u32 s64, s13, s14",
             "s_add_u32 s65, s64, 49152", "s_add_u32 s66, s64, 196608", "s_add_u32 s67, s64, 245760",
             "s_lshl_b32 s36, s3, 10"]
    side += [("v", t) for t in prep]
    def do_side():
        if not side: return False
        k, t = side.pop(0)
        if k == "ds": a(t); ds.issue("sp")
        elif k == "w": ds.wait("sp")
        elif k == "v": a(t)
        else:
            a("s_mov_b64 exec, s[32:33]")
            a(f"buffer_store_dwordx2 v[{P}:{P+1}], v5, s[72:75], s34 offen sc1"); vm.issue("gs")
            a("s_mov_b64 exec, -1")
        return True
    def mfma(i, t, s, n, first):
        c = f"v[{acc(i,t)}:{acc(i,t)+3}]"; w = 4 * (3 * s + t)
        a(f"v_mfma_f32_16x16x32_bf16 {c}, a[{w}:{w+3}], v[{hb(n,i%4)}:{hb(n,i%4)+3}], {0 if first else c}")
    def phase_a(var):
        for s in range(20):
            if s % 3 == 0: stamp(a, s // 3, "A")
            assert not any(kd in "hw" and x == s + 1 for kd, x, _ in items), s
            vm.wait(s + 1)
            a("s_barrier")
            ds.wait((s, 3))
            nl = 5 if s % ENV("K3_AX", 2) == 0 else 4
            for i in range(4):
                for t in range(3):
                    mfma(i, t, s, s, s == 0)
                    if t == 0: hread(s + 1, i)
                    if i == var:
                        for _ in range(2 if t or nl == 5 and False else 1):
                            if nl: issue_item(); nl -= 1
                    elif t: do_side(); do_side()
            if s == ENV("K3_STCHK", 15):
                while side: do_side()
                a("s_mov_b32 s35, 0")
                a.label(f"K3_STCHK{var}")
                vm.wait("st")
                saved_q = list(vm.q)
                a("v_min_u32 v6, v177, v179")
                a("v_cmp_eq_u32 vcc, 0, v6")
                a(f"s_cbranch_vccz K3_STOK{var}")
                a("s_add_u32 s35, s35, 1")
                a("s_cmp_ge_u32 s35, 0x4000")
                a(f"s_cbranch_scc1 K3_STOK{var}")
                a("s_sleep 2")
                st_loads()
                a("s_waitcnt vmcnt(0)")
                a(f"s_branch K3_STCHK{var}")
                a.label(f"K3_STOK{var}")
                vm.q = saved_q
                side.extend([("ds", "ds_write_b128 v8, v[176:179] offset:4096"), ("ds", "ds_write_b128 v8, v[180:183] offset:5120")])
                for i in range(8):
                    rt = ((var + i) & 3) + 4 * (i >> 2)
                    side.append(("ds", f"ds_read_b64 v[{STR+4*i}:{STR+4*i+1}], v184 offset:{4096 + rt*128}"))
                side.extend(("ds", f"ds_read_b128 v[{CSR+4*t}:{CSR+4*t+3}], v3 offset:{5120 + t*64}") for t in range(3))
                side.extend([("v", "v_mov_b32 v28, 1"), ("v", "v_mov_b32 v29, 0")])
                for pp, rr in ((1, 224), (2, 160), (3, 240)):
                    side.extend(("ds", f"ds_read_b128 v[{rr+4*t}:{rr+4*t+3}], v3 offset:{5120 + pp*192 + t*64}") for t in range(3))
                side.append(("w", None))
                side.extend(("v", f"v_add_f32 v{CSR+r}, v{CSR+r}, v{224+r}") for r in range(12))
                side.extend(("v", f"v_add_f32 v{160+r}, v{160+r}, v{240+r}") for r in range(12))
                side.extend(("v", f"v_add_f32 v{CSR+r}, v{CSR+r}, v{160+r}") for r in range(12))
                side.extend(("v", t) for t in pre)
        while side: do_side()
        stamp(a, 1)
    PK = ENV("K3_PK", 0)
    def epi(i, var, pk):
        S = STR + 4 * i; O = 224 + 4 * (i % 2); out = []; seqs = []
        for t in range(3):
            c = acc(i, t); e = 232 + 2 * t; cs = CSR + 4 * t
            if pk:
                seqs.append([
                f"v_pk_fma_f32 v[{c}:{c+1}], v[{cs}:{cs+1}], v[{S}:{S+1}], v[{c}:{c+1}] op_sel_hi:[1,0,1] neg_lo:[0,1,0] neg_hi:[0,1,0]",
                f"v_pk_fma_f32 v[{c+2}:{c+3}], v[{cs+2}:{cs+3}], v[{S}:{S+1}], v[{c+2}:{c+3}] op_sel_hi:[1,0,1] neg_lo:[0,1,0] neg_hi:[0,1,0]",
                f"v_pk_mul_f32 v[{e}:{e+1}], v[{c}:{c+1}], v[{S+2}:{S+3}] op_sel_hi:[1,0]",
                f"v_exp_f32 v{e}, v{e}",
                f"v_exp_f32 v{e+1}, v{e+1}",
                f"v_pk_mul_f32 v[{c}:{c+1}], v[{c}:{c+1}], v[{c+2}:{c+3}]",
                f"v_pk_fma_f32 v[{e}:{e+1}], v[{e}:{e+1}], v[{S}:{S+1}], v[{S}:{S+1}] op_sel:[0,1,1] op_sel_hi:[1,1,1]",
                f"v_rcp_f32 v{e}, v{e}",
                f"v_rcp_f32 v{e+1}, v{e+1}",
                f"v_pk_mul_f32 v[{c}:{c+1}], v[{c}:{c+1}], v[{e}:{e+1}]",
                f"v_cvt_pk_bf16_f32 v{O+t}, v{c}, v{c+1}"])
            else:
                seqs.append(
                [f"v_fma_f32 v{c+r}, -v{S}, v{cs+r}, v{c+r}" for r in range(2)] +
                [f"v_mul_f32 v{e+r}, v{c+r}, v{S+2}" for r in range(2)] +
                [f"v_exp_f32 v{e}, v{e}", f"v_fma_f32 v{c+2}, -v{S}, v{cs+2}, v{c+2}",
                 f"v_exp_f32 v{e+1}, v{e+1}", f"v_fma_f32 v{c+3}, -v{S}, v{cs+3}, v{c+3}"] +
                [f"v_mul_f32 v{c+r}, v{c+r}, v{c+2+r}" for r in range(2)] +
                [f"v_fma_f32 v{e+r}, v{e+r}, v{S+1}, v{S+1}" for r in range(2)] +
                [f"v_rcp_f32 v{e+r}, v{e+r}" for r in range(2)] +
                [f"v_mul_f32 v{c+r}, v{c+r}, v{e+r}" for r in range(2)] +
                [f"v_cvt_pk_bf16_f32 v{O+t}, v{c}, v{c+1}"])
        for j in range(len(seqs[0])):
            for sq in seqs:
                if not os.environ.get("K3_NOEPI"): out.append(sq[j])
        if var < 3:
            out.append(f"ds_write_b96 v{8+i}, v[{O}:{O+2}] offset:{var*1024}")
        else:
            out += [f"ds_write_b32 v{8+i}, v{O+t} offset:{t*1024 + 12}" for t in range(3)]
        return out
    pre = [f"v_mov_b32 v4, {f2u(-LOG2E):#x}"]
    pre += [f"v_rcp_f32 v{STR+4*i+2}, v{STR+4*i+1}" for i in range(8)]
    pre += [f"v_mul_f32 v{STR+4*i+1}, v{STR+4*i+1}, v{STR+4*i+1}" for i in range(8)]
    pre += [f"v_mul_f32 v{STR+4*i+2}, v{STR+4*i+2}, v4" for i in range(8)]
    PB = 160
    def signal(hf):
        if signal.var < 4:
            if signal.var == 0:
                a("s_mov_b64 exec, 1")
                a(f"buffer_atomic_add v28, v29, s[72:75], s62 offen offset:{hf*128} sc1"); vm.issue("sig")
                a("s_mov_b64 exec, -1")
            return
        a("s_cmp_lg_u32 s3, 0")
        lab = f"K3_NOSIG{hf}_{signal.var}"
        a(f"s_cbranch_scc1 {lab}")
        a("s_mov_b64 exec, 1")
        a(f"buffer_atomic_add v28, v29, s[72:75], s62 offen offset:{hf*128} sc1")
        a("s_mov_b64 exec, -1")
        a.label(lab)
        vm.q.append("sig")
        vm.q.pop()
    A2 = 80; HR = 224
    acc2 = lambda j, t: A2 + 4 * (5 * j + t)
    HMR = [32 + 4 * i for i in range(12)] + [160 + 4 * i for i in range(8)] + [240 + 4 * i for i in range(4)]
    hm = lambda j, k: HMR[12 * (j % 2) + k]
    hq = []
    def ld_hm(j, k):
        if k % 4 == 0: a(f"s_add_u32 s10, s{64+j}, {(k & ~3)*1024}")
        a(f"buffer_load_dwordx4 v[{hm(j,k)}:{hm(j,k)+3}], v2, s[56:59], s10 offen offset:{(k&3)*1024}{os.environ.get('K3_HMSC', ' sc1')}"); vm.issue((j, k))
    saves = (list(items), list(vm.q), list(ds.q), list(side))
    for w in range(1, 4):
        a(f"s_cmp_eq_u32 s3, {w}")
        a(f"s_cbranch_scc1 K3_VAR{w}")
    for var in range(4):
        if var:
            a.label(f"K3_VAR{var}")
            items[:] = saves[0]; vm.q = list(saves[1]); ds.q = list(saves[2]); cur[0] = -1; side[:] = saves[3]
        signal.var = var
        phase_a(var)
        sj = []
        for i in range(4): sj += epi(i, var, PK)
        def emit_side(budget):
            while sj and budget > 0:
                t = sj.pop(0); a(t)
                if t.startswith("ds_"): ds.issue("e")
                budget -= 8 if t.split()[0] in TRANS else 4
        state = 0
        for s in range(20):
            n = 20 + s
            if s % 4 == 3: stamp(a, 2 + s // 4, "B")
            if s + 1 < 20:
                assert not any(kd == "h" and x == n + 1 for kd, x, _ in items)
                vm.wait(n + 1)
            if state == 0 and not sj and not hasattr(emit_side, "nat"):
                emit_side.nat = s; print("epilogue A natural finish at step", s, "var", var)
            if state == 0 and s == ENV("K3_SA", 11):
                emit_side(100000)
                ds.wait("e"); state = 1
                a("s_barrier")
                for ph in range(3):
                    a(f"ds_read_b128 v[{PB+4*ph}:{PB+4*ph+3}], v8 offset:{ph*1024}"); ds.issue("pb")
            elif state == 1:
                a("s_barrier")
                ds.wait("pb")
                for ph in range(3):
                    a(f"buffer_store_dwordx4 v[{PB+4*ph}:{PB+4*ph+3}], v2, s[56:59], s60 offen offset:{ph*1024} sc1"); vm.issue("hsA")
                state = 2; s_st = s
            elif state == 2 and (s >= s_st + ENV("K3_DRAIN", 4) or s == 19):
                vm.wait("hsA")
                a("s_barrier")
                signal(0); state = 4
                stamp(a, 2)
            elif s + 1 < 20:
                a("s_barrier")
            ds.wait((n, 3))
            for i in range(4):
                for t in range(3):
                    mfma(4 + i, t, s, n, s == 0)
                    if t == 0 and s + 1 < 20: hread(n + 1, i)
                    if i == var:
                        issue_item()
                        if t == 2 and ENV("K3_BN", 4) == 4: issue_item()
                    else: emit_side(ENV("K3_B0", 8) if t == 0 else ENV("K3_B1", 12))
            cur[0] = s
            if s == ENV("K3_PAS", 18):
                a(f"buffer_load_dword v30, v29, s[72:75], s63 offen sc1"); vm.issue("pA")
        assert state == 4, state
        for i in range(4, 8): sj += epi(i, var, 1)
        n_eb = ENV("K3_EBN", 4)
        while sj:
            emit_side(ENV("K3_EB", 200))
            if n_eb and issue_item(): n_eb -= 1
        left = list(items)
        if var < 3: a("s_branch K3_EPIDONE")
    a.label("K3_EPIDONE")
    a("s_waitcnt lgkmcnt(0)"); ds.q = []
    stamp(a, 3)
    a("s_barrier")
    PB2 = 192
    for ph in range(3):
        a(f"ds_read_b128 v[{PB2+4*ph}:{PB2+4*ph+3}], v12 offset:{ph*1024}")
    a("s_mul_i32 s13, s3, 5120")
    a("v_add_u32 v8, s13, v2")
    a("v_add_u32 v9, 40960, v8")
    a("v_lshrrev_b32 v4, 5, v1")
    a("v_lshlrev_b32 v4, 8, v4")
    a("v_and_b32 v5, 15, v1")
    a("v_lshl_add_u32 v4, v5, 4, v4")
    a("v_bfe_u32 v6, v1, 4, 1")
    a("v_lshl_add_u32 v4, v6, 3, v4")
    a("v_mul_u32_u24 v5, 1280, v5")
    a("v_lshrrev_b32 v7, 4, v1")
    a("v_lshl_add_u32 v5, v7, 3, v5")
    a("s_mul_i32 s16, s18, 2560")
    a("s_mul_i32 s17, s18, 160")
    for q in range(3):
        a(f"s_add_u32 s12, s3, {4*q}")
        if q == 2:
            a("s_cmp_ge_u32 s12, 10")
            a("s_cselect_b32 s13, 2, 0")
            a("s_sub_u32 s12, s12, s13")
        a("s_cmp_ge_u32 s12, 5")
        a("s_cselect_b32 s13, 1, 0")
        a("s_mul_i32 s14, s13, 5")
        a("s_sub_u32 s12, s12, s14")
        a("s_mul_i32 s14, s13, 20480")
        a("s_lshl_b32 s15, s12, 10")
        a("s_add_u32 s15, s15, s14")
        a(f"v_add_u32 v{10+q}, s15, v2") if q < 2 else a("v_add_u32 v13, s15, v2")
        a("s_add_u32 s13, s13, s23")
        a("s_mul_i32 s13, s13, 20480")
        a("s_lshl_b32 s14, s12, 9")
        a("s_add_u32 s14, s14, s16")
        a(f"s_add_u32 s{24+q}, s13, s14")
        a("s_lshl_b32 s14, s12, 5")
        a("s_add_u32 s14, s14, s17")
        a(f"s_add_u32 s{28+q}, s13, s14")
    srd(a, 52, 38, 0, SZ_X)
    for ph in range(3):
        a(f"s_waitcnt lgkmcnt({2-ph})")
        a(f"buffer_store_dwordx4 v[{PB2+4*ph}:{PB2+4*ph+3}], v2, s[56:59], s61 offen offset:{ph*1024} sc1"); vm.issue("hsB")
    vm.wait("pA")
    a("s_mov_b32 s35, 0")
    a("s_branch K3_PA_CHK")
    a.label("K3_PA")
    a(f"buffer_load_dword v30, v29, s[72:75], s63 offen sc1")
    a("s_waitcnt vmcnt(0)")
    a.label("K3_PA_CHK")
    a("v_readfirstlane_b32 s14, v30")
    a("s_add_u32 s35, s35, 1")
    a("s_cmp_ge_u32 s14, 4")
    a("s_cbranch_scc1 K3_GOA")
    a("s_cmp_lt_u32 s35, 0x8000")
    a("s_cbranch_scc1 K3_PA")
    a.label("K3_GOA")
    def res_loads():
        for hf in range(2):
            for q in range(3):
                if hf: a(f"s_add_u32 s{24+q}, s{24+q}, 81920")
                a(f"buffer_load_dwordx2 v[{HR+6*hf+2*q}:{HR+6*hf+2*q+1}], v4, s[44:47], s{24+q} offen"); vm.issue("res")
    H0 = ENV("K3_H0", 6)
    hq[:] = [(0, kk) for kk in range(H0)] + ["w2"] * len(items) + [(0, kk) for kk in range(H0, 12)] + [(1, kk) for kk in range(12)] + ["res"]
    _ld = ld_hm
    def nxt():
        x = hq.pop(0)
        if x == "w2": assert issue_item()
        elif x == "res": res_loads()
        else: _ld(*x)
    for _ in range(ENV("K3_NPA", 12)): nxt()
    stamp(a, 4)
    wr = []
    def g2tile(j, hook=None):
        for k in range(12):
            while (j, k) in hq or (j == 0 and ("w2", 5 * k + 4, 0) in items): nxt()
            vm.wait((j, k)); vm.wait(("w2", 5 * k + 4))
            for t in range(5):
                c = f"v[{acc2(j,t)}:{acc2(j,t)+3}]"; w = 4 * (5 * k + t)
                a(f"v_mfma_f32_16x16x32_bf16 {c}, a[{w}:{w+3}], v[{hm(j,k)}:{hm(j,k)+3}], {c if k else 0}")
                if t == 2 and wr and k >= 1: a(wr.pop(0))
                if t in (0, 3) and hq: nxt()
            if hook: hook(k)
        wr.extend(f"ds_write_b128 v{8 + j//2}, v[{acc2(j,t)}:{acc2(j,t)+3}] offset:{(j%2)*20480 + t*1024}" for t in range(5))
    def hookA(k):
        if k == ENV("K3_SBK", 5):
            vm.wait("hsB")
            a("s_barrier")
            signal.var = 9; signal(1)
    g2tile(0, hookA)
    def hookB(k):
        if k == ENV("K3_PBK", 2):
            a(f"buffer_load_dword v30, v29, s[72:75], s63 offen offset:128 sc1"); vm.issue("pB")
        if k == ENV("K3_PBC", 6):
            stamp(a, 5)
            while hq: nxt()
            a("s_mov_b32 s35, 0")
            vm.wait("pB")
            a("s_branch K3_PB_CHK")
            a.label("K3_PB")
            a(f"buffer_load_dword v30, v29, s[72:75], s63 offen offset:128 sc1")
            a("s_waitcnt vmcnt(0)")
            a.label("K3_PB_CHK")
            a("v_readfirstlane_b32 s14, v30")
            a("s_add_u32 s35, s35, 1")
            a("s_cmp_ge_u32 s14, 4")
            a("s_cbranch_scc1 K3_GOB")
            a("s_cmp_lt_u32 s35, 0x8000")
            a("s_cbranch_scc1 K3_PB")
            a.label("K3_GOB")
            stamp(a, 6)
            hq.extend((2, kk) for kk in range(12))
            for _ in range(4): nxt()
    g2tile(1, hookB)
    hq.extend((3, kk) for kk in range(12))
    RD = [10, 11, 13]
    def finalize(hf, R, U):
        out = []
        for q in range(3):
            for w in range(4):
                out.append(f"ds_read_b128 v[{R+16*q+4*w}:{R+16*q+4*w+3}], v{RD[q]} offset:{hf*40960 + w*5120}")
        for q in range(3):
            for e in range(2):
                out.append(f"v_lshlrev_b32 v{U+4*q+2*e}, 16, v{HR+6*hf+2*q+e}")
                out.append(f"v_and_b32 v{U+4*q+2*e+1}, 0xffff0000, v{HR+6*hf+2*q+e}")
            if hf: out.append(f"s_add_u32 s{28+q}, s{28+q}, 81920")
        for q in range(3):
            b = R + 16 * q
            out.append(f"s_waitcnt lgkmcnt({8 - 4*q})")
            for e in (0, 2):
                out.append(f"v_pk_add_f32 v[{b+e}:{b+e+1}], v[{b+e}:{b+e+1}], v[{b+4+e}:{b+5+e}]")
                out.append(f"v_pk_add_f32 v[{b+8+e}:{b+9+e}], v[{b+8+e}:{b+9+e}], v[{b+12+e}:{b+13+e}]")
            for e in (0, 2):
                out.append(f"v_pk_add_f32 v[{b+e}:{b+e+1}], v[{b+e}:{b+e+1}], v[{b+8+e}:{b+9+e}]")
            for e in range(2):
                out.append(f"v_cvt_pk_bf16_f32 v{b+4+e}, v{b+2*e}, v{b+2*e+1}")
            for e in range(2):
                out.append(f"v_lshlrev_b32 v{b+2*e}, 16, v{b+4+e}")
                out.append(f"v_and_b32 v{b+2*e+1}, 0xffff0000, v{b+4+e}")
            for e in (0, 2):
                out.append(f"v_pk_add_f32 v[{b+e}:{b+e+1}], v[{b+e}:{b+e+1}], v[{U+4*q+e}:{U+4*q+e+1}]")
            for e in range(2):
                out.append(f"v_cvt_pk_bf16_f32 v{b+4+e}, v{b+2*e}, v{b+2*e+1}")
            out.append(f"buffer_store_dwordx2 v[{b+4}:{b+5}], v5, s[52:55], s{28+q} offen")
        return out
    for _ in range(ENV("K3_HB2", 12)):
        nxt()
        if wr: a(wr.pop(0))
    while wr: a(wr.pop(0))
    a("s_waitcnt lgkmcnt(0)")
    a("s_barrier")
    for t in finalize(0, 80, 16):
        a(t)
        if t.startswith("buffer"): vm.issue("o")
        if t.startswith("v_pk") and hq: nxt()
    while hq: nxt()
    g2tile(2); g2tile(3)
    while wr: a(wr.pop(0))
    a("s_waitcnt lgkmcnt(0)")
    a("s_barrier")
    for t in finalize(1, 32, 16): a(t)
    a.label("K3_END")
    a("s_endpgm")
```

```python
U_OFF   = 0x000000
K_OFF   = 0x280000
H_OFF   = 0x500000
W13_OFF = 0x780000
W2_OFF  = 0xB40000
HM_OFF  = 0xD20000
CS_OFF  = 0x1340000
ST_OFF  = 0x1324000
CNT_OFF = 0x1328000
CSP_OFF = 0x1330000
WS_END  = 0x1370000
SZ_X = 2621440
LOG2E = 1.4426950408889634
INV2PI = 0.15915494309189535
import struct
def f2u(x): return struct.unpack("<I", struct.pack("<f", x))[0]
def magic(div, maxn, shift):
    m = -(-(1 << shift) // div)
    for n in range(maxn):
        assert (n * m) >> shift == n // div, (div, n)
    assert maxn * m < (1 << 32) and m < (1 << 24)
    return m

UR_OFF = 0x1400000
SZ_UR = 160 * 32768
WS_END2 = UR_OFF + SZ_UR
S1_OFF = 0x1350000
```

```python
import sys
from asmlib import *
from layout import *
import k1
HEADER = open("sequential_preLN__ssm_conv_s4d__glu_gated_swiglu__prompt.s.ref").read().split("; Override launch")[0]
def build(kernels):
    a = Asm()
    launches = []; descs = []
    for k in kernels:
        if k == 1:
            k1.gen_k1(a); launches.append(f"; @launch kernel=prep_kernel grid=({k1.K1_GRID},1,1) block=(256,1,1) lds={k1.K1_LDS}")
            descs.append(kernel_desc("prep_kernel", 128, 96, 128))
        if k == 2:
            a.raw(".p2align 8\nCODE_BEG:")
            import k2
            k2.gen_k2(a); launches.append(f"; @launch kernel=conv_kernel grid=({k2.K2_GRID},1,1) block=({k2.K2_BLOCK},1,1) lds={k2.K2_LDS}")
            descs.append(kernel_desc("conv_kernel", k2.K2_VGPR, 96, k2.K2_VGPR))
        if k == 3:
            import k3
            k3.gen_k3(a); launches.append(f"; @launch kernel=gemm1_kernel grid=(256,1,1) block=(256,1,1) lds={k3.K3_LDS}")
            descs.append(kernel_desc("gemm1_kernel", 512, 96, 256))
        if k == 4:
            import k4
            k4.gen_k4(a); launches.append(f"; @launch kernel=gemm2_kernel grid=(256,1,1) block=(256,1,1) lds={k4.K4_LDS}")
            descs.append(kernel_desc("gemm2_kernel", 512, 96, 256))
        if k == 5:
            import k34
            k34.gen_k34(a); launches.append(f"; @launch kernel=mlp_kernel grid=(256,1,1) block=(256,1,1) lds={k34.K34_LDS}")
            descs.append(kernel_desc("mlp_kernel", 512, 96, 256))
        if k == 7:
            import k12
            k12.gen_front(a); launches.append(f"; @launch kernel=front_kernel grid=({k12.F_GRID},1,1) block=({k12.F_BLOCK},1,1) lds={k12.F_LDS}")
            descs.append(kernel_desc("front_kernel", k12.F_VGPR, 96, k12.F_VGPR))
            a.raw(".p2align 8\nCODE_BEG:")
        if k == 6:
            import k35
            k35.gen_k35(a); launches.append(f"; @launch kernel=mlp_kernel grid=(256,1,1) block=(256,1,1) lds={k35.K35_LDS}")
            descs.append(kernel_desc("mlp_kernel", 512, 96, 256))
        if k == 9:
            import kpf
            kpf.gen_pf(a); launches.append(f"; @launch kernel=pf_kernel grid=(256,1,1) block=(256,1,1) lds=0")
            descs.append(kernel_desc("pf_kernel", 128, 96, 128))
        a.win = []
    a.raw("CODE_END:")
    return HEADER + "\n".join(launches) + '\n.amdgcn_target "amdgcn-amd-amdhsa--gfx950"\n.text\n' + a.text() + '.section .rodata,"a"\n' + "\n".join(descs) + "\n"
PROF_OFF = 0x2000000
def add_prof(text):
    import re
    out = []; kidx = -1; cur = None
    for line in text.split("\n"):
        m = re.match(r"^(\w+_kernel):", line)
        if m:
            kidx += 1; cur = m.group(1)
            out.append(line)
            out.append("  s_memrealtime s[96:97]")
            out.append("  s_mov_b64 s[98:99], s[0:1]")
            out.append("  s_mov_b32 s100, s2")
            for q in range(76, 90): out.append(f"  s_mov_b32 s{q}, 0")
            out.append("  v_readfirstlane_b32 s101, v0")
            continue
        if line.strip() == "s_endpgm":
            out.append(f"  s_branch PROF_{cur}")
            continue
        if line.startswith(".globl") or line.startswith(".section .rodata"):
            if cur:
                out.append(f"""PROF_{cur}:
  s_waitcnt vmcnt(0) lgkmcnt(0)
  s_memrealtime s[4:5]
  s_load_dwordx2 s[8:9], s[98:99], 104
  s_getreg_b32 s6, hwreg(HW_REG_XCC_ID)
  s_getreg_b32 s7, hwreg(HW_REG_HW_ID)
  s_mov_b64 exec, 1
  s_lshr_b32 s101, s101, 6
  s_lshl_b32 s100, s100, 4
  s_add_u32 s100, s100, s101
  s_lshl_b32 s100, s100, 6
  s_waitcnt lgkmcnt(0)
  s_add_u32 s8, s8, {PROF_OFF + kidx * 0x100000:#x}
  s_addc_u32 s9, s9, 0
  s_mov_b32 s10, 0x100000
  s_mov_b32 s11, 0x20000
  v_mov_b32 v0, s96
  v_mov_b32 v1, s4
  v_mov_b32 v2, s6
  v_mov_b32 v3, s7
  v_mov_b32 v4, s100
  buffer_store_dwordx4 v[0:3], v4, s[8:11], 0 offen
  v_mov_b32 v6, s76
  v_mov_b32 v7, s78
  v_mov_b32 v8, s80
  v_mov_b32 v9, s82
  buffer_store_dwordx4 v[6:9], v4, s[8:11], 0 offen offset:16
  v_mov_b32 v10, s84
  v_mov_b32 v11, s86
  v_mov_b32 v12, s88
  v_mov_b32 v13, s88
  buffer_store_dwordx4 v[10:13], v4, s[8:11], 0 offen offset:32
  s_endpgm""")
                cur = None
        out.append(line)
    return "\n".join(out).replace("next_free_sgpr 96", "next_free_sgpr 102")
if __name__ == "__main__":
    ks = [int(c) for c in sys.argv[1]]
    t = build(ks)
    if PROF: t = add_prof(t)
    open(sys.argv[2], "w").write(t)
```

```python
import re

TRANS = ("v_exp_f32", "v_log_f32", "v_rcp_f32", "v_rsq_f32", "v_sqrt_f32", "v_sin_f32", "v_cos_f32")
REG_RE = re.compile(r"\b([vas])(\d+)\b|\b([vas])\[(\d+):(\d+)\]|\b(vcc|exec|m0)(?:_lo|_hi)?\b")

def regs_of(tok):
    out = set()
    for m in REG_RE.finditer(tok):
        if m.group(1):
            out.add((m.group(1), int(m.group(2))))
        elif m.group(3):
            for i in range(int(m.group(4)), int(m.group(5)) + 1):
                out.add((m.group(3), i))
        else:
            out.add((m.group(6), 0))
    return out

def split_ops(s):
    ops, depth, cur = [], 0, ""
    for ch in s:
        if ch == "[": depth += 1
        if ch == "]": depth -= 1
        if ch == "," and depth == 0:
            ops.append(cur.strip()); cur = ""
        else:
            cur += ch
    if cur.strip(): ops.append(cur.strip())
    return ops

class Ins:
    def __init__(self, text):
        self.text = text
        t = text.split(";")[0].strip()
        parts = t.split(None, 1)
        self.op = parts[0]
        rest = parts[1] if len(parts) > 1 else ""
        ops = split_ops(rest)
        mods = ""
        if ops:
            lp = ops[-1].split(None, 1)
            if len(lp) > 1 and not ops[-1].startswith("abs") :
                ops[-1] = lp[0]; mods = lp[1]
        self.ops = ops; self.mods = mods
        op = self.op
        self.kind = "other"
        self.w = set(); self.r = set(); self.srcc = set(); self.ab = set()
        R = [regs_of(o) for o in ops]
        allr = set().union(*R) if R else set()
        if op.startswith("v_mfma"):
            self.kind = "mfma"
            self.w = R[0]; self.ab = R[1] | R[2]; self.srcc = R[3]; self.r = self.ab | self.srcc
            self.passes = 4 if "16x16x32" in op else 8
        elif op.startswith("v_"):
            self.kind = "valu"
            self.trans = op.replace("_e32", "").replace("_e64", "") in TRANS
            self.dpp = ("dpp" in op) or any(k in mods for k in ("quad_perm", "row_", "wave_"))
            self.dot = op.startswith("v_dot")
            self.perml = op.startswith("v_permlane")
            self.rdlane = op.startswith("v_readlane") or op.startswith("v_readfirstlane")
            self.wrlane = op.startswith("v_writelane")
            if self.perml:
                self.w = R[0] | R[1]; self.r = R[0] | R[1]
            elif op.startswith("v_cmp"):
                self.w = R[0]; self.r = set().union(*R[1:])
            elif op.startswith(("v_add_co", "v_sub_co", "v_addc_co", "v_subb_co")):
                self.w = R[0] | R[1]; self.r = set().union(*R[2:])
            else:
                self.w = R[0]; self.r = set().union(*R[1:]) if len(R) > 1 else set()
                if op.startswith(("v_fmac", "v_dot2c", "v_writelane")) or self.dpp:
                    self.r |= R[0]
                if op.startswith("v_cndmask") and len(R) == 3:
                    self.r |= {("vcc", 0)}
            if op.startswith("v_accvgpr"):
                pass
        elif op.startswith("ds_"):
            self.kind = "ds"
            if op.startswith("ds_read") or op.startswith("ds_bpermute") or op.startswith("ds_swizzle") or op.startswith("ds_permute"):
                self.w = R[0]; self.r = set().union(*R[1:])
                if "d16" in op: self.r |= R[0]
            else:
                self.r = allr
        elif op.startswith(("buffer_", "global_")):
            self.kind = "vmem"
            self.lds = " lds" in (" " + mods)
            if "load" in op and not self.lds:
                self.w = R[0]; self.r = set().union(*R[1:])
            else:
                self.r = allr
                if "atomic" in op and "sc0" in mods: self.w = R[0] if op.startswith("buffer") else R[0]
            self.wide_store = (("store" in op) and ("x3" in op or "x4" in op)) or "cmpswap_x2" in op
            if self.wide_store:
                self.sdata = R[0] if op.startswith("buffer") else R[1]
            if self.lds: self.r |= {("m0", 0)}
        elif op.startswith("s_"):
            self.kind = "salu"
            if op.startswith(("s_branch", "s_cbranch", "s_endpgm", "s_barrier", "s_waitcnt", "s_nop", "s_sleep", "s_setprio", "s_cmp", "s_bitcmp")):
                self.r = allr
            else:
                self.w = R[0] if R else set(); self.r = set().union(*R[1:]) if len(R) > 1 else set()
                if "saveexec" in op: self.w = self.w | {("exec", 0)}
        self.states = 1
        if op == "s_nop":
            self.states = int(ops[0], 0) + 1

def vg(s):
    return {x for x in s if x[0] in "va"}
def sg(s):
    return {x for x in s if x[0] == "s" or x[0] == "vcc"}

def need(p, c):
    n = 0
    if p.kind == "valu":
        pw = vg(p.w); ps = sg(p.w)
        if c.kind == "mfma" and pw & c.r: n = max(n, 2)
        if c.kind == "valu":
            if p.trans and not c.trans and pw & c.r: n = max(n, 1)
            if p.trans and c.trans and pw & c.r: n = max(n, 1)
            if c.dpp and pw & c.r: n = max(n, 2)
            if c.perml and pw & c.r: n = max(n, 2)
            if c.rdlane and pw & c.r: n = max(n, 1)
            if ps & c.r:
                n = max(n, 4 if (c.rdlane or c.wrlane) else 2)
            if p.dot and (pw & (c.r | c.w)):
                same_acc = c.dot and c.op == p.op and not (pw & (regs_of(c.ops[1]) | regs_of(c.ops[2])))
                if not same_acc: n = max(n, 3)
        if p.dot and c.kind in ("ds", "vmem", "mfma") and pw & c.r: n = max(n, 3)
        if c.kind == "vmem" and ps & c.r: n = max(n, 5)
        if c.kind == "salu" and ps & c.r: n = max(n, 1)
    if p.kind == "mfma":
        big = 8 if p.passes == 4 else 12
        if c.kind == "mfma":
            if p.w & c.ab: n = max(n, big)
            if p.w & c.srcc and c.srcc != p.w: n = max(n, big - 2)
            if p.w & c.w and c.srcc != p.w: n = max(n, big - 2)
        elif c.kind in ("valu", "ds", "vmem"):
            if p.w & (c.r | c.w): n = max(n, big)
        if c.kind == "valu" and p.srcc & c.w: n = max(n, 3 if p.passes == 4 else 7)
    if p.kind == "vmem" and getattr(p, "wide_store", False):
        if p.sdata & c.w: n = max(n, 2 if c.kind in ("valu", "mfma") else 1)
    if p.kind == "salu" and ("m0", 0) in p.w and c.kind == "vmem" and c.lds: n = max(n, 1)
    if p.kind == "salu" and ("m0", 0) in p.w and c.kind == "ds" and "addtid" in c.op: n = max(n, 1)
    return n

class Asm:
    def __init__(self):
        self.lines = []
        self.win = []
        self.nops = 0
    def raw(self, text):
        self.lines.append(text)
    def flush_hazards(self, n=12):
        dist = 0; worst = 0
        for p in reversed(self.win):
            lim = 0
            if p.kind == "mfma": lim = 8 if p.passes == 4 else 12
            elif p.kind == "valu": lim = 5 if sg(p.w) else (3 if p.dot else 2)
            elif p.kind == "vmem" and getattr(p, "wide_store", False): lim = 2
            elif p.kind == "salu" and ("m0", 0) in p.w: lim = 1
            worst = max(worst, lim - dist)
            dist += p.states
        if worst > 0:
            self._emit(Ins(f"s_nop {worst-1}"))
        self.win = []
    def label(self, name):
        self.flush_hazards()
        self.lines.append(f"{name}:")
    def _emit(self, ins):
        self.lines.append("  " + ins.text)
        self.win.append(ins)
        if len(self.win) > 24: self.win.pop(0)
    def __call__(self, text):
        for t in text.strip().split("\n"):
            t = t.strip()
            if not t or t.startswith(";"):
                if t: self.lines.append("  " + t)
                continue
            ins = Ins(t)
            if getattr(self, "drop", None) and any(ins.op.startswith(d) for d in self.drop): continue
            if ins.op.startswith(("s_branch", "s_cbranch")):
                self.flush_hazards()
                self._emit(ins); continue
            dist = 0; pad = 0
            for p in reversed(self.win):
                pad = max(pad, need(p, ins) - dist)
                dist += p.states
                if dist > 13: break
            if pad > 0:
                self._emit(Ins(f"s_nop {pad-1}")); self.nops += pad
            self._emit(ins)
    def text(self):
        return "\n".join(self.lines) + "\n"

def kernel_header(name):
    return f""".globl {name}
.p2align 8
.type {name},@function
{name}:"""

def kernel_desc(name, vgpr, sgpr, accum):
    return f""".p2align 6
.amdhsa_kernel {name}
  .amdhsa_next_free_vgpr {vgpr}
  .amdhsa_next_free_sgpr {sgpr}
  .amdhsa_accum_offset {accum}
  .amdhsa_group_segment_fixed_size 0
  .amdhsa_kernarg_size 112
  .amdhsa_user_sgpr_count 2
  .amdhsa_user_sgpr_kernarg_segment_ptr 1
  .amdhsa_system_sgpr_workgroup_id_x 1
.end_amdhsa_kernel"""

import os
PROF = bool(int(os.environ.get("PROF", "0")))
def stamp(a, i):
    if PROF:
        a(f"{'s_memtime' if os.environ.get('PROFCLK') else 's_memrealtime'} s[{76+2*i}:{77+2*i}]")
        a("s_waitcnt lgkmcnt(0)")

class Cnt:
    def __init__(self, a, name, maxn):
        self.a = a; self.name = name; self.q = []; self.maxn = maxn
    def issue(self, tag=None):
        self.q.append(tag)
    def wait(self, tag):
        if tag not in self.q: return
        idx = len(self.q) - 1 - self.q[::-1].index(tag)
        n = len(self.q) - 1 - idx
        n = min(n, self.maxn)
        self.a(f"s_waitcnt {self.name}({n})")
        self.q = self.q[len(self.q) - n:] if n else []
    def wait_all(self):
        self.a(f"s_waitcnt {self.name}(0)"); self.q = []

def code_prefetch(a, nw, dst, tag):
    if not int(os.environ.get("CPF", "1")): return
    a("s_getpc_b64 s[92:93]")
    a.raw(f"PC_{tag}:")
    a(f"s_sub_u32 s92, s92, PC_{tag}-ALL_BEG")
    a("s_subb_u32 s93, s93, 0")
    a("s_lshr_b32 s94, s2, 3")
    a(f"s_mul_i32 s94, s94, {nw*1024}")
    a(f"v_lshlrev_b32 v{dst}, 4, v0")
    a(f"v_add_u32 v{dst}, s94, v{dst}")
    a(f"v_min_u32 v{dst}, CODE_END-ALL_BEG-16, v{dst}")
    a(f"global_load_dwordx4 v[{dst}:{dst+3}], v{dst}, s[92:93]")
```

```python
import os
from asmlib import *
from layout import *
from k1 import srd, cmul, interleave, Rec, wave_reduce_sum
ENV = lambda k, d: int(os.environ.get(k, d))
N_LN = 96; F_GRID = 256; F_BLOCK = 768; F_VGPR = 168
UB = 0; UPAD = 2048; KB = UPAD + 32768; KP = 4416; TB = KB + 4 * KP; SB = TB + 4 * 1536
RS = 4352; ROWP = 272; WREG = 2 * RS
F_LDS = SB + 12 * WREG
assert F_LDS <= 163840
PARTS = [(0, 16), (16, 25), (25, 32)]

def gen_front(a):
    a.raw(kernel_header("front_kernel"))
    a(f"s_cmp_ge_u32 s2, {F_GRID}")
    a("s_cbranch_scc1 F_END")
    a("s_load_dwordx16 s[16:31], s[0:1], 0")
    a("s_load_dwordx8 s[32:39], s[0:1], 64")
    a("s_load_dwordx4 s[40:43], s[0:1], 96")
    code_prefetch(a, 12, 164, "F12")
    a("v_lshrrev_b32 v2, 6, v0")
    a("v_and_b32 v1, 63, v0")
    a("v_readfirstlane_b32 s3, v2")
    a(f"s_cmp_lt_u32 s2, {N_LN}")
    a("s_cbranch_scc1 F_LN")
    conv_wg(a)
    a.label("F_LN")
    a("s_cmp_ge_u32 s3, 8")
    a("s_cbranch_scc1 F_PACK")
    a("s_cmp_ge_u32 s2, 64")
    a("s_cbranch_scc1 F_IDLE")
    role_ln(a)
    a.label("F_PACK")
    a("s_cmp_lt_u32 s3, 11")
    a("s_cbranch_scc1 F_W2")
    role_misc(a)
    a.label("F_W2"); ln_w2_tile(a)
    a.label("F_IDLE")
    a("s_waitcnt lgkmcnt(0)")
    srd(a, 48, 40, 0, 256)
    a("v_mov_b32 v6, 0")
    a("s_barrier")
    a("s_barrier")
    a.label("F_W13"); ln_w13(a)
    a.label("F_END")
    a("s_endpgm")
WS = 42

STG = 98304; STP = 400; XB = 16384; XP = 272
def pub_setup(a):
    m24 = magic(24, 768, 16)
    a(f"v_mul_u32_u24 v122, {m24}, v0")
    a("v_lshrrev_b32 v122, 16, v122")
    a("v_mul_u32_u24 v123, 24, v122")
    a("v_sub_u32 v123, v0, v123")
    a(f"v_mul_u32_u24 v120, {STP}, v122")
    a("v_lshl_add_u32 v120, v123, 4, v120")
    a(f"v_add_u32 v120, {STG}, v120")
    a("v_lshlrev_b32 v121, 15, v122")
    a("v_lshl_add_u32 v121, v123, 4, v121")
    a("s_mul_i32 s68, s2, 6")
    a("v_lshrrev_b32 v123, 2, v123")
    a("v_add_u32 v123, s68, v123")
    a("v_cmp_gt_u32 vcc, 512, v123")
    a("v_mov_b32 v122, 0x7ffffff0")
    a("s_lshl_b32 s68, s68, 6")
    a("v_cndmask_b32 v121, v122, v121, vcc")
    srd(a, 92, WS, UR_OFF, SZ_UR)

def publish(a):
    a("s_barrier")
    for k in range(10):
        a(f"ds_read_b128 v[{32+4*k}:{35+4*k}], v120 offset:{k*16*STP}")
    for k in range(10):
        a(f"s_add_u32 s69, s68, {k*16*32768}")
        a(f"s_waitcnt lgkmcnt({9-k})")
        a(f"buffer_store_dwordx4 v[{32+4*k}:{35+4*k}], v121, s[92:95], s69 offen sc1")
    stamp(a, 2)
    a("s_waitcnt vmcnt(0)")
    stamp(a, 3)
    a("s_barrier")

def role_misc(a):
    a("s_memrealtime s[60:61]")
    a("v_lshlrev_b32 v2, 4, v1")
    for i in range(4): a(f"v_mov_b32 v{4+i}, 0")
    a("s_waitcnt lgkmcnt(0)")
    if ENV("F_TLB", 1):
        srd(a, 64, WS, 0, 0x1A00000)
        a(f"v_mul_u32_u24 v30, {ENV('F_TLBS', 0x68000)}, v1")
        a("buffer_load_dword v31, v30, s[64:67], 0 offen")
    a("s_cmp_lg_u32 s2, 0")
    a("s_cbranch_scc1 F_NOEP")
    srd(a, 48, 40, 0, 8)
    a("s_or_b32 s60, s60, 1")
    a("v_mov_b32 v8, s60")
    a("v_mov_b32 v9, s61")
    a("v_mov_b32 v10, 0")
    a("v_mov_b32 v11, 0")
    a("buffer_atomic_cmpswap_x2 v[8:11], v2, s[48:51], 0 offen sc1")
    a.label("F_NOEP")
    a("s_lshl_b32 s4, s2, 10")
    a("s_getpc_b64 s[56:57]")
    a.raw("F_PC:")
    a("s_add_u32 s56, s56, CODE_BEG-F_PC")
    a("s_addc_u32 s57, s57, 0")
    a("s_lshr_b32 s5, s2, 3")
    a("s_mul_i32 s5, s5, 4096")
    a("v_add_u32 v8, s5, v2")
    a("v_mov_b32 v9, CODE_END-CODE_BEG-16")
    a("s_waitcnt lgkmcnt(0)")
    srd(a, 44, WS, ST_OFF, 0x8000)
    a("buffer_store_dwordx4 v[4:7], v2, s[44:47], s4 offen")
    a("s_barrier")
    for i in range(4):
        a(f"v_add_u32 v10, {i*1024}, v8")
        a("v_min_u32 v10, v10, v9")
        a(f"global_load_dwordx4 v[{12+4*i}:{15+4*i}], v10, s[56:57]")
    a("s_endpgm")

def role_ln(a):
    a("s_lshl_b32 s4, s2, 3")
    a("s_add_u32 s4, s4, s3")
    a("s_mul_i32 s5, s4, 5120")
    a("v_lshlrev_b32 v4, 2, v1")
    a("v_add_u32 v5, 2560, v4")
    a("s_waitcnt lgkmcnt(0)")
    srd(a, 44, 16, 0, SZ_X)
    for i in range(4):
        for q in range(5):
            a(f"buffer_load_dword v{8+5*i+q}, v{4 if i < 2 else 5}, s[44:47], s5 offen offset:{(i%2)*1280 + q*256}")
    srd(a, 48, 40, 0, 256); srd(a, 52, WS, S1_OFF, 16384); srd(a, 92, WS, UR_OFF, 160*16384)
    a("s_mov_b32 s10, 0x05040100")
    a("s_mov_b32 s11, 0x07060302")
    a("v_lshrrev_b32 v104, 1, v1")
    a(f"v_mul_u32_u24 v104, {XP}, v104")
    a("v_and_b32 v105, 1, v1")
    a("v_lshl_add_u32 v104, v105, 4, v104")
    a("s_lshl_b32 s9, s3, 5")
    a(f"s_add_u32 s9, s9, {STG}")
    a("v_add_u32 v104, s9, v104")
    a("v_lshrrev_b32 v107, 4, v0")
    a("v_and_b32 v108, 15, v0")
    a(f"v_mul_u32_u24 v105, {XP}, v107")
    a("v_lshl_add_u32 v105, v108, 4, v105")
    a(f"v_add_u32 v105, {STG}, v105")
    a("v_lshlrev_b32 v106, 14, v107")
    a("v_lshl_add_u32 v106, v108, 4, v106")
    a("s_lshl_b32 s68, s2, 8")
    a("s_lshl_b32 s6, s4, 5")
    a("v_mov_b32 v6, 0")
    a(f"v_mov_b32 v7, {f2u(1.0/640):#x}")
    X = lambda i, q: 32 + 2 * (5 * i + q)
    a("s_waitcnt vmcnt(0)")
    stamp(a, 0)
    a("buffer_load_dwordx2 v[98:99], v6, s[48:51], 0 offen sc1")
    for q in range(5):
        d = 112 + 4 * q
        a(f"v_perm_b32 v{d}, v{13+q}, v{8+q}, s10")
        a(f"v_perm_b32 v{d+1}, v{23+q}, v{18+q}, s10")
        a(f"v_perm_b32 v{d+2}, v{13+q}, v{8+q}, s11")
        a(f"v_perm_b32 v{d+3}, v{23+q}, v{18+q}, s11")
        a(f"ds_write_b128 v104, v[{d}:{d+3}] offset:{q*32*XP}")
    a("s_waitcnt lgkmcnt(0)")
    a("s_barrier")
    for kk in range(5):
        a(f"ds_read_b128 v[{112+4*kk}:{115+4*kk}], v105 offset:{kk*32*XP}")
    for kk in range(5):
        a(f"s_add_u32 s69, s68, {kk*32*16384}")
        a(f"s_waitcnt lgkmcnt({4-kk})")
        a(f"buffer_store_dwordx4 v[{112+4*kk}:{115+4*kk}], v106, s[92:95], s69 offen sc1")
    stamp(a, 2)
    for i in range(4):
        for q in range(5):
            a(f"v_lshlrev_b32 v{X(i,q)}, 16, v{8+5*i+q}")
            a(f"v_and_b32 v{X(i,q)+1}, 0xffff0000, v{8+5*i+q}")
        s = 72 + 2 * i
        a(f"v_pk_add_f32 v[{s}:{s+1}], v[{X(i,0)}:{X(i,0)+1}], v[{X(i,1)}:{X(i,1)+1}]")
        for q in range(2, 5):
            a(f"v_pk_add_f32 v[{s}:{s+1}], v[{s}:{s+1}], v[{X(i,q)}:{X(i,q)+1}]")
        a(f"v_add_f32 v{s}, v{s}, v{s+1}")
    wave_reduce_sum(a, [72, 74, 76, 78])
    for i in range(4): a(f"v_readlane_b32 s{70+i}, v{72+2*i}, 63")
    for i in range(4): a(f"v_mul_f32 v{80+2*i}, s{70+i}, v7")
    for i in range(4):
        m = 80 + 2 * i
        for q in range(5):
            x = X(i, q)
            a(f"v_pk_add_f32 v[{x}:{x+1}], v[{x}:{x+1}], v[{m}:{m+1}] op_sel_hi:[1,0] neg_lo:[0,1] neg_hi:[0,1]")
        s = 72 + 2 * i
        x = X(i, 0)
        a(f"v_pk_mul_f32 v[{s}:{s+1}], v[{x}:{x+1}], v[{x}:{x+1}]")
        for q in range(1, 5):
            x = X(i, q)
            a(f"v_pk_fma_f32 v[{s}:{s+1}], v[{x}:{x+1}], v[{x}:{x+1}], v[{s}:{s+1}]")
        a(f"v_add_f32 v{s}, v{s}, v{s+1}")
    wave_reduce_sum(a, [72, 74, 76, 78])
    for i in range(4): a(f"v_readlane_b32 s{70+i}, v{72+2*i}, 63")
    R = lambda i: 16 + 2 * i
    steps = [
        lambda i: f"v_mul_f32 v{R(i)}, s{70+i}, v7",
        lambda i: f"v_cvt_pk_bf16_f32 v{R(i)}, v{R(i)}, v{R(i)}",
        lambda i: f"v_lshlrev_b32 v{R(i)}, 16, v{R(i)}",
        lambda i: f"v_add_f32 v{R(i)}, {f2u(1e-5):#x}, v{R(i)}",
        lambda i: f"v_cvt_pk_bf16_f32 v{R(i)}, v{R(i)}, v{R(i)}",
        lambda i: f"v_lshlrev_b32 v{R(i)}, 16, v{R(i)}",
        lambda i: f"v_sqrt_f32 v{R(i)}, v{R(i)}",
        lambda i: f"v_cvt_pk_bf16_f32 v{(96, 97, 100, 101)[i]}, v{80+2*i}, v{R(i)}",
    ]
    for st in steps:
        for i in range(4): a(st(i))
    stamp(a, 1)
    a("s_mov_b32 s8, 0")
    a("s_waitcnt vmcnt(5)")
    a.label("F_EPW")
    a("v_readfirstlane_b32 s7, v98")
    a("s_cmp_lg_u32 s7, 0")
    a("s_cbranch_scc1 F_EPOK")
    a("s_add_u32 s8, s8, 1")
    a("s_cmp_ge_u32 s8, 0x8000")
    a("s_cbranch_scc1 F_EPOK")
    a("buffer_load_dwordx2 v[98:99], v6, s[48:51], 0 offen sc1")
    a("s_waitcnt vmcnt(0)")
    a("s_branch F_EPW")
    a.label("F_EPOK")
    a("v_mov_b32 v102, v98")
    a("v_mov_b32 v103, v99")
    a("s_lshl_b32 s9, s3, 5")
    a(f"s_add_u32 s9, s9, {STG - 1024}")
    a("v_mov_b32 v40, s9")
    a("ds_write_b128 v40, v[96:99]")
    a("ds_write_b128 v40, v[100:103] offset:16")
    a("v_lshlrev_b32 v41, 4, v1")
    a(f"v_add_u32 v42, {STG - 1024}, v41")
    a("s_lshl_b32 s6, s2, 8")
    a("s_waitcnt vmcnt(0) lgkmcnt(0)")
    stamp(a, 3)
    a("s_barrier")
    a("s_cmp_lg_u32 s3, 0")
    a("s_cbranch_scc1 F_W13")
    a("ds_read_b128 v[44:47], v42")
    a("s_mov_b64 exec, 0xffff")
    a("s_waitcnt lgkmcnt(0)")
    a("buffer_store_dwordx4 v[44:47], v41, s[52:55], s6 offen sc1")
    a("s_mov_b64 exec, -1")
    a("s_branch F_W13")

NK = 5; NP = 4
def flag_wait(a, tag, voff):
    a("s_mov_b32 s10, 0")
    a.label(f"F_FW{tag}")
    a("s_sleep 8")
    a(f"buffer_load_dword v3, v{voff}, s[48:51], 0 offen offset:128 sc1")
    a("s_waitcnt vmcnt(0)")
    a("v_readfirstlane_b32 s11, v3")
    a("s_add_u32 s10, s10, 1")
    a("s_cmp_ge_u32 s10, 0x4000")
    a(f"s_cbranch_scc1 F_FG{tag}")
    a("s_cmp_eq_u32 s11, 0")
    a(f"s_cbranch_scc1 F_FW{tag}")
    a.label(f"F_FG{tag}")

def ln_w13(a):
    a("s_lshr_b32 s62, s2, 2")
    a("s_and_b32 s63, s2, 3")
    w13_setup(a, 3, 62, 63, 0)
    a("s_lshl_b32 s61, s3, 10")
    for i in range(4): a(f"v_mov_b32 v{8+i}, 0x3f803f80")
    a("s_mov_b32 s62, 0x00010001")
    a("s_mov_b32 s63, 0x00010001")
    if ENV("F_PWAIT", 0):
        a("s_cmp_lg_u32 s3, 7")
        a("s_cbranch_scc1 F_W13B")
        flag_wait(a, "A", 6)
        if ENV("F_PDELAY", 0): a(f"s_sleep {ENV('F_PDELAY', 0)}")
        a.label("F_W13B")
    a("s_barrier")
    for n in range(NK):
        a(f"s_add_u32 m0, s61, {n*8192}")
        a("buffer_load_dwordx4 v135, s[32:35], s52 offen lds")
        if n < NK - 1: a("s_add_u32 s52, s52, s53")
    a("s_waitcnt vmcnt(0)")
    a("s_barrier")
    for n in range(NK):
        for h in range(2):
            a(f"ds_read_b64_tr_b16 v[{80+4*n+2*h}:{81+4*n+2*h}], v{136+h} offset:{n*8192}")
    PSC = " sc1" if ENV("F_PSC", 1) else ""
    for n in range(NK):
        a(f"s_waitcnt lgkmcnt({2*(NK-1-n)})")
        a(f"buffer_store_dwordx4 v[{80+4*n}:{83+4*n}], v138, s[88:91], s54 offen{PSC}")
        a(f"v_mfma_f32_16x16x32_bf16 v[12:15], v[{80+4*n}:{83+4*n}], v[8:11], {'v[12:15]' if n else 0}")
        if n < NK - 1: a("s_add_u32 s54, s54, s55")
    a("s_mov_b64 exec, s[62:63]")
    a("buffer_store_dwordx2 v[12:13], v139, s[92:95], s60 offen")
    a("buffer_store_dwordx2 v[14:15], v139, s[92:95], s60 offen offset:16")
    NPF = ENV("F_NPF", 0)
    if NPF:
        a("s_mov_b64 exec, -1")
        a("s_waitcnt vmcnt(0)")
        if ENV("F_PFD", 0): a(f"s_sleep {ENV('F_PFD', 0)}")
        a("s_lshr_b32 s10, s2, 3")
        a("s_lshl_b32 s10, s10, 3")
        a("s_add_u32 s10, s10, s3")
        m12 = magic(12, 96, 16)
        a(f"s_mul_i32 s11, s10, {m12}")
        a("s_lshr_b32 s11, s11, 16")
        a("s_mul_i32 s12, s11, 12")
        a("s_sub_u32 s10, s10, s12")
        a("s_lshl_b32 s11, s11, 1")
        a("s_and_b32 s12, s2, 1")
        a("s_add_u32 s11, s11, s12")
        a("s_mul_i32 s11, s11, 245760")
        a("s_mul_i32 s10, s10, 20480")
        a("s_add_u32 s11, s11, s10")
        a("v_lshlrev_b32 v2, 4, v1")
        for i in range(NPF):
            if i % 4 == 0: a(f"s_add_u32 s12, s11, {i*1024}")
            a(f"buffer_load_dwordx4 v[{16+4*i}:{19+4*i}], v2, s[88:91], s12 offen offset:{(i%4)*1024}")
    a("s_endpgm")

def w13_setup(a, sj, scg, skq, lbase):
    a("v_lshrrev_b32 v135, 3, v1")
    a("v_mul_u32_u24 v135, 3072, v135")
    a("v_and_b32 v136, 7, v1")
    a("v_lshl_add_u32 v135, v136, 4, v135")
    a(f"s_mul_i32 s52, s{skq}, {NK*98304}")
    a(f"s_lshl_b32 s53, s{scg}, 7")
    a("s_add_u32 s52, s52, s53")
    a(f"s_and_b32 s53, s{sj}, 3")
    a("s_mul_i32 s53, s53, 24576")
    a("s_add_u32 s52, s52, s53")
    a("s_mov_b32 s53, 98304")
    a(f"s_cmp_lt_u32 s{sj}, 4")
    a("s_cselect_b32 s32, s32, s34")
    a("s_cselect_b32 s33, s33, s35")
    a("s_mov_b32 s34, 1966080")
    a("s_mov_b32 s35, 0x20000")
    a("v_lshrrev_b32 v136, 4, v1")
    a("v_bfe_u32 v137, v1, 2, 2")
    a("v_lshl_add_u32 v136, v136, 3, v137")
    a("v_lshlrev_b32 v136, 7, v136")
    a("v_and_b32 v137, 1, v1")
    a("v_lshl_add_u32 v136, v137, 12, v136")
    a("v_bfe_u32 v137, v1, 1, 1")
    a("v_lshl_add_u32 v136, v137, 3, v136")
    a(f"s_lshl_b32 s54, s{sj}, 4")
    a(f"s_add_u32 s54, s54, {lbase}")
    a("v_add_u32 v136, s54, v136")
    a("v_add_u32 v137, 512, v136")
    a("v_bfe_u32 v138, v1, 3, 1")
    a("v_lshlrev_b32 v138, 3, v138")
    a("v_bfe_u32 v139, v1, 1, 1")
    a("v_lshl_add_u32 v138, v139, 2, v138")
    a("v_and_b32 v139, 1, v1")
    a("v_add_u32 v138, v138, v139")
    a("v_bfe_u32 v139, v1, 2, 1")
    a("v_lshl_add_u32 v138, v139, 1, v138")
    a("v_lshrrev_b32 v139, 4, v1")
    a("v_lshlrev_b32 v139, 8, v139")
    a("v_lshl_add_u32 v138, v138, 4, v139")
    a("v_lshrrev_b32 v139, 5, v1")
    a("v_lshlrev_b32 v139, 5, v139")
    a("v_bfe_u32 v140, v1, 4, 1")
    a("v_lshl_add_u32 v139, v140, 3, v139")
    m3 = magic(3, 256, 16)
    a(f"s_lshl_b32 s54, s{scg}, 3")
    a(f"s_add_u32 s54, s54, s{sj}")
    a(f"s_mul_i32 s55, s54, {m3}")
    a("s_lshr_b32 s55, s55, 16")
    a(f"s_mul_i32 s60, s55, {NP*192 - 192}")
    a("s_lshl_b32 s61, s54, 6")
    a("s_add_u32 s60, s60, s61")
    a(f"s_mul_i32 s61, s{skq}, 192")
    a("s_add_u32 s60, s60, s61")
    a("s_mul_i32 s55, s55, 58368")
    a("s_lshl_b32 s54, s54, 10")
    a("s_add_u32 s54, s54, s55")
    a(f"s_mul_i32 s55, s{skq}, {NK*3072}")
    a("s_add_u32 s54, s54, s55")
    a("s_mov_b32 s55, 3072")
    srd(a, 88, WS, W13_OFF, 3932160); srd(a, 92, WS, CS_OFF, 64*NP*192)

def w2_setup(a, sG, lbase, sj=None):
    m15 = magic(15, 64, 16); m5 = magic(5, 64, 16)
    a(f"s_mul_i32 s61, s{sG}, {m15}")
    a("s_lshr_b32 s61, s61, 16")
    a("s_mul_i32 s62, s61, 15")
    a(f"s_sub_u32 s62, s{sG}, s62")
    a(f"s_mul_i32 s63, s62, {m5}")
    a("s_lshr_b32 s63, s63, 16")
    a("s_mul_i32 s52, s63, 5")
    a("s_sub_u32 s62, s62, s52")
    a("v_lshrrev_b32 v136, 4, v1")
    a("v_and_b32 v137, 1, v136")
    a("v_lshrrev_b32 v136, 1, v136")
    a("v_lshl_add_u32 v135, v136, 3, v137")
    a("s_mul_i32 s52, s63, 24")
    a("s_lshl_b32 s53, s63, 3")
    a("s_add_u32 s53, s53, 72")
    a("s_add_u32 s54, s52, 16")
    a("v_mov_b32 v140, s54")
    a("v_mov_b32 v138, s53")
    a("v_cmp_eq_u32 vcc, 0, v136")
    a("v_add_u32 v135, s52, v135")
    a("v_cndmask_b32 v140, v138, v140, vcc")
    a("v_add_u32 v140, v140, v137")
    a("v_and_b32 v138, 15, v1")
    a("v_lshlrev_b32 v138, 4, v138")
    a("v_mul_u32_u24 v135, 1280, v135")
    a("v_mul_u32_u24 v140, 1280, v140")
    a("v_add_u32 v135, v135, v138")
    a("v_add_u32 v140, v140, v138")
    a("s_mul_i32 s52, s61, 491520")
    a("s_lshl_b32 s53, s62, 8")
    a("s_add_u32 s52, s52, s53")
    a("s_mov_b32 s53, 122880")
    a("v_lshrrev_b32 v136, 4, v1")
    a("v_bfe_u32 v137, v1, 2, 2")
    a("v_lshl_add_u32 v136, v136, 3, v137")
    a("v_lshlrev_b32 v136, 8, v136")
    a("v_and_b32 v137, 3, v1")
    a("v_lshl_add_u32 v136, v137, 3, v136")
    a(f"v_add_u32 v136, {lbase}, v136")
    a("v_lshlrev_b32 v138, 4, v1")
    a("s_mul_i32 s55, s61, 12")
    a("s_add_u32 s55, s55, s63")
    a("s_mul_i32 s63, s55, 5120")
    a("s_lshl_b32 s62, s62, 3")
    if sj is not None:
        a(f"s_bitcmp1_b32 s{sj}, 0")
        a("s_cselect_b64 vcc, -1, 0")
        a("v_cndmask_b32 v135, v135, v140, vcc")
        a(f"s_lshr_b32 s54, s{sj}, 1")
        a("s_mul_i32 s54, s54, 2560")
        a("s_add_u32 s52, s52, s54")
        a(f"s_lshl_b32 s54, s{sj}, 5")
        a("v_add_u32 v136, s54, v136")
        a(f"s_add_u32 s62, s62, s{sj}")
        a(f"s_mul_i32 s54, s62, {m5}")
        a("s_lshr_b32 s54, s54, 16")
        a(f"s_mul_i32 s54, s54, {245760 - 5120}")
        a("s_lshl_b32 s62, s62, 10")
        a("s_add_u32 s54, s54, s62")
        a("s_add_u32 s54, s54, s63")
        a("s_mov_b32 s55, 15360")
        a("s_mov_b32 s60, 0")
        a("v_mov_b32 v139, 0")
        srd(a, 92, WS, CS_OFF, 0)
    a("v_add_u32 v137, 1024, v136")
    srd(a, 84, 36, 0, 1966080); srd(a, 88, WS, W2_OFF, 1966080)

def ln_w2_tile(a):
    a("s_cmp_ge_u32 s2, 80")
    a("s_cbranch_scc1 F_END")
    a("s_mul_i32 s9, s2, 3")
    a("s_add_u32 s9, s9, s3")
    a("s_sub_u32 s9, s9, 8")
    a("s_lshr_b32 s10, s9, 2")
    a("s_waitcnt lgkmcnt(0)")
    w2_setup(a, 10, 0)
    a("s_lshl_b32 s8, s3, 13")
    a("v_add_u32 v136, s8, v136")
    a("v_add_u32 v137, s8, v137")
    a("s_and_b32 s10, s9, 3")
    a("s_mul_i32 s11, s10, 122880")
    a("s_add_u32 s52, s52, s11")
    a("s_mul_i32 s11, s10, 15360")
    a("s_add_u32 s63, s63, s11")
    a("s_barrier")
    a("s_barrier")
    a("s_barrier")
    for i in range(8):
        a(f"s_add_u32 m0, s8, {i*1024}")
        a(f"s_add_u32 s13, s52, {(i>>1)*2560}")
        a(f"buffer_load_dwordx4 v{140 if i & 1 else 135}, s[84:87], s13 offen lds")
    a("s_barrier")
    m5 = magic(5, 64, 16)
    for i in range(8):
        a(f"s_add_u32 s13, s62, {i}")
        a(f"s_mul_i32 s14, s13, {m5}")
        a("s_lshr_b32 s14, s14, 16")
        a(f"s_mul_i32 s14, s14, {245760 - 5120}")
        a("s_lshl_b32 s13, s13, 10")
        a("s_add_u32 s14, s14, s13")
        a(f"s_add_u32 s{64+i}, s14, s63")
    a("s_waitcnt vmcnt(0)")
    for i in range(8):
        for h in range(2):
            a(f"ds_read_b64_tr_b16 v[{16+4*i+2*h}:{17+4*i+2*h}], v{136+h} offset:{i*32}")
    for i in range(8):
        a(f"s_waitcnt lgkmcnt({14-2*i})")
        a(f"buffer_store_dwordx4 v[{16+4*i}:{19+4*i}], v138, s[88:91], s{64+i} offen{' sc1' if ENV('F_PSC', 1) else ''}")
    a("s_endpgm")

def gather_addrs(a, base, unit, lowcheck):
    a(f"v_lshlrev_b32 v3, 3, v{unit}")
    a("v_cvt_f32_u32 v4, v3")
    if lowcheck: a(f"v_cmp_gt_u32 vcc, 16, v{unit}")
    for p in range(4):
        a(f"v_add_f32 v5, {f2u(float(2*p)):#x}, v4")
        a(f"v_add_f32 v6, {f2u(float(2*p+1)):#x}, v4")
        a("v_cvt_pk_bf16_f32 v5, v5, v6")
        a("v_subrev_u32 v5, 0x42804280, v5")
        a("v_and_b32 v6, 0xffff, v5")
        a("v_lshrrev_b32 v5, 16, v5")
        if lowcheck:
            a(f"v_add_u32 v7, {2*p}, v3")
            a(f"v_add_u32 v8, {2*p+1}, v3")
            a("v_cndmask_b32 v6, v6, v7, vcc")
            a("v_cndmask_b32 v5, v5, v8, vcc")
        a(f"v_lshl_add_u32 v{base+2*p}, v6, 1, s11")
        a(f"v_lshl_add_u32 v{base+2*p+1}, v5, 1, s11")

def conv_wg(a):
    a(f"s_sub_u32 s4, s2, {N_LN}")
    a("s_and_b32 s5, s4, 7")
    a("s_mul_i32 s5, s5, 20")
    a("s_lshr_b32 s4, s4, 3")
    a("s_add_u32 s4, s4, s5")
    a("s_and_b32 s5, s3, 3")
    a("s_lshr_b32 s6, s3, 2")
    a("s_lshl_b32 s7, s4, 2")
    a("s_add_u32 s7, s7, s5")
    a("s_mul_i32 s8, s7, 384")
    a("s_lshl_b32 s9, s6, 7")
    a("s_add_u32 s8, s8, s9")
    a("v_lshlrev_b32 v2, 1, v1")
    a("v_add_u32 v2, s8, v2")
    a("s_lshr_b32 s9, s7, 1")
    a("s_lshl_b32 s9, s9, 2")
    a("s_waitcnt lgkmcnt(0)")
    a("s_load_dword s10, s[26:27], s9")
    a("global_load_ushort v10, v2, s[18:19]")
    a("global_load_ushort v11, v2, s[20:21]")
    a("global_load_ushort v12, v2, s[22:23]")
    a("global_load_ushort v13, v2, s[24:25]")
    a("s_lshl_b32 s9, s4, 3")
    a("s_load_dwordx2 s[68:69], s[28:29], s9")
    srd(a, 48, 40, 0, 256); srd(a, 56, WS, H_OFF, SZ_X)
    a("s_mul_i32 s11, s5, 1536")
    a(f"s_add_u32 s11, s11, {TB}")
    a("s_lshl_b32 s12, s6, 6")
    a("v_add_u32 v9, s12, v1")
    gather_addrs(a, 100, 9, True)
    a(f"s_mul_i32 s13, s5, {KP}")
    a(f"s_add_u32 s13, s13, {KB}")
    a("v_lshlrev_b32 v108, 4, v9")
    a("v_add_u32 v108, s13, v108")
    a("v_add_u32 v9, 192, v1")
    gather_addrs(a, 126, 9, False)
    a("v_lshlrev_b32 v134, 4, v9")
    a("v_add_u32 v134, s13, v134")
    a(f"s_mul_i32 s8, s3, {WREG}")
    a(f"s_add_u32 s8, s8, {SB}")
    a("v_lshlrev_b32 v3, 2, v1")
    a("v_add_u32 v3, s8, v3")
    a("v_and_b32 v4, 15, v1")
    a(f"v_mul_u32_u24 v4, {ROWP}, v4")
    a("v_lshrrev_b32 v5, 4, v1")
    a("v_lshl_add_u32 v4, v5, 4, v4")
    a("v_add_u32 v4, s8, v4")
    a("v_lshlrev_b32 v9, 4, v1")
    a("v_add_u32 v109, s8, v9")
    a("v_mov_b32 v7, 0")
    a("v_lshlrev_b32 v6, 2, v0")
    a("v_and_b32 v6, 0x7ff, v6")
    a(f"ds_write_b32 v6, v7 offset:{UB}")
    a("v_and_b32 v6, 31, v1")
    a("v_lshlrev_b32 v6, 2, v6")
    a("v_add_u32 v6, s13, v6")
    a("ds_write_b32 v6, v7")
    a("s_waitcnt lgkmcnt(0)")
    a("s_lshl_b32 s9, s10, 16")
    a("s_and_b32 s10, s10, 0xffff0000")
    a("s_bitcmp1_b32 s7, 0")
    a("s_cselect_b32 s10, s10, s9")
    a(f"v_mov_b32 v15, {f2u(LOG2E):#x}")
    a("v_mul_f32 v14, s10, v15")
    a("v_exp_f32 v14, v14")
    a("v_cvt_pk_bf16_f32 v14, v14, v14")
    a("v_lshlrev_b32 v14, 16, v14")
    a("s_waitcnt vmcnt(0)")
    stamp(a, 0)
    for r in (10, 11, 12, 13): a(f"v_lshlrev_b32 v{r}, 16, v{r}")
    a("v_mul_f32 v10, v10, v15")
    a("v_exp_f32 v10, v10")
    a("v_mul_f32 v11, v11, v14")
    a("v_cvt_pk_bf16_f32 v10, v10, v10")
    a("v_lshlrev_b32 v10, 16, v10")
    a("v_mul_f32 v10, v10, v14")
    a("v_mul_f32 v10, v10, v15")
    a(f"v_mul_f32 v11, {f2u(INV2PI):#x}, v11")
    a("v_add_f32 v14, v14, v14")
    Q0 = 40
    a(f"v_mul_f32 v{Q0}, v12, v14")
    a(f"v_mul_f32 v{Q0+1}, v13, v14")
    for k, p in enumerate((1.0, 8.0, 128.0)):
        a(f"v_mul_f32 v{24+k}, {f2u(-p):#x}, v10")
        a(f"v_mul_f32 v{28+k}, {f2u(p):#x}, v11")
    for k in range(3):
        a(f"v_exp_f32 v{24+k}, v{24+k}")
        a(f"v_fract_f32 v{28+k}, v{28+k}")
    for k in range(3):
        a(f"v_cos_f32 v{16+2*k}, v{28+k}")
        a(f"v_sin_f32 v{17+2*k}, v{28+k}")
    for k in range(3):
        a(f"v_mul_f32 v{16+2*k}, v{16+2*k}, v{24+k}")
        a(f"v_mul_f32 v{17+2*k}, v{17+2*k}, v{24+k}")
    W1, W8, W128, W16 = 16, 18, 20, 22
    tmp = [24, 25, 26, 27]; tctr = [0]
    def put(r, reg, row, val, neg=False):
        t = tmp[tctr[0] % 4]; tctr[0] += 1
        r(f"v_cvt_pk_bf16_f32 v{t}, v{val}, {'-' if neg else ''}v{val+1}")
        r(f"ds_write_b32 v3, v{t} offset:{reg*RS + row*ROWP}")
    rb = Rec()
    rb("v_mov_b32 v27, 0x3f80"); rb("ds_write_b32 v3, v27 offset:0")
    cmul(rb, W16, W8, W8)
    put(rb, 0, 1, W8, True); put(rb, 0, 2, W16, True)
    ring = {1: W8, 2: W16}; slots = [28, 30, 32, 34]
    for b in range(3, 16):
        d = slots[b % 4]
        cmul(rb, d, ring[b-2], W16); ring[b] = d
        put(rb, 0, b, d, True)
    wc = {1: W1}; rw = Rec()
    for c, (x, y) in ((2, (1, 1)), (3, (2, 1)), (4, (2, 2)), (5, (4, 1)), (6, (4, 2)), (7, (4, 3))):
        wc[c] = 72 + 2 * (c - 2); cmul(rw, wc[c], wc[x], wc[y])
    rq = Rec(); Q = {0: Q0}
    for q in range(1, 17):
        Q[q] = Q0 + 2 * q if q < 16 else 84
        cmul(rq, Q[q], Q[q-1], W128)
    for t in interleave(rb.l, rw.l + rq.l): a(t)
    pr = [28, 30, 32, 34]; pc = [0]
    def prod(reg, row, x, y):
        if y is None:
            put(a, reg, row, x); return
        d = pr[pc[0] % 4]; pc[0] += 1
        return (d, x, y, reg, row)
    def run(jobs):
        jobs = [j for j in jobs if j]
        for i, j in enumerate(jobs):
            cmul(a, j[0], j[1], j[2])
            if i: p = jobs[i-1]; put(a, p[3], p[4], p[0])
        p = jobs[-1]; put(a, p[3], p[4], p[0])
    run([prod(1, 8*ap + c, Q[ap], wc[c] if c else None) for ap in range(2) for c in range(8)])
    FB = 110
    for s in range(4): a(f"ds_read_b128 v[{FB+4*s}:{FB+4*s+3}], v4 offset:{s*64}")
    jobs = []
    for ap in range(2):
        for c in range(4): jobs.append(prod(0, 4*ap + c, Q[2+ap], wc[2*c] if c else None))
    for ap in range(4):
        for c in range(2): jobs.append(prod(0, 8 + 2*ap + c, Q[4+ap], wc[4] if c else None))
    run(jobs)
    FT0 = 40; FT1 = 8; FT2 = 56
    for s in range(4): a(f"ds_read_b128 v[{FT0+4*s}:{FT0+4*s+3}], v4 offset:{RS + s*64}")
    for s in range(4): a(f"ds_read_b128 v[{FT1+4*s}:{FT1+4*s+3}], v4 offset:{s*64}")
    for q in range(8, 17): put(a, 1, q - 8, Q[q])
    for s in range(4): a(f"ds_read_b128 v[{FT2+4*s}:{FT2+4*s+3}], v4 offset:{RS + s*64}")
    ACC = 86
    a("s_waitcnt lgkmcnt(0)")
    for s in range(4):
        for t, F in enumerate((FT0, FT1, FT2)):
            c = f"v[{ACC+4*t}:{ACC+4*t+3}]"
            a(f"v_mfma_f32_16x16x32_bf16 {c}, v[{F+4*s}:{F+4*s+3}], v[{FB+4*s}:{FB+4*s+3}], {c if s else 0}")
    for t in range(3):
        a(f"ds_write_b128 v109, v[{ACC+4*t}:{ACC+4*t+3}] offset:{t*1024}")
    a(f"s_mul_i32 s8, s5, {WREG}")
    a("s_lshl_b32 s9, s6, 10")
    a("s_add_u32 s8, s8, s9")
    a(f"s_add_u32 s8, s8, {SB}")
    a("v_lshlrev_b32 v2, 4, v1")
    a("v_add_u32 v5, s8, v2")
    a(f"v_add_u32 v6, {8*WREG}, v5")
    a("v_lshlrev_b32 v142, 5, v0")
    a("v_mov_b32 v143, 0")
    a("v_lshrrev_b32 v141, 3, v0")
    a("v_lshlrev_b32 v141, 8, v141")
    a("s_bfe_u32 s9, s4, 0x30002")
    a("s_lshl_b32 s9, s9, 5")
    a("v_add_u32 v141, s9, v141")
    srd(a, 44, WS, S1_OFF, 16384)
    a("s_waitcnt lgkmcnt(0)")
    stamp(a, 1)
    a("s_barrier")
    a("ds_read_b128 v[8:11], v5")
    a(f"ds_read_b128 v[12:15], v5 offset:{4*WREG}")
    a("ds_read_b128 v[16:19], v6")
    a("v_and_b32 v24, 15, v1")
    a("v_lshrrev_b32 v25, 4, v1")
    a("s_waitcnt lgkmcnt(0)")
    for j in (0, 2): a(f"v_pk_add_f32 v[{8+j}:{9+j}], v[{8+j}:{9+j}], v[{12+j}:{13+j}]")
    for j in (0, 2): a(f"v_pk_add_f32 v[{8+j}:{9+j}], v[{8+j}:{9+j}], v[{16+j}:{17+j}]")
    a("v_cvt_pk_bf16_f32 v20, v8, v9")
    a("v_cvt_pk_bf16_f32 v21, v10, v11")
    a("s_cmp_eq_u32 s6, 1")
    a("s_cbranch_scc1 F_T1")
    a("s_cmp_eq_u32 s6, 2")
    a("s_cbranch_scc1 F_T2")
    a("v_lshrrev_b32 v26, 1, v25")
    a("v_lshlrev_b32 v26, 8, v26")
    a("v_and_b32 v27, 1, v25")
    a("v_lshl_add_u32 v26, v27, 3, v26")
    a("v_lshl_add_u32 v26, v24, 4, v26")
    a("v_add_u32 v26, s11, v26")
    a("ds_write_b64 v26, v[20:21]")
    a("s_branch F_TW")
    a.label("F_T1")
    a("v_cmp_gt_u32 vcc, 2, v25")
    a("v_lshlrev_b32 v26, 3, v24")
    a("v_lshlrev_b32 v27, 2, v24")
    a("v_mov_b32 v28, 64")
    a("v_cndmask_b32 v26, v27, v26, vcc")
    a("v_cndmask_b32 v28, v28, 4, vcc")
    a("v_lshl_add_u32 v26, v25, 7, v26")
    a("v_add_u32 v26, s11, v26")
    a("v_add_u32 v28, v28, v26")
    a("ds_write_b32 v26, v20 offset:512")
    a("ds_write_b32 v28, v21 offset:512")
    a("s_branch F_TW")
    a.label("F_T2")
    a("v_lshlrev_b32 v26, 1, v24")
    a("v_lshl_add_u32 v26, v25, 7, v26")
    a("v_add_u32 v26, s11, v26")
    a("ds_write_b16 v26, v20 offset:1024")
    a("ds_write_b16_d16_hi v26, v20 offset:1056")
    a("ds_write_b16 v26, v21 offset:1088")
    a("ds_write_b16_d16_hi v26, v21 offset:1120")
    a.label("F_TW")
    a("s_waitcnt lgkmcnt(0)")
    a("s_barrier")
    a("s_cmp_ge_u32 s3, 8")
    a("s_cbranch_scc1 F_NOST")
    st_loads(a)
    a.label("F_NOST")
    for p in range(4):
        a(f"ds_read_u16 v{8+p}, v{100+2*p}")
        a(f"ds_read_u16_d16_hi v{12+p}, v{101+2*p}")
    a("s_cmp_lg_u32 s6, 0")
    a("s_cbranch_scc1 F_G1")
    for p in range(4):
        a(f"ds_read_u16 v{16+p}, v{126+2*p}")
        a(f"ds_read_u16_d16_hi v{20+p}, v{127+2*p}")
    a("s_waitcnt lgkmcnt(0)")
    for p in range(4): a(f"v_or_b32 v{16+p}, v{16+p}, v{20+p}")
    a("ds_write_b128 v134, v[16:19] offset:128")
    a.label("F_G1")
    a("s_waitcnt lgkmcnt(0)")
    for p in range(4): a(f"v_or_b32 v{8+p}, v{8+p}, v{12+p}")
    a("ds_write_b128 v108, v[8:11] offset:128")
    a("v_lshrrev_b32 v3, 4, v1")
    a("v_bfe_u32 v4, v1, 2, 2")
    a("v_and_b32 v5, 3, v1")
    a("v_lshlrev_b32 v16, 6, v3")
    a("v_lshl_add_u32 v16, v4, 3, v16")
    a("v_lshl_add_u32 v16, v5, 5, v16")
    a("v_add_u32 v16, s13, v16")
    a("s_lshr_b32 s14, s5, 1")
    a("s_and_b32 s15, s5, 1")
    a("s_lshl_b32 s15, s15, 3")
    for h in range(2):
        a(f"v_add_u32 v6, {44 - 4*h}, v5")
        a("v_sub_u32 v6, v6, v4")
        a("v_lshlrev_b32 v7, 3, v3")
        a("v_sub_u32 v6, v6, v7")
        a("v_lshrrev_b32 v7, 2, v6")
        a("v_add_u32 v7, s14, v7")
        a("v_and_b32 v7, 3, v7")
        a("v_lshlrev_b32 v6, 6, v6")
        a("v_lshl_add_u32 v6, v7, 4, v6")
        a(f"v_add_u32 v{17+h}, s15, v6")
    a("v_lshlrev_b32 v19, 1, v1")
    a("v_add_u32 v19, s13, v19")
    a("s_mov_b32 s70, 0"); a("s_mov_b32 s71, 0x80000000")
    a("s_mov_b32 s72, 0"); a("s_mov_b32 s73, 0xc0000000")
    a("s_mov_b32 s74, 0"); a("s_mov_b32 s75, 0xe0000000")
    a("s_lshl_b32 s12, s3, 10")
    a(f"s_add_u32 s12, s12, {UB + UPAD}")
    for e in range(2):
        a(f"s_lshl_b32 s{64+2*e}, s{68+e}, 16")
        a(f"s_and_b32 s{65+2*e}, s{68+e}, 0xffff0000")
    a("v_lshrrev_b32 v6, 2, v0")
    a("v_lshlrev_b32 v7, 6, v0")
    a(f"v_add_u32 v7, {UB + UPAD}, v7")
    for n in range(4):
        a(f"v_add_u32 v8, {n}, v6")
        a("v_and_b32 v8, 3, v8")
        a(f"v_lshl_add_u32 v{NB+28+n}, v8, 4, v7")
    srd(a, 36, WS, UR_OFF, 160*16384)
    a("s_lshl_b32 s9, s4, 14")
    a("s_cmp_ge_u32 s3, 8")
    a("s_cbranch_scc1 F_GO")
    a("s_mov_b32 s52, 0")
    a.label("F_STW")
    a("s_waitcnt vmcnt(0)")
    a(f"v_cmp_ne_u64 vcc, v[{NB+0}:{NB+1}], v[{NB+6}:{NB+7}]")
    a(f"v_cmp_ne_u64 s[14:15], v[{NB+0}:{NB+1}], v[{NB+10}:{NB+11}]")
    a(f"v_cmp_eq_u32 s[10:11], 0, v{NB}")
    a("s_or_b64 vcc, vcc, s[14:15]")
    a("s_or_b64 vcc, vcc, s[10:11]")
    a("s_cbranch_vccz F_STOK")
    a("s_add_u32 s52, s52, 1")
    a("s_cmp_ge_u32 s52, 0x8000")
    a("s_cbranch_scc1 F_STOK")
    a(f"s_sleep {ENV('F_SLEEP', 2)}")
    st_loads(a)
    a("s_branch F_STW")
    a.label("F_STOK")
    stamp(a, 2)
    a("buffer_load_dwordx4 v[144:147], v142, s[36:39], s9 offen sc1")
    a("buffer_load_dwordx4 v[148:151], v142, s[36:39], s9 offen offset:16 sc1")
    a.label("F_GO")
    a("s_waitcnt lgkmcnt(0)")
    stamp(a, 5)
    a("s_barrier")
    a("s_cmp_eq_u32 s6, 1")
    a("s_cbranch_scc1 F_P1")
    a("s_cmp_eq_u32 s6, 2")
    a("s_cbranch_scc1 F_P2")
    for p in range(3):
        if p: a.label(f"F_P{p}")
        conv_part(a, p)
        if p < 2: a("s_branch F_FIN")
    a.label("F_FIN")
    a("s_waitcnt lgkmcnt(0)")
    stamp(a, 4)
    a("s_barrier")
    a(f"v_mul_u32_u24 v16, {KP}, v4")
    a("v_lshl_add_u32 v16, v3, 5, v16")
    a("v_lshl_add_u32 v16, v5, 3, v16")
    a("s_lshl_b32 s13, s3, 7")
    a("v_add_u32 v16, s13, v16")
    a("v_lshl_add_u32 v6, v3, 2, v5")
    a("v_lshlrev_b32 v6, 6, v6")
    a("v_and_b32 v7, 1, v4")
    a("v_lshl_add_u32 v6, v7, 3, v6")
    a("v_add_u32 v6, s12, v6")
    a("v_lshrrev_b32 v7, 1, v4")
    a("v_add_u32 v7, v7, v3")
    a("v_add_u32 v7, 2, v7")
    a("v_and_b32 v7, 3, v7")
    a("v_lshl_add_u32 v17, v7, 4, v6")
    for i in range(3):
        a(f"ds_read_b64_tr_b16 v[{24+4*i}:{25+4*i}], v16 offset:{KB + 128 + i*1536}")
        a(f"ds_read_b64_tr_b16 v[{26+4*i}:{27+4*i}], v17 offset:{i*12288}")
    a("v_mul_u32_u24 v19, 20480, v3")
    a("v_and_b32 v6, 15, v1")
    a("v_lshl_add_u32 v19, v6, 4, v19")
    a("s_mul_i32 s13, s3, 81920")
    a("s_lshl_b32 s14, s4, 7")
    a("s_lshr_b32 s14, s4, 1")
    a("s_lshl_b32 s14, s14, 8")
    a("s_and_b32 s15, s4, 1")
    a("s_lshl_b32 s15, s15, 3")
    a("s_add_u32 s14, s14, s15")
    a("s_add_u32 s13, s13, s14")
    for i in range(3):
        Y = 24 + 4 * i; A = 40 + 8 * i
        a(f"s_waitcnt lgkmcnt({4 - 2*i})")
        for q in range(2):
            a(f"v_lshlrev_b32 v{A+2*q}, 16, v{Y+q}")
            a(f"v_and_b32 v{A+2*q+1}, 0xffff0000, v{Y+q}")
            a(f"v_lshlrev_b32 v{A+4+2*q}, 16, v{Y+2+q}")
            a(f"v_and_b32 v{A+4+2*q+1}, 0xffff0000, v{Y+2+q}")
        for q in range(2):
            a(f"v_pk_add_f32 v[{A+2*q}:{A+2*q+1}], v[{A+2*q}:{A+2*q+1}], v[{A+4+2*q}:{A+4+2*q+1}]")
        for q in range(2):
            a(f"v_cvt_pk_bf16_f32 v{Y+q}, v{A+2*q}, v{A+2*q+1}")
        a(f"s_add_u32 s14, s13, {i*12*81920}")
        a(f"buffer_store_dwordx2 v[{Y}:{Y+1}], v19, s[56:59], s14 offen{' sc1' if ENV('F_HSC', 0) else ''}")
    a("s_endpgm")

def normalise(a, p):
    G = [NB + 4, NB + 5, NB + 8, NB + 9]
    RSr = NB + 32; NM = NB + 36
    X = lambda c, h: NB + 12 + 4 * c + 2 * h
    U = lambda c, h: NB + 40 + 4 * c + 2 * h
    for i in range(4): a(f"v_and_b32 v{RSr+i}, 0xffff0000, v{G[i]}")
    for i in range(4): a(f"v_rcp_f32 v{RSr+i}, v{RSr+i}")
    for i in range(4): a(f"v_lshlrev_b32 v{NM+i}, 16, v{G[i]}")
    a("s_waitcnt vmcnt(0)")
    for c in range(4):
        for h in range(2):
            a(f"v_lshlrev_b32 v{X(c,h)}, 16, v{144+2*c+h}")
            a(f"v_and_b32 v{X(c,h)+1}, 0xffff0000, v{144+2*c+h}")
    for i in range(4): a(f"v_mul_f32 v{NM+i}, -v{NM+i}, v{RSr+i}")
    O = NB
    for c in range(4):
        for h in range(2):
            a(f"v_pk_fma_f32 v[{U(c,h)}:{U(c,h)+1}], v[{X(c,h)}:{X(c,h)+1}], v[{RSr+2*h}:{RSr+2*h+1}], v[{NM+2*h}:{NM+2*h+1}]")
    for c in range(4):
        for h in range(2):
            a(f"v_cvt_pk_bf16_f32 v{O+2*c+h}, v{U(c,h)}, v{U(c,h)+1}")
        if c % 2: a(f"ds_write_b128 v{NB+28+c//2}, v[{O+2*c-2}:{O+2*c+1}]")
    for c in range(4):
        o = c % 2
        for h in range(2):
            a(f"v_pk_fma_f32 v[{X(c,h)}:{X(c,h)+1}], v[{U(c,h)}:{U(c,h)+1}], s[{64+2*(c//2)}:{65+2*(c//2)}], v[{X(c,h)}:{X(c,h)+1}] op_sel:[0,{o},0] op_sel_hi:[1,{o},1]")
    for c in range(4):
        for h in range(2):
            a(f"v_cvt_pk_bf16_f32 v{144+2*c+h}, v{X(c,h)}, v{X(c,h)+1}")
        if c % 2: a(f"ds_write_b128 v{NB+30+c//2}, v[{144+2*c-2}:{144+2*c+1}]")

NB = 80
def st_loads(a):
    a(f"buffer_load_dwordx2 v[{NB}:{NB+1}], v143, s[48:51], 0 offen sc1")
    a(f"buffer_load_dwordx4 v[{NB+4}:{NB+7}], v142, s[44:47], 0 offen sc1")
    a(f"buffer_load_dwordx4 v[{NB+8}:{NB+11}], v142, s[44:47], 0 offen offset:16 sc1")

def conv_part(a, p):
    Ts, Te = PARTS[p]; Tf = max(Ts - 1, 0)
    Qmax = (Te - 1) // 2
    ds = Cnt(a, "lgkmcnt", 15)
    FR = 24; GR = FR + 4 * (Qmax + 1); NG = 8; AR = GR + 4 * NG
    acc = lambda T: AR + 4 * (T - Tf)
    T2 = 152
    assert acc(Te - 1) + 3 < T2
    if p == 2: a("s_waitcnt vmcnt(0)")
    for Q in range(Qmax, -1, -1):
        for h in range(2):
            a(f"ds_read_b64_tr_b16 v[{FR+4*Q+2*h}:{FR+4*Q+2*h+1}], v16 offset:{32 + 256*Q + 32*h}")
    if p < 2: normalise(a, p)
    a("s_waitcnt lgkmcnt(0)")
    stamp(a, 3)
    a("s_barrier")
    def gread(d):
        g = GR + 4 * (d % NG)
        for h in range(2):
            a(f"ds_read_b64_tr_b16 v[{g+2*h}:{g+2*h+1}], v{17+h} offset:{UB + 1024*d}"); ds.issue(("G", d))
    PD = 6
    for d in range(min(PD, Te)): gread(d)
    started = set(); pend = []
    def combine(T):
        t = T2 + 4 * (T % 2); D = acc(T); out = []
        for e, m in ((3, 74), (2, 72), (1, 70)):
            prev = f"v{acc(T-1)+e}" if T > 0 else "0"
            out.append(f"v_cndmask_b32 v{t+e}, v{D+e}, {prev}, s[{m}:{m+1}]")
        out.append(f"v_add_f32_dpp v{t+2}, v{t+3}, v{t+2} wave_ror:1 row_mask:0xf bank_mask:0xf")
        out.append(f"v_add_f32_dpp v{t+1}, v{t+2}, v{t+1} wave_ror:1 row_mask:0xf bank_mask:0xf")
        out.append(f"v_add_f32_dpp v{t}, v{t+1}, v{D} wave_ror:1 row_mask:0xf bank_mask:0xf")
        out.append(f"v_cvt_pk_bf16_f32 v{t}, v{t}, v{t}")
        out.append(f"ds_write_b16 v19, v{t} offset:{128 + T*128}")
        return out
    def side(n):
        for _ in range(n):
            if pend:
                t = pend.pop(0); a(t)
                if t.startswith("ds_"): ds.issue("Y")
    for d in range(Te):
        ds.wait(("G", d))
        g = GR + 4 * (d % NG)
        for T in [T for T in range(max(d, Tf), Te) if (T - d) % 2 == 0]:
            Q = (T - d) // 2
            c = f"v[{acc(T)}:{acc(T)+3}]"
            a(f"v_mfma_f32_16x16x32_bf16 {c}, v[{FR+4*Q}:{FR+4*Q+3}], v[{g}:{g+3}], {c if T in started else 0}")
            started.add(T)
            side(2)
        if d + PD < Te: gread(d + PD)
        if d - 1 >= Ts: pend += combine(d - 1)
    pend += combine(Te - 1)
    side(100)
```

```python
import os
from asmlib import *
from layout import *
from k1 import srd
from k34 import stat_finalize_steps
import asmlib
BST = os.environ.get("K3_BST") if "os" in dir() else None
K35_LDS = 163840
ENV = lambda k, d: int(os.environ.get(k, d))

_stamp = stamp
def stamp(a, i, alt=None):
    if os.environ.get("STSET", "M") != "M": return
    if (alt or "") == (BST or ""): _stamp(a, i)
    elif alt is None and i < 2 and BST == "B": _stamp(a, i)

def mlp_ids(a):
    a("s_bfe_u32 s4, s2, 0x20001")
    a("s_lshl_b32 s4, s4, 2")
    a("s_bfe_u32 s5, s2, 0x20003")
    a("s_add_u32 s4, s4, s5")
    a("s_lshr_b32 s18, s2, 5")
    a("s_and_b32 s19, s2, 1")
    a("s_lshl_b32 s5, s18, 1")
    a("s_add_u32 s5, s5, s19")

def gen_k36(a):
    a.raw(kernel_header("mlp_kernel"))
    if os.environ.get("K3_DROP"): a.drop = os.environ["K3_DROP"].split(",")
    a("s_cmp_ge_u32 s2, 256")
    a("s_cbranch_scc1 K3_END")
    a("s_load_dwordx2 s[38:39], s[0:1], 88")
    a("s_load_dwordx2 s[40:41], s[0:1], 104")
    a("v_lshrrev_b32 v2, 6, v0")
    a("v_and_b32 v1, 63, v0")
    a("v_readfirstlane_b32 s3, v2")
    mlp_body(a, False)

def mlp_body(a, fused, gate=None):
    SC1 = " sc1" if fused else ""
    a("v_lshlrev_b32 v2, 4, v1")
    a("s_bfe_u32 s4, s2, 0x20001")
    a("s_lshl_b32 s4, s4, 2")
    a("s_bfe_u32 s5, s2, 0x20003")
    a("s_add_u32 s4, s4, s5")
    a("s_lshr_b32 s18, s2, 5")
    a("s_and_b32 s19, s2, 1")
    a("s_lshl_b32 s5, s18, 1")
    a("s_add_u32 s5, s5, s19")
    a("s_mul_i32 s6, s3, 20480")
    a("s_mul_i32 s20, s4, 163840")
    a("s_add_u32 s7, s20, s6")
    a("s_lshl_b32 s8, s5, 2")
    a("s_add_u32 s8, s8, s3")
    a("s_mul_i32 s9, s8, 61440")
    a("s_mul_i32 s21, s18, 20480")
    a("s_add_u32 s21, s21, s20")
    a("s_mul_i32 s10, s3, 5120")
    a("s_add_u32 s21, s21, s10")
    a("s_mul_i32 s22, s18, 245760")
    a("s_mul_i32 s10, s3, 61440")
    a("s_add_u32 s22, s22, s10")
    a("s_waitcnt lgkmcnt(0)")
    srd(a, 44, 40, H_OFF, SZ_X); srd(a, 48, 40, W13_OFF, 3932160)
    vm = Cnt(a, "vmcnt", 63); ds = Cnt(a, "lgkmcnt", 15)
    ACC = 32; HB = 128; STR = 192; CSR = 16
    acc = lambda i, t: ACC + 4 * (3 * i + t)
    hb = lambda n, i: HB + 16 * (n & 1) + 4 * i
    SF = 160; CQ = 204
    PRE = ENV("K3_PRE", 0) or fused
    if PRE and not fused:
        for idx in range(60):
            if idx % 4 == 0: a(f"s_add_u32 s11, s9, {idx * 1024}")
            a(f"buffer_load_dwordx4 a[{4*idx}:{4*idx+3}], v2, s[48:51], s11 offen offset:{(idx&3)*1024}")
        a("s_waitcnt vmcnt(0)")
        a("s_barrier")
        a("s_memrealtime s[96:97]")
        a("s_waitcnt lgkmcnt(0)")
    def first_loads():
        for i in range(5):
            if i == 4: a("s_add_u32 s21, s21, 4096")
            a(f"buffer_load_dwordx4 v[{SF+4*i}:{SF+4*i+3}], v2, s[44:47], s21 offen offset:{(i%4)*1024}{SC1}"); vm.issue("sf")
        for _ in range(ENV("K3_PRO", 12 if fused else 14)): issue_item()
    items = []
    for s in range(20):
        items += [("h", s, 0)] + ([] if PRE else [("w", s, 0), ("w", s, 1), ("w", s, 2)])
        if s == (19 if PRE else 10): items.append(("cs", 0, 0))
        if s == ENV("K3_STPOS", 16) and not PRE: items.append(("st", 0, 0))
    HBE = ENV("K3_HBE", 20 if fused else 7)
    for s in range(HBE): items.append(("h", 20 + s, 1))
    if PRE: items.append(("st", 0, 0))
    for s in range(20):
        if s + HBE < 20: items.append(("h", 20 + s + HBE, 1))
        items += [("w2", 3 * s + t, 0) for t in range(3)]
    stepA = [0]
    cur = [-1]
    def issue_item():
        if not items or len(vm.q) >= 60: return False
        kd, s, x = items[0]
        if kd == "w2" and s // 3 > cur[0]: return False
        if kd == "st" and PRE and stepA[0] < ENV("K3_STI", 17): return False
        items.pop(0)
        if kd == "h":
            ss = s % 20
            off = x * 81920 + (ss & ~3) * 1024
            if ss % 4 == 0:
                a(f"s_add_u32 m0, s6, {off}")
                a(f"s_add_u32 s10, s7, {off}")
            a(f"buffer_load_dwordx4 v2, s[44:47], s10 offen offset:{(ss&3)*1024}{SC1} lds"); vm.issue(s)
        elif kd == "w":
            idx = 3 * s + x
            if idx % 4 == 0: a(f"s_add_u32 s11, s9, {(idx & ~3) * 1024}")
            a(f"buffer_load_dwordx4 a[{4*idx}:{4*idx+3}], v2, s[48:51], s11 offen offset:{(idx&3)*1024}"); vm.issue(s)
        elif kd == "w2" and os.environ.get("K3_NOW2"): pass
        elif kd == "w2":
            if s % 4 == 0: a(f"s_add_u32 s11, s22, {(s & ~3) * 1024}")
            a(f"buffer_load_dwordx4 a[{4*s}:{4*s+3}], v2, s[68:71], s11 offen offset:{(s&3)*1024}{SC1}"); vm.issue(("w2", s))
        elif kd == "cs":
            a(f"buffer_load_dwordx4 v[{CQ}:{CQ+3}], v2, s[52:55], s17 offen sc1"); vm.issue("cs")
        elif kd == "st":
            st_loads()
        return True
    def st_loads():
        a(f"buffer_load_dwordx4 v[176:179], v2, s[72:75], s24 offen sc1"); vm.issue("st")
    if not fused: first_loads()
    srd(a, 52, 40, CSQ_OFF, 64*1024); srd(a, 56, 40, HM_OFF, 6291456)
    srd(a, 68, 40, W2_OFF, 1966080); srd(a, 72, 40, ST_OFF, 0x4000 + 128*128)
    a("v_and_b32 v6, 15, v1")
    a("v_lshrrev_b32 v7, 4, v1")
    a("v_lshrrev_b32 v3, 1, v7")
    a("v_lshlrev_b32 v3, 5, v3")
    a("v_and_b32 v4, 1, v7")
    a("v_lshl_add_u32 v3, v4, 3, v3")
    a("v_lshlrev_b32 v186, 3, v1")
    a("v_add_u32 v185, s6, v2")
    a("s_lshl_b32 s17, s8, 10")
    a("v_lshlrev_b32 v5, 3, v6")
    a("s_lshl_b32 s24, s4, 10")
    a("v_add_u32 v3, s6, v3")
    a("v_add_u32 v187, 5120, v3")
    a("v_add_u32 v184, s6, v5")
    for i in range(8):
        a(f"s_add_u32 s13, s3, {i}")
        a("s_and_b32 s13, s13, 3")
        if i >= 4: a("s_add_u32 s13, s13, 4")
        a("s_mul_i32 s14, s13, 20480")
        a(f"v_add_u32 v{8+i}, s14, v186")
    if fused:
        gate()
        first_loads()
    a("s_mov_b32 s16, 0x3f803f80")
    SCR = 7 * 20480 + 19 * 1024
    a("s_lshl_b32 s13, s3, 7")
    a("v_and_b32 v6, 7, v1")
    a("v_lshlrev_b32 v6, 4, v6")
    a("v_add_u32 v6, s13, v6")
    vm.wait("sf")
    for r in range(20):
        for k in range(2):
            d = 28 + 2 * ((r % 4) // 2) + k
            src2 = "s16" if k == 0 else f"v{SF+r}"
            a(f"v_dot2_f32_bf16 v{d}, v{SF+r}, {src2}, {'0' if r in (0, 2) else 'v%d' % d}")
        if r % 2 == 1: issue_item()
    for sw in ("v_permlane32_swap_b32", "v_permlane16_swap_b32"):
        for r in range(4): a(f"v_mov_b32 v{SF+r}, v{28+r}")
        for r in range(4): a(f"{sw} v{28+r}, v{SF+r}")
        for r in (0, 2): a(f"v_pk_add_f32 v[{28+r}:{29+r}], v[{28+r}:{29+r}], v[{SF+r}:{SF+r+1}]")
    for r in range(4): a(f"v_add_f32_dpp v{28+r}, v{28+r}, v{28+r} row_ror:8 row_mask:0xf bank_mask:0xf")
    a(f"v_add_u32 v6, {SCR}, v6")
    a(f"v_add_u32 v7, {SCR}, v5")
    a("ds_write_b128 v6, v[28:31]")
    a("s_waitcnt lgkmcnt(0)")
    def hread(n, i):
        sl = i + 4 * (n // 20)
        a(f"ds_read2st64_b64 v[{hb(n,i)}:{hb(n,i)+3}], v{8+sl} offset0:{2*(n%20)} offset1:{2*(n%20)+1}"); ds.issue((n, i))
    vm.wait(0)
    stamp(a, 0)
    a("s_barrier")
    for i in range(4): hread(0, i)
    P = 240
    side = [("ds", f"ds_read_b64 v[{P+2*i}:{P+2*i+1}], v7 offset:{i*128}") for i in range(4)]
    side += [("v", f"v_mov_b32 v{P+8}, {f2u(1.0/640):#x}"),
             ("v", "s_lshl_b32 s13, s19, 3"), ("v", "s_lshl_b32 s14, s3, 1"), ("v", "s_add_u32 s13, s13, s14"),
             ("v", "s_lshl_b64 s[32:33], 3, s13"),
             ("v", "s_lshl_b32 s13, s4, 3"), ("v", "s_add_u32 s13, s13, s18"), ("v", "s_lshl_b32 s34, s13, 7"),
             ("w", None),
             ("v", f"v_add_f32 v{P}, v{P}, v{P+2}"), ("v", f"v_add_f32 v{P+1}, v{P+1}, v{P+3}"),
             ("v", f"v_add_f32 v{P+4}, v{P+4}, v{P+6}"), ("v", f"v_add_f32 v{P+5}, v{P+5}, v{P+7}"),
             ("v", f"v_add_f32 v{P}, v{P}, v{P+4}"), ("v", f"v_add_f32 v{P+1}, v{P+1}, v{P+5}")]
    side += [("v", st(P, P + 1, P + 2)) for st in stat_finalize_steps(P + 8)]
    side += [("x", None)]
    prep = []
    prep += ["s_lshl_b32 s13, s4, 3", "s_add_u32 s13, s13, s3", "s_mul_i32 s13, s13, 49152", "s_mul_i32 s14, s5, 3072",
             "s_add_u32 s60, s13, s14", "s_add_u32 s61, s60, 196608"]
    prep += ["s_lshl_b32 s13, s4, 2", "s_lshr_b32 s14, s5, 2", "s_add_u32 s14, s14, s13", "s_lshl_b32 s14, s14, 8",
             "s_add_u32 s62, s14, 0x4000",
             "s_add_u32 s13, s13, s3", "s_lshl_b32 s13, s13, 8", "s_add_u32 s63, s13, 0x4000"]
    prep += ["s_lshl_b32 s13, s4, 3", "s_lshl_b32 s14, s19, 1", "s_add_u32 s23, s13, s14",
             "s_mul_i32 s13, s23, 49152", "s_mul_i32 s14, s3, 12288", "s_add_u32 s64, s13, s14",
             "s_add_u32 s65, s64, 49152", "s_add_u32 s66, s64, 196608", "s_add_u32 s67, s64, 245760",
             "s_lshl_b32 s36, s3, 10"]
    side += [("v", t) for t in prep]
    def do_side():
        if not side: return False
        k, t = side.pop(0)
        if k == "ds": a(t); ds.issue("sp")
        elif k == "w": ds.wait("sp")
        elif k == "v": a(t)
        else:
            a("s_mov_b64 exec, s[32:33]")
            a(f"buffer_store_dwordx2 v[{P}:{P+1}], v5, s[72:75], s34 offen sc1"); vm.issue("gs")
            a("s_mov_b64 exec, -1")
        return True
    def mfma(i, t, s, n, first):
        c = f"v[{acc(i,t)}:{acc(i,t)+3}]"; w = 4 * (3 * s + t)
        a(f"v_mfma_f32_16x16x32_bf16 {c}, a[{w}:{w+3}], v[{hb(n,i%4)}:{hb(n,i%4)+3}], {0 if first else c}")
    STCHK = ENV('K3_STCHK', 99 if fused else 15); STB = ENV('K3_STB', 1)
    def stchk(var):
        while side: do_side()
        a("s_mov_b32 s35, 0")
        a.label(f"K3_STCHK{var}")
        vm.wait("st")
        saved_q = list(vm.q)
        a("v_min_u32 v6, v177, v179")
        a("v_cmp_eq_u32 vcc, 0, v6")
        a(f"s_cbranch_vccz K3_STOK{var}")
        a("s_add_u32 s35, s35, 1")
        a("s_cmp_ge_u32 s35, 0x4000")
        a(f"s_cbranch_scc1 K3_STOK{var}")
        a("s_sleep 2")
        st_loads()
        a("s_waitcnt vmcnt(0)")
        a(f"s_branch K3_STCHK{var}")
        a.label(f"K3_STOK{var}")
        vm.q = saved_q
        vm.wait("cs")
        for sw in ("v_permlane32_swap_b32", "v_permlane16_swap_b32"):
            side.extend(("v", f"v_mov_b32 v{CQ+4+r}, v{CQ+r}") for r in range(4))
            side.extend(("v", f"{sw} v{CQ+r}, v{CQ+4+r}") for r in range(4))
            side.extend(("v", f"v_add_f32 v{CQ+r}, v{CQ+r}, v{CQ+4+r}") for r in range(4))
        side.extend([("ds", "ds_write_b128 v185, v[176:179] offset:4096"), ("ds", f"ds_write_b128 v185, v[{CQ}:{CQ+3}] offset:5120")])
        for i in range(8):
            rt = ((var + i) & 3) + 4 * (i >> 2)
            side.append(("ds", f"ds_read_b64 v[{STR+4*i}:{STR+4*i+1}], v184 offset:{4096 + rt*128}"))
        for t in range(3):
            side.append(("ds", f"ds_read2_b64 v[{CSR+4*t}:{CSR+4*t+3}], v187 offset0:{8*t} offset1:{8*t+2}"))
        side.extend([("v", "v_mov_b32 v28, 1"), ("v", "v_mov_b32 v29, 0"), ("w", None)])
        side.extend(("v", t) for t in pre)
    def phase_a(var):
        for s in range(20):
            stepA[0] = s
            if s % 3 == 0: stamp(a, s // 3, "A")
            assert not any(kd in "hw" and x == s + 1 for kd, x, _ in items), s
            vm.wait(s + 1)
            a("s_barrier")
            ds.wait((s, 3))
            nl = 5 if s % ENV("K3_AX", 2) == 0 else 4
            if PRE: nl = ENV("K3_NL", 2)
            for i in range(4):
                for t in range(3):
                    mfma(i, t, s, s, s == 0)
                    if t == 0: hread(s + 1, i)
                    if i == var:
                        for _ in range(2 if t or nl == 5 and False else 1):
                            if nl: issue_item(); nl -= 1
                    elif t: do_side(); do_side()
            if s == STCHK: stchk(var)
        while side: do_side()
        stamp(a, 1)
    PK = ENV("K3_PK", 0)
    def epi(i, var, pk):
        S = STR + 4 * i; O = 224 + 4 * (i % 2); out = []; seqs = []
        for t in range(3):
            c = acc(i, t); e = 232 + 2 * t; cs = CSR + 4 * t
            if pk:
                seqs.append([
                f"v_pk_fma_f32 v[{c}:{c+1}], v[{cs}:{cs+1}], v[{S}:{S+1}], v[{c}:{c+1}] op_sel_hi:[1,0,1] neg_lo:[0,1,0] neg_hi:[0,1,0]",
                f"v_pk_fma_f32 v[{c+2}:{c+3}], v[{cs+2}:{cs+3}], v[{S}:{S+1}], v[{c+2}:{c+3}] op_sel_hi:[1,0,1] neg_lo:[0,1,0] neg_hi:[0,1,0]",
                f"v_pk_mul_f32 v[{e}:{e+1}], v[{c}:{c+1}], v[{S+2}:{S+3}] op_sel_hi:[1,0]",
                f"v_exp_f32 v{e}, v{e}",
                f"v_exp_f32 v{e+1}, v{e+1}",
                f"v_pk_mul_f32 v[{c}:{c+1}], v[{c}:{c+1}], v[{c+2}:{c+3}]",
                f"v_pk_fma_f32 v[{e}:{e+1}], v[{e}:{e+1}], v[{S}:{S+1}], v[{S}:{S+1}] op_sel:[0,1,1] op_sel_hi:[1,1,1]",
                f"v_rcp_f32 v{e}, v{e}",
                f"v_rcp_f32 v{e+1}, v{e+1}",
                f"v_pk_mul_f32 v[{c}:{c+1}], v[{c}:{c+1}], v[{e}:{e+1}]",
                f"v_cvt_pk_bf16_f32 v{O+t}, v{c}, v{c+1}"])
            else:
                seqs.append(
                [f"v_fma_f32 v{c+r}, -v{S}, v{cs+r}, v{c+r}" for r in range(2)] +
                [f"v_mul_f32 v{e+r}, v{c+r}, v{S+2}" for r in range(2)] +
                [f"v_exp_f32 v{e}, v{e}", f"v_fma_f32 v{c+2}, -v{S}, v{cs+2}, v{c+2}",
                 f"v_exp_f32 v{e+1}, v{e+1}", f"v_fma_f32 v{c+3}, -v{S}, v{cs+3}, v{c+3}"] +
                [f"v_mul_f32 v{c+r}, v{c+r}, v{c+2+r}" for r in range(2)] +
                [f"v_fma_f32 v{e+r}, v{e+r}, v{S+1}, v{S+1}" for r in range(2)] +
                [f"v_rcp_f32 v{e+r}, v{e+r}" for r in range(2)] +
                [f"v_mul_f32 v{c+r}, v{c+r}, v{e+r}" for r in range(2)] +
                [f"v_cvt_pk_bf16_f32 v{O+t}, v{c}, v{c+1}"])
        for j in range(len(seqs[0])):
            for sq in seqs:
                if not os.environ.get("K3_NOEPI"): out.append(sq[j])
        out.append(f"v_add_u32 v6, v{8+i}, v186")
        if var < 3:
            out.append(f"ds_write_b96 v6, v[{O}:{O+2}] offset:{var*1024}")
        else:
            out += [f"ds_write_b32 v6, v{O+t} offset:{t*1024 + 12}" for t in range(3)]
        return out
    pre = [f"v_mov_b32 v4, {f2u(-LOG2E):#x}"]
    pre += [f"v_rcp_f32 v{STR+4*i+2}, v{STR+4*i+1}" for i in range(8)]
    pre += [f"v_mul_f32 v{STR+4*i+1}, v{STR+4*i+1}, v{STR+4*i+1}" for i in range(8)]
    pre += [f"v_mul_f32 v{STR+4*i+2}, v{STR+4*i+2}, v4" for i in range(8)]
    PB = 160
    def signal(hf):
        if signal.var < 4:
            if signal.var == 0:
                a("s_mov_b64 exec, 1")
                a(f"buffer_atomic_add v28, v29, s[72:75], s62 offen offset:{hf*128} sc1"); vm.issue("sig")
                a("s_mov_b64 exec, -1")
            return
        a("s_cmp_lg_u32 s3, 0")
        lab = f"K3_NOSIG{hf}_{signal.var}"
        a(f"s_cbranch_scc1 {lab}")
        a("s_mov_b64 exec, 1")
        a(f"buffer_atomic_add v28, v29, s[72:75], s62 offen offset:{hf*128} sc1")
        a("s_mov_b64 exec, -1")
        a.label(lab)
        vm.q.append("sig")
        vm.q.pop()
    A2 = 80; HR = 224
    acc2 = lambda j, t: A2 + 4 * (5 * j + t)
    HMR = [32 + 4 * i for i in range(12)] + [160 + 4 * i for i in range(8)] + [240 + 4 * i for i in range(4)]
    hm = lambda j, k: HMR[12 * (j % 2) + k]
    hq = []
    def ld_hm(j, k):
        if k % 4 == 0: a(f"s_add_u32 s10, s{64+j}, {(k & ~3)*1024}")
        a(f"buffer_load_dwordx4 v[{hm(j,k)}:{hm(j,k)+3}], v2, s[56:59], s10 offen offset:{(k&3)*1024}{os.environ.get('K3_HMSC', ' sc1')}"); vm.issue((j, k))
    saves = (list(items), list(vm.q), list(ds.q), list(side))
    for w in range(1, 4):
        a(f"s_cmp_eq_u32 s3, {w}")
        a(f"s_cbranch_scc1 K3_VAR{w}")
    for var in range(4):
        if var:
            a.label(f"K3_VAR{var}")
            items[:] = saves[0]; vm.q = list(saves[1]); ds.q = list(saves[2]); cur[0] = -1; side[:] = saves[3]
        signal.var = var
        phase_a(var)
        sj = []
        if STCHK < 20:
            for i in range(4): sj += epi(i, var, PK)
        def emit_side(budget):
            while side and budget > 0:
                do_side(); budget -= 4
            while sj and budget > 0:
                t = sj.pop(0); a(t)
                if t.startswith("ds_"): ds.issue("e")
                budget -= 8 if t.split()[0] in TRANS else 4
        state = 0
        for s in range(20):
            n = 20 + s
            if s % 4 == 3: stamp(a, 2 + s // 4, "B")
            if s + 1 < 20:
                assert not any(kd == "h" and x == n + 1 for kd, x, _ in items)
                vm.wait(n + 1)
            if state == 0 and s > STB and not sj and not hasattr(emit_side, "nat"):
                emit_side.nat = s; print("epilogue A natural finish at step", s, "var", var)
            if state == 0 and s == ENV("K3_SA", 15 if STCHK >= 20 else 11):
                emit_side(100000)
                ds.wait("e"); state = 1
                a("s_barrier")
                for ph in range(3):
                    a(f"ds_read_b128 v[{PB+4*ph}:{PB+4*ph+3}], v185 offset:{ph*1024}"); ds.issue("pb")
            elif state == 1:
                a("s_barrier")
                ds.wait("pb")
                for ph in range(3):
                    a(f"buffer_store_dwordx4 v[{PB+4*ph}:{PB+4*ph+3}], v2, s[56:59], s60 offen offset:{ph*1024} sc1"); vm.issue("hsA")
                state = 2; s_st = s
            elif state == 2 and (s >= s_st + ENV("K3_DRAIN", 4) or s == 19):
                vm.wait("hsA")
                a("s_barrier")
                signal(0); state = 4
                stamp(a, 2)
            elif s + 1 < 20:
                a("s_barrier")
            ds.wait((n, 3))
            for i in range(4):
                for t in range(3):
                    mfma(4 + i, t, s, n, s == 0)
                    if t == 0 and s + 1 < 20: hread(n + 1, i)
                    if i == var:
                        issue_item()
                        if t == 2 and ENV("K3_BN", 4) == 4: issue_item()
                    else: emit_side(ENV("K3_B0", 8) if t == 0 else ENV("K3_B1", 12))
            cur[0] = s
            if STCHK >= 20 and s == STB:
                stchk(var)
                for i in range(4): sj += epi(i, var, PK)
            if s == ENV("K3_PAS", 18):
                a(f"buffer_load_dword v30, v29, s[72:75], s63 offen sc1"); vm.issue("pA")
        assert state == 4, state
        for i in range(4, 8): sj += epi(i, var, 1)
        n_eb = ENV("K3_EBN", 4)
        while sj:
            emit_side(ENV("K3_EB", 200))
            if n_eb and issue_item(): n_eb -= 1
        left = list(items)
        if var < 3: a("s_branch K3_EPIDONE")
    a.label("K3_EPIDONE")
    a("s_waitcnt lgkmcnt(0)"); ds.q = []
    stamp(a, 3)
    a("s_barrier")
    PB2 = 192
    a("v_add_u32 v12, 81920, v185")
    for ph in range(3):
        a(f"ds_read_b128 v[{PB2+4*ph}:{PB2+4*ph+3}], v12 offset:{ph*1024}")
    a("s_mul_i32 s13, s3, 5120")
    a("v_add_u32 v8, s13, v2")
    a("v_add_u32 v9, 40960, v8")
    a("v_lshrrev_b32 v4, 5, v1")
    a("v_lshlrev_b32 v4, 7, v4")
    a("v_and_b32 v5, 15, v1")
    a("v_lshl_add_u32 v4, v5, 3, v4")
    a("v_bfe_u32 v6, v1, 4, 1")
    a("v_lshl_add_u32 v4, v6, 9, v4")
    a("v_mul_u32_u24 v5, 1280, v5")
    a("v_lshrrev_b32 v7, 4, v1")
    a("v_lshl_add_u32 v5, v7, 3, v5")
    a("s_mul_i32 s16, s18, 5")
    a("s_mul_i32 s17, s18, 160")
    for q in range(3):
        a(f"s_add_u32 s12, s3, {4*q}")
        if q == 2:
            a("s_cmp_ge_u32 s12, 10")
            a("s_cselect_b32 s13, 2, 0")
            a("s_sub_u32 s12, s12, s13")
        a("s_cmp_ge_u32 s12, 5")
        a("s_cselect_b32 s13, 1, 0")
        a("s_mul_i32 s14, s13, 5")
        a("s_sub_u32 s12, s12, s14")
        a("s_mul_i32 s14, s13, 20480")
        a("s_lshl_b32 s15, s12, 10")
        a("s_add_u32 s15, s15, s14")
        a(f"v_add_u32 v{10+q}, s15, v2") if q < 2 else a("v_add_u32 v13, s15, v2")
        a("s_add_u32 s13, s13, s23")
        a("s_mul_i32 s13, s13, 20480")
        a("s_add_u32 s14, s12, s16")
        a("s_lshr_b32 s15, s14, 1")
        a("s_lshl_b32 s15, s15, 10")
        a("s_and_b32 s14, s14, 1")
        a("s_lshl_b32 s14, s14, 8")
        a("s_add_u32 s14, s14, s15")
        a(f"s_add_u32 s{24+q}, s13, s14")
        a("s_lshl_b32 s14, s12, 5")
        a("s_add_u32 s14, s14, s17")
        a(f"s_add_u32 s{28+q}, s13, s14")
    srd(a, 52, 38, 0, SZ_X)
    for ph in range(3):
        a(f"s_waitcnt lgkmcnt({2-ph})")
        a(f"buffer_store_dwordx4 v[{PB2+4*ph}:{PB2+4*ph+3}], v2, s[56:59], s61 offen offset:{ph*1024} sc1"); vm.issue("hsB")
    vm.wait("pA")
    a("s_mov_b32 s35, 0")
    a("s_branch K3_PA_CHK")
    a.label("K3_PA")
    a(f"buffer_load_dword v30, v29, s[72:75], s63 offen sc1")
    a("s_waitcnt vmcnt(0)")
    a.label("K3_PA_CHK")
    a("v_readfirstlane_b32 s14, v30")
    a("s_add_u32 s35, s35, 1")
    a("s_cmp_ge_u32 s14, 4")
    a("s_cbranch_scc1 K3_GOA")
    a("s_cmp_lt_u32 s35, 0x8000")
    a("s_cbranch_scc1 K3_PA")
    a.label("K3_GOA")
    def res_loads():
        for hf in range(2):
            for q in range(3):
                if hf: a(f"s_add_u32 s{24+q}, s{24+q}, 81920")
                a(f"buffer_load_dwordx2 v[{HR+6*hf+2*q}:{HR+6*hf+2*q+1}], v4, s[44:47], s{24+q} offen{SC1}"); vm.issue("res")
    H0 = ENV("K3_H0", 6)
    hq[:] = [(0, kk) for kk in range(H0)] + ["w2"] * len(items) + [(0, kk) for kk in range(H0, 12)] + [(1, kk) for kk in range(12)] + ["res"]
    _ld = ld_hm
    def nxt():
        x = hq.pop(0)
        if x == "w2": assert issue_item()
        elif x == "res": res_loads()
        else: _ld(*x)
    for _ in range(ENV("K3_NPA", 12)): nxt()
    stamp(a, 4)
    wr = []
    def g2tile(j, hook=None):
        for k in range(12):
            while (j, k) in hq or (j == 0 and ("w2", 5 * k + 4, 0) in items): nxt()
            vm.wait((j, k)); vm.wait(("w2", 5 * k + 4))
            for t in range(5):
                c = f"v[{acc2(j,t)}:{acc2(j,t)+3}]"; w = 4 * (5 * k + t)
                a(f"v_mfma_f32_16x16x32_bf16 {c}, a[{w}:{w+3}], v[{hm(j,k)}:{hm(j,k)+3}], {c if k else 0}")
                if t == 2 and wr and k >= 1: a(wr.pop(0))
                if t in (0, 3) and hq: nxt()
            if hook: hook(k)
        wr.extend(f"ds_write_b128 v{8 + j//2}, v[{acc2(j,t)}:{acc2(j,t)+3}] offset:{(j%2)*20480 + t*1024}" for t in range(5))
    def hookA(k):
        if k == ENV("K3_SBK", 5):
            vm.wait("hsB")
            a("s_barrier")
            signal.var = 9; signal(1)
    g2tile(0, hookA)
    def hookB(k):
        if k == ENV("K3_PBK", 2):
            a(f"buffer_load_dword v30, v29, s[72:75], s63 offen offset:128 sc1"); vm.issue("pB")
        if k == ENV("K3_PBC", 6):
            stamp(a, 5)
            while hq: nxt()
            a("s_mov_b32 s35, 0")
            vm.wait("pB")
            a("s_branch K3_PB_CHK")
            a.label("K3_PB")
            a(f"buffer_load_dword v30, v29, s[72:75], s63 offen offset:128 sc1")
            a("s_waitcnt vmcnt(0)")
            a.label("K3_PB_CHK")
            a("v_readfirstlane_b32 s14, v30")
            a("s_add_u32 s35, s35, 1")
            a("s_cmp_ge_u32 s14, 4")
            a("s_cbranch_scc1 K3_GOB")
            a("s_cmp_lt_u32 s35, 0x8000")
            a("s_cbranch_scc1 K3_PB")
            a.label("K3_GOB")
            stamp(a, 6)
            hq.extend((2, kk) for kk in range(12))
            for _ in range(4): nxt()
    g2tile(1, hookB)
    hq.extend((3, kk) for kk in range(12))
    RD = [10, 11, 13]
    def finalize(hf, R, U):
        out = []
        for q in range(3):
            for w in range(4):
                out.append(f"ds_read_b128 v[{R+16*q+4*w}:{R+16*q+4*w+3}], v{RD[q]} offset:{hf*40960 + w*5120}")
        for q in range(3):
            for e in range(2):
                out.append(f"v_lshlrev_b32 v{U+4*q+2*e}, 16, v{HR+6*hf+2*q+e}")
                out.append(f"v_and_b32 v{U+4*q+2*e+1}, 0xffff0000, v{HR+6*hf+2*q+e}")
            if hf: out.append(f"s_add_u32 s{28+q}, s{28+q}, 81920")
        for q in range(3):
            b = R + 16 * q
            out.append(f"s_waitcnt lgkmcnt({8 - 4*q})")
            for e in (0, 2):
                out.append(f"v_pk_add_f32 v[{b+e}:{b+e+1}], v[{b+e}:{b+e+1}], v[{b+4+e}:{b+5+e}]")
                out.append(f"v_pk_add_f32 v[{b+8+e}:{b+9+e}], v[{b+8+e}:{b+9+e}], v[{b+12+e}:{b+13+e}]")
            for e in (0, 2):
                out.append(f"v_pk_add_f32 v[{b+e}:{b+e+1}], v[{b+e}:{b+e+1}], v[{b+8+e}:{b+9+e}]")
            for e in range(2):
                out.append(f"v_cvt_pk_bf16_f32 v{b+4+e}, v{b+2*e}, v{b+2*e+1}")
            for e in range(2):
                out.append(f"v_lshlrev_b32 v{b+2*e}, 16, v{b+4+e}")
                out.append(f"v_and_b32 v{b+2*e+1}, 0xffff0000, v{b+4+e}")
            for e in (0, 2):
                out.append(f"v_pk_add_f32 v[{b+e}:{b+e+1}], v[{b+e}:{b+e+1}], v[{U+4*q+e}:{U+4*q+e+1}]")
            for e in range(2):
                out.append(f"v_cvt_pk_bf16_f32 v{b+4+e}, v{b+2*e}, v{b+2*e+1}")
            out.append(f"buffer_store_dwordx2 v[{b+4}:{b+5}], v5, s[52:55], s{28+q} offen")
        return out
    for _ in range(ENV("K3_HB2", 12)):
        nxt()
        if wr: a(wr.pop(0))
    while wr: a(wr.pop(0))
    a("s_waitcnt lgkmcnt(0)")
    a("s_barrier")
    for t in finalize(0, 80, 16):
        a(t)
        if t.startswith("buffer"): vm.issue("o")
        if t.startswith("v_pk") and hq: nxt()
    while hq: nxt()
    g2tile(2); g2tile(3)
    while wr: a(wr.pop(0))
    a("s_waitcnt lgkmcnt(0)")
    a("s_barrier")
    for t in finalize(1, 32, 16): a(t)
    a.label("K3_END")
    a("s_endpgm")
```

```python
import os
from asmlib import *
from layout import *
from k1 import srd
import kf4, k36
ENV = lambda k, d: int(os.environ.get(k, d))
NAME = "sequential_preLN__ssm_conv_s4d__glu_gated_swiglu__prompt_kernel"

class Fused:
    def __init__(self, a): self.a = a; self.n = 0
    def setup(self):
        a = self.a
        srd(a, 92, kf4.WS, FLG_OFF, 352 * 128); srd(a, 28, kf4.WS, W13_OFF, 3932160)
        a("s_lshr_b32 s32, s2, 5")
        a("s_lshl_b32 s32, s32, 1")
        a("s_and_b32 s33, s2, 1")
        a("s_add_u32 s32, s32, s33")
        a("s_mul_i32 s34, s32, 3")
        a("s_lshr_b32 s34, s34, 1")
        a("s_lshl_b32 s34, s34, 9")
        a("s_lshl_b32 s32, s32, 2")
        a("s_add_u32 s32, s32, s3")
        a("s_mul_i32 s32, s32, 61440")
        a("v_and_b32 v8, 7, v1")
        a("v_lshlrev_b32 v8, 7, v8")
        a("v_lshlrev_b32 v2, 4, v1")
    def flag(self, sidx, base, tag):
        a = self.a
        a("s_cmp_lg_u32 s3, 0")
        a(f"s_cbranch_scc1 FLG_{tag}")
        srd(a, 92, kf4.WS, FLG_OFF, 352 * 128)
        a(f"s_lshl_b32 s35, {sidx}, 7")
        a("v_mov_b32 v12, s90")
        a("v_mov_b32 v13, s91")
        a(f"v_mov_b32 v14, {base*128}")
        a("s_mov_b64 exec, 1")
        a("buffer_store_dwordx2 v[12:13], v14, s[92:95], s35 offen sc1")
        a("s_mov_b64 exec, -1")
        a.label(f"FLG_{tag}")
    def poll_issue(self):
        self.a("buffer_load_dwordx2 v[10:11], v8, s[92:95], s34 offen sc1")
    def check(self, notready):
        a = self.a
        a("s_waitcnt vmcnt(0)")
        a("v_cmp_ne_u64 vcc, s[90:91], v[10:11]")
        a(f"s_cbranch_vccnz {notready}")
        a("s_mov_b32 s33, 1")
    def wait(self, tag):
        a = self.a
        a("s_mov_b32 s35, 0")
        a.label(f"W13W_{tag}")
        self.poll_issue()
        a("s_waitcnt vmcnt(0)")
        a("v_cmp_ne_u64 vcc, s[90:91], v[10:11]")
        a(f"s_cbranch_vccz W13K_{tag}")
        a("s_sleep 4")
        a("s_add_u32 s35, s35, 1")
        a("s_cmp_lt_u32 s35, 0x8000")
        a(f"s_cbranch_scc1 W13W_{tag}")
        a.label(f"W13K_{tag}")
    def load(self, idx):
        a = self.a
        if idx % 4 == 0 or idx == self.first: a(f"s_add_u32 s35, s32, {(idx & ~3) * 1024}")
        a(f"buffer_load_dwordx4 a[{4*idx}:{4*idx+3}], v2, s[28:31], s35 offen offset:{(idx&3)*1024} sc1")
    def load_one(self):
        if self.n >= 60: return False
        self.first = 0
        self.load(self.n); self.n += 1
        return True

def gen_all(a):
    a.raw(kernel_header(NAME))
    a("s_cmp_ge_u32 s2, 256")
    a("s_cbranch_scc1 K3_END")
    kf4.front_entry(a)
    F = Fused(a)
    a(f"s_cmp_lt_u32 s2, {kf4.N_LN}")
    a("s_cbranch_scc1 F_LN")
    kf4.conv_wg(a, F)
    a("s_cmp_eq_u32 s33, 0")
    a("s_cbranch_scc1 C_ALL")
    n0 = F.n; F.first = n0
    NE = min(ENV("A_NE", 6), 60 - n0)
    for i in range(n0, n0 + NE): F.load(i)
    a(f"s_waitcnt vmcnt({NE})")
    a("s_barrier")
    a(f"s_sub_u32 s5, s2, {kf4.N_LN}")
    F.flag("s5", 192, "H1")
    F.first = n0 + NE
    for i in range(n0 + NE, 60): F.load(i)
    a("s_branch M_START")
    a.label("C_ALL")
    a("s_waitcnt vmcnt(0)")
    a("s_barrier")
    a(f"s_sub_u32 s5, s2, {kf4.N_LN}")
    F.flag("s5", 192, "H2")
    a("s_branch M_LOADALL")
    a.label("F_LN")
    kf4.ln_wg(a, F)
    F.setup()
    F.wait("L")
    F.first = 0
    for i in range(40): F.load(i)
    a("s_waitcnt vmcnt(40)")
    a("s_barrier")
    F.flag("s2", 96, "W2")
    for i in range(40, 60): F.load(i)
    a("s_branch M_START")
    a.label("M_LOADALL")
    F.wait("C")
    for i in range(60): F.load(i)
    a.label("M_START")
    a("s_load_dwordx2 s[38:39], s[0:1], 88")
    a("s_load_dwordx2 s[40:41], s[0:1], 104")
    def gate():
        a("v_lshlrev_b32 v28, 7, v1")
        a("s_mov_b32 s35, 0")
        a("s_lshl_b32 s14, s3, 13")
        a(f"s_add_u32 s14, s14, {96*128}")
        a.label("HW")
        a("buffer_load_dwordx2 v[32:33], v28, s[92:95], s14 offen sc1")
        a("s_waitcnt vmcnt(0)")
        a("v_cmp_ne_u64 vcc, s[90:91], v[32:33]")
        a("s_cbranch_vccz HOK")
        a(f"s_sleep {ENV('A_SLEEP', 4)}")
        a("s_add_u32 s35, s35, 1")
        a("s_cmp_lt_u32 s35, 0x8000")
        a("s_cbranch_scc1 HW")
        a.label("HOK")
        a("s_barrier")
        kf4._stamp(a, 5) if os.environ.get("STSET") == "F" else None
    k36.mlp_body(a, True, gate)
```

```python
import os
from asmlib import *
from layout import *
from k1 import srd, cmul, interleave, Rec, wave_reduce_sum
from kp2 import w2_ids, w2_dma_setup, w2_out_setup
ENV = lambda k, d: int(os.environ.get(k, d))
N_LN = 96
_stamp = stamp
def stamp(a, i):
    if os.environ.get('STSET', 'F') == 'F': _stamp(a, i)
UB = 0; UPAD = 2048; SB = UPAD + 32768; RS = 4352; ROWP = 272; WREG = 2 * RS
KB = SB + 12 * WREG; KP = 4416; TB = KB + 4 * KP; PK = UB + UPAD
assert TB + 4 * 1536 <= 163840
STG = 65536; XP = 272
WS = 42
XQ_OFF = UR_OFF

def front_entry(a):
    code_prefetch(a, 4, 132, "F4")
    a("s_load_dwordx16 s[16:31], s[0:1], 0")
    a("s_load_dwordx8 s[32:39], s[0:1], 64")
    a("s_load_dwordx4 s[40:43], s[0:1], 96")
    a("v_lshrrev_b32 v2, 6, v0")
    a("v_and_b32 v1, 63, v0")
    a("v_readfirstlane_b32 s3, v2")

def gen_front4(a):
    a.raw(kernel_header("front_kernel"))
    a("s_cmp_ge_u32 s2, 256")
    a("s_cbranch_scc1 F_END")
    front_entry(a)
    a(f"s_cmp_lt_u32 s2, {N_LN}")
    a("s_cbranch_scc1 F_LN")
    conv_wg(a)
    a("s_endpgm")
    a.label("F_LN")
    ln_wg(a)
    a.label("F_END")
    a("s_endpgm")

def epoch_wait(a, tag, vr, vz):
    a("s_mov_b32 s8, 0")
    a.label(f"EPW{tag}")
    a(f"v_readfirstlane_b32 s9, v{vr}")
    a("s_cmp_lg_u32 s9, 0")
    a(f"s_cbranch_scc1 EPOK{tag}")
    a("s_add_u32 s8, s8, 1")
    a("s_cmp_ge_u32 s8, 0x8000")
    a(f"s_cbranch_scc1 EPOK{tag}")
    a(f"buffer_load_dwordx2 v[{vr}:{vr+1}], v{vz}, s[48:51], 0 offen sc1")
    a("s_waitcnt vmcnt(0)")
    a(f"s_branch EPW{tag}")
    a.label(f"EPOK{tag}")

def l_w13(a):
    m3 = magic(3, 256, 16)
    a("s_lshr_b32 s62, s2, 2")
    a("s_and_b32 s63, s2, 3")
    a("v_lshrrev_b32 v120, 3, v1")
    a("v_mul_u32_u24 v120, 3072, v120")
    a("v_and_b32 v3, 7, v1")
    a("v_lshl_add_u32 v120, v3, 4, v120")
    a(f"s_mul_i32 s52, s63, {5*98304}")
    a("s_lshl_b32 s53, s62, 7")
    a("s_add_u32 s52, s52, s53")
    a("s_and_b32 s53, s3, 1")
    a("s_mul_i32 s53, s53, 49152")
    a("s_add_u32 s52, s52, s53")
    a("s_cmp_lt_u32 s3, 2")
    a("s_cselect_b32 s44, s32, s34")
    a("s_cselect_b32 s45, s33, s35")
    a("s_mov_b32 s46, 1966080")
    a("s_mov_b32 s47, 0x20000")
    a("s_lshl_b32 s55, s3, 11")
    for n in range(5):
        for r in range(2):
            a(f"s_add_u32 m0, s55, {n*8192 + r*1024}")
            a(f"s_add_u32 s53, s52, {n*98304 + r*24576}")
            a("buffer_load_dwordx4 v120, s[44:47], s53 offen lds")
    for e in range(2):
        a("s_lshl_b32 s12, s62, 2")
        a("s_add_u32 s12, s12, s3")
        a("s_lshl_b32 s12, s12, 1")
        if e: a("s_add_u32 s12, s12, 1")
        a(f"s_mul_i32 s6, s12, {m3}")
        a("s_lshr_b32 s6, s6, 16")
        a(f"s_mul_i32 s{64+e}, s6, 58368")
        a("s_lshl_b32 s55, s12, 10")
        a(f"s_add_u32 s{64+e}, s{64+e}, s55")
        a(f"s_mul_i32 s55, s63, {5*3072}")
        a(f"s_add_u32 s{64+e}, s{64+e}, s55")
        a(f"s_mul_i32 s{66+e}, s6, {1024 - 192}")
        a("s_lshl_b32 s55, s12, 6")
        a(f"s_add_u32 s{66+e}, s{66+e}, s55")
        a("s_lshl_b32 s55, s63, 8")
        a(f"s_add_u32 s{66+e}, s{66+e}, s55")
    a("v_lshrrev_b32 v121, 4, v1")
    a("v_bfe_u32 v3, v1, 2, 2")
    a("v_lshl_add_u32 v121, v121, 3, v3")
    a("v_lshlrev_b32 v121, 7, v121")
    a("v_and_b32 v3, 1, v1")
    a("v_lshl_add_u32 v121, v3, 12, v121")
    a("v_bfe_u32 v3, v1, 1, 1")
    a("v_lshl_add_u32 v121, v3, 3, v121")
    a("s_lshl_b32 s14, s3, 5")
    a("v_add_u32 v121, s14, v121")
    a("v_bfe_u32 v122, v1, 3, 1")
    a("v_lshlrev_b32 v122, 3, v122")
    a("v_bfe_u32 v3, v1, 1, 1")
    a("v_lshl_add_u32 v122, v3, 2, v122")
    a("v_and_b32 v3, 1, v1")
    a("v_add_u32 v122, v122, v3")
    a("v_bfe_u32 v3, v1, 2, 1")
    a("v_lshl_add_u32 v122, v3, 1, v122")
    a("v_lshrrev_b32 v3, 4, v1")
    a("v_lshlrev_b32 v123, 4, v3")
    a("v_lshlrev_b32 v3, 8, v3")
    a("v_lshl_add_u32 v122, v122, 4, v3")
    srd(a, 44, WS, W13_OFF, 3932160); srd(a, 52, WS, CSQ_OFF, 64*1024)
    for i in range(4): a(f"v_mov_b32 v{8+i}, 0x3f803f80")
    a("s_mov_b32 s12, 0x00010001")
    a("s_mov_b32 s13, 0x00010001")
    a("s_waitcnt vmcnt(0)")
    a("s_barrier")
    for n in range(5):
        for e in range(2):
            for h in range(2):
                r = 64 + 4 * (2 * n + e)
                a(f"ds_read_b64_tr_b16 v[{r+2*h}:{r+2*h+1}], v121 offset:{n*8192 + h*512 + e*16}")
    for n in range(5):
        for e in range(2):
            r = 64 + 4 * (2 * n + e)
            a(f"s_waitcnt lgkmcnt({min(15, 18 - 4*n - 2*e)})")
            a(f"buffer_store_dwordx4 v[{r}:{r+3}], v122, s[44:47], s{64+e} offen sc1")
            c = f"v[{12+4*e}:{15+4*e}]"
            a(f"v_mfma_f32_16x16x32_bf16 {c}, v[{r}:{r+3}], v[8:11], {c if n else 0}")
            if n < 4: a(f"s_add_u32 s{64+e}, s{64+e}, 3072")
    a("s_mov_b64 exec, s[12:13]")
    for e in range(2):
        a(f"buffer_store_dwordx4 v[{12+4*e}:{15+4*e}], v123, s[52:55], s{66+e} offen sc1")
    a("s_mov_b64 exec, -1")

def ln_wg(a, fused=None):
    a("s_memrealtime s[60:61]")
    a("v_mov_b32 v6, 0")
    a("s_waitcnt lgkmcnt(0)")
    srd(a, 48, 40, 0, 8)
    a("s_cmp_ge_u32 s2, 64")
    a("s_cbranch_scc1 F_SPARE")
    a("s_lshl_b32 s4, s2, 3")
    a("s_lshl_b32 s5, s3, 1")
    a("s_add_u32 s4, s4, s5")
    a("s_mul_i32 s5, s4, 5120")
    a("v_lshlrev_b32 v4, 2, v1")
    a("v_add_u32 v5, 2560, v4")
    srd(a, 44, 16, 0, SZ_X)
    a("s_add_u32 s7, s5, 5120")
    for i in range(8):
        for q in range(5):
            a(f"buffer_load_dword v{8+5*i+q}, v{4 if i % 4 < 2 else 5}, s[44:47], s{5 if i < 4 else 7} offen offset:{(i%2)*1280 + q*256}")
    a("s_lshl_b32 s9, s2, 2")
    a("s_add_u32 s9, s9, s3")
    a("s_cmp_lg_u32 s9, 0")
    a("s_cbranch_scc1 F_NOEP")
    a("s_or_b32 s60, s60, 1")
    a("v_mov_b32 v50, s60")
    a("v_mov_b32 v51, s61")
    a("v_lshlrev_b32 v52, 3, v1")
    a("buffer_store_dwordx2 v[50:51], v52, s[48:51], 0 offen sc1")
    a.label("F_NOEP")
    srd(a, 52, WS, ST_OFF, 0x8000)
    a("s_lshl_b32 s9, s9, 7")
    a("s_mov_b64 exec, 0xffffffff")
    a("buffer_store_dword v6, v4, s[52:55], s9 offen sc1")
    a("s_mov_b64 exec, -1")
    srd(a, 52, WS, S1_OFF, 16384); srd(a, 56, WS, XQ_OFF, 160*16384)
    a("s_mov_b32 s10, 0x05040100")
    a("s_mov_b32 s11, 0x07060302")
    a("v_lshrrev_b32 v54, 1, v1")
    a(f"v_mul_u32_u24 v54, {XP}, v54")
    a("v_and_b32 v55, 1, v1")
    a("v_lshl_add_u32 v54, v55, 4, v54")
    a("s_lshl_b32 s9, s3, 6")
    a(f"s_add_u32 s9, s9, {STG}")
    a("v_add_u32 v54, s9, v54")
    a("v_lshrrev_b32 v57, 4, v0")
    a("v_and_b32 v58, 15, v0")
    a(f"v_mul_u32_u24 v55, {XP}, v57")
    a("v_lshl_add_u32 v55, v58, 4, v55")
    a(f"v_add_u32 v55, {STG}, v55")
    a("v_lshlrev_b32 v56, 14, v57")
    a("v_lshl_add_u32 v56, v58, 4, v56")
    a("s_lshl_b32 s68, s2, 8")
    a("s_lshl_b32 s6, s4, 5")
    a(f"v_mov_b32 v7, {f2u(1.0/640):#x}")
    a("s_waitcnt vmcnt(0)")
    stamp(a, 0)
    a("buffer_load_dwordx2 v[50:51], v6, s[48:51], 0 offen sc1")
    for g in range(2):
        for q in range(5):
            d = 60 + 4 * (5 * g + q); b = 8 + 20 * g
            a(f"v_perm_b32 v{d}, v{b+5+q}, v{b+q}, s10")
            a(f"v_perm_b32 v{d+1}, v{b+15+q}, v{b+10+q}, s10")
            a(f"v_perm_b32 v{d+2}, v{b+5+q}, v{b+q}, s11")
            a(f"v_perm_b32 v{d+3}, v{b+15+q}, v{b+10+q}, s11")
            a(f"ds_write_b128 v54, v[{d}:{d+3}] offset:{q*32*XP + g*32}")
    a("s_waitcnt lgkmcnt(0)")
    a("s_barrier")
    for kk in range(10):
        a(f"ds_read_b128 v[{60+4*kk}:{63+4*kk}], v55 offset:{kk*16*XP}")
    for kk in range(10):
        a(f"s_add_u32 s69, s68, {kk*16*16384}")
        a(f"s_waitcnt lgkmcnt({9-kk})")
        a(f"buffer_store_dwordx4 v[{60+4*kk}:{63+4*kk}], v56, s[56:59], s69 offen sc1")
    stamp(a, 2)
    X = lambda i, q: 104 + 2 * (5 * i + q)
    SUM = lambda i: 184 + 2 * i
    MEAN = lambda i: 200 + 2 * i
    for i in range(8):
        for q in range(5):
            a(f"v_lshlrev_b32 v{X(i,q)}, 16, v{8+5*i+q}")
            a(f"v_and_b32 v{X(i,q)+1}, 0xffff0000, v{8+5*i+q}")
    for q in range(1, 5):
        for i in range(8):
            s = SUM(i); src = X(i, 0) if q == 1 else s
            a(f"v_pk_add_f32 v[{s}:{s+1}], v[{src}:{src+1}], v[{X(i,q)}:{X(i,q)+1}]")
    for i in range(8): a(f"v_add_f32 v{SUM(i)}, v{SUM(i)}, v{SUM(i)+1}")
    wave_reduce_sum(a, [SUM(i) for i in range(8)])
    for i in range(8): a(f"v_readlane_b32 s{60+i}, v{SUM(i)}, 63")
    for i in range(8): a(f"v_mul_f32 v{MEAN(i)}, s{60+i}, v7")
    for q in range(5):
        for i in range(8):
            x = X(i, q); m = MEAN(i)
            a(f"v_pk_add_f32 v[{x}:{x+1}], v[{x}:{x+1}], v[{m}:{m+1}] op_sel_hi:[1,0] neg_lo:[0,1] neg_hi:[0,1]")
    for q in range(5):
        for i in range(8):
            x = X(i, q); s = SUM(i)
            if q == 0: a(f"v_pk_mul_f32 v[{s}:{s+1}], v[{x}:{x+1}], v[{x}:{x+1}]")
            else: a(f"v_pk_fma_f32 v[{s}:{s+1}], v[{x}:{x+1}], v[{x}:{x+1}], v[{s}:{s+1}]")
    for i in range(8): a(f"v_add_f32 v{SUM(i)}, v{SUM(i)}, v{SUM(i)+1}")
    wave_reduce_sum(a, [SUM(i) for i in range(8)])
    for i in range(8): a(f"v_readlane_b32 s{60+i}, v{SUM(i)}, 63")
    R = lambda i: 16 + i
    G = lambda i: 24 + 4 * (i // 2) + (i % 2)
    steps = [
        lambda i: f"v_mul_f32 v{R(i)}, s{60+i}, v7",
        lambda i: f"v_cvt_pk_bf16_f32 v{R(i)}, v{R(i)}, v{R(i)}",
        lambda i: f"v_lshlrev_b32 v{R(i)}, 16, v{R(i)}",
        lambda i: f"v_add_f32 v{R(i)}, {f2u(1e-5):#x}, v{R(i)}",
        lambda i: f"v_cvt_pk_bf16_f32 v{R(i)}, v{R(i)}, v{R(i)}",
        lambda i: f"v_lshlrev_b32 v{R(i)}, 16, v{R(i)}",
        lambda i: f"v_sqrt_f32 v{R(i)}, v{R(i)}",
        lambda i: f"v_cvt_pk_bf16_f32 v{G(i)}, v{MEAN(i)}, v{R(i)}",
    ]
    for st in steps:
        for i in range(8): a(st(i))
    stamp(a, 1)
    a("s_waitcnt vmcnt(10)")
    epoch_wait(a, "L", 50, 6)
    for k in range(4):
        a(f"v_mov_b32 v{26+4*k}, v50")
        a(f"v_mov_b32 v{27+4*k}, v51")
    a("s_lshl_b32 s9, s3, 6")
    a(f"s_add_u32 s9, s9, {STG - 1024}")
    a("v_mov_b32 v40, s9")
    for k in range(4):
        a(f"ds_write_b128 v40, v[{24+4*k}:{27+4*k}] offset:{16*k}")
    a("v_lshlrev_b32 v41, 4, v1")
    a(f"v_add_u32 v42, {STG - 1024}, v41")
    a("s_lshl_b32 s6, s2, 8")
    a("s_waitcnt vmcnt(0) lgkmcnt(0)")
    stamp(a, 3)
    a("s_barrier")
    a("s_cmp_lg_u32 s3, 0")
    a("s_cbranch_scc1 F_W2")
    a("ds_read_b128 v[44:47], v42")
    a("s_mov_b64 exec, 0xffff")
    a("s_waitcnt lgkmcnt(0)")
    a("buffer_store_dwordx4 v[44:47], v41, s[52:55], s6 offen sc1")
    a("s_mov_b64 exec, -1")
    a("s_branch F_W2")
    a.label("F_SPARE")
    a("buffer_load_dwordx2 v[50:51], v6, s[48:51], 0 offen sc1")
    a("s_waitcnt vmcnt(0)")
    epoch_wait(a, "S", 50, 6)
    a.label("F_W2")
    a("v_readfirstlane_b32 s90, v50")
    a("v_readfirstlane_b32 s91, v51")
    if ENV("F_NOPACK", 0): a("s_endpgm")
    if ENV("F_PSLEEP", 0):
        for _ in range(ENV("F_PSLEEP", 0)): a("s_sleep 32")
    l_w13(a)
    a("s_mul_i32 s9, s2, 3")
    a("s_add_u32 s9, s9, s3")
    a("s_cmp_eq_u32 s3, 3")
    a("s_cselect_b32 s9, 240, s9")
    a("s_min_u32 s9, s9, 240")
    a("s_mov_b32 s40, s42"); a("s_mov_b32 s41, s43")
    w2_ids(a, 9)
    w2_dma_setup(a, 120, 121, 122, 123)
    a("s_cmp_eq_u32 s9, 240")
    a("s_cselect_b32 s50, 0, s50")
    a("s_lshl_b32 s8, s3, 13")
    a("s_add_u32 s8, s8, 40960")
    for i in range(8):
        a(f"s_add_u32 m0, s8, {i*1024}")
        a(f"s_add_u32 s70, s69, {(i>>1)*2560}")
        a(f"buffer_load_dwordx4 v{120 + (i&1)}, s[48:51], s70 offen lds")
    w2_out_setup(a, 0)
    a("s_cmp_eq_u32 s9, 240")
    a("s_cselect_b32 s54, 0, s54")
    a("v_add_u32 v6, s8, v6")
    if fused:
        a("s_waitcnt vmcnt(8)")
        a("s_barrier")
        fused.flag("s2", 0, "W")
    a("s_waitcnt vmcnt(0)")
    for i in range(8):
        for h in range(2):
            a(f"ds_read_b64_tr_b16 v[{16+4*i+2*h}:{17+4*i+2*h}], v6 offset:{h*1024 + i*32}")
    for i in range(8):
        a(f"s_waitcnt lgkmcnt({14-2*i})")
        a(f"buffer_store_dwordx4 v[{16+4*i}:{19+4*i}], v8, s[52:55], s{56+i} offen sc1")

def kgen_stream(m):
    B = 16 + 70 * m; L = m * 4 * WREG; A = 64 * m
    ADT = m < ENV('F_ADT', 2)
    if m == 2: L = 0
    wa, ra = (3, 4) if m < 2 else (234, 235)
    W = lambda t, off: f"ds_write_addtid_b32 v{t} offset:{off}" if ADT else f"ds_write_b32 v{wa}, v{t} offset:{off}"
    o = []
    a = o.append
    for r in range(4): a(f"v_lshlrev_b32 v{B+r}, 16, v{B+r}")
    W1, W8, W128, W16 = B + 4, B + 6, B + 8, B + 10
    tmp = [B + 12 + i for i in range(4)]; ringr = [B + 16 + 2 * i for i in range(4)]
    Q = {q: B + 36 + 2 * q for q in range(17)}
    a(f"v_mul_f32 v{B}, v{B}, v15")
    a(f"v_exp_f32 v{B}, v{B}")
    a(f"v_mul_f32 v{B+1}, v{B+1}, v14")
    a(f"v_mul_f32 v{Q[0]}, v{B+2}, v9")
    a(f"v_mul_f32 v{Q[0]+1}, v{B+3}, v9")
    a(f"v_cvt_pk_bf16_f32 v{B}, v{B}, v{B}")
    a(f"v_mul_f32 v{B+1}, {f2u(INV2PI):#x}, v{B+1}")
    a(f"v_lshlrev_b32 v{B}, 16, v{B}")
    a(f"v_mul_f32 v{B}, v{B}, v14")
    a(f"v_mul_f32 v{B}, v{B}, v15")
    E = B + 12; F = B + 16
    for k, p in enumerate((1.0, 8.0, 128.0)):
        a(f"v_mul_f32 v{F+k}, {f2u(p):#x}, v{B+1}")
        a(f"v_mul_f32 v{E+k}, {f2u(-p):#x}, v{B}")
    for k in range(3):
        a(f"v_fract_f32 v{F+k}, v{F+k}")
        a(f"v_exp_f32 v{E+k}, v{E+k}")
    for k in range(3):
        a(f"v_cos_f32 v{W1+2*k}, v{F+k}")
        a(f"v_sin_f32 v{W1+1+2*k}, v{F+k}")
    for k in range(3):
        a(f"v_mul_f32 v{W1+2*k}, v{W1+2*k}, v{E+k}")
        a(f"v_mul_f32 v{W1+1+2*k}, v{W1+1+2*k}, v{E+k}")
    tctr = [0]
    def put(r, reg, row, val, neg=False):
        t = tmp[tctr[0] % 4]; tctr[0] += 1
        r(f"v_cvt_pk_bf16_f32 v{t}, v{val}, {'-' if neg else ''}v{val+1}")
        r(W(t, L + reg*RS + row*ROWP))
    rb = Rec()
    rb(W(13, L))
    cmul(rb, W16, W8, W8)
    put(rb, 0, 1, W8, True); put(rb, 0, 2, W16, True)
    ring = {1: W8, 2: W16}
    for b in range(3, 16):
        d = ringr[b % 4]
        cmul(rb, d, ring[b-2], W16); ring[b] = d
        put(rb, 0, b, d, True)
    wc = {1: W1}; rw = Rec()
    for c, (x, y) in ((2, (1, 1)), (3, (2, 1)), (4, (2, 2)), (5, (4, 1)), (6, (4, 2)), (7, (4, 3))):
        wc[c] = B + 24 + 2 * (c - 2); cmul(rw, wc[c], wc[x], wc[y])
    rq = Rec()
    for q in range(1, 17): cmul(rq, Q[q], Q[q-1], W128)
    o += interleave(rb.l, rw.l + rq.l)
    def rd(which, reg):
        for s in range(4):
            a(("rd", (m, which), f"ds_read_b128 a[{A+16*which+4*s}:{A+16*which+4*s+3}], v{ra} offset:{L + reg*RS + s*64}"))
    def mf(t):
        for s in range(4):
            c = f"a[{192+4*t}:{195+4*t}]"
            a(("mf", (m, t + 1), f"v_mfma_f32_16x16x32_bf16 {c}, a[{A+16*(t+1)+4*s}:{A+16*(t+1)+4*s+3}], a[{A+4*s}:{A+4*s+3}], {c}"))
    rd(0, 0)
    pc = [0]
    def run(jobs):
        for reg, row, x, y in jobs:
            if y is None: put(a, reg, row, x); continue
            d = ringr[pc[0] % 4]; pc[0] += 1
            cmul(a, d, x, y); put(a, reg, row, d)
    run([(1, 8*ap + c, Q[ap], wc[c] if c else None) for ap in range(2) for c in range(8)])
    rd(1, 1)
    run([(0, 4*ap + c, Q[2+ap], wc[2*c] if c else None) for ap in range(2) for c in range(4)])
    mf(0)
    run([(0, 8 + 2*ap + c, Q[4+ap], wc[4] if c else None) for ap in range(4) for c in range(2)])
    rd(2, 0)
    for q in range(8, 17): put(a, 1, q - 8, Q[q])
    rd(3, 1)
    mf(1); mf(2)
    return o

def kgen_all(a, hooks):
    ds = Cnt(a, "lgkmcnt", 15)
    streams = [kgen_stream(m) for m in range(3)]
    lag = ENV("F_LAG", 12)
    seq = []
    n = max(len(s) + i * lag for i, s in enumerate(streams))
    for k in range(n):
        for i, s in enumerate(streams):
            j = k - i * lag
            if 0 <= j < len(s):
                if j == 0 and i: seq.append(("vm", i))
                seq.append(s[j])
    for idx, e in enumerate(seq):
        if idx in hooks: hooks[idx]()
        if isinstance(e, tuple):
            if e[0] == "vm": a(f"s_waitcnt vmcnt({8 - 4*e[1]})"); continue
            if e[0] == "rd": a(e[2]); ds.issue(e[1]); continue
            ds.wait(e[1]); a(e[2]); continue
        a(e)
        if e.startswith("ds_"): ds.issue("w")
    return len(seq)

NB = 120
def st_loads(a):
    a(f"buffer_load_dwordx2 v[{NB}:{NB+1}], v229, s[48:51], 0 offen sc1")
    for g in range(2):
        b = NB + 4 + 12 * g
        a(f"buffer_load_dwordx4 v[{b}:{b+3}], v228, s[44:47], {'0' if g == 0 else 's15'} offen sc1")
        a(f"buffer_load_dwordx4 v[{b+4}:{b+7}], v228, s[44:47], {'0' if g == 0 else 's15'} offen offset:16 sc1")

def conv_wg(a, fused=None):
    a(f"s_sub_u32 s5, s2, {N_LN}")
    a("s_and_b32 s6, s5, 7")
    a("s_mul_i32 s6, s6, 20")
    a("s_lshr_b32 s4, s5, 3")
    a("s_add_u32 s4, s4, s6")
    a("s_lshl_b32 s7, s4, 2")
    a("s_add_u32 s7, s7, s3")
    a("s_mul_i32 s8, s7, 384")
    a("v_lshlrev_b32 v2, 1, v1")
    a("v_add_u32 v2, s8, v2")
    a("s_lshr_b32 s9, s7, 1")
    a("s_lshl_b32 s9, s9, 2")
    a("s_lshl_b32 s12, s4, 3")
    a("s_waitcnt lgkmcnt(0)")
    a("s_load_dword s10, s[26:27], s9")
    a("s_load_dwordx2 s[68:69], s[28:29], s12")
    for m in range(3):
        for r in range(4):
            a(f"global_load_ushort v{16+70*m+r}, v2, s[{18+2*r}:{19+2*r}] offset:{128*m}")
    srd(a, 44, WS, S1_OFF, 16384); srd(a, 48, 40, 0, 8); srd(a, 56, WS, H_OFF, SZ_X); srd(a, 36, WS, XQ_OFF, 160*16384)
    a("s_mul_i32 s11, s3, 1536")
    a(f"s_add_u32 s11, s11, {TB}")
    a(f"s_mul_i32 s13, s3, {KP}")
    a(f"s_add_u32 s13, s13, {KB}")
    a("v_lshlrev_b32 v2, 4, v1")
    a("v_add_u32 v226, s13, v2")
    a("v_lshrrev_b32 v227, 3, v0")
    a("v_lshlrev_b32 v227, 8, v227")
    a("s_bfe_u32 s9, s4, 0x20002")
    a("s_lshl_b32 s9, s9, 6")
    a("v_add_u32 v227, s9, v227")
    a("v_lshlrev_b32 v228, 5, v0")
    a("v_mov_b32 v229, 0")
    a("s_mov_b32 s15, 8192")
    for i in range(12): a(f"v_accvgpr_write_b32 a{192+i}, 0")
    a("v_and_b32 v5, 15, v1")
    a("v_lshrrev_b32 v6, 4, v1")
    a("v_lshrrev_b32 v236, 1, v6")
    a("v_lshlrev_b32 v236, 8, v236")
    a("v_and_b32 v7, 1, v6")
    a("v_lshl_add_u32 v236, v7, 3, v236")
    a("v_lshl_add_u32 v236, v5, 4, v236")
    a("v_add_u32 v236, s11, v236")
    a("v_cmp_gt_u32 vcc, 2, v6")
    a("v_lshlrev_b32 v237, 3, v5")
    a("v_lshlrev_b32 v7, 2, v5")
    a("v_mov_b32 v238, 64")
    a("v_cndmask_b32 v237, v7, v237, vcc")
    a("v_cndmask_b32 v238, v238, 4, vcc")
    a("v_lshl_add_u32 v237, v6, 7, v237")
    a("v_add_u32 v237, s11, v237")
    a("v_add_u32 v238, v238, v237")
    a("v_lshlrev_b32 v239, 1, v5")
    a("v_lshl_add_u32 v239, v6, 7, v239")
    a("v_add_u32 v239, s11, v239")
    a("v_cmp_gt_u32 s[6:7], 32, v1".replace("s[6:7]", "vcc"))
    a("v_lshlrev_b32 v240, 4, v1")
    a("v_lshlrev_b32 v7, 3, v1")
    a("v_add_u32 v7, 256, v7")
    a("v_cndmask_b32 v240, v7, v240, vcc")
    a("v_add_u32 v240, s11, v240")
    a("v_lshlrev_b32 v241, 2, v1")
    a("v_add_u32 v241, s11, v241")
    a("v_lshlrev_b32 v242, 1, v1")
    a("v_add_u32 v242, s11, v242")
    a("v_mov_b32 v7, 0x01000100"); a("v_mov_b32 v8, 0x03020100"); a("v_cndmask_b32 v243, v7, v8, vcc")
    a("v_mov_b32 v7, 0x05040302"); a("v_mov_b32 v8, 0x07060504"); a("v_cndmask_b32 v244, v7, v8, vcc")
    a("v_mov_b32 v7, 0x01000100"); a("v_cndmask_b32 v245, v7, v8, vcc")
    a("v_and_b32 v7, 1, v1")
    a("v_cmp_eq_u32 vcc, 0, v7")
    a("v_mov_b32 v7, 0x05040504"); a("v_mov_b32 v8, 0x05040100"); a("v_cndmask_b32 v246, v7, v8, vcc")
    a("v_lshrrev_b32 v10, 4, v1")
    a("v_bfe_u32 v11, v1, 2, 2")
    a("v_and_b32 v12, 3, v1")
    a("v_lshlrev_b32 v247, 6, v10")
    a("v_lshl_add_u32 v247, v11, 3, v247")
    a("v_lshl_add_u32 v247, v12, 5, v247")
    a("v_add_u32 v247, s13, v247")
    a("s_lshr_b32 s14, s3, 1")
    a("s_and_b32 s12, s3, 1")
    a("s_lshl_b32 s12, s12, 3")
    for h in range(2):
        a(f"v_add_u32 v6, {44 - 4*h}, v12")
        a("v_sub_u32 v6, v6, v11")
        a("v_lshlrev_b32 v7, 3, v10")
        a("v_sub_u32 v6, v6, v7")
        a("v_lshrrev_b32 v7, 2, v6")
        a("v_add_u32 v7, s14, v7")
        a("v_and_b32 v7, 3, v7")
        a("v_lshlrev_b32 v6, 6, v6")
        a("v_lshl_add_u32 v6, v7, 4, v6")
        a(f"v_add_u32 v{248+h}, s12, v6")
    a("v_lshlrev_b32 v250, 1, v1")
    a("v_add_u32 v250, s13, v250")
    a("v_lshrrev_b32 v6, 2, v0")
    a("v_lshlrev_b32 v7, 6, v0")
    a(f"v_add_u32 v7, {UB + UPAD}, v7")
    for n in range(4):
        a(f"v_add_u32 v8, {n}, v6")
        a("v_and_b32 v8, 3, v8")
        a(f"v_lshl_add_u32 v{251+n}, v8, 4, v7")
    a(f"s_mul_i32 s8, s3, {WREG}")
    a(f"s_add_u32 s8, s8, {SB}")
    a("s_mov_b32 s14, s8")
    a("v_lshlrev_b32 v3, 2, v1")
    a("v_add_u32 v3, s8, v3")
    a("v_and_b32 v4, 15, v1")
    a(f"v_mul_u32_u24 v4, {ROWP}, v4")
    a("v_lshrrev_b32 v5, 4, v1")
    a("v_lshl_add_u32 v4, v5, 4, v4")
    a("v_add_u32 v4, s8, v4")
    a(f"v_add_u32 v234, {8*WREG}, v3")
    a(f"v_add_u32 v235, {8*WREG}, v4")
    a("s_mov_b32 m0, s14")
    a("v_mov_b32 v7, 0")
    a("v_lshlrev_b32 v6, 3, v0")
    a("v_mov_b32 v8, 0")
    a(f"ds_write_b64 v6, v[7:8] offset:{UB}".replace("v[7:8]", "v[6:7]") if False else "v_mov_b32 v9, 0")
    a(f"ds_write_b64 v6, v[8:9] offset:{UB}")
    a("v_and_b32 v6, 31, v1")
    a("v_lshlrev_b32 v6, 2, v6")
    a("v_add_u32 v6, s13, v6")
    a("ds_write_b32 v6, v7")
    a("s_waitcnt lgkmcnt(0)")
    a("s_lshl_b32 s9, s10, 16")
    a("s_and_b32 s10, s10, 0xffff0000")
    a("s_bitcmp1_b32 s7, 0")
    a("s_cselect_b32 s10, s10, s9")
    for e in range(2):
        a(f"s_lshl_b32 s{64+2+2*e}, s{68+e}, 16".replace(f"s{66+2*e}", f"s{84+2*e}"))
        a(f"s_and_b32 s{85+2*e}, s{68+e}, 0xffff0000")
    a(f"v_mov_b32 v15, {f2u(LOG2E):#x}")
    a("v_mul_f32 v14, s10, v15")
    a("v_exp_f32 v14, v14")
    a("v_cvt_pk_bf16_f32 v14, v14, v14")
    a("v_lshlrev_b32 v14, 16, v14")
    a("v_add_f32 v9, v14, v14")
    a("v_mov_b32 v13, 0x3f80")
    if ENV("F_ST5", 0): stamp(a, 6)
    a("s_waitcnt vmcnt(8)")
    stamp(a, 0)
    if os.environ.get("F_DROP"): a.drop = os.environ["F_DROP"].split(",")
    if os.environ.get("F_DROP"): a.drop = os.environ["F_DROP"].split(",")
    kgen_all(a, {})
    a.drop = None
    a.drop = None
    stamp(a, 1)
    for i in range(12): a(f"v_accvgpr_read_b32 v{16+i}, a{192+i}")
    st_loads(a)
    for t in range(3):
        a(f"v_cvt_pk_bf16_f32 v{28+2*t}, v{16+4*t}, v{17+4*t}")
        a(f"v_cvt_pk_bf16_f32 v{29+2*t}, v{18+4*t}, v{19+4*t}")
    a("ds_write_b64 v236, v[28:29]")
    a("ds_write_b32 v237, v30 offset:512")
    a("ds_write_b32 v238, v31 offset:512")
    a("ds_write_b16 v239, v32 offset:1024")
    a("ds_write_b16_d16_hi v239, v32 offset:1056")
    a("ds_write_b16 v239, v33 offset:1088")
    a("ds_write_b16_d16_hi v239, v33 offset:1120")
    a("ds_read2_b64 v[40:43], v240 offset0:0 offset1:1")
    a("ds_read2_b32 v[44:45], v241 offset0:192 offset1:193")
    for r in range(2):
        a(f"ds_read_u16 v{46+2*r}, v242 offset:{1024 + 128*r}")
        a(f"ds_read_u16 v{47+2*r}, v242 offset:{1026 + 128*r}")
    for i, r in enumerate((247, 248, 249, 250, 251, 252, 253, 254)): a(f"v_mov_b32 v{16+i}, v{r}")
    a("v_mov_b32 v3, v10"); a("v_mov_b32 v4, v11"); a("v_mov_b32 v5, v12")
    a("s_mov_b32 s8, 0x01000100")
    a("s_mov_b32 s9, 0x03020100")
    a("s_mov_b32 s10, 0x03020302")
    a("s_mov_b32 s12, 0x05040302")
    a("v_cmp_gt_u32 vcc, 32, v1")
    a("s_waitcnt lgkmcnt(5)")
    a("v_perm_b32 v52, v40, v40, v243")
    a("v_perm_b32 v53, v41, v40, v244")
    a("v_perm_b32 v54, v42, v41, v245")
    a("v_perm_b32 v55, v42, v41, s12")
    a("v_cndmask_b32 v55, v55, v43, vcc")
    a("ds_write_b128 v226, v[52:55] offset:128")
    a("s_waitcnt lgkmcnt(5)")
    a("v_perm_b32 v56, v44, v44, s8")
    a("v_mov_b32 v57, v44")
    a("v_perm_b32 v58, v44, v44, s10")
    a("v_perm_b32 v59, v45, v45, s8")
    a("ds_write_b128 v226, v[56:59] offset:1152")
    a("s_waitcnt lgkmcnt(2)")
    for r in range(2):
        d = 60 + 4 * r
        a(f"v_perm_b32 v{d}, v{46+2*r}, v{46+2*r}, s8")
        a(f"v_mov_b32 v{d+1}, v{d}")
        a(f"v_perm_b32 v{d+2}, v{47+2*r}, v{46+2*r}, v246")
        a(f"v_perm_b32 v{d+3}, v{47+2*r}, v{47+2*r}, s8")
        a(f"ds_write_b128 v226, v[{d}:{d+3}] offset:{128 + (2+r)*1024}")
    FR = 24; GR = 88; NG = 8; AR = 120; T2 = 248
    for Q in range(15, -1, -1):
        for h in range(2):
            a(f"ds_read_b64_tr_b16 v[{FR+4*Q+2*h}:{FR+4*Q+2*h+1}], v16 offset:{32 + 256*Q + 32*h}")
    a("s_lshl_b32 s9, s4, 14")
    a("s_add_u32 s12, s9, 8192")
    a("s_mov_b32 s52, 0")
    a.label("F_STW")
    a("s_waitcnt vmcnt(0)")
    a(f"v_cmp_eq_u32 vcc, 0, v{NB}")
    for off in (6, 10, 18, 22):
        a(f"v_cmp_ne_u64 s[10:11], v[{NB}:{NB+1}], v[{NB+off}:{NB+off+1}]")
        a("s_or_b64 vcc, vcc, s[10:11]")
    a("s_cbranch_vccz F_STOK")
    a("s_add_u32 s52, s52, 1")
    a("s_cmp_ge_u32 s52, 0x8000")
    a("s_cbranch_scc1 F_STOK")
    a(f"s_sleep {ENV('F_SLEEP', 2)}")
    st_loads(a)
    a("s_branch F_STW")
    a.label("F_STOK")
    stamp(a, 2)
    a(f"v_readfirstlane_b32 s90, v{NB}")
    a(f"v_readfirstlane_b32 s91, v{NB+1}")
    XR = 152
    for g in range(2):
        for hh in range(2):
            a(f"buffer_load_dwordx4 v[{XR+8*g+4*hh}:{XR+8*g+4*hh+3}], v228, s[36:39], s{9 if g == 0 else 12} offen offset:{16*hh} sc1")
    RSr = 176; NM = 184; X = lambda g, c, h: 192 + 16 * g + 4 * c + 2 * h; U = lambda c, h: 224 + 4 * c + 2 * h
    Gs = lambda g, i: NB + 4 + 12 * g + (0, 1, 4, 5)[i]
    for g in range(2):
        for i in range(4): a(f"v_and_b32 v{RSr+4*g+i}, 0xffff0000, v{Gs(g,i)}")
    for i in range(8): a(f"v_rcp_f32 v{RSr+i}, v{RSr+i}")
    for g in range(2):
        for i in range(4): a(f"v_lshlrev_b32 v{NM+4*g+i}, 16, v{Gs(g,i)}")
    for i in range(8): a(f"v_mul_f32 v{NM+i}, -v{NM+i}, v{RSr+i}")
    a("s_mov_b32 s70, 0"); a("s_mov_b32 s71, 0x80000000")
    a("s_mov_b32 s72, 0"); a("s_mov_b32 s73, 0xc0000000")
    a("s_mov_b32 s74, 0"); a("s_mov_b32 s75, 0xe0000000")
    for g in range(2):
        a(f"s_waitcnt vmcnt({2 - 2*g})")
        for c in range(4):
            for h in range(2):
                a(f"v_lshlrev_b32 v{X(g,c,h)}, 16, v{XR+8*g+2*c+h}")
                a(f"v_and_b32 v{X(g,c,h)+1}, 0xffff0000, v{XR+8*g+2*c+h}")
        for c in range(4):
            for h in range(2):
                a(f"v_pk_fma_f32 v[{U(c,h)}:{U(c,h)+1}], v[{X(g,c,h)}:{X(g,c,h)+1}], v[{RSr+4*g+2*h}:{RSr+4*g+2*h+1}], v[{NM+4*g+2*h}:{NM+4*g+2*h+1}]")
        O = 240
        for c in range(4):
            for h in range(2):
                a(f"v_cvt_pk_bf16_f32 v{O+2*c+h}, v{U(c,h)}, v{U(c,h)+1}")
            if c % 2: a(f"ds_write_b128 v{20+c//2}, v[{O+2*c-2}:{O+2*c+1}] offset:{g*16384}")
        for c in range(4):
            o = c % 2
            for h in range(2):
                a(f"v_pk_fma_f32 v[{X(g,c,h)}:{X(g,c,h)+1}], v[{U(c,h)}:{U(c,h)+1}], s[{84+2*(c//2)}:{85+2*(c//2)}], v[{X(g,c,h)}:{X(g,c,h)+1}] op_sel:[0,{o},0] op_sel_hi:[1,{o},1]")
        for c in range(4):
            for h in range(2):
                a(f"v_cvt_pk_bf16_f32 v{XR+8*g+2*c+h}, v{X(g,c,h)}, v{X(g,c,h)+1}")
            if c % 2: a(f"ds_write_b128 v{22+c//2}, v[{XR+8*g+2*c-2}:{XR+8*g+2*c+1}] offset:{g*16384}")
    a("s_waitcnt lgkmcnt(0)")
    stamp(a, 3)
    a("s_barrier")
    ds = Cnt(a, "lgkmcnt", 15)
    acc = lambda T: AR + 4 * T
    def gread(d):
        g = GR + 4 * (d % NG)
        for h in range(2):
            a(f"ds_read_b64_tr_b16 v[{g+2*h}:{g+2*h+1}], v{17+h} offset:{UB + 1024*d}"); ds.issue(("G", d))
    PDG = 6
    for d in range(PDG): gread(d)
    started = set(); pend = []
    def combine(T):
        t = T2 + 4 * (T % 2); D = acc(T); out = []
        for e, m in ((3, 74), (2, 72), (1, 70)):
            prev = f"v{acc(T-1)+e}" if T > 0 else "0"
            out.append(f"v_cndmask_b32 v{t+e}, v{D+e}, {prev}, s[{m}:{m+1}]")
        out.append(f"v_add_f32_dpp v{t+2}, v{t+3}, v{t+2} wave_ror:1 row_mask:0xf bank_mask:0xf")
        out.append(f"v_add_f32_dpp v{t+1}, v{t+2}, v{t+1} wave_ror:1 row_mask:0xf bank_mask:0xf")
        out.append(f"v_add_f32_dpp v{t}, v{t+1}, v{D} wave_ror:1 row_mask:0xf bank_mask:0xf")
        out.append(f"v_cvt_pk_bf16_f32 v{t}, v{t}, v{t}")
        out.append(f"ds_write_b16 v19, v{t} offset:{128 + T*128}")
        return out
    def side(n):
        for _ in range(n):
            if pend:
                t = pend.pop(0); a(t)
                if t.startswith("ds_"): ds.issue("Y")
    def run_deltas(d0, d1, hook=None):
        for d in range(d0, d1):
            ds.wait(("G", d))
            g = GR + 4 * (d % NG)
            for T in range(d, 32, 2):
                Q = (T - d) // 2
                c = f"v[{acc(T)}:{acc(T)+3}]"
                a(f"v_mfma_f32_16x16x32_bf16 {c}, v[{FR+4*Q}:{FR+4*Q+3}], v[{g}:{g+3}], {c if d >= 2 else 0}")
                if not (hook and hook()): side(1 if d < 20 else 2)
            if d + PDG < 32: gread(d + PDG)
            if d >= 1: pend.extend(combine(d - 1))
        if d1 == 32:
            pend.extend(combine(31)); side(200)
    if not fused:
        run_deltas(0, 32)
    else:
        D1 = ENV("F_D1", 6); D2 = ENV("F_D2", 10)
        fused.setup()
        run_deltas(0, D1)
        fused.poll_issue()
        run_deltas(D1, D2)
        fused.check("F_NOW13")
        sv = (list(pend), list(ds.q))
        cnt = [0]
        def hook():
            cnt[0] += 1
            return cnt[0] % ENV("F_WGAP", 4) == 0 and fused.load_one()
        run_deltas(D2, 32, hook)
        a("s_branch F_CONVDONE")
        a.label("F_NOW13")
        pend[:] = sv[0]; ds.q = sv[1]
        a("s_mov_b32 s33, 0")
        run_deltas(D2, 32)
        a.label("F_CONVDONE")
    a(f"v_mul_u32_u24 v16, {KP}, v4")
    a("v_lshl_add_u32 v16, v3, 5, v16")
    a("v_lshl_add_u32 v16, v5, 3, v16")
    a("s_lshl_b32 s13, s3, 7")
    a(f"s_add_u32 s13, s13, {KB}")
    a("v_add_u32 v16, s13, v16")
    a("v_lshl_add_u32 v6, v3, 2, v5")
    a("v_lshlrev_b32 v6, 6, v6")
    a("v_and_b32 v7, 1, v4")
    a("v_lshl_add_u32 v6, v7, 3, v6")
    a("s_lshl_b32 s12, s3, 10")
    a("v_add_u32 v6, s12, v6")
    a("v_lshrrev_b32 v7, 1, v4")
    a("v_add_u32 v7, v7, v3")
    a("v_add_u32 v7, 2, v7")
    a("v_and_b32 v7, 3, v7")
    a("v_lshl_add_u32 v17, v7, 4, v6")
    a("v_mul_u32_u24 v19, 20480, v3")
    a("v_and_b32 v6, 15, v1")
    a("v_lshl_add_u32 v19, v6, 3, v19")
    a("s_mul_i32 s13, s3, 81920")
    a("s_lshr_b32 s14, s4, 3")
    a("s_lshl_b32 s14, s14, 10")
    a("s_add_u32 s13, s13, s14")
    a("s_and_b32 s14, s4, 1")
    a("s_lshl_b32 s14, s14, 9")
    a("s_add_u32 s13, s13, s14")
    a("s_bfe_u32 s14, s4, 0x20001")
    a("s_lshl_b32 s14, s14, 7")
    a("s_add_u32 s13, s13, s14")
    a("s_waitcnt lgkmcnt(0)")
    stamp(a, 4)
    a("s_barrier")
    for i in range(8):
        a(f"ds_read_b64_tr_b16 v[{24+4*i}:{25+4*i}], v16 offset:{128 + i*512}")
        a(f"ds_read_b64_tr_b16 v[{26+4*i}:{27+4*i}], v17 offset:{UB + UPAD + i*4096}")
    HSC = " sc1" if (ENV("F_HSC", 0) or fused) else ""
    for i in range(8):
        Y = 24 + 4 * i; A = 64 + 8 * i
        a(f"s_waitcnt lgkmcnt({14 - 2*i})")
        for q in range(2):
            a(f"v_lshlrev_b32 v{A+2*q}, 16, v{Y+q}")
            a(f"v_and_b32 v{A+2*q+1}, 0xffff0000, v{Y+q}")
            a(f"v_lshlrev_b32 v{A+4+2*q}, 16, v{Y+2+q}")
            a(f"v_and_b32 v{A+4+2*q+1}, 0xffff0000, v{Y+2+q}")
        for q in range(2):
            a(f"v_pk_add_f32 v[{A+2*q}:{A+2*q+1}], v[{A+2*q}:{A+2*q+1}], v[{A+4+2*q}:{A+4+2*q+1}]")
        a(f"s_add_u32 s14, s13, {i*4*81920}")
        for q in range(2):
            a(f"v_cvt_pk_bf16_f32 v{Y+q}, v{A+2*q}, v{A+2*q+1}")
        a(f"buffer_store_dwordx2 v[{Y}:{Y+1}], v19, s[56:59], s14 offen{HSC}")
```

```python
from asmlib import *
from layout import *
import os

N_B, N_A, N_PACK = 128, 640, 480
ID_A = 0; ID_B = N_A; K1_GRID = N_A + N_B
K1_LDS = 27648 + 8192
PK = 27648

def srd(a, r, base, off, size):
    if off:
        a(f"s_add_u32 s{r}, s{base}, {off:#x}")
        a(f"s_addc_u32 s{r+1}, s{base+1}, 0")
    else:
        a(f"s_mov_b32 s{r}, s{base}")
        a(f"s_mov_b32 s{r+1}, s{base+1}")
    a(f"s_mov_b32 s{r+2}, {size:#x}")
    a(f"s_mov_b32 s{r+3}, 0x20000")

def cmul(a, d, x, y):
    a(f"v_pk_mul_f32 v[{d}:{d+1}], v[{x}:{x+1}], v[{y}:{y+1}] op_sel:[0,0] op_sel_hi:[0,1]")
    a(f"v_pk_fma_f32 v[{d}:{d+1}], v[{x}:{x+1}], v[{y}:{y+1}], v[{d}:{d+1}] op_sel:[1,1,0] op_sel_hi:[1,0,1] neg_lo:[1,0,0]")

def interleave(*seqs):
    out = []; seqs = [list(s) for s in seqs]
    while any(seqs):
        for s in seqs:
            if s: out.append(s.pop(0))
    return out

class Rec:
    def __init__(self): self.l = []
    def __call__(self, t): self.l.append(t)

def wave_reduce_sum(a, regs):
    for ctl in ("row_shr:1", "row_shr:2", "row_shr:4", "row_shr:8"):
        for r in regs:
            a(f"v_add_f32_dpp v{r}, v{r}, v{r} {ctl} row_mask:0xf bank_mask:0xf bound_ctrl:0")
    for r in regs:
        a(f"v_add_f32_dpp v{r}, v{r}, v{r} row_bcast:15 row_mask:0xa bank_mask:0xf")
    for r in regs:
        a(f"v_add_f32_dpp v{r}, v{r}, v{r} row_bcast:31 row_mask:0xc bank_mask:0xf")

def transpose8(a, src, dst_fn):
    for c in range(8):
        d, cb = dst_fn(c)
        sel = "s90" if c % 2 == 0 else "s91"
        for i in range(4):
            a(f"v_perm_b32 v{d+i}, v{src[2*i+1] + c//2}, v{src[2*i] + c//2}, {sel}")
        cb()

def gen_k1(a):
    a.raw(kernel_header("prep_kernel"))
    a(f"s_cmp_ge_u32 s2, {K1_GRID}")
    a("s_cbranch_scc1 K1_END")
    a("s_load_dwordx16 s[16:31], s[0:1], 0")
    a("s_load_dwordx8 s[32:39], s[0:1], 64")
    a("s_load_dwordx2 s[40:41], s[0:1], 104")
    a("v_lshrrev_b32 v2, 6, v0")
    a("v_and_b32 v1, 63, v0")
    a("s_mov_b32 s90, 0x05040100")
    a("v_readfirstlane_b32 s3, v2")
    a("s_mov_b32 s91, 0x07060302")
    a(f"s_cmp_lt_u32 s2, {ID_B}")
    a("s_cbranch_scc1 K1_A")
    import os
    only = os.environ.get("K1_ONLY", "AB")
    for nm, fn in (("B", role_b), ("A", role_a)):
        if nm != "B": a.label("K1_" + nm)
        if nm not in only: a("s_endpgm")
        else: fn(a)
    a.label("K1_END")
    a("s_endpgm")

SC = lambda n: " sc1" if int(os.environ.get(n, "1")) else ""
def w2_ids(a, st):
    m5 = magic(5, 240, 16); m3 = magic(3, 64, 16)
    a(f"s_mul_i32 s65, s{st}, {m5}")
    a("s_lshr_b32 s65, s65, 16")
    a("s_mul_i32 s66, s65, 5")
    a(f"s_sub_u32 s66, s{st}, s66")
    a(f"s_mul_i32 s67, s65, {m3}")
    a("s_lshr_b32 s67, s67, 16")
    a("s_mul_i32 s68, s67, 3")
    a("s_sub_u32 s68, s65, s68")

def w2_dma_setup(a, va, vb, t0, t1):
    a(f"v_lshrrev_b32 v{t0}, 4, v1")
    a(f"v_and_b32 v{t1}, 1, v{t0}")
    a(f"v_lshrrev_b32 v{t0}, 1, v{t0}")
    a(f"v_lshl_add_u32 v{va}, v{t0}, 3, v{t1}")
    a("s_mul_i32 s69, s68, 24")
    a("s_lshl_b32 s70, s68, 3")
    a("s_add_u32 s70, s70, 72")
    a("s_add_u32 s71, s69, 16")
    a(f"v_cmp_eq_u32 vcc, 0, v{t0}")
    a(f"v_mov_b32 v{vb}, s71")
    a(f"v_mov_b32 v{t0}, s70")
    a(f"v_add_u32 v{va}, s69, v{va}")
    a(f"v_cndmask_b32 v{vb}, v{t0}, v{vb}, vcc")
    a(f"v_add_u32 v{vb}, v{vb}, v{t1}")
    a(f"v_and_b32 v{t0}, 15, v1")
    a(f"v_lshlrev_b32 v{t0}, 4, v{t0}")
    a(f"v_mul_u32_u24 v{va}, 1280, v{va}")
    a(f"v_mul_u32_u24 v{vb}, 1280, v{vb}")
    a(f"v_add_u32 v{va}, v{va}, v{t0}")
    a(f"v_add_u32 v{vb}, v{vb}, v{t0}")
    a("s_mul_i32 s69, s67, 122880")
    a("s_lshl_b32 s70, s66, 8")
    a("s_add_u32 s69, s69, s70")
    srd(a, 48, 36, 0, 1966080)

def w2_out_setup(a, lbase):
    m5 = magic(5, 240, 16)
    a("v_lshrrev_b32 v6, 4, v1")
    a("v_bfe_u32 v7, v1, 2, 2")
    a("v_lshl_add_u32 v6, v6, 3, v7")
    a("v_lshlrev_b32 v6, 8, v6")
    a("v_and_b32 v7, 3, v1")
    a("v_lshl_add_u32 v6, v7, 3, v6")
    a("v_lshlrev_b32 v8, 4, v1")
    a("s_lshl_b32 s11, s66, 3")
    a("s_mul_i32 s14, s65, 5120")
    for i in range(8):
        a(f"s_add_u32 s12, s11, {i}")
        a(f"s_mul_i32 s13, s12, {m5}")
        a("s_lshr_b32 s13, s13, 16")
        a(f"s_mul_i32 s13, s13, {245760 - 5120}")
        a("s_lshl_b32 s12, s12, 10")
        a("s_add_u32 s13, s13, s12")
        a(f"s_add_u32 s{56+i}, s13, s14")
    srd(a, 52, 40, W2_OFF, 1966080)

def w2_out(a, lbase, vtr=6, vst=8, R=16):
    for i in range(8):
        for h in range(2):
            a(f"ds_read_b64_tr_b16 v[{R+4*i+2*h}:{R+1+4*i+2*h}], v{vtr} offset:{lbase + h*1024 + i*32}")
    for i in range(8):
        a(f"s_waitcnt lgkmcnt({14-2*i})")
        a(f"buffer_store_dwordx4 v[{R+4*i}:{R+3+4*i}], v{vst}, s[52:55], s{56+i} offen{SC('P_WSC')}")

def pack13_ids(a):
    m24 = magic(24, 480, 16)
    a(f"s_mul_i32 s65, s2, {m24}")
    a("s_lshr_b32 s65, s65, 16")
    a("s_mul_i32 s66, s65, 24")
    a("s_sub_u32 s66, s2, s66")

def pack_dma_setup(a):
    a(f"s_cmp_ge_u32 s2, {N_PACK}")
    a("s_cbranch_scc1 K1_DW2")
    pack13_ids(a)
    a("v_lshrrev_b32 v111, 3, v1")
    a("v_mul_u32_u24 v111, 3072, v111")
    a("v_and_b32 v112, 7, v1")
    a("v_lshl_add_u32 v111, v112, 4, v111")
    a("v_mov_b32 v112, v111")
    a("s_mul_i32 s69, s65, 98304")
    a("s_lshl_b32 s68, s66, 7")
    a("s_add_u32 s69, s69, s68")
    a("s_cmp_eq_u32 s3, 0")
    a("s_cselect_b32 s48, s32, s34")
    a("s_cselect_b32 s49, s33, s35")
    a("s_mov_b32 s50, 1966080")
    a("s_mov_b32 s51, 0x20000")
    a("s_mov_b32 s72, 24576")
    a("s_mov_b32 s73, 49152")
    a("s_branch K1_DOK")
    a.label("K1_DW2")
    a(f"s_sub_u32 s64, s2, {N_PACK}")
    w2_ids(a, 64)
    w2_dma_setup(a, 111, 112, 113, 114)
    a("s_mul_i32 s70, s3, 5120")
    a("s_add_u32 s69, s69, s70")
    a("s_mov_b32 s72, 0")
    a("s_mov_b32 s73, 2560")
    a.label("K1_DOK")
    a("s_lshl_b32 s74, s3, 12")
    a(f"s_add_u32 s74, s74, {PK}")

def pack_dma(a):
    for r in range(4):
        a(f"s_add_u32 m0, s74, {r*1024}")
        if r == 1 or r == 3: a("s_add_u32 s70, s69, s72")
        if r == 2: a("s_add_u32 s69, s69, s73")
        a(f"buffer_load_dwordx4 v{111 + (r&1)}, s[48:51], s{70 if r & 1 else 69} offen lds")

def pack13_out_setup(a):
    pack13_ids(a)
    a("v_lshrrev_b32 v6, 4, v1")
    a("v_bfe_u32 v7, v1, 2, 2")
    a("v_lshl_add_u32 v6, v6, 3, v7")
    a("v_lshlrev_b32 v6, 7, v6")
    a("v_and_b32 v7, 1, v1")
    a("v_lshl_add_u32 v6, v7, 12, v6")
    a("v_bfe_u32 v7, v1, 1, 1")
    a("v_lshl_add_u32 v6, v7, 3, v6")
    a("v_bfe_u32 v8, v1, 3, 1")
    a("v_lshlrev_b32 v8, 3, v8")
    a("v_bfe_u32 v9, v1, 1, 1")
    a("v_lshl_add_u32 v8, v9, 2, v8")
    a("v_and_b32 v9, 1, v1")
    a("v_add_u32 v8, v8, v9")
    a("v_bfe_u32 v9, v1, 2, 1")
    a("v_lshl_add_u32 v8, v9, 1, v8")
    a("v_lshrrev_b32 v9, 4, v1")
    a("v_lshlrev_b32 v9, 8, v9")
    a("v_lshl_add_u32 v8, v8, 4, v9")
    m3 = magic(3, 256, 16)
    a("s_lshl_b32 s11, s66, 3")
    a("s_mul_i32 s14, s65, 3072")
    a("s_lshl_b32 s15, s65, 8")
    for i in range(8):
        a(f"s_add_u32 s12, s11, {i}")
        a(f"s_mul_i32 s13, s12, {m3}")
        a("s_lshr_b32 s13, s13, 16")
        a(f"s_mul_i32 s64, s13, {5120 - 192}")
        a(f"s_lshl_b32 s{16+i}, s12, 6")
        a(f"s_add_u32 s{16+i}, s{16+i}, s64")
        a(f"s_add_u32 s{16+i}, s{16+i}, s15")
        a("s_mul_i32 s13, s13, 58368")
        a("s_lshl_b32 s12, s12, 10")
        a("s_add_u32 s13, s13, s12")
        a(f"s_add_u32 s{56+i}, s13, s14")
    srd(a, 52, 40, W13_OFF, 3932160)
    srd(a, 48, 40, CSQ_OFF, 64*5120)
    a("v_lshrrev_b32 v9, 5, v1")
    a("v_lshlrev_b32 v9, 5, v9")
    a("v_bfe_u32 v10, v1, 4, 1")
    a("v_lshl_add_u32 v9, v10, 3, v9")
    for i in range(4): a(f"v_mov_b32 v{12+i}, 0x3f803f80")

def pack13_out(a):
    for i in range(8):
        for h in range(2):
            a(f"ds_read_b64_tr_b16 v[{16+4*i+2*h}:{17+4*i+2*h}], v6 offset:{PK + h*512 + i*16}")
    for i in range(8):
        a(f"s_waitcnt lgkmcnt({14-2*i})")
        a(f"buffer_store_dwordx4 v[{16+4*i}:{19+4*i}], v8, s[52:55], s{56+i} offen{SC('P_WSC')}")
        a(f"v_mfma_f32_16x16x32_bf16 v[{48+4*i}:{51+4*i}], v[{16+4*i}:{19+4*i}], v[12:15], 0")
    a("s_mov_b32 s12, 0x00010001")
    a("s_mov_b32 s13, 0x00010001")
    a("s_mov_b64 exec, s[12:13]")
    for i in range(8):
        a(f"buffer_store_dwordx2 v[{48+4*i}:{49+4*i}], v9, s[48:51], s{16+i} offen")
        a(f"buffer_store_dwordx2 v[{50+4*i}:{51+4*i}], v9, s[48:51], s{16+i} offen offset:16")
    a("s_mov_b64 exec, -1")

def role_b(a):
    a(f"s_sub_u32 s4, s2, {ID_B}")
    a("s_lshl_b32 s4, s4, 2")
    a("s_add_u32 s4, s4, s3")
    a("s_mul_i32 s5, s4, 5120")
    a("v_lshlrev_b32 v2, 2, v1")
    a("v_add_u32 v3, 2560, v2")
    a("s_lshr_b32 s8, s4, 2")
    a("s_waitcnt lgkmcnt(0)")
    srd(a, 44, 16, 0, SZ_X); srd(a, 48, 40, U_OFF, SZ_X)
    for i in range(4):
        for q in range(5):
            a(f"buffer_load_dword v{8+5*i+q}, v{2 if i < 2 else 3}, s[44:47], s5 offen offset:{(i%2)*1280 + q*256}")
    srd(a, 64, 28, 0, 1280)
    for q in range(5):
        a(f"buffer_load_dword v{112+q}, v2, s[64:67], 0 offen offset:{q*256}")
    if os.environ.get("CODEPF", "1") == "1":
        a("s_getpc_b64 s[56:57]")
        a.raw("K1_PC:")
        a("s_add_u32 s56, s56, CODE_BEG-K1_PC")
        a("s_addc_u32 s57, s57, 0")
        a(f"s_sub_u32 s58, s2, {ID_B}")
        a("s_lshr_b32 s58, s58, 3")
        a("s_lshl_b32 s58, s58, 2")
        a("s_add_u32 s58, s58, s3")
        a("s_lshl_b32 s58, s58, 11")
        a("v_lshlrev_b32 v100, 4, v1")
        a("v_add_u32 v100, s58, v100")
        a("v_mov_b32 v101, CODE_END-CODE_BEG-16")
        a("v_min_u32 v102, v100, v101")
        a("v_add_u32 v100, 1024, v100")
        a("v_min_u32 v103, v100, v101")
        a("global_load_dwordx4 v[104:107], v102, s[56:57]")
        a("global_load_dwordx4 v[108:111], v103, s[56:57]")
    srd(a, 52, 40, ST_OFF, 0x10000)
    a("v_mov_b32 v7, 0")
    a("s_lshl_b32 s9, s4, 7")
    a("s_mov_b64 exec, 0xffffffff")
    a("buffer_store_dword v7, v2, s[52:55], s9 offen")
    a("s_mov_b64 exec, -1")
    srd(a, 84, 40, R_OFF, SZ_X)
    a("v_add_u32 v4, s8, v1")
    a("v_and_b32 v4, 3, v4")
    a("v_lshrrev_b32 v6, 2, v1")
    a("v_lshlrev_b32 v6, 15, v6")
    a("v_lshl_add_u32 v4, v4, 4, v6")
    a("s_lshl_b32 s9, s4, 6")
    for q in range(5):
        a(f"s_add_u32 s{60+q}, s9, {q*16*32768}")
    a(f"v_mov_b32 v7, {f2u(1.0/640):#x}")
    X = lambda i, q: 32 + 2 * (5 * i + q)
    for i in range(4):
        a(f"s_waitcnt vmcnt({21 + (2 if os.environ.get('CODEPF', '1') == '1' else 0) - 5*i})")
        for q in range(5):
            a(f"v_lshlrev_b32 v{X(i,q)}, 16, v{8+5*i+q}")
            a(f"v_and_b32 v{X(i,q)+1}, 0xffff0000, v{8+5*i+q}")
        s = 72 + 2 * i
        a(f"v_pk_add_f32 v[{s}:{s+1}], v[{X(i,0)}:{X(i,0)+1}], v[{X(i,1)}:{X(i,1)+1}]")
        for q in range(2, 5):
            a(f"v_pk_add_f32 v[{s}:{s+1}], v[{s}:{s+1}], v[{X(i,q)}:{X(i,q)+1}]")
        a(f"v_add_f32 v{s}, v{s}, v{s+1}")
    stamp(a, 1)
    wave_reduce_sum(a, [72, 74, 76, 78])
    for i in range(4):
        a(f"v_readlane_b32 s{70+i}, v{72+2*i}, 63")
    for i in range(4):
        a(f"v_mul_f32 v{80+2*i}, s{70+i}, v7")
    for i in range(4):
        a(f"v_cvt_pk_bf16_f32 v{8+2*i}, v{80+2*i}, v{80+2*i}")
    for i in range(4):
        a(f"v_lshlrev_b32 v{8+2*i}, 16, v{8+2*i}")
    for i in range(4):
        a(f"v_sub_f32 v{81+2*i}, v{80+2*i}, v{8+2*i}")
    for i in range(4):
        m = 8 + 2 * i
        for q in range(5):
            x = X(i, q)
            a(f"v_pk_add_f32 v[{x}:{x+1}], v[{x}:{x+1}], v[{m}:{m+1}] op_sel_hi:[1,0] neg_lo:[0,1] neg_hi:[0,1]")
        s = 72 + 2 * i
        x = X(i, 0)
        a(f"v_pk_mul_f32 v[{s}:{s+1}], v[{x}:{x+1}], v[{x}:{x+1}]")
        for q in range(1, 5):
            x = X(i, q)
            a(f"v_pk_fma_f32 v[{s}:{s+1}], v[{x}:{x+1}], v[{x}:{x+1}], v[{s}:{s+1}]")
        a(f"v_add_f32 v{s}, v{s}, v{s+1}")
    wave_reduce_sum(a, [72, 74, 76, 78])
    for i in range(4):
        a(f"v_readlane_b32 s{70+i}, v{72+2*i}, 63")
    R = lambda i: 16 + 2 * i
    steps = [
        lambda i: f"v_mul_f32 v{R(i)}, s{70+i}, v7",
        lambda i: f"v_fma_f32 v{R(i)}, -v{81+2*i}, v{81+2*i}, v{R(i)}",
        lambda i: f"v_cvt_pk_bf16_f32 v{R(i)}, v{R(i)}, v{R(i)}",
        lambda i: f"v_lshlrev_b32 v{R(i)}, 16, v{R(i)}",
        lambda i: f"v_add_f32 v{R(i)}, {f2u(1e-5):#x}, v{R(i)}",
        lambda i: f"v_cvt_pk_bf16_f32 v{R(i)}, v{R(i)}, v{R(i)}",
        lambda i: f"v_lshlrev_b32 v{R(i)}, 16, v{R(i)}",
        lambda i: f"v_sqrt_f32 v{R(i)}, v{R(i)}",
        lambda i: f"v_cvt_pk_bf16_f32 v{R(i)}, v{R(i)}, v{R(i)}",
        lambda i: f"v_lshlrev_b32 v{R(i)}, 16, v{R(i)}",
        lambda i: f"v_rcp_f32 v{R(i)}, v{R(i)}",
    ]
    for st in steps:
        for i in range(4): a(st(i))
    stamp(a, 2)
    a("s_waitcnt vmcnt(0)")
    a("s_lshl_b32 s9, s3, 7")
    a("s_add_u32 s9, s9, s2")
    a(f"s_cmp_ge_u32 s9, {ID_B + 80}")
    a("s_cselect_b32 s10, 0, 1")
    a("s_cbranch_scc1 K1_B_NOW2")
    a(f"s_sub_u32 s9, s2, {ID_B - 160}")
    w2_ids(a, 9)
    w2_dma_setup(a, 120, 121, 122, 123)
    for i in range(8):
        a(f"s_mov_b32 m0, {i*1024}")
        a(f"s_add_u32 s70, s69, {(i>>1)*2560}")
        a(f"buffer_load_dwordx4 v{120 + (i&1)}, s[48:51], s70 offen lds")
    srd(a, 48, 40, U_OFF, SZ_X)
    a.label("K1_B_NOW2")
    for q in range(5):
        a(f"v_lshlrev_b32 v{72+2*q}, 16, v{112+q}")
        a(f"v_and_b32 v{73+2*q}, 0xffff0000, v{112+q}")
    US = SC("P_USC")
    for q in range(5):
        for i in range(4):
            x = X(i, q)
            a(f"v_pk_mul_f32 v[{96+2*i}:{97+2*i}], v[{x}:{x+1}], v[{R(i)}:{R(i)+1}] op_sel_hi:[1,0]")
        for e in range(2):
            a(f"v_cvt_pk_bf16_f32 v{88+2*e}, v{96+e}, v{98+e}")
            a(f"v_cvt_pk_bf16_f32 v{89+2*e}, v{100+e}, v{102+e}")
        a(f"buffer_store_dwordx4 v[88:91], v4, s[48:51], s{60+q} offen{US}")
        for i in range(4):
            x = X(i, q)
            a(f"v_pk_fma_f32 v[{x}:{x+1}], v[{96+2*i}:{97+2*i}], v[{72+2*q}:{73+2*q}], v[{x}:{x+1}]")
        for i in range(4):
            x = X(i, q); m = 8 + 2 * i
            a(f"v_pk_add_f32 v[{x}:{x+1}], v[{x}:{x+1}], v[{m}:{m+1}] op_sel_hi:[1,0]")
        for e in range(2):
            a(f"v_cvt_pk_bf16_f32 v{92+2*e}, v{X(0,q)+e}, v{X(1,q)+e}")
            a(f"v_cvt_pk_bf16_f32 v{93+2*e}, v{X(2,q)+e}, v{X(3,q)+e}")
        a(f"buffer_store_dwordx4 v[92:95], v4, s[84:87], s{60+q} offen{US}")
    a("s_cmp_eq_u32 s10, 0")
    a("s_cbranch_scc1 K1_END")
    w2_out_setup(a, 0)
    a("s_waitcnt vmcnt(10)")
    w2_out(a, 0)
    a("s_endpgm")

RS = 4352; ROWP = 272; WREG = 2 * RS; TAB = 3 * WREG

def role_a(a):
    a(f"s_sub_u32 s4, s2, {ID_A}")
    a("s_mul_i32 s5, s4, 384")
    a("v_lshlrev_b32 v2, 1, v0")
    a("v_add_u32 v2, s5, v2")
    a("s_lshr_b32 s6, s4, 1")
    a("s_lshl_b32 s6, s6, 2")
    a("s_waitcnt lgkmcnt(0)")
    stamp(a, 0)
    a("s_load_dword s7, s[26:27], s6")
    srd(a, 44, 40, K_OFF, SZ_X)
    a("s_cmp_eq_u32 s3, 3")
    a("s_cbranch_scc1 K1_A_IDX")
    a("global_load_ushort v10, v2, s[18:19]")
    a("global_load_ushort v11, v2, s[20:21]")
    a("global_load_ushort v12, v2, s[22:23]")
    a("global_load_ushort v13, v2, s[24:25]")
    a.label("K1_A_IDX")
    a("v_lshlrev_b32 v3, 3, v0")
    a("v_cvt_f32_u32 v4, v3")
    a("v_cmp_gt_u32 vcc, 16, v0")
    for p in range(4):
        a(f"v_add_f32 v5, {f2u(float(2*p)):#x}, v4")
        a(f"v_add_f32 v6, {f2u(float(2*p+1)):#x}, v4")
        a("v_cvt_pk_bf16_f32 v5, v5, v6")
        a("v_subrev_u32 v5, 0x42804280, v5")
        a("v_and_b32 v6, 0xffff, v5")
        a("v_lshrrev_b32 v5, 16, v5")
        a(f"v_add_u32 v7, {2*p}, v3")
        a(f"v_add_u32 v8, {2*p+1}, v3")
        a("v_cndmask_b32 v6, v6, v7, vcc")
        a("v_cndmask_b32 v5, v5, v8, vcc")
        a(f"v_lshlrev_b32 v{100+2*p}, 1, v6")
        a(f"v_lshlrev_b32 v{101+2*p}, 1, v5")
    a("v_lshlrev_b32 v108, 4, v0")
    a("s_lshl_b32 s10, s4, 12")
    a("s_cmp_lg_u32 s3, 3")
    a("s_cbranch_scc1 K1_A_MAIN")
    a(f"s_cmp_ge_u32 s2, {N_PACK}")
    a("s_cbranch_scc1 K1_A_OW2")
    pack13_out_setup(a)
    a("s_barrier")
    pack13_out(a)
    a("s_branch K1_A_BAR2")
    a.label("K1_A_OW2")
    a(f"s_sub_u32 s64, s2, {N_PACK}")
    w2_ids(a, 64)
    w2_out_setup(a, PK)
    a("s_barrier")
    w2_out(a, PK)
    a("s_branch K1_A_BAR2")
    a.label("K1_A_MAIN")
    pack_dma_setup(a)
    a(f"s_mul_i32 s8, s3, {WREG}")
    a("v_lshlrev_b32 v3, 2, v1")
    a("v_add_u32 v3, s8, v3")
    a("v_and_b32 v4, 15, v1")
    a(f"v_mul_u32_u24 v4, {ROWP}, v4")
    a("v_lshrrev_b32 v5, 4, v1")
    a("v_lshl_add_u32 v4, v5, 4, v4")
    a("v_add_u32 v4, s8, v4")
    a("v_lshlrev_b32 v9, 4, v1")
    a("v_add_u32 v109, s8, v9")
    a("s_waitcnt lgkmcnt(0)")
    a("s_lshl_b32 s9, s7, 16")
    a("s_and_b32 s7, s7, 0xffff0000")
    a("s_bitcmp1_b32 s4, 0")
    a("s_cselect_b32 s7, s7, s9")
    a(f"v_mov_b32 v15, {f2u(LOG2E):#x}")
    a("v_mul_f32 v14, s7, v15")
    a("v_exp_f32 v14, v14")
    a("v_cvt_pk_bf16_f32 v14, v14, v14")
    a("v_lshlrev_b32 v14, 16, v14")
    a("s_waitcnt vmcnt(0)")
    stamp(a, 1)
    a("s_cmp_eq_u32 s3, 2")
    a("s_cbranch_scc1 K1_A_NODMA")
    pack_dma(a)
    a.label("K1_A_NODMA")
    for r in (10, 11, 12, 13):
        a(f"v_lshlrev_b32 v{r}, 16, v{r}")
    a("v_mul_f32 v10, v10, v15")
    a("v_exp_f32 v10, v10")
    a("v_mul_f32 v11, v11, v14")
    a("v_cvt_pk_bf16_f32 v10, v10, v10")
    a("v_lshlrev_b32 v10, 16, v10")
    a("v_mul_f32 v10, v10, v14")
    a("v_mul_f32 v10, v10, v15")
    a(f"v_mul_f32 v11, {f2u(INV2PI):#x}, v11")
    a("v_add_f32 v14, v14, v14")
    Q0 = 40
    a(f"v_mul_f32 v{Q0}, v12, v14")
    a(f"v_mul_f32 v{Q0+1}, v13, v14")
    for k, p in enumerate((1.0, 8.0, 128.0)):
        a(f"v_mul_f32 v{24+k}, {f2u(-p):#x}, v10")
        a(f"v_mul_f32 v{28+k}, {f2u(p):#x}, v11")
    for k in range(3):
        a(f"v_exp_f32 v{24+k}, v{24+k}")
        a(f"v_fract_f32 v{28+k}, v{28+k}")
    for k in range(3):
        a(f"v_cos_f32 v{16+2*k}, v{28+k}")
        a(f"v_sin_f32 v{17+2*k}, v{28+k}")
    for k in range(3):
        a(f"v_mul_f32 v{16+2*k}, v{16+2*k}, v{24+k}")
        a(f"v_mul_f32 v{17+2*k}, v{17+2*k}, v{24+k}")
    W1, W8, W128 = 16, 18, 20
    tmp = [24, 25, 26, 27]
    tctr = [0]
    def put(r, reg, row, val, neg=False):
        t = tmp[tctr[0] % 4]; tctr[0] += 1
        r(f"v_cvt_pk_bf16_f32 v{t}, v{val}, {'-' if neg else ''}v{val+1}")
        r(f"ds_write_b32 v3, v{t} offset:{reg*RS + row*ROWP}")
    rb = Rec()
    rb("v_mov_b32 v27, 0x3f80"); rb(f"ds_write_b32 v3, v27 offset:0")
    W16 = 22
    cmul(rb, W16, W8, W8)
    put(rb, 0, 1, W8, True); put(rb, 0, 2, W16, True)
    ring = {1: W8, 2: W16}
    slots = [28, 30, 32, 34]
    for b in range(3, 16):
        d = slots[b % 4]
        cmul(rb, d, ring[b-2], W16); ring[b] = d
        put(rb, 0, b, d, True)
    wc = {1: W1}
    rw = Rec()
    for c, (x, y) in ((2, (1, 1)), (3, (2, 1)), (4, (2, 2)), (5, (4, 1)), (6, (4, 2)), (7, (4, 3))):
        wc[c] = 72 + 2 * (c - 2); cmul(rw, wc[c], wc[x], wc[y])
    rq = Rec()
    Q = {0: Q0}
    for q in range(1, 17):
        Q[q] = Q0 + 2 * q if q < 16 else 84
        cmul(rq, Q[q], Q[q-1], W128)
    for t in interleave(rb.l, rw.l + rq.l): a(t)
    pr = [28, 30, 32, 34]; pc = [0]
    def prod(reg, row, x, y):
        if y is None:
            put(a, reg, row, x); return
        d = pr[pc[0] % 4]; pc[0] += 1
        return (d, x, y, reg, row)
    def run(jobs):
        jobs = [j for j in jobs if j]
        for i, j in enumerate(jobs):
            cmul(a, j[0], j[1], j[2])
            if i: p = jobs[i-1]; put(a, p[3], p[4], p[0])
        p = jobs[-1]; put(a, p[3], p[4], p[0])
    run([prod(1, 8*ap + c, Q[ap], wc[c] if c else None) for ap in range(2) for c in range(8)])
    FB, F0, F1, F2 = 86, 110, 40, 72
    FB = 110
    FA = 86
    FA0 = 8
    return_regs = None
    for s in range(4):
        a(f"ds_read_b128 v[{FB+4*s}:{FB+4*s+3}], v4 offset:{s*64}")
    jobs = []
    for ap in range(2):
        for c in range(4):
            jobs.append(prod(0, 4*ap + c, Q[2+ap], wc[2*c] if c else None))
    for ap in range(4):
        for c in range(2):
            jobs.append(prod(0, 8 + 2*ap + c, Q[4+ap], wc[4] if c else None))
    run(jobs)
    FT0 = 40; FT1 = 8
    for s in range(4):
        a(f"ds_read_b128 v[{FT0+4*s}:{FT0+4*s+3}], v4 offset:{RS + s*64}")
    for s in range(4):
        a(f"ds_read_b128 v[{FT1+4*s}:{FT1+4*s+3}], v4 offset:{s*64}")
    for q in range(8, 17):
        put(a, 1, q - 8, Q[q])
    FT2 = 56
    for s in range(4):
        a(f"ds_read_b128 v[{FT2+4*s}:{FT2+4*s+3}], v4 offset:{RS + s*64}")
    ACC = 86
    a("s_waitcnt lgkmcnt(0)")
    for s in range(4):
        for t, F in enumerate((FT0, FT1, FT2)):
            c = f"v[{ACC+4*t}:{ACC+4*t+3}]"
            a(f"v_mfma_f32_16x16x32_bf16 {c}, v[{F+4*s}:{F+4*s+3}], v[{FB+4*s}:{FB+4*s+3}], {c if s else 0}")
    for t in range(3):
        a(f"ds_write_b128 v109, v[{ACC+4*t}:{ACC+4*t+3}] offset:{t*1024}")
    a("s_waitcnt vmcnt(0) lgkmcnt(0)")
    stamp(a, 2)
    a("s_barrier")
    a("s_lshl_b32 s8, s3, 10")
    a("v_lshlrev_b32 v5, 4, v1")
    a("v_add_u32 v5, s8, v5")
    for w in range(3):
        a(f"ds_read_b128 v[{8+4*w}:{11+4*w}], v5 offset:{w*WREG}")
    a("v_and_b32 v24, 15, v1")
    a("v_lshrrev_b32 v25, 4, v1")
    a("s_waitcnt lgkmcnt(0)")
    for j in (0, 2):
        a(f"v_pk_add_f32 v[{8+j}:{9+j}], v[{8+j}:{9+j}], v[{12+j}:{13+j}]")
    for j in (0, 2):
        a(f"v_pk_add_f32 v[{8+j}:{9+j}], v[{8+j}:{9+j}], v[{16+j}:{17+j}]")
    a("v_cvt_pk_bf16_f32 v20, v8, v9")
    a("v_cvt_pk_bf16_f32 v21, v10, v11")
    a("s_cmp_eq_u32 s3, 1")
    a("s_cbranch_scc1 K1_A_T1")
    a("s_cmp_eq_u32 s3, 2")
    a("s_cbranch_scc1 K1_A_T2")
    a("v_lshrrev_b32 v26, 1, v25")
    a("v_lshlrev_b32 v26, 8, v26")
    a("v_and_b32 v27, 1, v25")
    a("v_lshl_add_u32 v26, v27, 3, v26")
    a("v_lshl_add_u32 v26, v24, 4, v26")
    a(f"ds_write_b64 v26, v[20:21] offset:{TAB}")
    a("s_branch K1_A_W")
    a.label("K1_A_T1")
    a("v_cmp_gt_u32 vcc, 2, v25")
    a("v_lshlrev_b32 v26, 3, v24")
    a("v_lshlrev_b32 v27, 2, v24")
    a("v_mov_b32 v28, 64")
    a("v_cndmask_b32 v26, v27, v26, vcc")
    a("v_cndmask_b32 v28, v28, 4, vcc")
    a("v_lshl_add_u32 v26, v25, 7, v26")
    a("v_add_u32 v28, v28, v26")
    a(f"ds_write_b32 v26, v20 offset:{TAB + 512}")
    a(f"ds_write_b32 v28, v21 offset:{TAB + 512}")
    a("s_branch K1_A_W")
    a.label("K1_A_T2")
    a("v_lshlrev_b32 v26, 1, v24")
    a("v_lshl_add_u32 v26, v25, 7, v26")
    a(f"ds_write_b16 v26, v20 offset:{TAB + 1024}")
    a(f"ds_write_b16_d16_hi v26, v20 offset:{TAB + 1024 + 32}")
    a(f"ds_write_b16 v26, v21 offset:{TAB + 1024 + 64}")
    a(f"ds_write_b16_d16_hi v26, v21 offset:{TAB + 1024 + 96}")
    a.label("K1_A_W")
    a("s_waitcnt lgkmcnt(0)")
    a.label("K1_A_BAR2")
    a("s_barrier")
    stamp(a, 3)
    for p in range(4):
        a(f"ds_read_u16 v{8+p}, v{100+2*p} offset:{TAB}")
        a(f"ds_read_u16_d16_hi v{12+p}, v{101+2*p} offset:{TAB}")
    a("s_waitcnt lgkmcnt(0)")
    for p in range(4):
        a(f"v_or_b32 v{8+p}, v{8+p}, v{12+p}")
    a(f"buffer_store_dwordx4 v[8:11], v108, s[44:47], s10 offen{SC('P_KSC')}")
    a("s_endpgm")
```

```python
U_OFF   = 0x000000
K_OFF   = 0x280000
H_OFF   = 0x500000
W13_OFF = 0x780000
W2_OFF  = 0xB40000
HM_OFF  = 0xD20000
CS_OFF  = 0x1340000
ST_OFF  = 0x1324000
CNT_OFF = 0x1328000
CSP_OFF = 0x1330000
WS_END  = 0x1370000
SZ_X = 2621440
LOG2E = 1.4426950408889634
INV2PI = 0.15915494309189535
import struct
def f2u(x): return struct.unpack("<I", struct.pack("<f", x))[0]
def magic(div, maxn, shift):
    m = -(-(1 << shift) // div)
    for n in range(maxn):
        assert (n * m) >> shift == n // div, (div, n)
    assert maxn * m < (1 << 32) and m < (1 << 24)
    return m

UR_OFF = 0x1400000
SZ_UR = 160 * 32768
WS_END2 = UR_OFF + SZ_UR
S1_OFF = 0x1350000
FL_OFF = 0x132C000
CSQ_OFF = 0x1360000
R_OFF = 0x1400000
FLG_OFF = 0x13C0000
```

```python
import sys, os
from asmlib import *
from layout import *
import k1
HEADER = open("sequential_preLN__ssm_conv_s4d__glu_gated_swiglu__prompt.s.ref").read().split("; Override launch")[0]
def build(kernels):
    a = Asm()
    launches = []; descs = []
    a.raw("ALL_BEG:")
    for k in kernels:
        if k == 1:
            k1.gen_k1(a); launches.append(f"; @launch kernel=prep_kernel grid=({k1.K1_GRID},1,1) block=(256,1,1) lds={k1.K1_LDS}")
            descs.append(kernel_desc("prep_kernel", 128, 96, 128))
        if k == 2:
            a.raw(".p2align 8\nCODE_BEG:")
            import k2
            k2.gen_k2(a); launches.append(f"; @launch kernel=conv_kernel grid=({k2.K2_GRID},1,1) block=({k2.K2_BLOCK},1,1) lds={k2.K2_LDS}")
            descs.append(kernel_desc("conv_kernel", k2.K2_VGPR, 96, k2.K2_VGPR))
        if k == 3:
            import k3
            k3.gen_k3(a); launches.append(f"; @launch kernel=gemm1_kernel grid=(256,1,1) block=(256,1,1) lds={k3.K3_LDS}")
            descs.append(kernel_desc("gemm1_kernel", 512, 96, 256))
        if k == 4:
            import k4
            k4.gen_k4(a); launches.append(f"; @launch kernel=gemm2_kernel grid=(256,1,1) block=(256,1,1) lds={k4.K4_LDS}")
            descs.append(kernel_desc("gemm2_kernel", 512, 96, 256))
        if k == 5:
            import k34
            k34.gen_k34(a); launches.append(f"; @launch kernel=mlp_kernel grid=(256,1,1) block=(256,1,1) lds={k34.K34_LDS}")
            descs.append(kernel_desc("mlp_kernel", 512, 96, 256))
        if k == 8:
            import kp2
            kp2.gen_k1(a); launches.append(f"; @launch kernel=prep_kernel grid=({kp2.K1_GRID},1,1) block=(256,1,1) lds={kp2.K1_LDS}")
            descs.append(kernel_desc("prep_kernel", 128, 96, 128))
            a.raw(".p2align 8\nCODE_BEG:")
        if k == 0:
            import kcm
            kcm.gen_cm(a); launches.append(f"; @launch kernel=cm_kernel grid=(256,1,1) block=(256,1,1) lds=163840")
            descs.append(kernel_desc("cm_kernel", 512, 96, 256))
        if k == 3.5 or k == 4 and False: pass
        if k == 13:
            import kall
            kall.gen_all(a); launches.append(f"; @launch kernel={kall.NAME} grid=(256,1,1) block=(256,1,1) lds=163840" if os.environ.get("ASLIST") else "; @launch grid=(256,1,1) block=(256,1,1) lds=163840")
            descs.append(kernel_desc(kall.NAME, 512, 96, 256))
        if k == 12:
            import k36
            k36.gen_k36(a); launches.append(f"; @launch kernel=mlp_kernel grid=(256,1,1) block=(256,1,1) lds=163840")
            descs.append(kernel_desc("mlp_kernel", 512, 96, 256))
        if k == 11:
            import kf4
            kf4.gen_front4(a); launches.append(f"; @launch kernel=front_kernel grid=(256,1,1) block=(256,1,1) lds=163840")
            descs.append(kernel_desc("front_kernel", 512, 96, 256))
            a.raw(".p2align 8\nCODE_BEG:")
        if k == 7:
            import k12
            k12.gen_front(a); launches.append(f"; @launch kernel=front_kernel grid=({k12.F_GRID},1,1) block=({k12.F_BLOCK},1,1) lds={k12.F_LDS}")
            descs.append(kernel_desc("front_kernel", k12.F_VGPR, 96, k12.F_VGPR))
            a.raw(".p2align 8\nCODE_BEG:")
        if k == 6:
            import k35
            k35.gen_k35(a); launches.append(f"; @launch kernel=mlp_kernel grid=(256,1,1) block=(256,1,1) lds={k35.K35_LDS}")
            descs.append(kernel_desc("mlp_kernel", 512, 96, 256))
        if k == 9:
            import kpf
            kpf.gen_pf(a); launches.append(f"; @launch kernel=pf_kernel grid=(256,1,1) block=(256,1,1) lds=0")
            descs.append(kernel_desc("pf_kernel", 128, 96, 128))
        a.win = []
    a.raw("CODE_END:")
    return HEADER + "\n".join(launches) + '\n.amdgcn_target "amdgcn-amd-amdhsa--gfx950"\n.text\n' + a.text() + '.section .rodata,"a"\n' + "\n".join(descs) + "\n"
PROF_OFF = 0x2000000
def add_prof(text):
    import re
    out = []; kidx = -1; cur = None
    for line in text.split("\n"):
        m = re.match(r"^(\w+_kernel):", line)
        if m:
            kidx += 1; cur = m.group(1)
            out.append(line)
            out.append("  s_memrealtime s[96:97]")
            out.append("  s_mov_b64 s[98:99], s[0:1]")
            out.append("  s_mov_b32 s100, s2")
            for q in range(76, 90): out.append(f"  s_mov_b32 s{q}, 0")
            out.append("  v_readfirstlane_b32 s101, v0")
            continue
        if line.strip() == "s_endpgm":
            out.append(f"  s_branch PROF_{cur}")
            continue
        if line.startswith(".globl") or line.startswith(".section .rodata"):
            if cur:
                out.append(f"""PROF_{cur}:
  s_waitcnt vmcnt(0) lgkmcnt(0)
  s_memrealtime s[4:5]
  s_load_dwordx2 s[8:9], s[98:99], 104
  s_getreg_b32 s6, hwreg(HW_REG_XCC_ID)
  s_getreg_b32 s7, hwreg(HW_REG_HW_ID)
  s_mov_b64 exec, 1
  s_lshr_b32 s101, s101, 6
  s_lshl_b32 s100, s100, 4
  s_add_u32 s100, s100, s101
  s_lshl_b32 s100, s100, 6
  s_waitcnt lgkmcnt(0)
  s_add_u32 s8, s8, {PROF_OFF + kidx * 0x100000:#x}
  s_addc_u32 s9, s9, 0
  s_mov_b32 s10, 0x100000
  s_mov_b32 s11, 0x20000
  v_mov_b32 v0, s96
  v_mov_b32 v1, s4
  v_mov_b32 v2, s6
  v_mov_b32 v3, s7
  v_mov_b32 v4, s100
  buffer_store_dwordx4 v[0:3], v4, s[8:11], 0 offen
  v_mov_b32 v6, s76
  v_mov_b32 v7, s78
  v_mov_b32 v8, s80
  v_mov_b32 v9, s82
  buffer_store_dwordx4 v[6:9], v4, s[8:11], 0 offen offset:16
  v_mov_b32 v10, s84
  v_mov_b32 v11, s86
  v_mov_b32 v12, s88
  v_mov_b32 v13, s88
  buffer_store_dwordx4 v[10:13], v4, s[8:11], 0 offen offset:32
  s_endpgm""")
                cur = None
        out.append(line)
    return "\n".join(out).replace("next_free_sgpr 96", "next_free_sgpr 102")
if __name__ == "__main__":
    ks = [int(c, 36) for c in sys.argv[1]]
    t = build(ks)
    if PROF: t = add_prof(t)
    open(sys.argv[2], "w").write(t)
```

```python
import os
from asmlib import *
from layout import *
from k1 import srd
from k34 import stat_finalize_steps
import asmlib
BST = os.environ.get("K3_BST") if "os" in dir() else None
K35_LDS = 163840
ENV = lambda k, d: int(os.environ.get(k, d))

_stamp = stamp
def stamp(a, i, alt=None):
    if (alt or "") == (BST or ""): _stamp(a, i)
    elif alt is None and i < 2 and BST == "B": _stamp(a, i)

def gen_k35(a):
    a.raw(kernel_header("mlp_kernel"))
    if os.environ.get("K3_DROP"): a.drop = os.environ["K3_DROP"].split(",")
    a("s_cmp_ge_u32 s2, 256")
    a("s_cbranch_scc1 K3_END")
    a("s_load_dwordx2 s[38:39], s[0:1], 88")
    a("s_load_dwordx2 s[40:41], s[0:1], 104")
    a("v_lshrrev_b32 v2, 6, v0")
    a("v_and_b32 v1, 63, v0")
    a("v_readfirstlane_b32 s3, v2")
    a("v_lshlrev_b32 v2, 4, v1")
    a("s_bfe_u32 s4, s2, 0x20001")
    a("s_lshl_b32 s4, s4, 2")
    a("s_bfe_u32 s5, s2, 0x20003")
    a("s_add_u32 s4, s4, s5")
    a("s_lshr_b32 s18, s2, 5")
    a("s_and_b32 s19, s2, 1")
    a("s_lshl_b32 s5, s18, 1")
    a("s_add_u32 s5, s5, s19")
    a("s_mul_i32 s6, s3, 20480")
    a("s_mul_i32 s20, s4, 163840")
    a("s_add_u32 s7, s20, s6")
    a("s_lshl_b32 s8, s5, 2")
    a("s_add_u32 s8, s8, s3")
    a("s_mul_i32 s9, s8, 61440")
    a("s_mul_i32 s21, s18, 20480")
    a("s_add_u32 s21, s21, s20")
    a("s_mul_i32 s10, s3, 5120")
    a("s_add_u32 s21, s21, s10")
    a("s_mul_i32 s22, s18, 245760")
    a("s_mul_i32 s10, s3, 61440")
    a("s_add_u32 s22, s22, s10")
    a("s_waitcnt lgkmcnt(0)")
    srd(a, 44, 40, H_OFF, SZ_X); srd(a, 48, 40, W13_OFF, 3932160)
    vm = Cnt(a, "vmcnt", 63); ds = Cnt(a, "lgkmcnt", 15)
    ACC = 32; HB = 128; STR = 192; CSR = 16
    acc = lambda i, t: ACC + 4 * (3 * i + t)
    hb = lambda n, i: HB + 16 * (n & 1) + 4 * i
    SF = 160
    for i in range(5):
        if i == 4: a("s_add_u32 s21, s21, 4096")
        a(f"buffer_load_dwordx4 v[{SF+4*i}:{SF+4*i+3}], v2, s[44:47], s21 offen offset:{(i%4)*1024}"); vm.issue("sf")
    items = []
    for s in range(20):
        items += [("h", s, 0), ("w", s, 0), ("w", s, 1), ("w", s, 2)]
        if s == 10: items.append(("cs", 0, 0))
        if s == ENV("K3_STPOS", 16): items.append(("st", 0, 0))
    HBE = ENV("K3_HBE", 7)
    for s in range(HBE): items.append(("h", 20 + s, 1))
    for s in range(20):
        if s + HBE < 20: items.append(("h", 20 + s + HBE, 1))
        items += [("w2", 3 * s + t, 0) for t in range(3)]
    cur = [-1]
    def issue_item():
        if not items or len(vm.q) >= 60: return False
        kd, s, x = items[0]
        if kd == "w2" and s // 3 > cur[0]: return False
        items.pop(0)
        if kd == "h":
            ss = s % 20
            off = x * 81920 + (ss & ~3) * 1024
            if ss % 4 == 0:
                a(f"s_add_u32 m0, s6, {off}")
                a(f"s_add_u32 s10, s7, {off}")
            a(f"buffer_load_dwordx4 v2, s[44:47], s10 offen offset:{(ss&3)*1024} lds"); vm.issue(s)
        elif kd == "w":
            idx = 3 * s + x
            if idx % 4 == 0: a(f"s_add_u32 s11, s9, {(idx & ~3) * 1024}")
            a(f"buffer_load_dwordx4 a[{4*idx}:{4*idx+3}], v2, s[48:51], s11 offen offset:{(idx&3)*1024}"); vm.issue(s)
        elif kd == "w2" and os.environ.get("K3_NOW2"): pass
        elif kd == "w2":
            if s % 4 == 0: a(f"s_add_u32 s11, s22, {(s & ~3) * 1024}")
            a(f"buffer_load_dwordx4 a[{4*s}:{4*s+3}], v2, s[68:71], s11 offen offset:{(s&3)*1024}"); vm.issue(("w2", s))
        elif kd == "cs":
            a(f"buffer_load_dwordx4 v[180:183], v2, s[52:55], s17 offen"); vm.issue("cs")
        elif kd == "st":
            st_loads()
        return True
    def st_loads():
        a(f"buffer_load_dwordx4 v[176:179], v2, s[72:75], s24 offen sc1"); vm.issue("st")
    for _ in range(ENV("K3_PRO", 14)): issue_item()
    srd(a, 52, 40, CS_OFF, 64*768); srd(a, 56, 40, HM_OFF, 6291456)
    srd(a, 68, 40, W2_OFF, 1966080); srd(a, 72, 40, ST_OFF, 0x4000 + 128*128)
    a("v_and_b32 v6, 15, v1")
    a("v_lshrrev_b32 v7, 4, v1")
    a("v_lshlrev_b32 v3, 4, v7")
    a("s_mul_i32 s17, s8, 768")
    a("v_lshlrev_b32 v5, 3, v6")
    a("s_lshl_b32 s24, s4, 10")
    a("s_cmp_lt_u32 s18, 3")
    a("s_cselect_b32 s36, 10240, 0")
    a("s_cselect_b32 s13, 4096, 0")
    a("s_add_u32 s13, s13, s6")
    a("v_add_u32 v3, s13, v3")
    a("v_add_u32 v184, s13, v5")
    a("v_add_u32 v185, s13, v2")
    a("s_add_u32 s13, s36, s6")
    a("v_add_u32 v186, s13, v2")
    for i in range(8):
        a(f"s_add_u32 s13, s3, {i}")
        a("s_and_b32 s13, s13, 3")
        if i >= 4: a("s_add_u32 s13, s13, 4")
        a("s_mul_i32 s14, s13, 20480")
        a(f"v_add_u32 v{8+i}, s14, v2")
    a("s_mov_b32 s16, 0x3f803f80")
    SCR = 7 * 20480 + 19 * 1024
    a("s_lshl_b32 s13, s3, 7")
    a("v_add_u32 v6, s13, v5")
    vm.wait("sf")
    for r in range(20):
        for k in range(2):
            d = 28 + 2 * (r % 2) + k
            src2 = "s16" if k == 0 else f"v{SF+r}"
            a(f"v_dot2_f32_bf16 v{d}, v{SF+r}, {src2}, {'0' if r < 2 else 'v%d' % d}")
        if r % 2 == 1: issue_item()
    a("v_pk_add_f32 v[28:29], v[28:29], v[30:31]")
    for sw in ("v_permlane32_swap_b32", "v_permlane16_swap_b32"):
        for r in range(2): a(f"v_mov_b32 v{30+r}, v{28+r}")
        for r in range(2): a(f"{sw} v{28+r}, v{30+r}")
        a("v_pk_add_f32 v[28:29], v[28:29], v[30:31]")
    a(f"v_add_u32 v6, {SCR}, v6")
    a(f"v_add_u32 v7, {SCR}, v5")
    a("ds_write_b64 v6, v[28:29]")
    a("s_waitcnt lgkmcnt(0)")
    def hread(n, i):
        sl = i + 4 * (n // 20)
        a(f"ds_read_b128 v[{hb(n,i)}:{hb(n,i)+3}], v{8+sl} offset:{(n%20)*1024}"); ds.issue((n, i))
    vm.wait(0)
    stamp(a, 0)
    a("s_barrier")
    for i in range(4): hread(0, i)
    P = 240
    side = [("ds", f"ds_read_b64 v[{P+2*i}:{P+2*i+1}], v7 offset:{i*128}") for i in range(4)]
    side += [("v", f"v_mov_b32 v{P+8}, {f2u(1.0/640):#x}"),
             ("v", "s_lshl_b32 s13, s19, 3"), ("v", "s_lshl_b32 s14, s3, 1"), ("v", "s_add_u32 s13, s13, s14"),
             ("v", "s_lshl_b64 s[32:33], 3, s13"),
             ("v", "s_lshl_b32 s13, s4, 3"), ("v", "s_add_u32 s13, s13, s18"), ("v", "s_lshl_b32 s34, s13, 7"),
             ("w", None),
             ("v", f"v_add_f32 v{P}, v{P}, v{P+2}"), ("v", f"v_add_f32 v{P+1}, v{P+1}, v{P+3}"),
             ("v", f"v_add_f32 v{P+4}, v{P+4}, v{P+6}"), ("v", f"v_add_f32 v{P+5}, v{P+5}, v{P+7}"),
             ("v", f"v_add_f32 v{P}, v{P}, v{P+4}"), ("v", f"v_add_f32 v{P+1}, v{P+1}, v{P+5}")]
    side += [("v", st(P, P + 1, P + 2)) for st in stat_finalize_steps(P + 8)]
    side += [("x", None)]
    prep = []
    prep += ["s_lshl_b32 s13, s4, 3", "s_add_u32 s13, s13, s3", "s_mul_i32 s13, s13, 49152", "s_mul_i32 s14, s5, 3072",
             "s_add_u32 s60, s13, s14", "s_add_u32 s61, s60, 196608"]
    prep += ["s_lshl_b32 s13, s4, 2", "s_lshr_b32 s14, s5, 2", "s_add_u32 s14, s14, s13", "s_lshl_b32 s14, s14, 8",
             "s_add_u32 s62, s14, 0x4000",
             "s_add_u32 s13, s13, s3", "s_lshl_b32 s13, s13, 8", "s_add_u32 s63, s13, 0x4000"]
    prep += ["s_lshl_b32 s13, s4, 3", "s_lshl_b32 s14, s19, 1", "s_add_u32 s23, s13, s14",
             "s_mul_i32 s13, s23, 49152", "s_mul_i32 s14, s3, 12288", "s_add_u32 s64, s13, s14",
             "s_add_u32 s65, s64, 49152", "s_add_u32 s66, s64, 196608", "s_add_u32 s67, s64, 245760"]
    side += [("v", t) for t in prep]
    def do_side():
        if not side: return False
        k, t = side.pop(0)
        if k == "ds": a(t); ds.issue("sp")
        elif k == "w": ds.wait("sp")
        elif k == "v": a(t)
        else:
            a("s_mov_b64 exec, s[32:33]")
            a(f"buffer_store_dwordx2 v[{P}:{P+1}], v5, s[72:75], s34 offen sc1"); vm.issue("gs")
            a("s_mov_b64 exec, -1")
        return True
    def mfma(i, t, s, n, first):
        c = f"v[{acc(i,t)}:{acc(i,t)+3}]"; w = 4 * (3 * s + t)
        a(f"v_mfma_f32_16x16x32_bf16 {c}, a[{w}:{w+3}], v[{hb(n,i%4)}:{hb(n,i%4)+3}], {0 if first else c}")
    def phase_a(var):
        for s in range(20):
            if s % 3 == 0: stamp(a, s // 3, "A")
            assert not any(kd in "hw" and x == s + 1 for kd, x, _ in items), s
            vm.wait(s + 1)
            a("s_barrier")
            ds.wait((s, 3))
            nl = 5 if s % ENV("K3_AX", 2) == 0 else 4
            for i in range(4):
                for t in range(3):
                    mfma(i, t, s, s, s == 0)
                    if t == 0: hread(s + 1, i)
                    if i == var:
                        for _ in range(2 if t or nl == 5 and False else 1):
                            if nl: issue_item(); nl -= 1
                    elif t: do_side(); do_side()
            if s == ENV("K3_STCHK", 15):
                while side: do_side()
                a("s_mov_b32 s35, 0")
                a.label(f"K3_STCHK{var}")
                vm.wait("st")
                saved_q = list(vm.q)
                a("v_min_u32 v6, v177, v179")
                a("v_cmp_eq_u32 vcc, 0, v6")
                a(f"s_cbranch_vccz K3_STOK{var}")
                a("s_add_u32 s35, s35, 1")
                a("s_cmp_ge_u32 s35, 0x4000")
                a(f"s_cbranch_scc1 K3_STOK{var}")
                a("s_sleep 2")
                st_loads()
                a("s_waitcnt vmcnt(0)")
                a(f"s_branch K3_STCHK{var}")
                a.label(f"K3_STOK{var}")
                vm.q = saved_q
                side.extend([("ds", "ds_write_b128 v185, v[176:179] offset:4096"), ("ds", "ds_write_b128 v185, v[180:183] offset:5120")])
                for i in range(8):
                    rt = ((var + i) & 3) + 4 * (i >> 2)
                    side.append(("ds", f"ds_read_b64 v[{STR+4*i}:{STR+4*i+1}], v184 offset:{4096 + rt*128}"))
                side.extend(("ds", f"ds_read_b128 v[{CSR+4*t}:{CSR+4*t+3}], v3 offset:{5120 + t*64}") for t in range(3))
                side.extend([("v", "v_mov_b32 v28, 1"), ("v", "v_mov_b32 v29, 0")])
                for pp, rr in ((1, 224), (2, 160), (3, 240)):
                    side.extend(("ds", f"ds_read_b128 v[{rr+4*t}:{rr+4*t+3}], v3 offset:{5120 + pp*192 + t*64}") for t in range(3))
                side.append(("w", None))
                side.extend(("v", f"v_add_f32 v{CSR+r}, v{CSR+r}, v{224+r}") for r in range(12))
                side.extend(("v", f"v_add_f32 v{160+r}, v{160+r}, v{240+r}") for r in range(12))
                side.extend(("v", f"v_add_f32 v{CSR+r}, v{CSR+r}, v{160+r}") for r in range(12))
                side.extend(("v", t) for t in pre)
        while side: do_side()
        stamp(a, 1)
    PK = ENV("K3_PK", 0)
    def epi(i, var, pk):
        S = STR + 4 * i; O = 224 + 4 * (i % 2); out = []; seqs = []
        for t in range(3):
            c = acc(i, t); e = 232 + 2 * t; cs = CSR + 4 * t
            if pk:
                seqs.append([
                f"v_pk_fma_f32 v[{c}:{c+1}], v[{cs}:{cs+1}], v[{S}:{S+1}], v[{c}:{c+1}] op_sel_hi:[1,0,1] neg_lo:[0,1,0] neg_hi:[0,1,0]",
                f"v_pk_fma_f32 v[{c+2}:{c+3}], v[{cs+2}:{cs+3}], v[{S}:{S+1}], v[{c+2}:{c+3}] op_sel_hi:[1,0,1] neg_lo:[0,1,0] neg_hi:[0,1,0]",
                f"v_pk_mul_f32 v[{e}:{e+1}], v[{c}:{c+1}], v[{S+2}:{S+3}] op_sel_hi:[1,0]",
                f"v_exp_f32 v{e}, v{e}",
                f"v_exp_f32 v{e+1}, v{e+1}",
                f"v_pk_mul_f32 v[{c}:{c+1}], v[{c}:{c+1}], v[{c+2}:{c+3}]",
                f"v_pk_fma_f32 v[{e}:{e+1}], v[{e}:{e+1}], v[{S}:{S+1}], v[{S}:{S+1}] op_sel:[0,1,1] op_sel_hi:[1,1,1]",
                f"v_rcp_f32 v{e}, v{e}",
                f"v_rcp_f32 v{e+1}, v{e+1}",
                f"v_pk_mul_f32 v[{c}:{c+1}], v[{c}:{c+1}], v[{e}:{e+1}]",
                f"v_cvt_pk_bf16_f32 v{O+t}, v{c}, v{c+1}"])
            else:
                seqs.append(
                [f"v_fma_f32 v{c+r}, -v{S}, v{cs+r}, v{c+r}" for r in range(2)] +
                [f"v_mul_f32 v{e+r}, v{c+r}, v{S+2}" for r in range(2)] +
                [f"v_exp_f32 v{e}, v{e}", f"v_fma_f32 v{c+2}, -v{S}, v{cs+2}, v{c+2}",
                 f"v_exp_f32 v{e+1}, v{e+1}", f"v_fma_f32 v{c+3}, -v{S}, v{cs+3}, v{c+3}"] +
                [f"v_mul_f32 v{c+r}, v{c+r}, v{c+2+r}" for r in range(2)] +
                [f"v_fma_f32 v{e+r}, v{e+r}, v{S+1}, v{S+1}" for r in range(2)] +
                [f"v_rcp_f32 v{e+r}, v{e+r}" for r in range(2)] +
                [f"v_mul_f32 v{c+r}, v{c+r}, v{e+r}" for r in range(2)] +
                [f"v_cvt_pk_bf16_f32 v{O+t}, v{c}, v{c+1}"])
        for j in range(len(seqs[0])):
            for sq in seqs:
                if not os.environ.get("K3_NOEPI"): out.append(sq[j])
        out.append(f"v_add_u32 v6, s36, v{8+i}")
        if var < 3:
            out.append(f"ds_write_b96 v6, v[{O}:{O+2}] offset:{var*1024}")
        else:
            out += [f"ds_write_b32 v6, v{O+t} offset:{t*1024 + 12}" for t in range(3)]
        return out
    pre = [f"v_mov_b32 v4, {f2u(-LOG2E):#x}"]
    pre += [f"v_rcp_f32 v{STR+4*i+2}, v{STR+4*i+1}" for i in range(8)]
    pre += [f"v_mul_f32 v{STR+4*i+1}, v{STR+4*i+1}, v{STR+4*i+1}" for i in range(8)]
    pre += [f"v_mul_f32 v{STR+4*i+2}, v{STR+4*i+2}, v4" for i in range(8)]
    PB = 160
    def signal(hf):
        if signal.var < 4:
            if signal.var == 0:
                a("s_mov_b64 exec, 1")
                a(f"buffer_atomic_add v28, v29, s[72:75], s62 offen offset:{hf*128} sc1"); vm.issue("sig")
                a("s_mov_b64 exec, -1")
            return
        a("s_cmp_lg_u32 s3, 0")
        lab = f"K3_NOSIG{hf}_{signal.var}"
        a(f"s_cbranch_scc1 {lab}")
        a("s_mov_b64 exec, 1")
        a(f"buffer_atomic_add v28, v29, s[72:75], s62 offen offset:{hf*128} sc1")
        a("s_mov_b64 exec, -1")
        a.label(lab)
        vm.q.append("sig")
        vm.q.pop()
    A2 = 80; HR = 224
    acc2 = lambda j, t: A2 + 4 * (5 * j + t)
    HMR = [32 + 4 * i for i in range(12)] + [160 + 4 * i for i in range(8)] + [240 + 4 * i for i in range(4)]
    hm = lambda j, k: HMR[12 * (j % 2) + k]
    hq = []
    def ld_hm(j, k):
        if k % 4 == 0: a(f"s_add_u32 s10, s{64+j}, {(k & ~3)*1024}")
        a(f"buffer_load_dwordx4 v[{hm(j,k)}:{hm(j,k)+3}], v2, s[56:59], s10 offen offset:{(k&3)*1024}{os.environ.get('K3_HMSC', ' sc1')}"); vm.issue((j, k))
    saves = (list(items), list(vm.q), list(ds.q), list(side))
    for w in range(1, 4):
        a(f"s_cmp_eq_u32 s3, {w}")
        a(f"s_cbranch_scc1 K3_VAR{w}")
    for var in range(4):
        if var:
            a.label(f"K3_VAR{var}")
            items[:] = saves[0]; vm.q = list(saves[1]); ds.q = list(saves[2]); cur[0] = -1; side[:] = saves[3]
        signal.var = var
        phase_a(var)
        sj = []
        for i in range(4): sj += epi(i, var, PK)
        def emit_side(budget):
            while sj and budget > 0:
                t = sj.pop(0); a(t)
                if t.startswith("ds_"): ds.issue("e")
                budget -= 8 if t.split()[0] in TRANS else 4
        state = 0
        for s in range(20):
            n = 20 + s
            if s % 4 == 3: stamp(a, 2 + s // 4, "B")
            if s + 1 < 20:
                assert not any(kd == "h" and x == n + 1 for kd, x, _ in items)
                vm.wait(n + 1)
            if state == 0 and not sj and not hasattr(emit_side, "nat"):
                emit_side.nat = s; print("epilogue A natural finish at step", s, "var", var)
            if state == 0 and s == ENV("K3_SA", 11):
                emit_side(100000)
                ds.wait("e"); state = 1
                a("s_barrier")
                for ph in range(3):
                    a(f"ds_read_b128 v[{PB+4*ph}:{PB+4*ph+3}], v186 offset:{ph*1024}"); ds.issue("pb")
            elif state == 1:
                a("s_barrier")
                ds.wait("pb")
                for ph in range(3):
                    a(f"buffer_store_dwordx4 v[{PB+4*ph}:{PB+4*ph+3}], v2, s[56:59], s60 offen offset:{ph*1024} sc1"); vm.issue("hsA")
                state = 2; s_st = s
            elif state == 2 and (s >= s_st + ENV("K3_DRAIN", 4) or s == 19):
                vm.wait("hsA")
                a("s_barrier")
                signal(0); state = 4
                stamp(a, 2)
            elif s + 1 < 20:
                a("s_barrier")
            ds.wait((n, 3))
            for i in range(4):
                for t in range(3):
                    mfma(4 + i, t, s, n, s == 0)
                    if t == 0 and s + 1 < 20: hread(n + 1, i)
                    if i == var:
                        issue_item()
                        if t == 2 and ENV("K3_BN", 4) == 4: issue_item()
                    else: emit_side(ENV("K3_B0", 8) if t == 0 else ENV("K3_B1", 12))
            cur[0] = s
            if s == ENV("K3_PAS", 18):
                a(f"buffer_load_dword v30, v29, s[72:75], s63 offen sc1"); vm.issue("pA")
        assert state == 4, state
        for i in range(4, 8): sj += epi(i, var, 1)
        EB = ENV("K3_EB", 90)
        while items:
            emit_side(EB // 2); assert issue_item()
        vm.wait("pA")
        a("s_mov_b32 s35, 0")
        a(f"s_branch K3_PA_CHK{var}")
        a.label(f"K3_PA{var}")
        a(f"buffer_load_dword v30, v29, s[72:75], s63 offen sc1")
        a("s_waitcnt vmcnt(0)")
        a.label(f"K3_PA_CHK{var}")
        a("v_readfirstlane_b32 s14, v30")
        a("s_add_u32 s35, s35, 1")
        a("s_cmp_ge_u32 s14, 4")
        a(f"s_cbranch_scc1 K3_GOA{var}")
        a("s_cmp_lt_u32 s35, 0x8000")
        a(f"s_cbranch_scc1 K3_PA{var}")
        a.label(f"K3_GOA{var}")
        hq[:] = [(0, kk) for kk in range(12)] + [(1, kk) for kk in range(12)]
        NE = ENV("K3_NE", 8)
        while sj:
            if len(hq) > 24 - NE: ld_hm(*hq.pop(0))
            emit_side(EB)
        while len(hq) > 24 - NE: ld_hm(*hq.pop(0))
        if var < 3: a("s_branch K3_EPIDONE")
    a.label("K3_EPIDONE")
    a("s_waitcnt lgkmcnt(0)"); ds.q = []
    stamp(a, 3)
    a("s_barrier")
    PB2 = 192
    a("v_add_u32 v12, 81920, v186")
    for ph in range(3):
        a(f"ds_read_b128 v[{PB2+4*ph}:{PB2+4*ph+3}], v12 offset:{ph*1024}")
    a("s_mul_i32 s13, s3, 5120")
    a("v_add_u32 v8, s13, v2")
    a("v_add_u32 v9, 40960, v8")
    a("v_lshrrev_b32 v4, 5, v1")
    a("v_lshlrev_b32 v4, 8, v4")
    a("v_and_b32 v5, 15, v1")
    a("v_lshl_add_u32 v4, v5, 4, v4")
    a("v_bfe_u32 v6, v1, 4, 1")
    a("v_lshl_add_u32 v4, v6, 3, v4")
    a("v_mul_u32_u24 v5, 1280, v5")
    a("v_lshrrev_b32 v7, 4, v1")
    a("v_lshl_add_u32 v5, v7, 3, v5")
    a("s_mul_i32 s16, s18, 2560")
    a("s_mul_i32 s17, s18, 160")
    for q in range(3):
        a(f"s_add_u32 s12, s3, {4*q}")
        if q == 2:
            a("s_cmp_ge_u32 s12, 10")
            a("s_cselect_b32 s13, 2, 0")
            a("s_sub_u32 s12, s12, s13")
        a("s_cmp_ge_u32 s12, 5")
        a("s_cselect_b32 s13, 1, 0")
        a("s_mul_i32 s14, s13, 5")
        a("s_sub_u32 s12, s12, s14")
        a("s_mul_i32 s14, s13, 20480")
        a("s_lshl_b32 s15, s12, 10")
        a("s_add_u32 s15, s15, s14")
        a(f"v_add_u32 v{10+q}, s15, v2") if q < 2 else a("v_add_u32 v13, s15, v2")
        a("s_add_u32 s13, s13, s23")
        a("s_mul_i32 s13, s13, 20480")
        a("s_lshl_b32 s14, s12, 9")
        a("s_add_u32 s14, s14, s16")
        a(f"s_add_u32 s{24+q}, s13, s14")
        a(f"s_sub_u32 s15, s{24+q}, s20")
        a(f"v_add_u32 v{16+q}, s15, v4")
        a(f"v_add_u32 v{20+q}, 81920, v{16+q}")
        a("s_lshl_b32 s14, s12, 5")
        a("s_add_u32 s14, s14, s17")
        a(f"s_add_u32 s{28+q}, s13, s14")
    srd(a, 52, 38, 0, SZ_X)
    for ph in range(3):
        a(f"s_waitcnt lgkmcnt({2-ph})")
        a(f"buffer_store_dwordx4 v[{PB2+4*ph}:{PB2+4*ph+3}], v2, s[56:59], s61 offen offset:{ph*1024} sc1"); vm.issue("hsB")
    for hf in range(2):
        for q in range(3):
            a(f"ds_read_b64 v[{HR+6*hf+2*q}:{HR+6*hf+2*q+1}], v{16+4*hf+q}")
    _ld = ld_hm
    def nxt():
        x = hq.pop(0)
        if x == "w2": assert issue_item()
        elif x == "res": res_loads()
        else: _ld(*x)
    for _ in range(ENV("K3_NPA", 8)): nxt()
    stamp(a, 4)
    wr = []
    def g2tile(j, hook=None):
        for k in range(12):
            while (j, k) in hq or (j == 0 and ("w2", 5 * k + 4, 0) in items): nxt()
            vm.wait((j, k)); vm.wait(("w2", 5 * k + 4))
            for t in range(5):
                c = f"v[{acc2(j,t)}:{acc2(j,t)+3}]"; w = 4 * (5 * k + t)
                a(f"v_mfma_f32_16x16x32_bf16 {c}, a[{w}:{w+3}], v[{hm(j,k)}:{hm(j,k)+3}], {c if k else 0}")
                if t == 2 and wr and k >= 1: a(wr.pop(0))
                if t in (0, 3) and hq: nxt()
            if hook: hook(k)
        wr.extend(f"ds_write_b128 v{8 + j//2}, v[{acc2(j,t)}:{acc2(j,t)+3}] offset:{(j%2)*20480 + t*1024}" for t in range(5))
    def hookA(k):
        if k == ENV("K3_SBK", -1):
            vm.wait("hsB")
            a("s_waitcnt lgkmcnt(0)")
            a("s_barrier")
            signal.var = 9; signal(1)
    if ENV("K3_SBK", -1) < 0:
        vm.wait("hsB")
        a("s_waitcnt lgkmcnt(0)")
        a("s_barrier")
        signal.var = 9; signal(1)
    def hookA2(k):
        hookA(k)
        if k == ENV("K3_PBK0", 99):
            a(f"buffer_load_dword v30, v29, s[72:75], s63 offen offset:128 sc1"); vm.issue("pB")
    g2tile(0, hookA2)
    def hookB(k):
        if k == ENV("K3_PBK", 0):
            a(f"buffer_load_dword v30, v29, s[72:75], s63 offen offset:128 sc1"); vm.issue("pB")
        if k == ENV("K3_PBC", 3):
            stamp(a, 5)
            while hq: nxt()
            a("s_mov_b32 s35, 0")
            vm.wait("pB")
            a("s_branch K3_PB_CHK")
            a.label("K3_PB")
            a(f"buffer_load_dword v30, v29, s[72:75], s63 offen offset:128 sc1")
            a("s_waitcnt vmcnt(0)")
            a.label("K3_PB_CHK")
            a("v_readfirstlane_b32 s14, v30")
            a("s_add_u32 s35, s35, 1")
            a("s_cmp_ge_u32 s14, 4")
            a("s_cbranch_scc1 K3_GOB")
            a("s_cmp_lt_u32 s35, 0x8000")
            a("s_cbranch_scc1 K3_PB")
            a.label("K3_GOB")
            stamp(a, 6)
            hq.extend((2, kk) for kk in range(12))
            for _ in range(4): nxt()
    g2tile(1, hookB)
    hq.extend((3, kk) for kk in range(12))
    RD = [10, 11, 13]
    def finalize(hf, R, U):
        out = []
        for q in range(3):
            for w in range(4):
                out.append(f"ds_read_b128 v[{R[q]+4*w}:{R[q]+4*w+3}], v{RD[q]} offset:{hf*40960 + w*5120}")
        for q in range(3):
            for e in range(2):
                out.append(f"v_lshlrev_b32 v{U+4*q+2*e}, 16, v{HR+6*hf+2*q+e}")
                out.append(f"v_and_b32 v{U+4*q+2*e+1}, 0xffff0000, v{HR+6*hf+2*q+e}")
            if hf: out.append(f"s_add_u32 s{28+q}, s{28+q}, 81920")
        for q in range(3):
            b = R[q]
            out.append(f"s_waitcnt lgkmcnt({8 - 4*q})")
            for e in (0, 2):
                out.append(f"v_pk_add_f32 v[{b+e}:{b+e+1}], v[{b+e}:{b+e+1}], v[{b+4+e}:{b+5+e}]")
                out.append(f"v_pk_add_f32 v[{b+8+e}:{b+9+e}], v[{b+8+e}:{b+9+e}], v[{b+12+e}:{b+13+e}]")
            for e in (0, 2):
                out.append(f"v_pk_add_f32 v[{b+e}:{b+e+1}], v[{b+e}:{b+e+1}], v[{b+8+e}:{b+9+e}]")
            for e in range(2):
                out.append(f"v_cvt_pk_bf16_f32 v{b+4+e}, v{b+2*e}, v{b+2*e+1}")
            for e in range(2):
                out.append(f"v_lshlrev_b32 v{b+2*e}, 16, v{b+4+e}")
                out.append(f"v_and_b32 v{b+2*e+1}, 0xffff0000, v{b+4+e}")
            for e in (0, 2):
                out.append(f"v_pk_add_f32 v[{b+e}:{b+e+1}], v[{b+e}:{b+e+1}], v[{U+4*q+e}:{U+4*q+e+1}]")
            for e in range(2):
                out.append(f"v_cvt_pk_bf16_f32 v{b+4+e}, v{b+2*e}, v{b+2*e+1}")
            out.append(f"buffer_store_dwordx2 v[{b+4}:{b+5}], v5, s[52:55], s{28+q} offen")
        return out
    fin = []
    def hook2(k):
        if k == ENV("K3_FK", 4):
            while wr: a(wr.pop(0))
            a("s_waitcnt lgkmcnt(0)")
            a("s_barrier")
            fin.extend(finalize(0, [80, 96, 192], 16))
        for _ in range(ENV("K3_FN", 10)):
            if fin:
                t = fin.pop(0); a(t)
                if t.startswith("buffer"): vm.issue("o")
    g2tile(2, hook2)
    pend_wr = list(wr); wr[:] = []
    def hook3(k):
        for _ in range(ENV("K3_FN", 10)):
            if fin:
                t = fin.pop(0); a(t)
                if t.startswith("buffer"): vm.issue("o")
        if not fin and pend_wr:
            wr.extend(pend_wr); pend_wr[:] = []
    g2tile(3, hook3)
    assert not fin and not pend_wr
    while wr: a(wr.pop(0))
    a("s_waitcnt lgkmcnt(0)")
    a("s_barrier")
    for t in finalize(1, [32, 48, 64], 16): a(t)
    a.label("K3_END")
    a("s_endpgm")
```

```python
import os
from asmlib import *
from layout import *
from k1 import srd
from k34 import stat_finalize_steps
import asmlib
ENV = lambda k, d: int(os.environ.get(k, d))
BST = os.environ.get("K3_BST")
_stamp = stamp
def stamp(a, i, alt=None):
    if (alt or "") == (BST or ""): _stamp(a, i)
    elif alt is None and i < 2 and BST == "B": _stamp(a, i)
NA = 6

def gen_k37(a):
    a.raw(kernel_header("mlp_kernel"))
    a("s_cmp_ge_u32 s2, 256")
    a("s_cbranch_scc1 K3_END")
    a("s_load_dwordx2 s[38:39], s[0:1], 88")
    a("s_load_dwordx2 s[40:41], s[0:1], 104")
    a("v_lshrrev_b32 v2, 6, v0")
    a("v_and_b32 v1, 63, v0")
    a("v_readfirstlane_b32 s3, v2")
    a("v_lshlrev_b32 v2, 4, v1")
    a("s_bfe_u32 s4, s2, 0x20001")
    a("s_lshl_b32 s4, s4, 2")
    a("s_bfe_u32 s5, s2, 0x20003")
    a("s_add_u32 s4, s4, s5")
    a("s_lshr_b32 s18, s2, 5")
    a("s_and_b32 s19, s2, 1")
    a("s_lshl_b32 s5, s18, 1")
    a("s_add_u32 s5, s5, s19")
    a("s_mul_i32 s20, s4, 163840")
    a("s_lshl_b32 s8, s5, 2")
    a("s_add_u32 s8, s8, s3")
    a("s_mul_i32 s9, s8, 61440")
    a("s_mul_i32 s21, s18, 20480")
    a("s_add_u32 s21, s21, s20")
    a("s_mul_i32 s10, s3, 5120")
    a("s_add_u32 s21, s21, s10")
    a("s_mul_i32 s22, s18, 245760")
    a("s_mul_i32 s10, s3, 61440")
    a("s_add_u32 s22, s22, s10")
    a("s_waitcnt lgkmcnt(0)")
    srd(a, 44, 40, H_OFF, SZ_X); srd(a, 48, 40, W13_OFF, 3932160)
    vm = Cnt(a, "vmcnt", 63); ds = Cnt(a, "lgkmcnt", 15)
    ACC = 32; HB = 128; STR = 192; CSR = 16; SF = 176
    acc = lambda i, t: ACC + 4 * (3 * i + t)
    hbA = lambda s, i: HB + 24 * (s & 1) + 4 * i
    hbB = lambda s, i: HB + 8 * (s % 3) + 4 * i
    for i in range(5):
        if i == 4: a("s_add_u32 s21, s21, 4096")
        a(f"buffer_load_dwordx4 v[{SF+4*i}:{SF+4*i+3}], v2, s[44:47], s21 offen offset:{(i%4)*1024}"); vm.issue("sf")
    NW0 = 6
    for idx in range(NW0):
        if idx % 4 == 0: a(f"s_add_u32 s11, s9, {idx*1024}")
        a(f"buffer_load_dwordx4 a[{4*idx}:{4*idx+3}], v2, s[48:51], s11 offen offset:{(idx&3)*1024}"); vm.issue(0)
    for w in range(1, 4):
        a(f"s_cmp_eq_u32 s3, {w}")
        a(f"s_cbranch_scc1 K3_VAR{w}")
    q0 = list(vm.q)
    A2 = 176; HR = 16
    acc2 = lambda j, t: A2 + 4 * (5 * j + t)
    hm = lambda j, k: 32 + 4 * (12 * (j % 3) + k)
    PK = ENV("K3_PK", 0)
    addr = lambda rt: (8 + rt // 3, (rt % 3) * 20480)
    state_after = {}
    for var in range(4):
        if var: a.label(f"K3_VAR{var}")
        vm.q = list(q0); ds.q = []
        items = []
        for sp in range(0, 20, 2):
            fr = [(sp, i) for i in range(NA)] + [(sp + 1, i) for i in range(NA)]
            mine = [fr[(var + 4 * k)] for k in range(3)]
            ws = [("w", idx) for idx in range(3 * sp, 3 * sp + 6) if idx >= NW0]
            seq = []
            for k in range(3):
                seq.append(("h",) + mine[k]); seq += ws[2 * k: 2 * k + 2]
            items += seq
            if sp == 10: items.append(("cs",))
            if sp == ENV("K3_STPOS", 16): items.append(("st",))
        hB = [("h", 20 + s, 6 + i) for s in range(20) for i in range(2)][var::4] if False else []
        for sp in range(0, 20, 2):
            fr = [(20 + sp, 6), (20 + sp, 7), (21 + sp, 6), (21 + sp, 7)]
            hB.append(("h",) + fr[var])
        HBE = ENV("K3_HBE", 5)
        items += hB[:HBE]
        rest = hB[HBE:]
        for i in range(60):
            if i % 4 == 0 and rest: items.append(rest.pop(0))
            items.append(("w2", i))
        cur = [-1]
        def issue_item():
            if not items or len(vm.q) >= 60: return False
            it = items[0]
            if it[0] == "w2" and it[1] // 3 > cur[0]: return False
            items.pop(0)
            if it[0] == "h":
                n, rt = it[1], it[2]; off = rt * 20480 + (n % 20) * 1024
                a(f"s_mov_b32 m0, {off}")
                a(f"s_add_u32 s10, s20, {off}")
                a("buffer_load_dwordx4 v2, s[44:47], s10 offen lds"); vm.issue(n & ~1)
            elif it[0] == "w":
                idx = it[1]
                if idx % 4 == 0 or idx == NW0: a(f"s_add_u32 s11, s9, {(idx & ~3) * 1024}")
                a(f"buffer_load_dwordx4 a[{4*idx}:{4*idx+3}], v2, s[48:51], s11 offen offset:{(idx&3)*1024}"); vm.issue((idx // 3) & ~1)
            elif it[0] == "w2":
                s = it[1]
                if s % 4 == 0: a(f"s_add_u32 s11, s22, {s * 1024}")
                a(f"buffer_load_dwordx4 a[{4*s}:{4*s+3}], v2, s[68:71], s11 offen offset:{(s&3)*1024}"); vm.issue(("w2", s))
            elif it[0] == "cs":
                a("buffer_load_dwordx4 v[244:247], v2, s[52:55], s17 offen"); vm.issue("cs")
            else: st_loads()
            return True
        def st_loads():
            a("buffer_load_dwordx4 v[240:243], v2, s[72:75], s24 offen sc1"); vm.issue("st")
        for _ in range(ENV("K3_PRO", 9)): issue_item()
        srd(a, 52, 40, CS_OFF, 64*768); srd(a, 56, 40, HM_OFF, 6291456)
        srd(a, 68, 40, W2_OFF, 1966080); srd(a, 72, 40, ST_OFF, 0x8000)
        a("v_and_b32 v6, 15, v1")
        a("v_lshrrev_b32 v7, 4, v1")
        a("v_lshlrev_b32 v3, 4, v7")
        a("s_mul_i32 s17, s8, 768")
        a("v_lshlrev_b32 v5, 3, v6")
        a("s_lshl_b32 s24, s4, 10")
        a("v_mov_b32 v8, v2")
        a("v_add_u32 v9, 61440, v2")
        a("v_add_u32 v10, 122880, v2")
        SCB = var * 20480 + 4096
        a(f"v_add_u32 v3, {SCB + 1024}, v3")
        a(f"v_add_u32 v11, {SCB}, v5")
        a(f"v_add_u32 v12, {SCB}, v2")
        a("s_mov_b32 s16, 0x3f803f80")
        SCR = 7 * 20480 + 19 * 1024
        a(f"v_add_u32 v6, {SCR + var*128}, v5")
        a(f"v_add_u32 v7, {SCR}, v5")
        vm.wait("sf")
        for r in range(20):
            for k in range(2):
                d = 28 + 2 * (r % 2) + k
                a(f"v_dot2_f32_bf16 v{d}, v{SF+r}, {'s16' if k == 0 else 'v%d' % (SF+r)}, {'0' if r < 2 else 'v%d' % d}")
            if r % 2 == 1: issue_item()
        a("v_pk_add_f32 v[28:29], v[28:29], v[30:31]")
        for sw in ("v_permlane32_swap_b32", "v_permlane16_swap_b32"):
            for r in range(2): a(f"v_mov_b32 v{30+r}, v{28+r}")
            for r in range(2): a(f"{sw} v{28+r}, v{30+r}")
            a("v_pk_add_f32 v[28:29], v[28:29], v[30:31]")
        a("ds_write_b64 v6, v[28:29]")
        a("s_waitcnt lgkmcnt(0)")
        def hread(n, rt):
            r = hbA(n, rt) if n < 20 else hbB(n, rt - 6); va, off = addr(rt)
            a(f"ds_read_b128 v[{r}:{r+3}], v{va} offset:{off + (n%20)*1024}"); ds.issue((n, rt))
        vm.wait(0)
        stamp(a, 0)
        a("s_barrier")
        for i in range(NA): hread(0, i)
        P = 228
        side = [("ds", f"ds_read_b64 v[{P+2*i}:{P+2*i+1}], v7 offset:{i*128}") for i in range(4)]
        side += [("v", f"v_mov_b32 v{P+8}, {f2u(1.0/640):#x}"),
                 ("v", "s_lshl_b32 s13, s19, 3"), ("v", f"s_lshl_b64 s[32:33], {3 << (2*var)}, s13"),
                 ("v", "s_lshl_b32 s13, s4, 3"), ("v", "s_add_u32 s13, s13, s18"), ("v", "s_lshl_b32 s34, s13, 7"),
                 ("w", None),
                 ("v", f"v_add_f32 v{P}, v{P}, v{P+2}"), ("v", f"v_add_f32 v{P+1}, v{P+1}, v{P+3}"),
                 ("v", f"v_add_f32 v{P+4}, v{P+4}, v{P+6}"), ("v", f"v_add_f32 v{P+5}, v{P+5}, v{P+7}"),
                 ("v", f"v_add_f32 v{P}, v{P}, v{P+4}"), ("v", f"v_add_f32 v{P+1}, v{P+1}, v{P+5}")]
        side += [("v", st(P, P + 1, P + 2)) for st in stat_finalize_steps(P + 8)]
        side += [("x", None)]
        prep = ["s_mul_i32 s13, s4, 393216", "s_mul_i32 s14, s5, 3072", "s_add_u32 s60, s13, s14",
                "s_lshl_b32 s13, s4, 2", "s_lshr_b32 s14, s5, 2", "s_add_u32 s14, s14, s13", "s_lshl_b32 s14, s14, 8",
                "s_add_u32 s62, s14, 0x4000", f"s_add_u32 s13, s13, {var}", "s_lshl_b32 s13, s13, 8", "s_add_u32 s63, s13, 0x4000",
                "s_lshl_b32 s13, s4, 3", "s_mul_i32 s14, s19, 3", "s_add_u32 s23, s13, s14",
                "s_add_u32 s13, s13, s19", "s_add_u32 s25, s13, 6",
                "s_mul_i32 s13, s23, 49152", f"s_add_u32 s64, s13, {var*12288}", "s_add_u32 s65, s64, 49152", "s_add_u32 s66, s64, 98304",
                "s_mul_i32 s13, s25, 49152", f"s_add_u32 s67, s13, {var*12288}"]
        side += [("v", t) for t in prep]
        def do_side():
            if not side: return False
            k, t = side.pop(0)
            if k == "ds": a(t); ds.issue("sp")
            elif k == "w": ds.wait("sp")
            elif k == "v": a(t)
            else:
                a("s_mov_b64 exec, s[32:33]")
                a(f"buffer_store_dwordx2 v[{P}:{P+1}], v5, s[72:75], s34 offen sc1"); vm.issue("gs")
                a("s_mov_b64 exec, -1")
            return True
        pre = [f"v_mov_b32 v4, {f2u(-LOG2E):#x}"]
        pre += [f"v_rcp_f32 v{STR+4*i+2}, v{STR+4*i+1}" for i in range(8)]
        pre += [f"v_mul_f32 v{STR+4*i+1}, v{STR+4*i+1}, v{STR+4*i+1}" for i in range(8)]
        pre += [f"v_mul_f32 v{STR+4*i+2}, v{STR+4*i+2}, v4" for i in range(8)]
        def mfma(rt, t, n):
            s = n % 20
            c = f"v[{acc(rt,t)}:{acc(rt,t)+3}]"; w = 4 * (3 * s + t); r = hbA(n, rt) if n < 20 else hbB(n, rt - 6)
            a(f"v_mfma_f32_16x16x32_bf16 {c}, a[{w}:{w+3}], v[{r}:{r+3}], {c if s else 0}")
        need = lambda n: any(it[0] in "hw" and ((it[1] & ~1) == n if it[0] == "h" else ((it[1] // 3) & ~1) == n) for it in items if it[0] in ("h", "w"))
        for s in range(20):
            if s % 3 == 0: stamp(a, s // 3, "A")
            if s % 2 == 1:
                assert not need(s + 1), (var, s)
                vm.wait(s + 1)
                a("s_barrier")
            ds.wait((s, NA - 1))
            nl = ENV("K3_NLA", 5)
            slot = 0
            for i in range(NA):
                for t in range(3):
                    mfma(i, t, s)
                    if t == 0:
                        if s + 1 < 20: hread(s + 1, i)
                        elif i < 2: hread(20, 6 + i)
                        elif i < 4: hread(21, 4 + i)
                    elif (slot + var) % ENV("K3_LG", 2) == 0 and nl and i >= 0 and issue_item(): nl -= 1
                    else: do_side(); do_side()
                    if t: slot += 1
            if s == ENV("K3_STCHK", 15):
                while side: do_side()
                a("s_mov_b32 s35, 0")
                a.label(f"K3_STCHK{var}")
                assert ("st",) not in items
                vm.wait("st")
                saved_q = list(vm.q)
                a("v_min_u32 v6, v241, v243")
                a("v_cmp_eq_u32 vcc, 0, v6")
                a(f"s_cbranch_vccz K3_STOK{var}")
                a("s_add_u32 s35, s35, 1")
                a("s_cmp_ge_u32 s35, 0x4000")
                a(f"s_cbranch_scc1 K3_STOK{var}")
                a("s_sleep 2")
                st_loads()
                a("s_waitcnt vmcnt(0)")
                a(f"s_branch K3_STCHK{var}")
                a.label(f"K3_STOK{var}")
                vm.q = saved_q
                side.extend([("ds", "ds_write_b128 v12, v[240:243]"), ("ds", "ds_write_b128 v12, v[244:247] offset:1024")])
                side.extend(("ds", f"ds_read_b64 v[{STR+4*i}:{STR+4*i+1}], v11 offset:{i*128}") for i in range(8))
                side.extend(("ds", f"ds_read_b128 v[{CSR+4*t}:{CSR+4*t+3}], v3 offset:{t*64}") for t in range(3))
                side.extend([("v", "v_mov_b32 v28, 1"), ("v", "v_mov_b32 v29, 0")])
                for pp, rr in ((1, 224), (2, 176), (3, 240)):
                    side.extend(("ds", f"ds_read_b128 v[{rr+4*t}:{rr+4*t+3}], v3 offset:{pp*192 + t*64}") for t in range(3))
                side.append(("w", None))
                side.extend(("v", f"v_add_f32 v{CSR+r}, v{CSR+r}, v{224+r}") for r in range(12))
                side.extend(("v", f"v_add_f32 v{176+r}, v{176+r}, v{240+r}") for r in range(12))
                side.extend(("v", f"v_add_f32 v{CSR+r}, v{CSR+r}, v{176+r}") for r in range(12))
                side.extend(("v", t) for t in pre)
        while side: do_side()
        stamp(a, 1)
        def epi(i, pk):
            S = STR + 4 * i; O = 224 + 4 * (i % 2); out = []; seqs = []
            for t in range(3):
                c = acc(i, t); e = 232 + 2 * t + 6 * (i % 2); cs = CSR + 4 * t
                if pk:
                    seqs.append([
                    f"v_pk_fma_f32 v[{c}:{c+1}], v[{cs}:{cs+1}], v[{S}:{S+1}], v[{c}:{c+1}] op_sel_hi:[1,0,1] neg_lo:[0,1,0] neg_hi:[0,1,0]",
                    f"v_pk_fma_f32 v[{c+2}:{c+3}], v[{cs+2}:{cs+3}], v[{S}:{S+1}], v[{c+2}:{c+3}] op_sel_hi:[1,0,1] neg_lo:[0,1,0] neg_hi:[0,1,0]",
                    f"v_pk_mul_f32 v[{e}:{e+1}], v[{c}:{c+1}], v[{S+2}:{S+3}] op_sel_hi:[1,0]",
                    f"v_exp_f32 v{e}, v{e}", f"v_exp_f32 v{e+1}, v{e+1}",
                    f"v_pk_mul_f32 v[{c}:{c+1}], v[{c}:{c+1}], v[{c+2}:{c+3}]",
                    f"v_pk_fma_f32 v[{e}:{e+1}], v[{e}:{e+1}], v[{S}:{S+1}], v[{S}:{S+1}] op_sel:[0,1,1] op_sel_hi:[1,1,1]",
                    f"v_rcp_f32 v{e}, v{e}", f"v_rcp_f32 v{e+1}, v{e+1}",
                    f"v_pk_mul_f32 v[{c}:{c+1}], v[{c}:{c+1}], v[{e}:{e+1}]",
                    f"v_cvt_pk_bf16_f32 v{O+t}, v{c}, v{c+1}"])
                else:
                    seqs.append(
                    [f"v_fma_f32 v{c+r}, -v{S}, v{cs+r}, v{c+r}" for r in range(2)] +
                    [f"v_mul_f32 v{e+r}, v{c+r}, v{S+2}" for r in range(2)] +
                    [f"v_exp_f32 v{e}, v{e}", f"v_fma_f32 v{c+2}, -v{S}, v{cs+2}, v{c+2}",
                     f"v_exp_f32 v{e+1}, v{e+1}", f"v_fma_f32 v{c+3}, -v{S}, v{cs+3}, v{c+3}"] +
                    [f"v_mul_f32 v{c+r}, v{c+r}, v{c+2+r}" for r in range(2)] +
                    [f"v_fma_f32 v{e+r}, v{e+r}, v{S+1}, v{S+1}" for r in range(2)] +
                    [f"v_rcp_f32 v{e+r}, v{e+r}" for r in range(2)] +
                    [f"v_mul_f32 v{c+r}, v{c+r}, v{e+r}" for r in range(2)] +
                    [f"v_cvt_pk_bf16_f32 v{O+t}, v{c}, v{c+1}"])
            for j in range(len(seqs[0])):
                for sq in seqs: out.append(sq[j])
            va, off = addr(i)
            if var < 3: out.append(f"ds_write_b96 v{va}, v[{O}:{O+2}] offset:{off + var*1024}")
            else: out += [f"ds_write_b32 v{va}, v{O+t} offset:{off + t*1024 + 12}" for t in range(3)]
            return out
        sj = []
        for i in range(NA): sj += epi(i, PK)
        def emit_side(budget):
            while sj and budget > 0:
                t = sj.pop(0); a(t)
                if t.startswith("ds_"): ds.issue("e")
                budget -= 8 if t.split()[0] in TRANS else 4
        BB = ENV("K3_BB", 16)
        for s in range(20):
            n = 20 + s
            if s % 2 == 0 and s + 2 < 20:
                assert not need(n + 2), (var, s)
                vm.wait(n + 2)
                a("s_barrier")
            ds.wait((n, 7))
            for i in range(2):
                for t in range(3):
                    mfma(6 + i, t, n)
                    if t == 0 and s + 2 < 20: hread(n + 2, 6 + i)
                    if t == 1 and issue_item(): emit_side(BB - 8)
                    else: emit_side(BB)
            cur[0] = s
        stamp(a, 2)
        L1 = ENV("K3_L1", 30); L2 = ENV("K3_L2", 26)
        while sj:
            emit_side(ENV("K3_EB", 64))
            if len(items) > L1: issue_item()
        while len(items) > L1: assert issue_item()
        ds.wait("e")
        a("s_barrier")
        PB = 128
        fl = [(rt, ph) for rt in range(NA) for ph in range(3)]
        mine = (fl[var::4] + fl[var::4][:1])[:5]
        for k, (rt, ph) in enumerate(mine):
            va, off = addr(rt)
            a(f"ds_read_b128 v[{PB+4*k}:{PB+4*k+3}], v{va} offset:{off + ph*1024}"); ds.issue(("pb", k))
        for i in (6, 7): sj += epi(i, 1)
        emit_side(60)
        for k, (rt, ph) in enumerate(mine):
            ds.wait(("pb", k))
            a(f"s_add_u32 s10, s60, {rt*49152 + ph*1024}")
            a(f"buffer_store_dwordx4 v[{PB+4*k}:{PB+4*k+3}], v2, s[56:59], s10 offen sc1"); vm.issue("hsA")
            emit_side(ENV("K3_EB2", 60))
        while sj:
            emit_side(ENV("K3_EB", 64))
            if len(items) > L2: issue_item()
        while len(items) > L2: assert issue_item()
        ds.wait("e")
        a("s_barrier")
        fl = [(6, 0), (6, 1), (6, 2), (7, 0), (7, 1), (7, 2), (7, 1), (7, 2)][2*var:2*var+2]
        for k, (rt, ph) in enumerate(fl):
            va, off = addr(rt)
            a(f"ds_read_b128 v[{PB+20+4*k}:{PB+23+4*k}], v{va} offset:{off + ph*1024}"); ds.issue(("pc", k))
        for k, (rt, ph) in enumerate(fl):
            ds.wait(("pc", k))
            a(f"s_add_u32 s10, s60, {rt*49152 + ph*1024}")
            a(f"buffer_store_dwordx4 v[{PB+20+4*k}:{PB+23+4*k}], v2, s[56:59], s10 offen sc1"); vm.issue("hsB")
        stamp(a, 3)
        print("var", var, "items left", len(items), "q", len(vm.q))
        state_after[var] = (list(items), vm.q[vm.q.index("hsA"):])
        if var < 3: a("s_branch K3_JOIN")
    a.label("K3_JOIN")
    assert all(state_after[v] == state_after[0] for v in range(4)), [len(state_after[v][0]) for v in range(4)]
    setup = []
    S = setup.append
    S("s_mul_i32 s13, s3, 5120"); S("v_add_u32 v8, s13, v2"); S("v_add_u32 v9, 40960, v8")
    S("v_lshrrev_b32 v4, 5, v1"); S("v_lshlrev_b32 v4, 8, v4"); S("v_and_b32 v5, 15, v1"); S("v_lshl_add_u32 v4, v5, 4, v4")
    S("v_bfe_u32 v6, v1, 4, 1"); S("v_lshl_add_u32 v4, v6, 3, v4"); S("v_mul_u32_u24 v5, 1280, v5"); S("v_lshrrev_b32 v7, 4, v1")
    S("v_lshl_add_u32 v5, v7, 3, v5"); S("s_mul_i32 s16, s18, 2560"); S("s_mul_i32 s17, s18, 160")
    m5 = magic(5, 16, 8)
    RD = [10, 11, 12, 13, 14, 15]; RS_ = [24, 26, 27, 30, 31, 32]; OS = [33, 34, 36, 37, 60, 61]
    for q in range(6):
        if q < 4:
            S(f"s_add_u32 s12, s3, {4*q}")
            if q == 3: S("s_min_u32 s12, s12, 14")
            S(f"s_mul_i32 s13, s12, {m5}"); S("s_lshr_b32 s13, s13, 8")
            S("s_mul_i32 s14, s13, 5"); S("s_sub_u32 s12, s12, s14")
            S("s_mul_i32 s14, s13, 20480"); S("s_add_u32 s13, s13, s23")
        else:
            S("s_mov_b32 s12, s3" if q == 4 else "s_mov_b32 s12, 4")
            S("s_mov_b32 s14, 61440"); S("s_mov_b32 s13, s25")
        S("s_lshl_b32 s15, s12, 10"); S("s_add_u32 s15, s15, s14"); S(f"v_add_u32 v{RD[q]}, s15, v2")
        S("s_mul_i32 s13, s13, 20480")
        S("s_lshl_b32 s14, s12, 9"); S("s_add_u32 s14, s14, s16"); S(f"s_add_u32 s{RS_[q]}, s13, s14")
        S("s_lshl_b32 s14, s12, 5"); S("s_add_u32 s14, s14, s17"); S(f"s_add_u32 s{OS[q]}, s13, s14")
    for i, t in enumerate(setup):
        a(t)
        if i % 8 == 7: issue_item()
    srd(a, 52, 38, 0, SZ_X)
    def signal(hf):
        a("s_cmp_lg_u32 s3, 0")
        a(f"s_cbranch_scc1 K3_NOSIG{hf}")
        a("s_mov_b64 exec, 1")
        a(f"buffer_atomic_add v28, v29, s[72:75], s62 offen offset:{hf*128} sc1")
        a("s_mov_b64 exec, -1")
        a.label(f"K3_NOSIG{hf}")
    for _ in range(ENV("K3_W0", 4)): issue_item()
    vm.wait("hsA")
    a("s_barrier")
    signal(0)
    for _ in range(ENV("K3_W1", 3)): issue_item()
    vm.wait("hsB")
    a("s_barrier")
    signal(1)
    for q in range(6):
        a(f"buffer_load_dwordx2 v[{HR+2*q}:{HR+2*q+1}], v4, s[44:47], s{RS_[q]} offen"); vm.issue("res")
    while items: assert issue_item()
    def poll(tag, off):
        a("s_mov_b32 s35, 0")
        a.label(f"K3_P{tag}")
        a(f"buffer_load_dword v30, v29, s[72:75], s63 offen offset:{off} sc1")
        a("s_waitcnt vmcnt(0)")
        a("v_readfirstlane_b32 s14, v30")
        a("s_add_u32 s35, s35, 1")
        a("s_cmp_ge_u32 s14, 4")
        a(f"s_cbranch_scc1 K3_G{tag}")
        a("s_cmp_lt_u32 s35, 0x8000")
        a(f"s_cbranch_scc1 K3_P{tag}")
        a.label(f"K3_G{tag}")
        vm.q = []
    poll("A", 0)
    stamp(a, 4)
    hq = [(j, k) for j in range(3) for k in range(12)]
    def nxt():
        j, k = hq.pop(0)
        if k % 4 == 0: a(f"s_add_u32 s10, s{64+j}, {k*1024}")
        a(f"buffer_load_dwordx4 v[{hm(j,k)}:{hm(j,k)+3}], v2, s[56:59], s10 offen offset:{(k&3)*1024} sc1"); vm.issue((j, k))
    for _ in range(ENV("K3_NPA", 14)): nxt()
    wr = []
    def g2tile(j, hook=None):
        for k in range(12):
            while (j, k) in hq: nxt()
            vm.wait((j, k))
            for t in range(5):
                c = f"v[{acc2(j,t)}:{acc2(j,t)+3}]"; w = 4 * (5 * k + t)
                a(f"v_mfma_f32_16x16x32_bf16 {c}, a[{w}:{w+3}], v[{hm(j,k)}:{hm(j,k)+3}], {c if k else 0}")
                if t == 2 and wr and k >= 1: a(wr.pop(0))
                if t in (0, 3) and hq: nxt()
            if hook: hook(k)
        wr.extend(f"ds_write_b128 v{8 + j//2}, v[{acc2(j,t)}:{acc2(j,t)+3}] offset:{(j%2)*20480 + t*1024}" for t in range(5))
    g2tile(0)
    def hookB(k):
        if k == ENV("K3_PBK", 1):
            a("buffer_load_dword v30, v29, s[72:75], s63 offen offset:128 sc1"); vm.issue("pB")
        if k == ENV("K3_PBC", 5):
            while hq: nxt()
            sv = list(vm.q)
            vm.wait("pB"); sv = list(vm.q)
            a("v_readfirstlane_b32 s14, v30")
            a("s_cmp_ge_u32 s14, 4")
            a("s_cbranch_scc1 K3_GB")
            poll("B", 128)
            vm.q = sv
            stamp(a, 5)
            hq.extend((3, kk) for kk in range(12))
    g2tile(1, hookB)
    g2tile(2)
    def finalize(qs, R, U):
        out = []
        for n, q in enumerate(qs):
            for w in range(4):
                out.append(f"ds_read_b128 v[{R+16*n+4*w}:{R+16*n+4*w+3}], v{RD[q]} offset:{w*5120}")
        for n, q in enumerate(qs):
            for e in range(2):
                out.append(f"v_lshlrev_b32 v{U+4*n+2*e}, 16, v{HR+2*q+e}")
                out.append(f"v_and_b32 v{U+4*n+2*e+1}, 0xffff0000, v{HR+2*q+e}")
        for n, q in enumerate(qs):
            b = R + 16 * n
            out.append(("wait", n))
            for e in (0, 2):
                out.append(f"v_pk_add_f32 v[{b+e}:{b+e+1}], v[{b+e}:{b+e+1}], v[{b+4+e}:{b+5+e}]")
                out.append(f"v_pk_add_f32 v[{b+8+e}:{b+9+e}], v[{b+8+e}:{b+9+e}], v[{b+12+e}:{b+13+e}]")
            for e in (0, 2): out.append(f"v_pk_add_f32 v[{b+e}:{b+e+1}], v[{b+e}:{b+e+1}], v[{b+8+e}:{b+9+e}]")
            for e in range(2): out.append(f"v_cvt_pk_bf16_f32 v{b+4+e}, v{b+2*e}, v{b+2*e+1}")
            for e in range(2):
                out.append(f"v_lshlrev_b32 v{b+2*e}, 16, v{b+4+e}")
                out.append(f"v_and_b32 v{b+2*e+1}, 0xffff0000, v{b+4+e}")
            for e in (0, 2): out.append(f"v_pk_add_f32 v[{b+e}:{b+e+1}], v[{b+e}:{b+e+1}], v[{U+4*n+e}:{U+4*n+e+1}]")
            for e in range(2): out.append(f"v_cvt_pk_bf16_f32 v{b+4+e}, v{b+2*e}, v{b+2*e+1}")
            out.append(f"buffer_store_dwordx2 v[{b+4}:{b+5}], v5, s[52:55], s{OS[q]} offen")
        return out
    ds.q = []
    fin = []
    def emit_fin(n):
        for _ in range(n):
            if not fin: return
            t = fin.pop(0)
            if isinstance(t, tuple): ds.wait(("f", t[1])); continue
            a(t)
            if t.startswith("ds_read"): ds.issue(("f", emit_fin.c // 4)); emit_fin.c += 1
            if t.startswith("buffer"): vm.issue("o")
    emit_fin.c = 0
    def hook3(k):
        if k == ENV("K3_FK", 5):
            while wr: a(wr.pop(0))
            a("s_waitcnt lgkmcnt(0)")
            a("s_barrier")
            fin.extend(finalize([0, 1, 2, 3], 80, 144))
        if k >= ENV("K3_FK", 5): emit_fin(ENV("K3_FN", 14))
    g2tile(3, hook3)
    emit_fin(12)
    while wr: a(wr.pop(0)); ds.issue("w")
    emit_fin(1000)
    a("s_waitcnt lgkmcnt(0)"); ds.q = []
    stamp(a, 6)
    a("s_barrier")
    emit_fin.c = 0
    fin.extend(finalize([4, 5], 32, 64))
    emit_fin(1000)
    a.label("K3_END")
    a("s_endpgm")
```

```python
import os
from asmlib import *
from layout import *
from k1 import srd
import kf4, k36
ENV = lambda k, d: int(os.environ.get(k, d))
NAME = "sequential_preLN__ssm_conv_s4d__glu_gated_swiglu__prompt_kernel"

class Fused:
    def __init__(self, a): self.a = a; self.n = 0
    def setup(self):
        a = self.a
        srd(a, 92, kf4.WS, FLG_OFF, 352 * 128); srd(a, 28, kf4.WS, W13_OFF, 3932160)
        a("s_lshr_b32 s32, s2, 5")
        a("s_lshl_b32 s32, s32, 1")
        a("s_and_b32 s33, s2, 1")
        a("s_add_u32 s32, s32, s33")
        a("s_mul_i32 s34, s32, 3")
        a("s_lshr_b32 s34, s34, 1")
        a("s_lshl_b32 s34, s34, 9")
        a("s_lshl_b32 s32, s32, 2")
        a("s_add_u32 s32, s32, s3")
        a("s_mul_i32 s32, s32, 61440")
        a("v_and_b32 v8, 7, v1")
        a("v_lshlrev_b32 v8, 7, v8")
        a("v_lshlrev_b32 v2, 4, v1")
    def flag(self, sidx, base, tag):
        a = self.a
        a("s_cmp_lg_u32 s3, 0")
        a(f"s_cbranch_scc1 FLG_{tag}")
        srd(a, 92, kf4.WS, FLG_OFF, 352 * 128)
        a(f"s_lshl_b32 s35, {sidx}, 7")
        a("v_mov_b32 v12, s90")
        a("v_mov_b32 v13, s91")
        a(f"v_mov_b32 v14, {base*128}")
        a("s_mov_b64 exec, 1")
        a("buffer_store_dwordx2 v[12:13], v14, s[92:95], s35 offen sc1")
        a("s_mov_b64 exec, -1")
        a.label(f"FLG_{tag}")
    def poll_issue(self):
        self.a("buffer_load_dwordx2 v[10:11], v8, s[92:95], s34 offen sc1")
    def check(self, notready):
        a = self.a
        a("s_waitcnt vmcnt(0)")
        a("v_cmp_ne_u64 vcc, s[90:91], v[10:11]")
        a(f"s_cbranch_vccnz {notready}")
        a("s_mov_b32 s33, 1")
    def wait(self, tag):
        a = self.a
        a("s_mov_b32 s35, 0")
        a.label(f"W13W_{tag}")
        self.poll_issue()
        a("s_waitcnt vmcnt(0)")
        a("v_cmp_ne_u64 vcc, s[90:91], v[10:11]")
        a(f"s_cbranch_vccz W13K_{tag}")
        a("s_sleep 4")
        a("s_add_u32 s35, s35, 1")
        a("s_cmp_lt_u32 s35, 0x8000")
        a(f"s_cbranch_scc1 W13W_{tag}")
        a.label(f"W13K_{tag}")
    def load(self, idx):
        a = self.a
        if idx % 4 == 0 or idx == self.first: a(f"s_add_u32 s35, s32, {(idx & ~3) * 1024}")
        a(f"buffer_load_dwordx4 a[{4*idx}:{4*idx+3}], v2, s[28:31], s35 offen offset:{(idx&3)*1024} sc1")
    def load_one(self):
        if self.n >= 60: return False
        self.first = 0
        self.load(self.n); self.n += 1
        return True

def gen_all(a):
    a.raw(kernel_header(NAME))
    a("s_cmp_ge_u32 s2, 256")
    a("s_cbranch_scc1 K3_END")
    kf4.front_entry(a)
    F = Fused(a)
    a(f"s_cmp_lt_u32 s2, {kf4.N_LN}")
    a("s_cbranch_scc1 F_LN")
    kf4.conv_wg(a, F)
    a("s_cmp_eq_u32 s33, 0")
    a("s_cbranch_scc1 C_ALL")
    gs = lambda i: kf4._stamp(a, i) if os.environ.get("STSET") == "G" else None
    gs(0)
    n0 = F.n; F.first = n0
    NE = min(ENV("A_NE", 6), 60 - n0)
    for i in range(n0, n0 + NE): F.load(i)
    a(f"s_waitcnt vmcnt({NE})")
    gs(1)
    a("s_barrier")
    a(f"s_sub_u32 s5, s2, {kf4.N_LN}")
    F.flag("s5", 192, "H1")
    gs(2)
    F.first = n0 + NE
    for i in range(n0 + NE, 60): F.load(i)
    a("s_branch M_START")
    a.label("C_ALL")
    gs(6)
    a("s_waitcnt vmcnt(0)")
    a("s_barrier")
    a(f"s_sub_u32 s5, s2, {kf4.N_LN}")
    F.flag("s5", 192, "H2")
    a("s_branch M_LOADALL")
    a.label("F_LN")
    kf4.ln_wg(a, F)
    F.setup()
    a("s_waitcnt vmcnt(0)")
    a("s_barrier")
    F.flag("s2", 96, "W2")
    F.first = 0
    a.label("M_LOADALL")
    F.wait("C")
    for i in range(60): F.load(i)
    a.label("M_START")
    a("s_load_dwordx2 s[38:39], s[0:1], 88")
    a("s_load_dwordx2 s[40:41], s[0:1], 104")
    def gate():
        a("v_lshlrev_b32 v28, 7, v1")
        a("s_mov_b32 s35, 0")
        a("s_lshl_b32 s14, s3, 13")
        a(f"s_add_u32 s14, s14, {96*128}")
        gs(3)
        a.label("HW")
        a("buffer_load_dwordx2 v[32:33], v28, s[92:95], s14 offen sc1")
        a("s_waitcnt vmcnt(0)")
        a("v_cmp_ne_u64 vcc, s[90:91], v[32:33]")
        a("s_cbranch_vccz HOK")
        a(f"s_sleep {ENV('A_SLEEP', 4)}")
        a("s_add_u32 s35, s35, 1")
        a("s_cmp_lt_u32 s35, 0x8000")
        a("s_cbranch_scc1 HW")
        a.label("HOK")
        gs(4)
        a("s_barrier")
        kf4._stamp(a, 5) if os.environ.get("STSET", "x") in "FG" else None
    k36.mlp_body(a, True, gate)
```

```python
import os
from asmlib import *
from layout import *
from k1 import srd, cmul, interleave, Rec, wave_reduce_sum
from kp2 import w2_ids, w2_dma_setup, w2_out_setup
ENV = lambda k, d: int(os.environ.get(k, d))
N_LN = 96
_stamp = stamp
def stamp(a, i):
    if os.environ.get('STSET', 'F') == 'F': _stamp(a, i)
UB = 0; UPAD = 2048; SB = UPAD + 32768; RS = 4352; ROWP = 272; WREG = 2 * RS
KB = SB + 12 * WREG; KP = 4416; TB = KB + 4 * KP; PK = UB + UPAD
assert TB + 4 * 1536 <= 163840
STG = 65536; XP = 272
WS = 42
XQ_OFF = UR_OFF

def front_entry(a):
    code_prefetch(a, 4, 132, "F4")
    a("s_load_dwordx16 s[16:31], s[0:1], 0")
    a("s_load_dwordx8 s[32:39], s[0:1], 64")
    a("s_load_dwordx4 s[40:43], s[0:1], 96")
    a("v_lshrrev_b32 v2, 6, v0")
    a("v_and_b32 v1, 63, v0")
    a("v_readfirstlane_b32 s3, v2")

def gen_front4(a):
    a.raw(kernel_header("front_kernel"))
    a("s_cmp_ge_u32 s2, 256")
    a("s_cbranch_scc1 F_END")
    front_entry(a)
    a(f"s_cmp_lt_u32 s2, {N_LN}")
    a("s_cbranch_scc1 F_LN")
    conv_wg(a)
    a("s_endpgm")
    a.label("F_LN")
    ln_wg(a)
    a.label("F_END")
    a("s_endpgm")

def epoch_wait(a, tag, vr, vz):
    a("s_mov_b32 s8, 0")
    a.label(f"EPW{tag}")
    a(f"v_readfirstlane_b32 s9, v{vr}")
    a("s_cmp_lg_u32 s9, 0")
    a(f"s_cbranch_scc1 EPOK{tag}")
    a("s_add_u32 s8, s8, 1")
    a("s_cmp_ge_u32 s8, 0x8000")
    a(f"s_cbranch_scc1 EPOK{tag}")
    a(f"buffer_load_dwordx2 v[{vr}:{vr+1}], v{vz}, s[48:51], 0 offen sc1")
    a("s_waitcnt vmcnt(0)")
    a(f"s_branch EPW{tag}")
    a.label(f"EPOK{tag}")

def l_w13(a):
    m3 = magic(3, 256, 16)
    a("s_lshr_b32 s62, s2, 2")
    a("s_and_b32 s63, s2, 3")
    a("v_lshrrev_b32 v120, 3, v1")
    a("v_mul_u32_u24 v120, 3072, v120")
    a("v_and_b32 v3, 7, v1")
    a("v_lshl_add_u32 v120, v3, 4, v120")
    a(f"s_mul_i32 s52, s63, {5*98304}")
    a("s_lshl_b32 s53, s62, 7")
    a("s_add_u32 s52, s52, s53")
    a("s_and_b32 s53, s3, 1")
    a("s_mul_i32 s53, s53, 49152")
    a("s_add_u32 s52, s52, s53")
    a("s_cmp_lt_u32 s3, 2")
    a("s_cselect_b32 s44, s32, s34")
    a("s_cselect_b32 s45, s33, s35")
    a("s_mov_b32 s46, 1966080")
    a("s_mov_b32 s47, 0x20000")
    a("s_lshl_b32 s55, s3, 11")
    for n in range(5):
        for r in range(2):
            a(f"s_add_u32 m0, s55, {n*8192 + r*1024}")
            a(f"s_add_u32 s53, s52, {n*98304 + r*24576}")
            a("buffer_load_dwordx4 v120, s[44:47], s53 offen lds")
    for e in range(2):
        a("s_lshl_b32 s12, s62, 2")
        a("s_add_u32 s12, s12, s3")
        a("s_lshl_b32 s12, s12, 1")
        if e: a("s_add_u32 s12, s12, 1")
        a(f"s_mul_i32 s6, s12, {m3}")
        a("s_lshr_b32 s6, s6, 16")
        a(f"s_mul_i32 s{64+e}, s6, 58368")
        a("s_lshl_b32 s55, s12, 10")
        a(f"s_add_u32 s{64+e}, s{64+e}, s55")
        a(f"s_mul_i32 s55, s63, {5*3072}")
        a(f"s_add_u32 s{64+e}, s{64+e}, s55")
        a(f"s_mul_i32 s{66+e}, s6, {1024 - 192}")
        a("s_lshl_b32 s55, s12, 6")
        a(f"s_add_u32 s{66+e}, s{66+e}, s55")
        a("s_lshl_b32 s55, s63, 8")
        a(f"s_add_u32 s{66+e}, s{66+e}, s55")
    a("v_lshrrev_b32 v121, 4, v1")
    a("v_bfe_u32 v3, v1, 2, 2")
    a("v_lshl_add_u32 v121, v121, 3, v3")
    a("v_lshlrev_b32 v121, 7, v121")
    a("v_and_b32 v3, 1, v1")
    a("v_lshl_add_u32 v121, v3, 12, v121")
    a("v_bfe_u32 v3, v1, 1, 1")
    a("v_lshl_add_u32 v121, v3, 3, v121")
    a("s_lshl_b32 s14, s3, 5")
    a("v_add_u32 v121, s14, v121")
    a("v_bfe_u32 v122, v1, 3, 1")
    a("v_lshlrev_b32 v122, 3, v122")
    a("v_bfe_u32 v3, v1, 1, 1")
    a("v_lshl_add_u32 v122, v3, 2, v122")
    a("v_and_b32 v3, 1, v1")
    a("v_add_u32 v122, v122, v3")
    a("v_bfe_u32 v3, v1, 2, 1")
    a("v_lshl_add_u32 v122, v3, 1, v122")
    a("v_lshrrev_b32 v3, 4, v1")
    a("v_lshlrev_b32 v123, 4, v3")
    a("v_lshlrev_b32 v3, 8, v3")
    a("v_lshl_add_u32 v122, v122, 4, v3")
    srd(a, 44, WS, W13_OFF, 3932160); srd(a, 52, WS, CSQ_OFF, 64*1024)
    for i in range(4): a(f"v_mov_b32 v{8+i}, 0x3f803f80")
    a("s_mov_b32 s12, 0x00010001")
    a("s_mov_b32 s13, 0x00010001")
    a("s_waitcnt vmcnt(0)")
    a("s_barrier")
    for n in range(5):
        for e in range(2):
            for h in range(2):
                r = 64 + 4 * (2 * n + e)
                a(f"ds_read_b64_tr_b16 v[{r+2*h}:{r+2*h+1}], v121 offset:{n*8192 + h*512 + e*16}")
    for n in range(5):
        for e in range(2):
            r = 64 + 4 * (2 * n + e)
            a(f"s_waitcnt lgkmcnt({min(15, 18 - 4*n - 2*e)})")
            a(f"buffer_store_dwordx4 v[{r}:{r+3}], v122, s[44:47], s{64+e} offen sc1")
            c = f"v[{12+4*e}:{15+4*e}]"
            a(f"v_mfma_f32_16x16x32_bf16 {c}, v[{r}:{r+3}], v[8:11], {c if n else 0}")
            if n < 4: a(f"s_add_u32 s{64+e}, s{64+e}, 3072")
    a("s_mov_b64 exec, s[12:13]")
    for e in range(2):
        a(f"buffer_store_dwordx4 v[{12+4*e}:{15+4*e}], v123, s[52:55], s{66+e} offen sc1")
    a("s_mov_b64 exec, -1")

def ln_wg(a, fused=None):
    a("s_memrealtime s[60:61]")
    a("v_mov_b32 v6, 0")
    a("s_waitcnt lgkmcnt(0)")
    srd(a, 48, 40, 0, 8)
    a("s_cmp_ge_u32 s2, 64")
    a("s_cbranch_scc1 F_SPARE")
    a("s_lshl_b32 s4, s2, 3")
    a("s_lshl_b32 s5, s3, 1")
    a("s_add_u32 s4, s4, s5")
    a("s_mul_i32 s5, s4, 5120")
    a("v_lshlrev_b32 v4, 2, v1")
    a("v_add_u32 v5, 2560, v4")
    srd(a, 44, 16, 0, SZ_X)
    a("s_add_u32 s7, s5, 5120")
    for i in range(8):
        for q in range(5):
            a(f"buffer_load_dword v{8+5*i+q}, v{4 if i % 4 < 2 else 5}, s[44:47], s{5 if i < 4 else 7} offen offset:{(i%2)*1280 + q*256}")
    a("s_lshl_b32 s9, s2, 2")
    a("s_add_u32 s9, s9, s3")
    a("s_cmp_lg_u32 s9, 0")
    a("s_cbranch_scc1 F_NOEP")
    a("s_or_b32 s60, s60, 1")
    a("v_mov_b32 v50, s60")
    a("v_mov_b32 v51, s61")
    a("v_mov_b32 v52, 0")
    a("v_mov_b32 v53, 0")
    a("v_lshlrev_b32 v48, 3, v1")
    a("buffer_atomic_cmpswap_x2 v[50:53], v48, s[48:51], 0 offen sc1")
    a.label("F_NOEP")
    srd(a, 52, WS, ST_OFF, 0x8000)
    a("s_lshl_b32 s9, s9, 7")
    a("s_mov_b64 exec, 0xffffffff")
    a("buffer_store_dword v6, v4, s[52:55], s9 offen sc1")
    a("s_mov_b64 exec, -1")
    srd(a, 52, WS, S1_OFF, 16384); srd(a, 56, WS, XQ_OFF, 160*16384)
    a("s_mov_b32 s10, 0x05040100")
    a("s_mov_b32 s11, 0x07060302")
    a("v_lshrrev_b32 v54, 1, v1")
    a(f"v_mul_u32_u24 v54, {XP}, v54")
    a("v_and_b32 v55, 1, v1")
    a("v_lshl_add_u32 v54, v55, 4, v54")
    a("s_lshl_b32 s9, s3, 6")
    a(f"s_add_u32 s9, s9, {STG}")
    a("v_add_u32 v54, s9, v54")
    a("v_lshrrev_b32 v57, 4, v0")
    a("v_and_b32 v58, 15, v0")
    a(f"v_mul_u32_u24 v55, {XP}, v57")
    a("v_lshl_add_u32 v55, v58, 4, v55")
    a(f"v_add_u32 v55, {STG}, v55")
    a("v_lshlrev_b32 v56, 14, v57")
    a("v_lshl_add_u32 v56, v58, 4, v56")
    a("s_lshl_b32 s68, s2, 8")
    a("s_lshl_b32 s6, s4, 5")
    a(f"v_mov_b32 v7, {f2u(1.0/640):#x}")
    a("s_waitcnt vmcnt(0)")
    stamp(a, 0)
    a("buffer_load_dwordx2 v[50:51], v6, s[48:51], 0 offen sc1")
    for g in range(2):
        for q in range(5):
            d = 60 + 4 * (5 * g + q); b = 8 + 20 * g
            a(f"v_perm_b32 v{d}, v{b+5+q}, v{b+q}, s10")
            a(f"v_perm_b32 v{d+1}, v{b+15+q}, v{b+10+q}, s10")
            a(f"v_perm_b32 v{d+2}, v{b+5+q}, v{b+q}, s11")
            a(f"v_perm_b32 v{d+3}, v{b+15+q}, v{b+10+q}, s11")
            a(f"ds_write_b128 v54, v[{d}:{d+3}] offset:{q*32*XP + g*32}")
    a("s_waitcnt lgkmcnt(0)")
    a("s_barrier")
    for kk in range(10):
        a(f"ds_read_b128 v[{60+4*kk}:{63+4*kk}], v55 offset:{kk*16*XP}")
    for kk in range(10):
        a(f"s_add_u32 s69, s68, {kk*16*16384}")
        a(f"s_waitcnt lgkmcnt({9-kk})")
        a(f"buffer_store_dwordx4 v[{60+4*kk}:{63+4*kk}], v56, s[56:59], s69 offen sc1")
    stamp(a, 2)
    X = lambda i, q: 104 + 2 * (5 * i + q)
    SUM = lambda i: 184 + 2 * i
    MEAN = lambda i: 200 + 2 * i
    for i in range(8):
        for q in range(5):
            a(f"v_lshlrev_b32 v{X(i,q)}, 16, v{8+5*i+q}")
            a(f"v_and_b32 v{X(i,q)+1}, 0xffff0000, v{8+5*i+q}")
    for q in range(1, 5):
        for i in range(8):
            s = SUM(i); src = X(i, 0) if q == 1 else s
            a(f"v_pk_add_f32 v[{s}:{s+1}], v[{src}:{src+1}], v[{X(i,q)}:{X(i,q)+1}]")
    for i in range(8): a(f"v_add_f32 v{SUM(i)}, v{SUM(i)}, v{SUM(i)+1}")
    wave_reduce_sum(a, [SUM(i) for i in range(8)])
    for i in range(8): a(f"v_readlane_b32 s{60+i}, v{SUM(i)}, 63")
    for i in range(8): a(f"v_mul_f32 v{MEAN(i)}, s{60+i}, v7")
    for q in range(5):
        for i in range(8):
            x = X(i, q); m = MEAN(i)
            a(f"v_pk_add_f32 v[{x}:{x+1}], v[{x}:{x+1}], v[{m}:{m+1}] op_sel_hi:[1,0] neg_lo:[0,1] neg_hi:[0,1]")
    for q in range(5):
        for i in range(8):
            x = X(i, q); s = SUM(i)
            if q == 0: a(f"v_pk_mul_f32 v[{s}:{s+1}], v[{x}:{x+1}], v[{x}:{x+1}]")
            else: a(f"v_pk_fma_f32 v[{s}:{s+1}], v[{x}:{x+1}], v[{x}:{x+1}], v[{s}:{s+1}]")
    for i in range(8): a(f"v_add_f32 v{SUM(i)}, v{SUM(i)}, v{SUM(i)+1}")
    wave_reduce_sum(a, [SUM(i) for i in range(8)])
    for i in range(8): a(f"v_readlane_b32 s{60+i}, v{SUM(i)}, 63")
    R = lambda i: 16 + i
    G = lambda i: 24 + 4 * (i // 2) + (i % 2)
    steps = [
        lambda i: f"v_mul_f32 v{R(i)}, s{60+i}, v7",
        lambda i: f"v_cvt_pk_bf16_f32 v{R(i)}, v{R(i)}, v{R(i)}",
        lambda i: f"v_lshlrev_b32 v{R(i)}, 16, v{R(i)}",
        lambda i: f"v_add_f32 v{R(i)}, {f2u(1e-5):#x}, v{R(i)}",
        lambda i: f"v_cvt_pk_bf16_f32 v{R(i)}, v{R(i)}, v{R(i)}",
        lambda i: f"v_lshlrev_b32 v{R(i)}, 16, v{R(i)}",
        lambda i: f"v_sqrt_f32 v{R(i)}, v{R(i)}",
        lambda i: f"v_cvt_pk_bf16_f32 v{G(i)}, v{MEAN(i)}, v{R(i)}",
    ]
    for st in steps:
        for i in range(8): a(st(i))
    stamp(a, 1)
    a("s_waitcnt vmcnt(10)")
    epoch_wait(a, "L", 50, 6)
    for k in range(4):
        a(f"v_mov_b32 v{26+4*k}, v50")
        a(f"v_mov_b32 v{27+4*k}, v51")
    a("s_lshl_b32 s9, s3, 6")
    a(f"s_add_u32 s9, s9, {STG - 1024}")
    a("v_mov_b32 v40, s9")
    for k in range(4):
        a(f"ds_write_b128 v40, v[{24+4*k}:{27+4*k}] offset:{16*k}")
    a("v_lshlrev_b32 v41, 4, v1")
    a(f"v_add_u32 v42, {STG - 1024}, v41")
    a("s_lshl_b32 s6, s2, 8")
    a("s_waitcnt vmcnt(0) lgkmcnt(0)")
    stamp(a, 3)
    a("s_barrier")
    a("s_cmp_lg_u32 s3, 0")
    a("s_cbranch_scc1 F_W2")
    a("ds_read_b128 v[44:47], v42")
    a("s_mov_b64 exec, 0xffff")
    a("s_waitcnt lgkmcnt(0)")
    a("buffer_store_dwordx4 v[44:47], v41, s[52:55], s6 offen sc1")
    a("s_mov_b64 exec, -1")
    a("s_branch F_W2")
    a.label("F_SPARE")
    a("buffer_load_dwordx2 v[50:51], v6, s[48:51], 0 offen sc1")
    a("s_waitcnt vmcnt(0)")
    epoch_wait(a, "S", 50, 6)
    a.label("F_W2")
    a("v_readfirstlane_b32 s90, v50")
    a("v_readfirstlane_b32 s91, v51")
    if ENV("F_NOPACK", 0): a("s_endpgm")
    if ENV("F_PSLEEP", 0):
        for _ in range(ENV("F_PSLEEP", 0)): a("s_sleep 32")
    l_w13(a)
    a("s_mul_i32 s9, s2, 3")
    a("s_add_u32 s9, s9, s3")
    a("s_cmp_eq_u32 s3, 3")
    a("s_cselect_b32 s9, 240, s9")
    a("s_min_u32 s9, s9, 240")
    a("s_mov_b32 s40, s42"); a("s_mov_b32 s41, s43")
    w2_ids(a, 9)
    w2_dma_setup(a, 120, 121, 122, 123)
    a("s_cmp_eq_u32 s9, 240")
    a("s_cselect_b32 s50, 0, s50")
    a("s_lshl_b32 s8, s3, 13")
    a("s_add_u32 s8, s8, 40960")
    for i in range(8):
        a(f"s_add_u32 m0, s8, {i*1024}")
        a(f"s_add_u32 s70, s69, {(i>>1)*2560}")
        a(f"buffer_load_dwordx4 v{120 + (i&1)}, s[48:51], s70 offen lds")
    w2_out_setup(a, 0)
    a("s_cmp_eq_u32 s9, 240")
    a("s_cselect_b32 s54, 0, s54")
    a("v_add_u32 v6, s8, v6")
    if fused:
        a("s_waitcnt vmcnt(8)")
        a("s_barrier")
        fused.flag("s2", 0, "W")
    a("s_waitcnt vmcnt(0)")
    for i in range(8):
        for h in range(2):
            a(f"ds_read_b64_tr_b16 v[{16+4*i+2*h}:{17+4*i+2*h}], v6 offset:{h*1024 + i*32}")
    for i in range(8):
        a(f"s_waitcnt lgkmcnt({14-2*i})")
        a(f"buffer_store_dwordx4 v[{16+4*i}:{19+4*i}], v8, s[52:55], s{56+i} offen sc1")

def kgen_stream(m):
    B = 16 + 70 * m; L = m * 4 * WREG; A = 64 * m
    ADT = m < ENV('F_ADT', 2)
    if m == 2: L = 0
    wa, ra = (3, 4) if m < 2 else (234, 235)
    W = lambda t, off: f"ds_write_addtid_b32 v{t} offset:{off}" if ADT else f"ds_write_b32 v{wa}, v{t} offset:{off}"
    o = []
    a = o.append
    for r in range(4): a(f"v_lshlrev_b32 v{B+r}, 16, v{B+r}")
    W1, W8, W128, W16 = B + 4, B + 6, B + 8, B + 10
    tmp = [B + 12 + i for i in range(4)]; ringr = [B + 16 + 2 * i for i in range(4)]
    Q = {q: B + 36 + 2 * q for q in range(17)}
    a(f"v_mul_f32 v{B}, v{B}, v15")
    a(f"v_exp_f32 v{B}, v{B}")
    a(f"v_mul_f32 v{B+1}, v{B+1}, v14")
    a(f"v_mul_f32 v{Q[0]}, v{B+2}, v9")
    a(f"v_mul_f32 v{Q[0]+1}, v{B+3}, v9")
    a(f"v_cvt_pk_bf16_f32 v{B}, v{B}, v{B}")
    a(f"v_mul_f32 v{B+1}, {f2u(INV2PI):#x}, v{B+1}")
    a(f"v_lshlrev_b32 v{B}, 16, v{B}")
    a(f"v_mul_f32 v{B}, v{B}, v14")
    a(f"v_mul_f32 v{B}, v{B}, v15")
    E = B + 12; F = B + 16
    for k, p in enumerate((1.0, 8.0, 128.0)):
        a(f"v_mul_f32 v{F+k}, {f2u(p):#x}, v{B+1}")
        a(f"v_mul_f32 v{E+k}, {f2u(-p):#x}, v{B}")
    for k in range(3):
        a(f"v_fract_f32 v{F+k}, v{F+k}")
        a(f"v_exp_f32 v{E+k}, v{E+k}")
    for k in range(3):
        a(f"v_cos_f32 v{W1+2*k}, v{F+k}")
        a(f"v_sin_f32 v{W1+1+2*k}, v{F+k}")
    for k in range(3):
        a(f"v_mul_f32 v{W1+2*k}, v{W1+2*k}, v{E+k}")
        a(f"v_mul_f32 v{W1+1+2*k}, v{W1+1+2*k}, v{E+k}")
    tctr = [0]
    def put(r, reg, row, val, neg=False):
        t = tmp[tctr[0] % 4]; tctr[0] += 1
        r(f"v_cvt_pk_bf16_f32 v{t}, v{val}, {'-' if neg else ''}v{val+1}")
        r(W(t, L + reg*RS + row*ROWP))
    rb = Rec()
    rb(W(13, L))
    cmul(rb, W16, W8, W8)
    put(rb, 0, 1, W8, True); put(rb, 0, 2, W16, True)
    ring = {1: W8, 2: W16}
    for b in range(3, 16):
        d = ringr[b % 4]
        cmul(rb, d, ring[b-2], W16); ring[b] = d
        put(rb, 0, b, d, True)
    wc = {1: W1}; rw = Rec()
    for c, (x, y) in ((2, (1, 1)), (3, (2, 1)), (4, (2, 2)), (5, (4, 1)), (6, (4, 2)), (7, (4, 3))):
        wc[c] = B + 24 + 2 * (c - 2); cmul(rw, wc[c], wc[x], wc[y])
    rq = Rec()
    for q in range(1, 17): cmul(rq, Q[q], Q[q-1], W128)
    o += interleave(rb.l, rw.l + rq.l)
    def rd(which, reg):
        for s in range(4):
            a(("rd", (m, which), f"ds_read_b128 a[{A+16*which+4*s}:{A+16*which+4*s+3}], v{ra} offset:{L + reg*RS + s*64}"))
    def mf(t):
        for s in range(4):
            c = f"a[{192+4*t}:{195+4*t}]"
            a(("mf", (m, t + 1), f"v_mfma_f32_16x16x32_bf16 {c}, a[{A+16*(t+1)+4*s}:{A+16*(t+1)+4*s+3}], a[{A+4*s}:{A+4*s+3}], {c}"))
    rd(0, 0)
    pc = [0]
    def run(jobs):
        for reg, row, x, y in jobs:
            if y is None: put(a, reg, row, x); continue
            d = ringr[pc[0] % 4]; pc[0] += 1
            cmul(a, d, x, y); put(a, reg, row, d)
    run([(1, 8*ap + c, Q[ap], wc[c] if c else None) for ap in range(2) for c in range(8)])
    rd(1, 1)
    run([(0, 4*ap + c, Q[2+ap], wc[2*c] if c else None) for ap in range(2) for c in range(4)])
    mf(0)
    run([(0, 8 + 2*ap + c, Q[4+ap], wc[4] if c else None) for ap in range(4) for c in range(2)])
    rd(2, 0)
    for q in range(8, 17): put(a, 1, q - 8, Q[q])
    rd(3, 1)
    mf(1); mf(2)
    return o

def kgen_all(a, hooks):
    ds = Cnt(a, "lgkmcnt", 15)
    streams = [kgen_stream(m) for m in range(3)]
    lag = ENV("F_LAG", 12)
    seq = []
    n = max(len(s) + i * lag for i, s in enumerate(streams))
    for k in range(n):
        for i, s in enumerate(streams):
            j = k - i * lag
            if 0 <= j < len(s):
                if j == 0 and i: seq.append(("vm", i))
                seq.append(s[j])
    for idx, e in enumerate(seq):
        if idx in hooks: hooks[idx]()
        if isinstance(e, tuple):
            if e[0] == "vm": a(f"s_waitcnt vmcnt({8 - 4*e[1]})"); continue
            if e[0] == "rd": a(e[2]); ds.issue(e[1]); continue
            ds.wait(e[1]); a(e[2]); continue
        a(e)
        if e.startswith("ds_"): ds.issue("w")
    return len(seq)

NB = 120
def st_loads(a):
    a(f"buffer_load_dwordx2 v[{NB}:{NB+1}], v229, s[48:51], 0 offen sc1")
    for g in range(2):
        b = NB + 4 + 12 * g
        a(f"buffer_load_dwordx4 v[{b}:{b+3}], v228, s[44:47], 0 offen offset:{32*g} sc1")
        a(f"buffer_load_dwordx4 v[{b+4}:{b+7}], v228, s[44:47], 0 offen offset:{32*g+16} sc1")

def conv_wg(a, fused=None):
    a(f"s_sub_u32 s5, s2, {N_LN}")
    a("s_and_b32 s6, s5, 7")
    a("s_mul_i32 s6, s6, 20")
    a("s_lshr_b32 s4, s5, 3")
    a("s_add_u32 s4, s4, s6")
    a("s_lshl_b32 s7, s4, 2")
    a("s_add_u32 s7, s7, s3")
    a("s_mul_i32 s8, s7, 384")
    a("v_lshlrev_b32 v2, 1, v1")
    a("v_add_u32 v2, s8, v2")
    a("s_lshr_b32 s9, s7, 1")
    a("s_lshl_b32 s9, s9, 2")
    a("s_lshl_b32 s12, s4, 3")
    a("s_waitcnt lgkmcnt(0)")
    a("s_load_dword s10, s[26:27], s9")
    a("s_load_dwordx2 s[68:69], s[28:29], s12")
    for m in range(3):
        for r in range(4):
            a(f"global_load_ushort v{16+70*m+r}, v2, s[{18+2*r}:{19+2*r}] offset:{128*m}")
    srd(a, 44, WS, S1_OFF, 16384); srd(a, 48, 40, 0, 8); srd(a, 56, WS, H_OFF, SZ_X); srd(a, 36, WS, XQ_OFF, 160*16384)
    a("s_mul_i32 s11, s3, 1536")
    a(f"s_add_u32 s11, s11, {TB}")
    a(f"s_mul_i32 s13, s3, {KP}")
    a(f"s_add_u32 s13, s13, {KB}")
    a("v_lshlrev_b32 v2, 4, v1")
    a("v_add_u32 v226, s13, v2")
    a("v_lshrrev_b32 v227, 3, v0")
    a("v_lshlrev_b32 v227, 8, v227")
    a("s_bfe_u32 s9, s4, 0x20002")
    a("s_lshl_b32 s9, s9, 6")
    a("v_add_u32 v227, s9, v227")
    a("v_lshlrev_b32 v228, 6, v0")
    a("v_mov_b32 v229, 0")
    a("s_mov_b32 s15, 8192")
    for i in range(12): a(f"v_accvgpr_write_b32 a{192+i}, 0")
    a("v_and_b32 v5, 15, v1")
    a("v_lshrrev_b32 v6, 4, v1")
    a("v_lshrrev_b32 v236, 1, v6")
    a("v_lshlrev_b32 v236, 8, v236")
    a("v_and_b32 v7, 1, v6")
    a("v_lshl_add_u32 v236, v7, 3, v236")
    a("v_lshl_add_u32 v236, v5, 4, v236")
    a("v_add_u32 v236, s11, v236")
    a("v_cmp_gt_u32 vcc, 2, v6")
    a("v_lshlrev_b32 v237, 3, v5")
    a("v_lshlrev_b32 v7, 2, v5")
    a("v_mov_b32 v238, 64")
    a("v_cndmask_b32 v237, v7, v237, vcc")
    a("v_cndmask_b32 v238, v238, 4, vcc")
    a("v_lshl_add_u32 v237, v6, 7, v237")
    a("v_add_u32 v237, s11, v237")
    a("v_add_u32 v238, v238, v237")
    a("v_lshlrev_b32 v239, 1, v5")
    a("v_lshl_add_u32 v239, v6, 7, v239")
    a("v_add_u32 v239, s11, v239")
    a("v_cmp_gt_u32 s[6:7], 32, v1".replace("s[6:7]", "vcc"))
    a("v_lshlrev_b32 v240, 4, v1")
    a("v_lshlrev_b32 v7, 3, v1")
    a("v_add_u32 v7, 256, v7")
    a("v_cndmask_b32 v240, v7, v240, vcc")
    a("v_add_u32 v240, s11, v240")
    a("v_lshlrev_b32 v241, 2, v1")
    a("v_add_u32 v241, s11, v241")
    a("v_lshlrev_b32 v242, 1, v1")
    a("v_add_u32 v242, s11, v242")
    a("v_mov_b32 v7, 0x01000100"); a("v_mov_b32 v8, 0x03020100"); a("v_cndmask_b32 v243, v7, v8, vcc")
    a("v_mov_b32 v7, 0x05040302"); a("v_mov_b32 v8, 0x07060504"); a("v_cndmask_b32 v244, v7, v8, vcc")
    a("v_mov_b32 v7, 0x01000100"); a("v_cndmask_b32 v245, v7, v8, vcc")
    a("v_and_b32 v7, 1, v1")
    a("v_cmp_eq_u32 vcc, 0, v7")
    a("v_mov_b32 v7, 0x05040504"); a("v_mov_b32 v8, 0x05040100"); a("v_cndmask_b32 v246, v7, v8, vcc")
    a("v_lshrrev_b32 v10, 4, v1")
    a("v_bfe_u32 v11, v1, 2, 2")
    a("v_and_b32 v12, 3, v1")
    a("v_lshlrev_b32 v247, 6, v10")
    a("v_lshl_add_u32 v247, v11, 3, v247")
    a("v_lshl_add_u32 v247, v12, 5, v247")
    a("v_add_u32 v247, s13, v247")
    a("s_lshr_b32 s14, s3, 1")
    a("s_and_b32 s12, s3, 1")
    a("s_lshl_b32 s12, s12, 3")
    for h in range(2):
        a(f"v_add_u32 v6, {44 - 4*h}, v12")
        a("v_sub_u32 v6, v6, v11")
        a("v_lshlrev_b32 v7, 3, v10")
        a("v_sub_u32 v6, v6, v7")
        a("v_lshrrev_b32 v7, 2, v6")
        a("v_add_u32 v7, s14, v7")
        a("v_and_b32 v7, 3, v7")
        a("v_lshlrev_b32 v6, 6, v6")
        a("v_lshl_add_u32 v6, v7, 4, v6")
        a(f"v_add_u32 v{248+h}, s12, v6")
    a("v_and_b32 v250, 1, v1")
    a("v_lshlrev_b32 v250, 7, v250")
    a("v_and_b32 v6, 62, v1")
    a("v_add3_u32 v250, s13, v250, v6")
    a("v_lshrrev_b32 v6, 1, v0")
    a("v_lshlrev_b32 v7, 7, v0")
    a(f"v_add_u32 v7, {UB + UPAD}, v7")
    for n in range(4):
        a(f"v_add_u32 v8, {n}, v6")
        a("v_and_b32 v8, 3, v8")
        a(f"v_lshl_add_u32 v{251+n}, v8, 4, v7")
    a(f"s_mul_i32 s8, s3, {WREG}")
    a(f"s_add_u32 s8, s8, {SB}")
    a("s_mov_b32 s14, s8")
    a("v_lshlrev_b32 v3, 2, v1")
    a("v_add_u32 v3, s8, v3")
    a("v_and_b32 v4, 15, v1")
    a(f"v_mul_u32_u24 v4, {ROWP}, v4")
    a("v_lshrrev_b32 v5, 4, v1")
    a("v_lshl_add_u32 v4, v5, 4, v4")
    a("v_add_u32 v4, s8, v4")
    a(f"v_add_u32 v234, {8*WREG}, v3")
    a(f"v_add_u32 v235, {8*WREG}, v4")
    a("s_mov_b32 m0, s14")
    a("v_mov_b32 v7, 0")
    a("v_lshlrev_b32 v6, 3, v0")
    a("v_mov_b32 v8, 0")
    a(f"ds_write_b64 v6, v[7:8] offset:{UB}".replace("v[7:8]", "v[6:7]") if False else "v_mov_b32 v9, 0")
    a(f"ds_write_b64 v6, v[8:9] offset:{UB}")
    a("v_and_b32 v6, 31, v1")
    a("v_lshlrev_b32 v6, 2, v6")
    a("v_add_u32 v6, s13, v6")
    a("ds_write_b32 v6, v7")
    a("s_waitcnt lgkmcnt(0)")
    a("s_lshl_b32 s9, s10, 16")
    a("s_and_b32 s10, s10, 0xffff0000")
    a("s_bitcmp1_b32 s7, 0")
    a("s_cselect_b32 s10, s10, s9")
    for e in range(2):
        a(f"s_lshl_b32 s{64+2+2*e}, s{68+e}, 16".replace(f"s{66+2*e}", f"s{84+2*e}"))
        a(f"s_and_b32 s{85+2*e}, s{68+e}, 0xffff0000")
    a(f"v_mov_b32 v15, {f2u(LOG2E):#x}")
    a("v_mul_f32 v14, s10, v15")
    a("v_exp_f32 v14, v14")
    a("v_cvt_pk_bf16_f32 v14, v14, v14")
    a("v_lshlrev_b32 v14, 16, v14")
    a("v_add_f32 v9, v14, v14")
    a("v_mov_b32 v13, 0x3f80")
    if ENV("F_ST5", 0): stamp(a, 6)
    a("s_waitcnt vmcnt(8)")
    stamp(a, 0)
    if os.environ.get("F_DROP"): a.drop = os.environ["F_DROP"].split(",")
    if os.environ.get("F_DROP"): a.drop = os.environ["F_DROP"].split(",")
    kgen_all(a, {})
    a.drop = None
    a.drop = None
    stamp(a, 1)
    for i in range(12): a(f"v_accvgpr_read_b32 v{16+i}, a{192+i}")
    st_loads(a)
    for t in range(3):
        a(f"v_cvt_pk_bf16_f32 v{28+2*t}, v{16+4*t}, v{17+4*t}")
        a(f"v_cvt_pk_bf16_f32 v{29+2*t}, v{18+4*t}, v{19+4*t}")
    a("ds_write_b64 v236, v[28:29]")
    a("ds_write_b32 v237, v30 offset:512")
    a("ds_write_b32 v238, v31 offset:512")
    a("ds_write_b16 v239, v32 offset:1024")
    a("ds_write_b16_d16_hi v239, v32 offset:1056")
    a("ds_write_b16 v239, v33 offset:1088")
    a("ds_write_b16_d16_hi v239, v33 offset:1120")
    a("ds_read2_b64 v[40:43], v240 offset0:0 offset1:1")
    a("ds_read2_b32 v[44:45], v241 offset0:192 offset1:193")
    for r in range(2):
        a(f"ds_read_u16 v{46+2*r}, v242 offset:{1024 + 128*r}")
        a(f"ds_read_u16 v{47+2*r}, v242 offset:{1026 + 128*r}")
    for i, r in enumerate((247, 248, 249, 250, 251, 252, 253, 254)): a(f"v_mov_b32 v{16+i}, v{r}")
    a("v_mov_b32 v3, v10"); a("v_mov_b32 v4, v11"); a("v_mov_b32 v5, v12")
    a("s_mov_b32 s8, 0x01000100")
    a("s_mov_b32 s9, 0x03020100")
    a("s_mov_b32 s10, 0x03020302")
    a("s_mov_b32 s12, 0x05040302")
    a("v_cmp_gt_u32 vcc, 32, v1")
    a("s_waitcnt lgkmcnt(5)")
    a("v_perm_b32 v52, v40, v40, v243")
    a("v_perm_b32 v53, v41, v40, v244")
    a("v_perm_b32 v54, v42, v41, v245")
    a("v_perm_b32 v55, v42, v41, s12")
    a("v_cndmask_b32 v55, v55, v43, vcc")
    a("ds_write_b128 v226, v[52:55] offset:128")
    a("s_waitcnt lgkmcnt(5)")
    a("v_perm_b32 v56, v44, v44, s8")
    a("v_mov_b32 v57, v44")
    a("v_perm_b32 v58, v44, v44, s10")
    a("v_perm_b32 v59, v45, v45, s8")
    a("ds_write_b128 v226, v[56:59] offset:1152")
    a("s_waitcnt lgkmcnt(2)")
    for r in range(2):
        d = 60 + 4 * r
        a(f"v_perm_b32 v{d}, v{46+2*r}, v{46+2*r}, s8")
        a(f"v_mov_b32 v{d+1}, v{d}")
        a(f"v_perm_b32 v{d+2}, v{47+2*r}, v{46+2*r}, v246")
        a(f"v_perm_b32 v{d+3}, v{47+2*r}, v{47+2*r}, s8")
        a(f"ds_write_b128 v226, v[{d}:{d+3}] offset:{128 + (2+r)*1024}")
    FR = 24; GR = 88; NG = 8; AR = 120; T2 = 248
    for Q in range(15, -1, -1):
        for h in range(2):
            a(f"ds_read_b64_tr_b16 v[{FR+4*Q+2*h}:{FR+4*Q+2*h+1}], v16 offset:{32 + 256*Q + 32*h}")
    a("s_lshl_b32 s9, s4, 14")
    a("s_add_u32 s12, s9, 8192")
    a("s_mov_b32 s52, 0")
    a.label("F_STW")
    a("s_waitcnt vmcnt(0)")
    a(f"v_cmp_eq_u32 vcc, 0, v{NB}")
    for off in (6, 10, 18, 22):
        a(f"v_cmp_ne_u64 s[10:11], v[{NB}:{NB+1}], v[{NB+off}:{NB+off+1}]")
        a("s_or_b64 vcc, vcc, s[10:11]")
    a("s_cbranch_vccz F_STOK")
    a("s_add_u32 s52, s52, 1")
    a("s_cmp_ge_u32 s52, 0x8000")
    a("s_cbranch_scc1 F_STOK")
    a(f"s_sleep {ENV('F_SLEEP', 2)}")
    st_loads(a)
    a("s_branch F_STW")
    a.label("F_STOK")
    stamp(a, 2)
    a(f"v_readfirstlane_b32 s90, v{NB}")
    a(f"v_readfirstlane_b32 s91, v{NB+1}")
    XR = 152
    for g in range(2):
        for hh in range(2):
            a(f"buffer_load_dwordx4 v[{XR+8*g+4*hh}:{XR+8*g+4*hh+3}], v228, s[36:39], s9 offen offset:{32*g + 16*hh} sc1")
    RSr = 176; NM = 184; X = lambda g, c, h: 192 + 16 * g + 4 * c + 2 * h; U = lambda c, h: 224 + 4 * c + 2 * h
    Gs = lambda g, i: NB + 4 + 12 * g + (0, 1, 4, 5)[i]
    for g in range(2):
        for i in range(4): a(f"v_and_b32 v{RSr+4*g+i}, 0xffff0000, v{Gs(g,i)}")
    for i in range(8): a(f"v_rcp_f32 v{RSr+i}, v{RSr+i}")
    for g in range(2):
        for i in range(4): a(f"v_lshlrev_b32 v{NM+4*g+i}, 16, v{Gs(g,i)}")
    for i in range(8): a(f"v_mul_f32 v{NM+i}, -v{NM+i}, v{RSr+i}")
    a("s_mov_b32 s70, 0"); a("s_mov_b32 s71, 0x80000000")
    a("s_mov_b32 s72, 0"); a("s_mov_b32 s73, 0xc0000000")
    a("s_mov_b32 s74, 0"); a("s_mov_b32 s75, 0xe0000000")
    for g in range(2):
        a(f"s_waitcnt vmcnt({2 - 2*g})")
        for c in range(4):
            for h in range(2):
                a(f"v_lshlrev_b32 v{X(g,c,h)}, 16, v{XR+8*g+2*c+h}")
                a(f"v_and_b32 v{X(g,c,h)+1}, 0xffff0000, v{XR+8*g+2*c+h}")
        for c in range(4):
            for h in range(2):
                a(f"v_pk_fma_f32 v[{U(c,h)}:{U(c,h)+1}], v[{X(g,c,h)}:{X(g,c,h)+1}], v[{RSr+4*g+2*h}:{RSr+4*g+2*h+1}], v[{NM+4*g+2*h}:{NM+4*g+2*h+1}]")
        O = 240
        for c in range(4):
            for h in range(2):
                a(f"v_cvt_pk_bf16_f32 v{O+2*c+h}, v{U(c,h)}, v{U(c,h)+1}")
            if c % 2: a(f"ds_write_b128 v{20+c//2}, v[{O+2*c-2}:{O+2*c+1}] offset:{g*64}")
        for c in range(4):
            o = c % 2
            for h in range(2):
                a(f"v_pk_fma_f32 v[{X(g,c,h)}:{X(g,c,h)+1}], v[{U(c,h)}:{U(c,h)+1}], s[{84+2*(c//2)}:{85+2*(c//2)}], v[{X(g,c,h)}:{X(g,c,h)+1}] op_sel:[0,{o},0] op_sel_hi:[1,{o},1]")
    for par in range(2):
        for c in range(4):
            for g in range(2):
                a(f"v_cvt_pk_bf16_f32 v{XR+8*par+2*c+g}, v{X(g,c,0)+par}, v{X(g,c,1)+par}")
            if c % 2: a(f"ds_write_b128 v{22+c//2}, v[{XR+8*par+2*c-2}:{XR+8*par+2*c+1}] offset:{par*64}")
    a("s_waitcnt lgkmcnt(0)")
    stamp(a, 3)
    a("s_barrier")
    ds = Cnt(a, "lgkmcnt", 15)
    acc = lambda T: AR + 4 * T
    def gread(d):
        g = GR + 4 * (d % NG)
        for h in range(2):
            a(f"ds_read_b64_tr_b16 v[{g+2*h}:{g+2*h+1}], v{17+h} offset:{UB + 1024*d}"); ds.issue(("G", d))
    PDG = 6
    for d in range(PDG): gread(d)
    started = set(); pend = []
    def combine(T):
        t = T2 + 4 * (T % 2); D = acc(T); out = []
        for e, m in ((3, 74), (2, 72), (1, 70)):
            prev = f"v{acc(T-1)+e}" if T > 0 else "0"
            out.append(f"v_cndmask_b32 v{t+e}, v{D+e}, {prev}, s[{m}:{m+1}]")
        out.append(f"v_add_f32_dpp v{t+2}, v{t+3}, v{t+2} wave_ror:1 row_mask:0xf bank_mask:0xf")
        out.append(f"v_add_f32_dpp v{t+1}, v{t+2}, v{t+1} wave_ror:1 row_mask:0xf bank_mask:0xf")
        out.append(f"v_add_f32_dpp v{t}, v{t+1}, v{D} wave_ror:1 row_mask:0xf bank_mask:0xf")
        out.append(f"v_cvt_pk_bf16_f32 v{t}, v{t}, v{t}")
        out.append(f"ds_write_b16 v19, v{t} offset:{128 + (T>>1)*256 + (T&1)*64}")
        return out
    def side(n):
        for _ in range(n):
            if pend:
                t = pend.pop(0); a(t)
                if t.startswith("ds_"): ds.issue("Y")
    def run_deltas(d0, d1, hook=None):
        for d in range(d0, d1):
            ds.wait(("G", d))
            g = GR + 4 * (d % NG)
            for T in range(d, 32, 2):
                Q = (T - d) // 2
                c = f"v[{acc(T)}:{acc(T)+3}]"
                a(f"v_mfma_f32_16x16x32_bf16 {c}, v[{FR+4*Q}:{FR+4*Q+3}], v[{g}:{g+3}], {c if d >= 2 else 0}")
                if not (hook and hook()): side(1 if d < 20 else 2)
            if d + PDG < 32: gread(d + PDG)
            if d >= 1: pend.extend(combine(d - 1))
        if d1 == 32:
            pend.extend(combine(31)); side(200)
    if not fused:
        run_deltas(0, 32)
    else:
        D1 = ENV("F_D1", 6); D2 = ENV("F_D2", 10)
        fused.setup()
        run_deltas(0, D1)
        fused.poll_issue()
        run_deltas(D1, D2)
        fused.check("F_NOW13")
        sv = (list(pend), list(ds.q))
        cnt = [0]
        def hook():
            cnt[0] += 1
            return cnt[0] % ENV("F_WGAP", 6) == 0 and fused.load_one()
        run_deltas(D2, 32, hook)
        a("s_branch F_CONVDONE")
        a.label("F_NOW13")
        pend[:] = sv[0]; ds.q = sv[1]
        a("s_mov_b32 s33, 0")
        run_deltas(D2, 32)
        a.label("F_CONVDONE")
    a(f"v_mul_u32_u24 v16, {KP}, v4")
    a("v_lshl_add_u32 v16, v3, 5, v16")
    a("v_lshl_add_u32 v16, v5, 3, v16")
    a("s_lshl_b32 s13, s3, 8")
    a(f"s_add_u32 s13, s13, {KB}")
    a("v_add_u32 v16, s13, v16")
    a("v_lshl_add_u32 v6, v3, 2, v5")
    a("v_lshrrev_b32 v7, 1, v6")
    a("v_lshlrev_b32 v6, 7, v6")
    a("v_and_b32 v20, 1, v4")
    a("v_lshl_add_u32 v6, v20, 3, v6")
    a("s_lshl_b32 s12, s3, 11")
    a("v_add_u32 v6, s12, v6")
    a("v_lshrrev_b32 v20, 1, v4")
    a("v_add3_u32 v7, v7, v20, 2")
    a("v_and_b32 v7, 3, v7")
    a("v_lshl_add_u32 v17, v7, 4, v6")
    a("v_lshrrev_b32 v19, 3, v1")
    a("v_mul_u32_u24 v19, 20480, v19")
    a("v_and_b32 v6, 7, v1")
    a("v_lshl_add_u32 v19, v6, 4, v19")
    a("s_mul_i32 s13, s3, 163840")
    a("s_lshr_b32 s14, s4, 3")
    a("s_lshl_b32 s14, s14, 10")
    a("s_add_u32 s13, s13, s14")
    a("s_and_b32 s14, s4, 1")
    a("s_lshl_b32 s14, s14, 9")
    a("s_add_u32 s13, s13, s14")
    a("s_bfe_u32 s14, s4, 0x20001")
    a("s_lshl_b32 s14, s14, 7")
    a("s_add_u32 s13, s13, s14")
    a("s_waitcnt lgkmcnt(0)")
    stamp(a, 4)
    a("s_barrier")
    for i in range(4):
        for par in range(2):
            a(f"ds_read_b64_tr_b16 v[{24+8*i+2*par}:{25+8*i+2*par}], v16 offset:{128 + i*1024 + par*128}")
            a(f"ds_read_b64_tr_b16 v[{28+8*i+2*par}:{29+8*i+2*par}], v17 offset:{UB + UPAD + i*8192 + par*64}")
    HSC = " sc1" if (ENV("F_HSC", 0) or fused) else ""
    for i in range(4):
        Y = 24 + 8 * i; A = 64 + 16 * i
        a(f"s_waitcnt lgkmcnt({12 - 4*i})")
        for q in range(4):
            a(f"v_lshlrev_b32 v{A+2*q}, 16, v{Y+q}")
            a(f"v_and_b32 v{A+2*q+1}, 0xffff0000, v{Y+q}")
            a(f"v_lshlrev_b32 v{A+8+2*q}, 16, v{Y+4+q}")
            a(f"v_and_b32 v{A+8+2*q+1}, 0xffff0000, v{Y+4+q}")
        for q in range(4):
            a(f"v_pk_add_f32 v[{A+2*q}:{A+2*q+1}], v[{A+2*q}:{A+2*q+1}], v[{A+8+2*q}:{A+8+2*q+1}]")
        a(f"s_add_u32 s14, s13, {i*4*163840}")
        for q in range(4):
            a(f"v_cvt_pk_bf16_f32 v{Y+q}, v{A+2*q}, v{A+2*q+1}")
        a(f"buffer_store_dwordx4 v[{Y}:{Y+3}], v19, s[56:59], s14 offen{HSC}")
```

```python
import sys, os
from asmlib import *
from layout import *
import k1
HEADER = open("sequential_preLN__ssm_conv_s4d__glu_gated_swiglu__prompt.s.ref").read().split("; Override launch")[0]
def build(kernels):
    a = Asm()
    launches = []; descs = []
    a.raw("ALL_BEG:")
    for k in kernels:
        if k == 1:
            k1.gen_k1(a); launches.append(f"; @launch kernel=prep_kernel grid=({k1.K1_GRID},1,1) block=(256,1,1) lds={k1.K1_LDS}")
            descs.append(kernel_desc("prep_kernel", 128, 96, 128))
        if k == 2:
            a.raw(".p2align 8\nCODE_BEG:")
            import k2
            k2.gen_k2(a); launches.append(f"; @launch kernel=conv_kernel grid=({k2.K2_GRID},1,1) block=({k2.K2_BLOCK},1,1) lds={k2.K2_LDS}")
            descs.append(kernel_desc("conv_kernel", k2.K2_VGPR, 96, k2.K2_VGPR))
        if k == 3:
            import k3
            k3.gen_k3(a); launches.append(f"; @launch kernel=gemm1_kernel grid=(256,1,1) block=(256,1,1) lds={k3.K3_LDS}")
            descs.append(kernel_desc("gemm1_kernel", 512, 96, 256))
        if k == 4:
            import k4
            k4.gen_k4(a); launches.append(f"; @launch kernel=gemm2_kernel grid=(256,1,1) block=(256,1,1) lds={k4.K4_LDS}")
            descs.append(kernel_desc("gemm2_kernel", 512, 96, 256))
        if k == 5:
            import k34
            k34.gen_k34(a); launches.append(f"; @launch kernel=mlp_kernel grid=(256,1,1) block=(256,1,1) lds={k34.K34_LDS}")
            descs.append(kernel_desc("mlp_kernel", 512, 96, 256))
        if k == 8:
            import kp2
            kp2.gen_k1(a); launches.append(f"; @launch kernel=prep_kernel grid=({kp2.K1_GRID},1,1) block=(256,1,1) lds={kp2.K1_LDS}")
            descs.append(kernel_desc("prep_kernel", 128, 96, 128))
            a.raw(".p2align 8\nCODE_BEG:")
        if k == 0:
            import kcm
            kcm.gen_cm(a); launches.append(f"; @launch kernel=cm_kernel grid=(256,1,1) block=(256,1,1) lds=163840")
            descs.append(kernel_desc("cm_kernel", 512, 96, 256))
        if k == 3.5 or k == 4 and False: pass
        if k == 14:
            import k37
            k37.gen_k37(a); launches.append(f"; @launch kernel=mlp_kernel grid=(256,1,1) block=(256,1,1) lds=163840")
            descs.append(kernel_desc("mlp_kernel", 512, 96, 256))
        if k == 13:
            import kall
            kall.gen_all(a); launches.append(f"; @launch kernel={kall.NAME} grid=(256,1,1) block=(256,1,1) lds=163840" if os.environ.get("ASLIST") else "; @launch grid=(256,1,1) block=(256,1,1) lds=163840")
            descs.append(kernel_desc(kall.NAME, 512, 96, 256))
        if k == 12:
            import k36
            k36.gen_k36(a); launches.append(f"; @launch kernel=mlp_kernel grid=(256,1,1) block=(256,1,1) lds=163840")
            descs.append(kernel_desc("mlp_kernel", 512, 96, 256))
        if k == 11:
            import kf4
            kf4.gen_front4(a); launches.append(f"; @launch kernel=front_kernel grid=(256,1,1) block=(256,1,1) lds=163840")
            descs.append(kernel_desc("front_kernel", 512, 96, 256))
            a.raw(".p2align 8\nCODE_BEG:")
        if k == 7:
            import k12
            k12.gen_front(a); launches.append(f"; @launch kernel=front_kernel grid=({k12.F_GRID},1,1) block=({k12.F_BLOCK},1,1) lds={k12.F_LDS}")
            descs.append(kernel_desc("front_kernel", k12.F_VGPR, 96, k12.F_VGPR))
            a.raw(".p2align 8\nCODE_BEG:")
        if k == 6:
            import k35
            k35.gen_k35(a); launches.append(f"; @launch kernel=mlp_kernel grid=(256,1,1) block=(256,1,1) lds={k35.K35_LDS}")
            descs.append(kernel_desc("mlp_kernel", 512, 96, 256))
        if k == 9:
            import kpf
            kpf.gen_pf(a); launches.append(f"; @launch kernel=pf_kernel grid=(256,1,1) block=(256,1,1) lds=0")
            descs.append(kernel_desc("pf_kernel", 128, 96, 128))
        a.win = []
    a.raw("CODE_END:")
    return HEADER + "\n".join(launches) + '\n.amdgcn_target "amdgcn-amd-amdhsa--gfx950"\n.text\n' + a.text() + '.section .rodata,"a"\n' + "\n".join(descs) + "\n"
PROF_OFF = 0x2000000
def add_prof(text):
    import re
    out = []; kidx = -1; cur = None
    for line in text.split("\n"):
        m = re.match(r"^(\w+_kernel):", line)
        if m:
            kidx += 1; cur = m.group(1)
            out.append(line)
            out.append("  s_memrealtime s[96:97]")
            out.append("  s_mov_b64 s[98:99], s[0:1]")
            out.append("  s_mov_b32 s100, s2")
            for q in range(76, 90): out.append(f"  s_mov_b32 s{q}, 0")
            out.append("  v_readfirstlane_b32 s101, v0")
            continue
        if line.strip() == "s_endpgm":
            out.append(f"  s_branch PROF_{cur}")
            continue
        if line.startswith(".globl") or line.startswith(".section .rodata"):
            if cur:
                out.append(f"""PROF_{cur}:
  s_waitcnt vmcnt(0) lgkmcnt(0)
  s_memrealtime s[4:5]
  s_load_dwordx2 s[8:9], s[98:99], 104
  s_getreg_b32 s6, hwreg(HW_REG_XCC_ID)
  s_getreg_b32 s7, hwreg(HW_REG_HW_ID)
  s_mov_b64 exec, 1
  s_lshr_b32 s101, s101, 6
  s_lshl_b32 s100, s100, 4
  s_add_u32 s100, s100, s101
  s_lshl_b32 s100, s100, 6
  s_waitcnt lgkmcnt(0)
  s_add_u32 s8, s8, {PROF_OFF + kidx * 0x100000:#x}
  s_addc_u32 s9, s9, 0
  s_mov_b32 s10, 0x100000
  s_mov_b32 s11, 0x20000
  v_mov_b32 v0, s96
  v_mov_b32 v1, s4
  v_mov_b32 v2, s6
  v_mov_b32 v3, s7
  v_mov_b32 v4, s100
  buffer_store_dwordx4 v[0:3], v4, s[8:11], 0 offen
  v_mov_b32 v6, s76
  v_mov_b32 v7, s78
  v_mov_b32 v8, s80
  v_mov_b32 v9, s82
  buffer_store_dwordx4 v[6:9], v4, s[8:11], 0 offen offset:16
  v_mov_b32 v10, s84
  v_mov_b32 v11, s86
  v_mov_b32 v12, s88
  v_mov_b32 v13, s88
  buffer_store_dwordx4 v[10:13], v4, s[8:11], 0 offen offset:32
  s_endpgm""")
                cur = None
        out.append(line)
    return "\n".join(out).replace("next_free_sgpr 96", "next_free_sgpr 102")
if __name__ == "__main__":
    ks = [int(c, 36) for c in sys.argv[1]]
    t = build(ks)
    if PROF: t = add_prof(t)
    open(sys.argv[2], "w").write(t)
```

```python
import os
from asmlib import *
from layout import *
from k1 import srd
from k34 import stat_finalize_steps
import asmlib
BST = os.environ.get("K3_BST") if "os" in dir() else None
K35_LDS = 163840
ENV = lambda k, d: int(os.environ.get(k, d))

_stamp = stamp
def stamp(a, i, alt=None):
    if (alt or "") == (BST or ""): _stamp(a, i)
    elif alt is None and i < 2 and BST == "B": _stamp(a, i)

def gen_k35(a):
    a.raw(kernel_header("mlp_kernel"))
    if os.environ.get("K3_DROP"): a.drop = os.environ["K3_DROP"].split(",")
    a("s_cmp_ge_u32 s2, 256")
    a("s_cbranch_scc1 K3_END")
    a("s_load_dwordx2 s[38:39], s[0:1], 88")
    a("s_load_dwordx2 s[40:41], s[0:1], 104")
    a("v_lshrrev_b32 v2, 6, v0")
    a("v_and_b32 v1, 63, v0")
    a("v_readfirstlane_b32 s3, v2")
    a("v_lshlrev_b32 v2, 4, v1")
    a("s_bfe_u32 s4, s2, 0x20001")
    a("s_lshl_b32 s4, s4, 2")
    a("s_bfe_u32 s5, s2, 0x20003")
    a("s_add_u32 s4, s4, s5")
    a("s_lshr_b32 s18, s2, 5")
    a("s_and_b32 s19, s2, 1")
    a("s_lshl_b32 s5, s18, 1")
    a("s_add_u32 s5, s5, s19")
    a("s_mul_i32 s6, s3, 20480")
    a("s_mul_i32 s20, s4, 163840")
    a("s_add_u32 s7, s20, s6")
    a("s_lshl_b32 s8, s5, 2")
    a("s_add_u32 s8, s8, s3")
    a("s_mul_i32 s9, s8, 61440")
    a("s_mul_i32 s21, s18, 20480")
    a("s_add_u32 s21, s21, s20")
    a("s_mul_i32 s10, s3, 5120")
    a("s_add_u32 s21, s21, s10")
    a("s_mul_i32 s22, s18, 245760")
    a("s_mul_i32 s10, s3, 61440")
    a("s_add_u32 s22, s22, s10")
    a("s_waitcnt lgkmcnt(0)")
    srd(a, 44, 40, H_OFF, SZ_X); srd(a, 48, 40, W13_OFF, 3932160)
    vm = Cnt(a, "vmcnt", 63); ds = Cnt(a, "lgkmcnt", 15)
    ACC = 32; HB = 128; STR = 192; CSR = 16
    acc = lambda i, t: ACC + 4 * (3 * i + t)
    hb = lambda n, i: HB + 16 * (n & 1) + 4 * i
    SF = 160
    for i in range(5):
        if i == 4: a("s_add_u32 s21, s21, 4096")
        a(f"buffer_load_dwordx4 v[{SF+4*i}:{SF+4*i+3}], v2, s[44:47], s21 offen offset:{(i%4)*1024}"); vm.issue("sf")
    items = []
    for s in range(20):
        items += [("h", s, 0), ("w", s, 0), ("w", s, 1), ("w", s, 2)]
        if s == 10: items.append(("cs", 0, 0))
        if s == ENV("K3_STPOS", 16): items.append(("st", 0, 0))
    HBE = ENV("K3_HBE", 7)
    for s in range(HBE): items.append(("h", 20 + s, 1))
    for s in range(20):
        if s + HBE < 20: items.append(("h", 20 + s + HBE, 1))
        items += [("w2", 3 * s + t, 0) for t in range(3)]
    cur = [-1]
    def issue_item():
        if not items or len(vm.q) >= 60: return False
        kd, s, x = items[0]
        if kd == "w2" and s // 3 > cur[0]: return False
        items.pop(0)
        if kd == "h":
            ss = s % 20
            off = x * 81920 + (ss & ~3) * 1024
            if ss % 4 == 0:
                a(f"s_add_u32 m0, s6, {off}")
                a(f"s_add_u32 s10, s7, {off}")
            a(f"buffer_load_dwordx4 v2, s[44:47], s10 offen offset:{(ss&3)*1024} lds"); vm.issue(s)
        elif kd == "w":
            idx = 3 * s + x
            if idx % 4 == 0: a(f"s_add_u32 s11, s9, {(idx & ~3) * 1024}")
            a(f"buffer_load_dwordx4 a[{4*idx}:{4*idx+3}], v2, s[48:51], s11 offen offset:{(idx&3)*1024}"); vm.issue(s)
        elif kd == "w2" and os.environ.get("K3_NOW2"): pass
        elif kd == "w2":
            if s % 4 == 0: a(f"s_add_u32 s11, s22, {(s & ~3) * 1024}")
            a(f"buffer_load_dwordx4 a[{4*s}:{4*s+3}], v2, s[68:71], s11 offen offset:{(s&3)*1024}"); vm.issue(("w2", s))
        elif kd == "cs":
            a(f"buffer_load_dwordx4 v[180:183], v2, s[52:55], s17 offen"); vm.issue("cs")
        elif kd == "st":
            st_loads()
        return True
    def st_loads():
        a(f"buffer_load_dwordx4 v[176:179], v2, s[72:75], s24 offen sc1"); vm.issue("st")
    for _ in range(ENV("K3_PRO", 14)): issue_item()
    srd(a, 52, 40, CS_OFF, 64*768); srd(a, 56, 40, HM_OFF, 6291456)
    srd(a, 68, 40, W2_OFF, 1966080); srd(a, 72, 40, ST_OFF, 0x4000 + 128*128)
    a("v_and_b32 v6, 15, v1")
    a("v_lshrrev_b32 v7, 4, v1")
    a("v_lshlrev_b32 v3, 4, v7")
    a("s_mul_i32 s17, s8, 768")
    a("v_lshlrev_b32 v5, 3, v6")
    a("s_lshl_b32 s24, s4, 10")
    a("s_cmp_lt_u32 s18, 3")
    a("s_cselect_b32 s36, 10240, 0")
    a("s_cselect_b32 s13, 4096, 0")
    a("s_add_u32 s13, s13, s6")
    a("v_add_u32 v3, s13, v3")
    a("v_add_u32 v184, s13, v5")
    a("v_add_u32 v185, s13, v2")
    a("s_add_u32 s13, s36, s6")
    a("v_add_u32 v186, s13, v2")
    for i in range(8):
        a(f"s_add_u32 s13, s3, {i}")
        a("s_and_b32 s13, s13, 3")
        if i >= 4: a("s_add_u32 s13, s13, 4")
        a("s_mul_i32 s14, s13, 20480")
        a(f"v_add_u32 v{8+i}, s14, v2")
    a("s_mov_b32 s16, 0x3f803f80")
    SCR = 7 * 20480 + 19 * 1024
    a("s_lshl_b32 s13, s3, 7")
    a("v_add_u32 v6, s13, v5")
    vm.wait("sf")
    for r in range(20):
        for k in range(2):
            d = 28 + 2 * (r % 2) + k
            src2 = "s16" if k == 0 else f"v{SF+r}"
            a(f"v_dot2_f32_bf16 v{d}, v{SF+r}, {src2}, {'0' if r < 2 else 'v%d' % d}")
        if r % 2 == 1: issue_item()
    a("v_pk_add_f32 v[28:29], v[28:29], v[30:31]")
    for sw in ("v_permlane32_swap_b32", "v_permlane16_swap_b32"):
        for r in range(2): a(f"v_mov_b32 v{30+r}, v{28+r}")
        for r in range(2): a(f"{sw} v{28+r}, v{30+r}")
        a("v_pk_add_f32 v[28:29], v[28:29], v[30:31]")
    a(f"v_add_u32 v6, {SCR}, v6")
    a(f"v_add_u32 v7, {SCR}, v5")
    a("ds_write_b64 v6, v[28:29]")
    a("s_waitcnt lgkmcnt(0)")
    def hread(n, i):
        sl = i + 4 * (n // 20)
        a(f"ds_read_b128 v[{hb(n,i)}:{hb(n,i)+3}], v{8+sl} offset:{(n%20)*1024}"); ds.issue((n, i))
    vm.wait(0)
    stamp(a, 0)
    a("s_barrier")
    for i in range(4): hread(0, i)
    P = 240
    side = [("ds", f"ds_read_b64 v[{P+2*i}:{P+2*i+1}], v7 offset:{i*128}") for i in range(4)]
    side += [("v", f"v_mov_b32 v{P+8}, {f2u(1.0/640):#x}"),
             ("v", "s_lshl_b32 s13, s19, 3"), ("v", "s_lshl_b32 s14, s3, 1"), ("v", "s_add_u32 s13, s13, s14"),
             ("v", "s_lshl_b64 s[32:33], 3, s13"),
             ("v", "s_lshl_b32 s13, s4, 3"), ("v", "s_add_u32 s13, s13, s18"), ("v", "s_lshl_b32 s34, s13, 7"),
             ("w", None),
             ("v", f"v_add_f32 v{P}, v{P}, v{P+2}"), ("v", f"v_add_f32 v{P+1}, v{P+1}, v{P+3}"),
             ("v", f"v_add_f32 v{P+4}, v{P+4}, v{P+6}"), ("v", f"v_add_f32 v{P+5}, v{P+5}, v{P+7}"),
             ("v", f"v_add_f32 v{P}, v{P}, v{P+4}"), ("v", f"v_add_f32 v{P+1}, v{P+1}, v{P+5}")]
    side += [("v", st(P, P + 1, P + 2)) for st in stat_finalize_steps(P + 8)]
    side += [("x", None)]
    prep = []
    prep += ["s_lshl_b32 s13, s4, 3", "s_add_u32 s13, s13, s3", "s_mul_i32 s13, s13, 49152", "s_mul_i32 s14, s5, 3072",
             "s_add_u32 s60, s13, s14", "s_add_u32 s61, s60, 196608"]
    prep += ["s_lshl_b32 s13, s4, 2", "s_lshr_b32 s14, s5, 2", "s_add_u32 s14, s14, s13", "s_lshl_b32 s14, s14, 8",
             "s_add_u32 s62, s14, 0x4000",
             "s_add_u32 s13, s13, s3", "s_lshl_b32 s13, s13, 8", "s_add_u32 s63, s13, 0x4000"]
    prep += ["s_lshl_b32 s13, s4, 3", "s_lshl_b32 s14, s19, 1", "s_add_u32 s23, s13, s14",
             "s_mul_i32 s13, s23, 49152", "s_mul_i32 s14, s3, 12288", "s_add_u32 s64, s13, s14",
             "s_add_u32 s65, s64, 49152", "s_add_u32 s66, s64, 196608", "s_add_u32 s67, s64, 245760"]
    side += [("v", t) for t in prep]
    def do_side():
        if not side: return False
        k, t = side.pop(0)
        if k == "ds": a(t); ds.issue("sp")
        elif k == "w": ds.wait("sp")
        elif k == "v": a(t)
        else:
            a("s_mov_b64 exec, s[32:33]")
            a(f"buffer_store_dwordx2 v[{P}:{P+1}], v5, s[72:75], s34 offen sc1"); vm.issue("gs")
            a("s_mov_b64 exec, -1")
        return True
    def mfma(i, t, s, n, first):
        c = f"v[{acc(i,t)}:{acc(i,t)+3}]"; w = 4 * (3 * s + t)
        a(f"v_mfma_f32_16x16x32_bf16 {c}, a[{w}:{w+3}], v[{hb(n,i%4)}:{hb(n,i%4)+3}], {0 if first else c}")
    def phase_a(var):
        for s in range(20):
            if s % 3 == 0: stamp(a, s // 3, "A")
            assert not any(kd in "hw" and x == s + 1 for kd, x, _ in items), s
            vm.wait(s + 1)
            a("s_barrier")
            ds.wait((s, 3))
            nl = 5 if s % ENV("K3_AX", 2) == 0 else 4
            for i in range(4):
                for t in range(3):
                    mfma(i, t, s, s, s == 0)
                    if t == 0: hread(s + 1, i)
                    if i == var:
                        for _ in range(2 if t or nl == 5 and False else 1):
                            if nl: issue_item(); nl -= 1
                    elif t: do_side(); do_side()
            if s == ENV("K3_STCHK", 15):
                while side: do_side()
                a("s_mov_b32 s35, 0")
                a.label(f"K3_STCHK{var}")
                vm.wait("st")
                saved_q = list(vm.q)
                a("v_min_u32 v6, v177, v179")
                a("v_cmp_eq_u32 vcc, 0, v6")
                a(f"s_cbranch_vccz K3_STOK{var}")
                a("s_add_u32 s35, s35, 1")
                a("s_cmp_ge_u32 s35, 0x4000")
                a(f"s_cbranch_scc1 K3_STOK{var}")
                a("s_sleep 2")
                st_loads()
                a("s_waitcnt vmcnt(0)")
                a(f"s_branch K3_STCHK{var}")
                a.label(f"K3_STOK{var}")
                vm.q = saved_q
                side.extend([("ds", "ds_write_b128 v185, v[176:179] offset:4096"), ("ds", "ds_write_b128 v185, v[180:183] offset:5120")])
                for i in range(8):
                    rt = ((var + i) & 3) + 4 * (i >> 2)
                    side.append(("ds", f"ds_read_b64 v[{STR+4*i}:{STR+4*i+1}], v184 offset:{4096 + rt*128}"))
                side.extend(("ds", f"ds_read_b128 v[{CSR+4*t}:{CSR+4*t+3}], v3 offset:{5120 + t*64}") for t in range(3))
                side.extend([("v", "v_mov_b32 v28, 1"), ("v", "v_mov_b32 v29, 0")])
                for pp, rr in ((1, 224), (2, 160), (3, 240)):
                    side.extend(("ds", f"ds_read_b128 v[{rr+4*t}:{rr+4*t+3}], v3 offset:{5120 + pp*192 + t*64}") for t in range(3))
                side.append(("w", None))
                side.extend(("v", f"v_add_f32 v{CSR+r}, v{CSR+r}, v{224+r}") for r in range(12))
                side.extend(("v", f"v_add_f32 v{160+r}, v{160+r}, v{240+r}") for r in range(12))
                side.extend(("v", f"v_add_f32 v{CSR+r}, v{CSR+r}, v{160+r}") for r in range(12))
                side.extend(("v", t) for t in pre)
        while side: do_side()
        stamp(a, 1)
    PK = ENV("K3_PK", 0)
    def epi(i, var, pk):
        S = STR + 4 * i; O = 224 + 4 * (i % 2); out = []; seqs = []
        for t in range(3):
            c = acc(i, t); e = 232 + 2 * t; cs = CSR + 4 * t
            if pk:
                seqs.append([
                f"v_pk_fma_f32 v[{c}:{c+1}], v[{cs}:{cs+1}], v[{S}:{S+1}], v[{c}:{c+1}] op_sel_hi:[1,0,1] neg_lo:[0,1,0] neg_hi:[0,1,0]",
                f"v_pk_fma_f32 v[{c+2}:{c+3}], v[{cs+2}:{cs+3}], v[{S}:{S+1}], v[{c+2}:{c+3}] op_sel_hi:[1,0,1] neg_lo:[0,1,0] neg_hi:[0,1,0]",
                f"v_pk_mul_f32 v[{e}:{e+1}], v[{c}:{c+1}], v[{S+2}:{S+3}] op_sel_hi:[1,0]",
                f"v_exp_f32 v{e}, v{e}",
                f"v_exp_f32 v{e+1}, v{e+1}",
                f"v_pk_mul_f32 v[{c}:{c+1}], v[{c}:{c+1}], v[{c+2}:{c+3}]",
                f"v_pk_fma_f32 v[{e}:{e+1}], v[{e}:{e+1}], v[{S}:{S+1}], v[{S}:{S+1}] op_sel:[0,1,1] op_sel_hi:[1,1,1]",
                f"v_rcp_f32 v{e}, v{e}",
                f"v_rcp_f32 v{e+1}, v{e+1}",
                f"v_pk_mul_f32 v[{c}:{c+1}], v[{c}:{c+1}], v[{e}:{e+1}]",
                f"v_cvt_pk_bf16_f32 v{O+t}, v{c}, v{c+1}"])
            else:
                seqs.append(
                [f"v_fma_f32 v{c+r}, -v{S}, v{cs+r}, v{c+r}" for r in range(2)] +
                [f"v_mul_f32 v{e+r}, v{c+r}, v{S+2}" for r in range(2)] +
                [f"v_exp_f32 v{e}, v{e}", f"v_fma_f32 v{c+2}, -v{S}, v{cs+2}, v{c+2}",
                 f"v_exp_f32 v{e+1}, v{e+1}", f"v_fma_f32 v{c+3}, -v{S}, v{cs+3}, v{c+3}"] +
                [f"v_mul_f32 v{c+r}, v{c+r}, v{c+2+r}" for r in range(2)] +
                [f"v_fma_f32 v{e+r}, v{e+r}, v{S+1}, v{S+1}" for r in range(2)] +
                [f"v_rcp_f32 v{e+r}, v{e+r}" for r in range(2)] +
                [f"v_mul_f32 v{c+r}, v{c+r}, v{e+r}" for r in range(2)] +
                [f"v_cvt_pk_bf16_f32 v{O+t}, v{c}, v{c+1}"])
        for j in range(len(seqs[0])):
            for sq in seqs:
                if not os.environ.get("K3_NOEPI"): out.append(sq[j])
        out.append(f"v_add_u32 v6, s36, v{8+i}")
        if var < 3:
            out.append(f"ds_write_b96 v6, v[{O}:{O+2}] offset:{var*1024}")
        else:
            out += [f"ds_write_b32 v6, v{O+t} offset:{t*1024 + 12}" for t in range(3)]
        return out
    pre = [f"v_mov_b32 v4, {f2u(-LOG2E):#x}"]
    pre += [f"v_rcp_f32 v{STR+4*i+2}, v{STR+4*i+1}" for i in range(8)]
    pre += [f"v_mul_f32 v{STR+4*i+1}, v{STR+4*i+1}, v{STR+4*i+1}" for i in range(8)]
    pre += [f"v_mul_f32 v{STR+4*i+2}, v{STR+4*i+2}, v4" for i in range(8)]
    PB = 160
    def signal(hf):
        if signal.var < 4:
            if signal.var == 0:
                a("s_mov_b64 exec, 1")
                a(f"buffer_atomic_add v28, v29, s[72:75], s62 offen offset:{hf*128} sc1"); vm.issue("sig")
                a("s_mov_b64 exec, -1")
            return
        a("s_cmp_lg_u32 s3, 0")
        lab = f"K3_NOSIG{hf}_{signal.var}"
        a(f"s_cbranch_scc1 {lab}")
        a("s_mov_b64 exec, 1")
        a(f"buffer_atomic_add v28, v29, s[72:75], s62 offen offset:{hf*128} sc1")
        a("s_mov_b64 exec, -1")
        a.label(lab)
        vm.q.append("sig")
        vm.q.pop()
    A2 = 80; HR = 224
    acc2 = lambda j, t: A2 + 4 * (5 * j + t)
    HMR = [32 + 4 * i for i in range(12)] + [160 + 4 * i for i in range(8)] + [240 + 4 * i for i in range(4)]
    hm = lambda j, k: HMR[12 * (j % 2) + k]
    hq = []
    def ld_hm(j, k):
        if k % 4 == 0: a(f"s_add_u32 s10, s{64+j}, {(k & ~3)*1024}")
        a(f"buffer_load_dwordx4 v[{hm(j,k)}:{hm(j,k)+3}], v2, s[56:59], s10 offen offset:{(k&3)*1024}{os.environ.get('K3_HMSC', ' sc1')}"); vm.issue((j, k))
    saves = (list(items), list(vm.q), list(ds.q), list(side))
    for w in range(1, 4):
        a(f"s_cmp_eq_u32 s3, {w}")
        a(f"s_cbranch_scc1 K3_VAR{w}")
    for var in range(4):
        if var:
            a.label(f"K3_VAR{var}")
            items[:] = saves[0]; vm.q = list(saves[1]); ds.q = list(saves[2]); cur[0] = -1; side[:] = saves[3]
        signal.var = var
        phase_a(var)
        sj = []
        for i in range(4): sj += epi(i, var, PK)
        def emit_side(budget):
            while sj and budget > 0:
                t = sj.pop(0); a(t)
                if t.startswith("ds_"): ds.issue("e")
                budget -= 8 if t.split()[0] in TRANS else 4
        state = 0
        for s in range(20):
            n = 20 + s
            if s % 4 == 3: stamp(a, 2 + s // 4, "B")
            if s + 1 < 20:
                assert not any(kd == "h" and x == n + 1 for kd, x, _ in items)
                vm.wait(n + 1)
            if state == 0 and not sj and not hasattr(emit_side, "nat"):
                emit_side.nat = s; print("epilogue A natural finish at step", s, "var", var)
            if state == 0 and s == ENV("K3_SA", 11):
                emit_side(100000)
                ds.wait("e"); state = 1
                a("s_barrier")
                for ph in range(3):
                    a(f"ds_read_b128 v[{PB+4*ph}:{PB+4*ph+3}], v186 offset:{ph*1024}"); ds.issue("pb")
            elif state == 1:
                a("s_barrier")
                ds.wait("pb")
                for ph in range(3):
                    a(f"buffer_store_dwordx4 v[{PB+4*ph}:{PB+4*ph+3}], v2, s[56:59], s60 offen offset:{ph*1024} sc1"); vm.issue("hsA")
                state = 2; s_st = s
            elif state == 2 and (s >= s_st + ENV("K3_DRAIN", 4) or s == 19):
                vm.wait("hsA")
                a("s_barrier")
                signal(0); state = 4
                stamp(a, 2)
            elif s + 1 < 20:
                a("s_barrier")
            ds.wait((n, 3))
            for i in range(4):
                for t in range(3):
                    mfma(4 + i, t, s, n, s == 0)
                    if t == 0 and s + 1 < 20: hread(n + 1, i)
                    if i == var:
                        issue_item()
                        if t == 2 and ENV("K3_BN", 4) == 4: issue_item()
                    else: emit_side(ENV("K3_B0", 8) if t == 0 else ENV("K3_B1", 12))
            cur[0] = s
            if s == ENV("K3_PAS", 18):
                a(f"buffer_load_dword v30, v29, s[72:75], s63 offen sc1"); vm.issue("pA")
        assert state == 4, state
        for i in range(4, 8): sj += epi(i, var, 1)
        n_eb = ENV("K3_EBN", 4)
        while sj:
            emit_side(ENV("K3_EB", 200))
            if n_eb and issue_item(): n_eb -= 1
        left = list(items)
        if var < 3: a("s_branch K3_EPIDONE")
    a.label("K3_EPIDONE")
    a("s_waitcnt lgkmcnt(0)"); ds.q = []
    stamp(a, 3)
    a("s_barrier")
    PB2 = 192
    a("v_add_u32 v12, 81920, v186")
    for ph in range(3):
        a(f"ds_read_b128 v[{PB2+4*ph}:{PB2+4*ph+3}], v12 offset:{ph*1024}")
    a("s_mul_i32 s13, s3, 5120")
    a("v_add_u32 v8, s13, v2")
    a("v_add_u32 v9, 40960, v8")
    a("v_lshrrev_b32 v4, 5, v1")
    a("v_lshlrev_b32 v4, 8, v4")
    a("v_and_b32 v5, 15, v1")
    a("v_lshl_add_u32 v4, v5, 4, v4")
    a("v_bfe_u32 v6, v1, 4, 1")
    a("v_lshl_add_u32 v4, v6, 3, v4")
    a("v_mul_u32_u24 v5, 1280, v5")
    a("v_lshrrev_b32 v7, 4, v1")
    a("v_lshl_add_u32 v5, v7, 3, v5")
    a("s_mul_i32 s16, s18, 2560")
    a("s_mul_i32 s17, s18, 160")
    for q in range(3):
        a(f"s_add_u32 s12, s3, {4*q}")
        if q == 2:
            a("s_cmp_ge_u32 s12, 10")
            a("s_cselect_b32 s13, 2, 0")
            a("s_sub_u32 s12, s12, s13")
        a("s_cmp_ge_u32 s12, 5")
        a("s_cselect_b32 s13, 1, 0")
        a("s_mul_i32 s14, s13, 5")
        a("s_sub_u32 s12, s12, s14")
        a("s_mul_i32 s14, s13, 20480")
        a("s_lshl_b32 s15, s12, 10")
        a("s_add_u32 s15, s15, s14")
        a(f"v_add_u32 v{10+q}, s15, v2") if q < 2 else a("v_add_u32 v13, s15, v2")
        a("s_add_u32 s13, s13, s23")
        a("s_mul_i32 s13, s13, 20480")
        a("s_lshl_b32 s14, s12, 9")
        a("s_add_u32 s14, s14, s16")
        a(f"s_add_u32 s{24+q}, s13, s14")
        a(f"s_sub_u32 s15, s{24+q}, s20")
        a(f"v_add_u32 v{16+q}, s15, v4")
        a(f"v_add_u32 v{20+q}, 81920, v{16+q}")
        a("s_lshl_b32 s14, s12, 5")
        a("s_add_u32 s14, s14, s17")
        a(f"s_add_u32 s{28+q}, s13, s14")
    srd(a, 52, 38, 0, SZ_X)
    for ph in range(3):
        a(f"s_waitcnt lgkmcnt({2-ph})")
        a(f"buffer_store_dwordx4 v[{PB2+4*ph}:{PB2+4*ph+3}], v2, s[56:59], s61 offen offset:{ph*1024} sc1"); vm.issue("hsB")
    for hf in range(2):
        for q in range(3):
            a(f"ds_read_b64 v[{HR+6*hf+2*q}:{HR+6*hf+2*q+1}], v{16+4*hf+q}")
    vm.wait("pA")
    a("s_mov_b32 s35, 0")
    a("s_branch K3_PA_CHK")
    a.label("K3_PA")
    a(f"buffer_load_dword v30, v29, s[72:75], s63 offen sc1")
    a("s_waitcnt vmcnt(0)")
    a.label("K3_PA_CHK")
    a("v_readfirstlane_b32 s14, v30")
    a("s_add_u32 s35, s35, 1")
    a("s_cmp_ge_u32 s14, 4")
    a("s_cbranch_scc1 K3_GOA")
    a("s_cmp_lt_u32 s35, 0x8000")
    a("s_cbranch_scc1 K3_PA")
    a.label("K3_GOA")
    def res_loads():
        for hf in range(2):
            for q in range(3):
                if hf: a(f"s_add_u32 s{24+q}, s{24+q}, 81920")
                a(f"buffer_load_dwordx2 v[{HR+6*hf+2*q}:{HR+6*hf+2*q+1}], v4, s[44:47], s{24+q} offen"); vm.issue("res")
    H0 = ENV("K3_H0", 6)
    hq[:] = [(0, kk) for kk in range(H0)] + ["w2"] * len(items) + [(0, kk) for kk in range(H0, 12)] + [(1, kk) for kk in range(12)]
    _ld = ld_hm
    def nxt():
        x = hq.pop(0)
        if x == "w2": assert issue_item()
        elif x == "res": res_loads()
        else: _ld(*x)
    for _ in range(ENV("K3_NPA", 8)): nxt()
    stamp(a, 4)
    wr = []
    def g2tile(j, hook=None):
        for k in range(12):
            while (j, k) in hq or (j == 0 and ("w2", 5 * k + 4, 0) in items): nxt()
            vm.wait((j, k)); vm.wait(("w2", 5 * k + 4))
            for t in range(5):
                c = f"v[{acc2(j,t)}:{acc2(j,t)+3}]"; w = 4 * (5 * k + t)
                a(f"v_mfma_f32_16x16x32_bf16 {c}, a[{w}:{w+3}], v[{hm(j,k)}:{hm(j,k)+3}], {c if k else 0}")
                if t == 2 and wr and k >= 1: a(wr.pop(0))
                if t in (0, 3) and hq: nxt()
            if hook: hook(k)
        wr.extend(f"ds_write_b128 v{8 + j//2}, v[{acc2(j,t)}:{acc2(j,t)+3}] offset:{(j%2)*20480 + t*1024}" for t in range(5))
    def hookA(k):
        if k == ENV("K3_SBK", -1):
            vm.wait("hsB")
            a("s_waitcnt lgkmcnt(0)")
            a("s_barrier")
            signal.var = 9; signal(1)
    if ENV("K3_SBK", -1) < 0:
        vm.wait("hsB")
        a("s_waitcnt lgkmcnt(0)")
        a("s_barrier")
        signal.var = 9; signal(1)
    def hookA2(k):
        hookA(k)
        if k == ENV("K3_PBK0", 99):
            a(f"buffer_load_dword v30, v29, s[72:75], s63 offen offset:128 sc1"); vm.issue("pB")
    g2tile(0, hookA2)
    def hookB(k):
        if k == ENV("K3_PBK", 0):
            a(f"buffer_load_dword v30, v29, s[72:75], s63 offen offset:128 sc1"); vm.issue("pB")
        if k == ENV("K3_PBC", 3):
            stamp(a, 5)
            while hq: nxt()
            a("s_mov_b32 s35, 0")
            vm.wait("pB")
            a("s_branch K3_PB_CHK")
            a.label("K3_PB")
            a(f"buffer_load_dword v30, v29, s[72:75], s63 offen offset:128 sc1")
            a("s_waitcnt vmcnt(0)")
            a.label("K3_PB_CHK")
            a("v_readfirstlane_b32 s14, v30")
            a("s_add_u32 s35, s35, 1")
            a("s_cmp_ge_u32 s14, 4")
            a("s_cbranch_scc1 K3_GOB")
            a("s_cmp_lt_u32 s35, 0x8000")
            a("s_cbranch_scc1 K3_PB")
            a.label("K3_GOB")
            stamp(a, 6)
            hq.extend((2, kk) for kk in range(12))
            for _ in range(4): nxt()
    g2tile(1, hookB)
    hq.extend((3, kk) for kk in range(12))
    RD = [10, 11, 13]
    def finalize(hf, R, U):
        out = []
        for q in range(3):
            for w in range(4):
                out.append(f"ds_read_b128 v[{R+16*q+4*w}:{R+16*q+4*w+3}], v{RD[q]} offset:{hf*40960 + w*5120}")
        for q in range(3):
            for e in range(2):
                out.append(f"v_lshlrev_b32 v{U+4*q+2*e}, 16, v{HR+6*hf+2*q+e}")
                out.append(f"v_and_b32 v{U+4*q+2*e+1}, 0xffff0000, v{HR+6*hf+2*q+e}")
            if hf: out.append(f"s_add_u32 s{28+q}, s{28+q}, 81920")
        for q in range(3):
            b = R + 16 * q
            out.append(f"s_waitcnt lgkmcnt({8 - 4*q})")
            for e in (0, 2):
                out.append(f"v_pk_add_f32 v[{b+e}:{b+e+1}], v[{b+e}:{b+e+1}], v[{b+4+e}:{b+5+e}]")
                out.append(f"v_pk_add_f32 v[{b+8+e}:{b+9+e}], v[{b+8+e}:{b+9+e}], v[{b+12+e}:{b+13+e}]")
            for e in (0, 2):
                out.append(f"v_pk_add_f32 v[{b+e}:{b+e+1}], v[{b+e}:{b+e+1}], v[{b+8+e}:{b+9+e}]")
            for e in range(2):
                out.append(f"v_cvt_pk_bf16_f32 v{b+4+e}, v{b+2*e}, v{b+2*e+1}")
            for e in range(2):
                out.append(f"v_lshlrev_b32 v{b+2*e}, 16, v{b+4+e}")
                out.append(f"v_and_b32 v{b+2*e+1}, 0xffff0000, v{b+4+e}")
            for e in (0, 2):
                out.append(f"v_pk_add_f32 v[{b+e}:{b+e+1}], v[{b+e}:{b+e+1}], v[{U+4*q+e}:{U+4*q+e+1}]")
            for e in range(2):
                out.append(f"v_cvt_pk_bf16_f32 v{b+4+e}, v{b+2*e}, v{b+2*e+1}")
            out.append(f"buffer_store_dwordx2 v[{b+4}:{b+5}], v5, s[52:55], s{28+q} offen")
        return out
    for _ in range(ENV("K3_HB2", 12)):
        nxt()
        if wr: a(wr.pop(0))
    while wr: a(wr.pop(0))
    a("s_waitcnt lgkmcnt(0)")
    a("s_barrier")
    for t in finalize(0, 80, 16):
        a(t)
        if t.startswith("buffer"): vm.issue("o")
        if t.startswith("v_pk") and hq: nxt()
    while hq: nxt()
    g2tile(2); g2tile(3)
    while wr: a(wr.pop(0))
    a("s_waitcnt lgkmcnt(0)")
    a("s_barrier")
    for t in finalize(1, 32, 16): a(t)
    a.label("K3_END")
    a("s_endpgm")
```

```python
import os
from asmlib import *
from layout import *
from k1 import srd
from k34 import stat_finalize_steps
import asmlib
BST = os.environ.get("K3_BST") if "os" in dir() else None
K35_LDS = 163840
ENV = lambda k, d: int(os.environ.get(k, d))

_stamp = stamp
def stamp(a, i, alt=None):
    if os.environ.get("STSET", "M") != "M": return
    if (alt or "") == (BST or ""): _stamp(a, i)
    elif alt is None and i < 2 and BST == "B": _stamp(a, i)

def mlp_ids(a):
    a("s_bfe_u32 s4, s2, 0x20001")
    a("s_lshl_b32 s4, s4, 2")
    a("s_bfe_u32 s5, s2, 0x20003")
    a("s_add_u32 s4, s4, s5")
    a("s_lshr_b32 s18, s2, 5")
    a("s_and_b32 s19, s2, 1")
    a("s_lshl_b32 s5, s18, 1")
    a("s_add_u32 s5, s5, s19")

def gen_k36(a):
    a.raw(kernel_header("mlp_kernel"))
    if os.environ.get("K3_DROP"): a.drop = os.environ["K3_DROP"].split(",")
    a("s_cmp_ge_u32 s2, 256")
    a("s_cbranch_scc1 K3_END")
    a("s_load_dwordx2 s[38:39], s[0:1], 88")
    a("s_load_dwordx2 s[40:41], s[0:1], 104")
    a("v_lshrrev_b32 v2, 6, v0")
    a("v_and_b32 v1, 63, v0")
    a("v_readfirstlane_b32 s3, v2")
    mlp_body(a, False)

def mlp_body(a, fused, gate=None):
    SC1 = " sc1" if fused else ""
    a("v_lshlrev_b32 v2, 4, v1")
    a("s_bfe_u32 s4, s2, 0x20001")
    a("s_lshl_b32 s4, s4, 2")
    a("s_bfe_u32 s5, s2, 0x20003")
    a("s_add_u32 s4, s4, s5")
    a("s_lshr_b32 s18, s2, 5")
    a("s_and_b32 s19, s2, 1")
    a("s_lshl_b32 s5, s18, 1")
    a("s_add_u32 s5, s5, s19")
    a("s_mul_i32 s6, s3, 20480")
    a("s_mul_i32 s20, s4, 163840")
    a("s_add_u32 s7, s20, s6")
    a("s_lshl_b32 s8, s5, 2")
    a("s_add_u32 s8, s8, s3")
    a("s_mul_i32 s9, s8, 61440")
    a("s_mul_i32 s21, s18, 20480")
    a("s_add_u32 s21, s21, s20")
    a("s_mul_i32 s10, s3, 5120")
    a("s_add_u32 s21, s21, s10")
    a("s_mul_i32 s22, s18, 245760")
    a("s_mul_i32 s10, s3, 61440")
    a("s_add_u32 s22, s22, s10")
    a("s_waitcnt lgkmcnt(0)")
    srd(a, 44, 40, H_OFF, SZ_X); srd(a, 48, 40, W13_OFF, 3932160)
    vm = Cnt(a, "vmcnt", 63); ds = Cnt(a, "lgkmcnt", 15)
    ACC = 32; HB = 128; STR = 192; CSR = 16
    acc = lambda i, t: ACC + 4 * (3 * i + t)
    hb = lambda n, i: HB + 16 * (n & 1) + 4 * i
    SF = 160; CQ = 204
    PRE = ENV("K3_PRE", 0) or fused
    if PRE and not fused:
        for idx in range(60):
            if idx % 4 == 0: a(f"s_add_u32 s11, s9, {idx * 1024}")
            a(f"buffer_load_dwordx4 a[{4*idx}:{4*idx+3}], v2, s[48:51], s11 offen offset:{(idx&3)*1024}")
        a("s_waitcnt vmcnt(0)")
        a("s_barrier")
        a("s_memrealtime s[96:97]")
        a("s_waitcnt lgkmcnt(0)")
    def first_loads():
        for i in range(5):
            if i == 4: a("s_add_u32 s21, s21, 4096")
            a(f"buffer_load_dwordx4 v[{SF+4*i}:{SF+4*i+3}], v2, s[44:47], s21 offen offset:{(i%4)*1024}{SC1}"); vm.issue("sf")
        for _ in range(ENV("K3_PRO", 12 if fused else 14)): issue_item()
    items = []
    NPRE = ENV("A_NPRE", 36 if fused else 60)
    for s in range(20):
        items += [("h", s, 0)] + [("w", s, t) for t in range(3) if not PRE or 3 * s + t >= NPRE]
        if s == (19 if PRE else 10): items.append(("cs", 0, 0))
        if s == ENV("K3_STPOS", 16) and not PRE: items.append(("st", 0, 0))
    HBE = ENV("K3_HBE", 8 if fused else 7)
    for s in range(HBE): items.append(("h", 20 + s, 1))
    if PRE: items.append(("st", 0, 0))
    for s in range(20):
        if s + HBE < 20: items.append(("h", 20 + s + HBE, 1))
        items += [("w2", 3 * s + t, 0) for t in range(3)]
    stepA = [0]
    cur = [-1]
    def issue_item():
        if not items or len(vm.q) >= 60: return False
        kd, s, x = items[0]
        if kd == "w2" and s // 3 > cur[0]: return False
        if kd == "st" and PRE and stepA[0] < ENV("K3_STI", 17): return False
        items.pop(0)
        if kd == "h":
            ss = s % 20
            off = x * 81920 + (ss & ~3) * 1024
            if ss % 4 == 0:
                a(f"s_add_u32 m0, s6, {off}")
                a(f"s_add_u32 s10, s7, {off}")
            a(f"buffer_load_dwordx4 v2, s[44:47], s10 offen offset:{(ss&3)*1024}{SC1} lds"); vm.issue(s)
        elif kd == "w":
            idx = 3 * s + x
            if idx % 4 == 0 or idx == NPRE: a(f"s_add_u32 s11, s9, {(idx & ~3) * 1024}")
            a(f"buffer_load_dwordx4 a[{4*idx}:{4*idx+3}], v2, s[48:51], s11 offen offset:{(idx&3)*1024}{SC1}"); vm.issue(s)
        elif kd == "w2" and os.environ.get("K3_NOW2"): pass
        elif kd == "w2":
            if s % 4 == 0: a(f"s_add_u32 s11, s22, {(s & ~3) * 1024}")
            a(f"buffer_load_dwordx4 a[{4*s}:{4*s+3}], v2, s[68:71], s11 offen offset:{(s&3)*1024}{SC1}"); vm.issue(("w2", s))
        elif kd == "cs":
            a(f"buffer_load_dwordx4 v[{CQ}:{CQ+3}], v2, s[52:55], s17 offen sc1"); vm.issue("cs")
        elif kd == "st":
            st_loads()
        return True
    def st_loads():
        a(f"buffer_load_dwordx4 v[176:179], v2, s[72:75], s24 offen sc1"); vm.issue("st")
    if not fused: first_loads()
    srd(a, 52, 40, CSQ_OFF, 64*1024); srd(a, 56, 40, HM_OFF, 6291456)
    srd(a, 68, 40, W2_OFF, 1966080); srd(a, 72, 40, ST_OFF, 0x4000 + 128*128)
    a("v_and_b32 v6, 15, v1")
    a("v_lshrrev_b32 v7, 4, v1")
    a("v_lshrrev_b32 v3, 1, v7")
    a("v_lshlrev_b32 v3, 5, v3")
    a("v_and_b32 v4, 1, v7")
    a("v_lshl_add_u32 v3, v4, 3, v3")
    a("v_lshlrev_b32 v186, 3, v1")
    a("v_add_u32 v185, s6, v2")
    a("s_lshl_b32 s17, s8, 10")
    a("v_lshlrev_b32 v5, 3, v6")
    a("s_lshl_b32 s24, s4, 10")
    a("v_add_u32 v3, s6, v3")
    a("v_add_u32 v187, 5120, v3")
    a("v_add_u32 v184, s6, v5")
    for i in range(8):
        a(f"s_add_u32 s13, s3, {i}")
        a("s_and_b32 s13, s13, 3")
        if i >= 4: a("s_add_u32 s13, s13, 4")
        a("s_mul_i32 s14, s13, 20480")
        a(f"v_add_u32 v{8+i}, s14, v186")
    if fused:
        gate()
        first_loads()
    a("s_mov_b32 s16, 0x3f803f80")
    SCR = 7 * 20480 + 19 * 1024
    a("s_lshl_b32 s13, s3, 7")
    a("v_and_b32 v6, 7, v1")
    a("v_lshlrev_b32 v6, 4, v6")
    a("v_add_u32 v6, s13, v6")
    vm.wait("sf")
    for r in range(20):
        for k in range(2):
            d = 28 + 2 * ((r % 4) // 2) + k
            src2 = "s16" if k == 0 else f"v{SF+r}"
            a(f"v_dot2_f32_bf16 v{d}, v{SF+r}, {src2}, {'0' if r in (0, 2) else 'v%d' % d}")
        if r % 2 == 1: issue_item()
    for sw in ("v_permlane32_swap_b32", "v_permlane16_swap_b32"):
        for r in range(4): a(f"v_mov_b32 v{SF+r}, v{28+r}")
        for r in range(4): a(f"{sw} v{28+r}, v{SF+r}")
        for r in (0, 2): a(f"v_pk_add_f32 v[{28+r}:{29+r}], v[{28+r}:{29+r}], v[{SF+r}:{SF+r+1}]")
    for r in range(4): a(f"v_add_f32_dpp v{28+r}, v{28+r}, v{28+r} row_ror:8 row_mask:0xf bank_mask:0xf")
    a(f"v_add_u32 v6, {SCR}, v6")
    a(f"v_add_u32 v7, {SCR}, v5")
    a("ds_write_b128 v6, v[28:31]")
    a("s_waitcnt lgkmcnt(0)")
    def hread(n, i):
        sl = i + 4 * (n // 20)
        a(f"ds_read2st64_b64 v[{hb(n,i)}:{hb(n,i)+3}], v{8+sl} offset0:{2*(n%20)} offset1:{2*(n%20)+1}"); ds.issue((n, i))
    vm.wait(0)
    stamp(a, 0)
    a("s_barrier")
    for i in range(4): hread(0, i)
    P = 240
    side = [("ds", f"ds_read_b64 v[{P+2*i}:{P+2*i+1}], v7 offset:{i*128}") for i in range(4)]
    side += [("v", f"v_mov_b32 v{P+8}, {f2u(1.0/640):#x}"),
             ("v", "s_lshl_b32 s13, s19, 3"), ("v", "s_lshl_b32 s14, s3, 1"), ("v", "s_add_u32 s13, s13, s14"),
             ("v", "s_lshl_b64 s[32:33], 3, s13"),
             ("v", "s_lshl_b32 s13, s4, 3"), ("v", "s_add_u32 s13, s13, s18"), ("v", "s_lshl_b32 s34, s13, 7"),
             ("w", None),
             ("v", f"v_add_f32 v{P}, v{P}, v{P+2}"), ("v", f"v_add_f32 v{P+1}, v{P+1}, v{P+3}"),
             ("v", f"v_add_f32 v{P+4}, v{P+4}, v{P+6}"), ("v", f"v_add_f32 v{P+5}, v{P+5}, v{P+7}"),
             ("v", f"v_add_f32 v{P}, v{P}, v{P+4}"), ("v", f"v_add_f32 v{P+1}, v{P+1}, v{P+5}")]
    side += [("v", st(P, P + 1, P + 2)) for st in stat_finalize_steps(P + 8)]
    side += [("x", None)]
    prep = []
    prep += ["s_lshl_b32 s13, s4, 3", "s_add_u32 s13, s13, s3", "s_mul_i32 s13, s13, 49152", "s_mul_i32 s14, s5, 3072",
             "s_add_u32 s60, s13, s14", "s_add_u32 s61, s60, 196608"]
    prep += ["s_lshl_b32 s13, s4, 2", "s_lshr_b32 s14, s5, 2", "s_add_u32 s14, s14, s13", "s_lshl_b32 s14, s14, 8",
             "s_add_u32 s62, s14, 0x4000",
             "s_add_u32 s13, s13, s3", "s_lshl_b32 s13, s13, 8", "s_add_u32 s63, s13, 0x4000"]
    prep += ["s_lshl_b32 s13, s4, 3", "s_lshl_b32 s14, s19, 1", "s_add_u32 s23, s13, s14",
             "s_mul_i32 s13, s23, 49152", "s_mul_i32 s14, s3, 12288", "s_add_u32 s64, s13, s14",
             "s_add_u32 s65, s64, 49152", "s_add_u32 s66, s64, 196608", "s_add_u32 s67, s64, 245760",
             "s_lshl_b32 s36, s3, 10"]
    side += [("v", t) for t in prep]
    def do_side():
        if not side: return False
        k, t = side.pop(0)
        if k == "ds": a(t); ds.issue("sp")
        elif k == "w": ds.wait("sp")
        elif k == "v": a(t)
        else:
            a("s_mov_b64 exec, s[32:33]")
            a(f"buffer_store_dwordx2 v[{P}:{P+1}], v5, s[72:75], s34 offen sc1"); vm.issue("gs")
            a("s_mov_b64 exec, -1")
        return True
    def mfma(i, t, s, n, first):
        c = f"v[{acc(i,t)}:{acc(i,t)+3}]"; w = 4 * (3 * s + t)
        a(f"v_mfma_f32_16x16x32_bf16 {c}, a[{w}:{w+3}], v[{hb(n,i%4)}:{hb(n,i%4)+3}], {0 if first else c}")
    STCHK = ENV('K3_STCHK', 99 if fused else 15); STB = ENV('K3_STB', 1)
    def stchk(var):
        while side: do_side()
        a("s_mov_b32 s35, 0")
        a.label(f"K3_STCHK{var}")
        vm.wait("st")
        saved_q = list(vm.q)
        a("v_min_u32 v6, v177, v179")
        a("v_cmp_eq_u32 vcc, 0, v6")
        a(f"s_cbranch_vccz K3_STOK{var}")
        a("s_add_u32 s35, s35, 1")
        a("s_cmp_ge_u32 s35, 0x4000")
        a(f"s_cbranch_scc1 K3_STOK{var}")
        a("s_sleep 2")
        st_loads()
        a("s_waitcnt vmcnt(0)")
        a(f"s_branch K3_STCHK{var}")
        a.label(f"K3_STOK{var}")
        vm.q = saved_q
        vm.wait("cs")
        for sw in ("v_permlane32_swap_b32", "v_permlane16_swap_b32"):
            side.extend(("v", f"v_mov_b32 v{CQ+4+r}, v{CQ+r}") for r in range(4))
            side.extend(("v", f"{sw} v{CQ+r}, v{CQ+4+r}") for r in range(4))
            side.extend(("v", f"v_add_f32 v{CQ+r}, v{CQ+r}, v{CQ+4+r}") for r in range(4))
        side.extend([("ds", "ds_write_b128 v185, v[176:179] offset:4096"), ("ds", f"ds_write_b128 v185, v[{CQ}:{CQ+3}] offset:5120")])
        for i in range(8):
            rt = ((var + i) & 3) + 4 * (i >> 2)
            side.append(("ds", f"ds_read_b64 v[{STR+4*i}:{STR+4*i+1}], v184 offset:{4096 + rt*128}"))
        for t in range(3):
            side.append(("ds", f"ds_read2_b64 v[{CSR+4*t}:{CSR+4*t+3}], v187 offset0:{8*t} offset1:{8*t+2}"))
        side.extend([("v", "v_mov_b32 v28, 1"), ("v", "v_mov_b32 v29, 0"), ("w", None)])
        side.extend(("v", t) for t in pre)
    def phase_a(var):
        for s in range(20):
            stepA[0] = s
            if s % 3 == 0: stamp(a, s // 3, "A")
            assert not any(kd in "hw" and x == s + 1 for kd, x, _ in items), s
            vm.wait(s + 1)
            a("s_barrier")
            ds.wait((s, 3))
            nl = 5 if s % ENV("K3_AX", 2) == 0 else 4
            if PRE: nl = ENV("K3_NL", 3 if fused else 2)
            for i in range(4):
                for t in range(3):
                    mfma(i, t, s, s, s == 0)
                    if t == 0: hread(s + 1, i)
                    if i == var:
                        for _ in range(2 if t or nl == 5 and False else 1):
                            if nl: issue_item(); nl -= 1
                    elif t: do_side(); do_side()
            if s == STCHK: stchk(var)
            if fused and s == 12: gate.w2_issue(vm)
            if fused and s == 18: gate.w2_check(vm, var)
        while side: do_side()
        stamp(a, 1)
    PK = ENV("K3_PK", 0)
    def epi(i, var, pk):
        S = STR + 4 * i; O = 224 + 4 * (i % 2); out = []; seqs = []
        for t in range(3):
            c = acc(i, t); e = 232 + 2 * t; cs = CSR + 4 * t
            if pk:
                seqs.append([
                f"v_pk_fma_f32 v[{c}:{c+1}], v[{cs}:{cs+1}], v[{S}:{S+1}], v[{c}:{c+1}] op_sel_hi:[1,0,1] neg_lo:[0,1,0] neg_hi:[0,1,0]",
                f"v_pk_fma_f32 v[{c+2}:{c+3}], v[{cs+2}:{cs+3}], v[{S}:{S+1}], v[{c+2}:{c+3}] op_sel_hi:[1,0,1] neg_lo:[0,1,0] neg_hi:[0,1,0]",
                f"v_pk_mul_f32 v[{e}:{e+1}], v[{c}:{c+1}], v[{S+2}:{S+3}] op_sel_hi:[1,0]",
                f"v_exp_f32 v{e}, v{e}",
                f"v_exp_f32 v{e+1}, v{e+1}",
                f"v_pk_mul_f32 v[{c}:{c+1}], v[{c}:{c+1}], v[{c+2}:{c+3}]",
                f"v_pk_fma_f32 v[{e}:{e+1}], v[{e}:{e+1}], v[{S}:{S+1}], v[{S}:{S+1}] op_sel:[0,1,1] op_sel_hi:[1,1,1]",
                f"v_rcp_f32 v{e}, v{e}",
                f"v_rcp_f32 v{e+1}, v{e+1}",
                f"v_pk_mul_f32 v[{c}:{c+1}], v[{c}:{c+1}], v[{e}:{e+1}]",
                f"v_cvt_pk_bf16_f32 v{O+t}, v{c}, v{c+1}"])
            else:
                seqs.append(
                [f"v_fma_f32 v{c+r}, -v{S}, v{cs+r}, v{c+r}" for r in range(2)] +
                [f"v_mul_f32 v{e+r}, v{c+r}, v{S+2}" for r in range(2)] +
                [f"v_exp_f32 v{e}, v{e}", f"v_fma_f32 v{c+2}, -v{S}, v{cs+2}, v{c+2}",
                 f"v_exp_f32 v{e+1}, v{e+1}", f"v_fma_f32 v{c+3}, -v{S}, v{cs+3}, v{c+3}"] +
                [f"v_mul_f32 v{c+r}, v{c+r}, v{c+2+r}" for r in range(2)] +
                [f"v_fma_f32 v{e+r}, v{e+r}, v{S+1}, v{S+1}" for r in range(2)] +
                [f"v_rcp_f32 v{e+r}, v{e+r}" for r in range(2)] +
                [f"v_mul_f32 v{c+r}, v{c+r}, v{e+r}" for r in range(2)] +
                [f"v_cvt_pk_bf16_f32 v{O+t}, v{c}, v{c+1}"])
        for j in range(len(seqs[0])):
            for sq in seqs:
                if not os.environ.get("K3_NOEPI"): out.append(sq[j])
        out.append(f"v_add_u32 v6, v{8+i}, v186")
        if var < 3:
            out.append(f"ds_write_b96 v6, v[{O}:{O+2}] offset:{var*1024}")
        else:
            out += [f"ds_write_b32 v6, v{O+t} offset:{t*1024 + 12}" for t in range(3)]
        return out
    pre = [f"v_mov_b32 v4, {f2u(-LOG2E):#x}"]
    pre += [f"v_rcp_f32 v{STR+4*i+2}, v{STR+4*i+1}" for i in range(8)]
    pre += [f"v_mul_f32 v{STR+4*i+1}, v{STR+4*i+1}, v{STR+4*i+1}" for i in range(8)]
    pre += [f"v_mul_f32 v{STR+4*i+2}, v{STR+4*i+2}, v4" for i in range(8)]
    PB = 160
    def signal(hf):
        if signal.var < 4:
            if signal.var == 0:
                a("s_mov_b64 exec, 1")
                a(f"buffer_atomic_add v28, v29, s[72:75], s62 offen offset:{hf*128} sc1"); vm.issue("sig")
                a("s_mov_b64 exec, -1")
            return
        a("s_cmp_lg_u32 s3, 0")
        lab = f"K3_NOSIG{hf}_{signal.var}"
        a(f"s_cbranch_scc1 {lab}")
        a("s_mov_b64 exec, 1")
        a(f"buffer_atomic_add v28, v29, s[72:75], s62 offen offset:{hf*128} sc1")
        a("s_mov_b64 exec, -1")
        a.label(lab)
        vm.q.append("sig")
        vm.q.pop()
    A2 = 80; HR = 224
    acc2 = lambda j, t: A2 + 4 * (5 * j + t)
    HMR = [32 + 4 * i for i in range(12)] + [160 + 4 * i for i in range(8)] + [240 + 4 * i for i in range(4)]
    hm = lambda j, k: HMR[12 * (j % 2) + k]
    hq = []
    def ld_hm(j, k):
        if k % 4 == 0: a(f"s_add_u32 s10, s{64+j}, {(k & ~3)*1024}")
        a(f"buffer_load_dwordx4 v[{hm(j,k)}:{hm(j,k)+3}], v2, s[56:59], s10 offen offset:{(k&3)*1024}{os.environ.get('K3_HMSC', ' sc1')}"); vm.issue((j, k))
    saves = (list(items), list(vm.q), list(ds.q), list(side))
    for w in range(1, 4):
        a(f"s_cmp_eq_u32 s3, {w}")
        a(f"s_cbranch_scc1 K3_VAR{w}")
    for var in range(4):
        if var:
            a.label(f"K3_VAR{var}")
            items[:] = saves[0]; vm.q = list(saves[1]); ds.q = list(saves[2]); cur[0] = -1; side[:] = saves[3]
        signal.var = var
        phase_a(var)
        sj = []
        if STCHK < 20:
            for i in range(4): sj += epi(i, var, PK)
        def emit_side(budget):
            while side and budget > 0:
                do_side(); budget -= 4
            while sj and budget > 0:
                t = sj.pop(0); a(t)
                if t.startswith("ds_"): ds.issue("e")
                budget -= 8 if t.split()[0] in TRANS else 4
        state = 0
        for s in range(20):
            n = 20 + s
            if s % 4 == 3: stamp(a, 2 + s // 4, "B")
            if s + 1 < 20:
                assert not any(kd == "h" and x == n + 1 for kd, x, _ in items)
                vm.wait(n + 1)
            if state == 0 and s > STB and not sj and not hasattr(emit_side, "nat"):
                emit_side.nat = s; print("epilogue A natural finish at step", s, "var", var)
            if state == 0 and s == ENV("K3_SA", 15 if STCHK >= 20 else 11):
                emit_side(100000)
                ds.wait("e"); state = 1
                a("s_barrier")
                for ph in range(3):
                    a(f"ds_read_b128 v[{PB+4*ph}:{PB+4*ph+3}], v185 offset:{ph*1024}"); ds.issue("pb")
            elif state == 1:
                a("s_barrier")
                ds.wait("pb")
                for ph in range(3):
                    a(f"buffer_store_dwordx4 v[{PB+4*ph}:{PB+4*ph+3}], v2, s[56:59], s60 offen offset:{ph*1024} sc1"); vm.issue("hsA")
                state = 2; s_st = s
            elif state == 2 and (s >= s_st + ENV("K3_DRAIN", 4) or s == 19):
                vm.wait("hsA")
                a("s_barrier")
                signal(0); state = 4
                stamp(a, 2)
            elif s + 1 < 20:
                a("s_barrier")
            ds.wait((n, 3))
            for i in range(4):
                for t in range(3):
                    mfma(4 + i, t, s, n, s == 0)
                    if t == 0 and s + 1 < 20: hread(n + 1, i)
                    if i == var:
                        issue_item()
                        if t == 2 and ENV("K3_BN", 4) == 4: issue_item()
                    else: emit_side(ENV("K3_B0", 8) if t == 0 else ENV("K3_B1", 12))
            cur[0] = s
            if STCHK >= 20 and s == STB:
                stchk(var)
                for i in range(4): sj += epi(i, var, PK)
            if s == ENV("K3_PAS", 18):
                a(f"buffer_load_dword v30, v29, s[72:75], s63 offen sc1"); vm.issue("pA")
        assert state == 4, state
        for i in range(4, 8): sj += epi(i, var, 1)
        n_eb = ENV("K3_EBN", 4)
        while sj:
            emit_side(ENV("K3_EB", 200))
            if n_eb and issue_item(): n_eb -= 1
        left = list(items)
        if var < 3: a("s_branch K3_EPIDONE")
    a.label("K3_EPIDONE")
    a("s_waitcnt lgkmcnt(0)"); ds.q = []
    stamp(a, 3)
    a("s_barrier")
    PB2 = 192
    a("v_add_u32 v12, 81920, v185")
    for ph in range(3):
        a(f"ds_read_b128 v[{PB2+4*ph}:{PB2+4*ph+3}], v12 offset:{ph*1024}")
    a("s_mul_i32 s13, s3, 5120")
    a("v_add_u32 v8, s13, v2")
    a("v_add_u32 v9, 40960, v8")
    a("v_lshrrev_b32 v4, 5, v1")
    a("v_lshlrev_b32 v4, 7, v4")
    a("v_and_b32 v5, 15, v1")
    a("v_lshl_add_u32 v4, v5, 3, v4")
    a("v_bfe_u32 v6, v1, 4, 1")
    a("v_lshl_add_u32 v4, v6, 9, v4")
    a("v_mul_u32_u24 v5, 1280, v5")
    a("v_lshrrev_b32 v7, 4, v1")
    a("v_lshl_add_u32 v5, v7, 3, v5")
    a("s_mul_i32 s16, s18, 5")
    a("s_mul_i32 s17, s18, 160")
    for q in range(3):
        a(f"s_add_u32 s12, s3, {4*q}")
        if q == 2:
            a("s_cmp_ge_u32 s12, 10")
            a("s_cselect_b32 s13, 2, 0")
            a("s_sub_u32 s12, s12, s13")
        a("s_cmp_ge_u32 s12, 5")
        a("s_cselect_b32 s13, 1, 0")
        a("s_mul_i32 s14, s13, 5")
        a("s_sub_u32 s12, s12, s14")
        a("s_mul_i32 s14, s13, 20480")
        a("s_lshl_b32 s15, s12, 10")
        a("s_add_u32 s15, s15, s14")
        a(f"v_add_u32 v{10+q}, s15, v2") if q < 2 else a("v_add_u32 v13, s15, v2")
        a("s_add_u32 s13, s13, s23")
        a("s_mul_i32 s13, s13, 20480")
        a("s_add_u32 s14, s12, s16")
        a("s_lshr_b32 s15, s14, 1")
        a("s_lshl_b32 s15, s15, 10")
        a("s_and_b32 s14, s14, 1")
        a("s_lshl_b32 s14, s14, 8")
        a("s_add_u32 s14, s14, s15")
        a(f"s_add_u32 s{24+q}, s13, s14")
        a("s_lshl_b32 s14, s12, 5")
        a("s_add_u32 s14, s14, s17")
        a(f"s_add_u32 s{28+q}, s13, s14")
    srd(a, 52, 38, 0, SZ_X)
    for ph in range(3):
        a(f"s_waitcnt lgkmcnt({2-ph})")
        a(f"buffer_store_dwordx4 v[{PB2+4*ph}:{PB2+4*ph+3}], v2, s[56:59], s61 offen offset:{ph*1024} sc1"); vm.issue("hsB")
    vm.wait("pA")
    a("s_mov_b32 s35, 0")
    a("s_branch K3_PA_CHK")
    a.label("K3_PA")
    a(f"buffer_load_dword v30, v29, s[72:75], s63 offen sc1")
    a("s_waitcnt vmcnt(0)")
    a.label("K3_PA_CHK")
    a("v_readfirstlane_b32 s14, v30")
    a("s_add_u32 s35, s35, 1")
    a("s_cmp_ge_u32 s14, 4")
    a("s_cbranch_scc1 K3_GOA")
    a("s_cmp_lt_u32 s35, 0x8000")
    a("s_cbranch_scc1 K3_PA")
    a.label("K3_GOA")
    def res_loads():
        for hf in range(2):
            for q in range(3):
                if hf: a(f"s_add_u32 s{24+q}, s{24+q}, 81920")
                a(f"buffer_load_dwordx2 v[{HR+6*hf+2*q}:{HR+6*hf+2*q+1}], v4, s[44:47], s{24+q} offen{SC1}"); vm.issue("res")
    H0 = ENV("K3_H0", 6)
    hq[:] = [(0, kk) for kk in range(H0)] + ["w2"] * len(items) + [(0, kk) for kk in range(H0, 12)] + [(1, kk) for kk in range(12)] + ["res"]
    _ld = ld_hm
    def nxt():
        x = hq.pop(0)
        if x == "w2": assert issue_item()
        elif x == "res": res_loads()
        else: _ld(*x)
    for _ in range(ENV("K3_NPA", 8)): nxt()
    stamp(a, 4)
    wr = []
    def g2tile(j, hook=None):
        for k in range(12):
            while (j, k) in hq or (j == 0 and ("w2", 5 * k + 4, 0) in items): nxt()
            vm.wait((j, k)); vm.wait(("w2", 5 * k + 4))
            for t in range(5):
                c = f"v[{acc2(j,t)}:{acc2(j,t)+3}]"; w = 4 * (5 * k + t)
                a(f"v_mfma_f32_16x16x32_bf16 {c}, a[{w}:{w+3}], v[{hm(j,k)}:{hm(j,k)+3}], {c if k else 0}")
                if t == 2 and wr and k >= 1: a(wr.pop(0))
                if t in (0, 3) and hq: nxt()
            if hook: hook(k)
        wr.extend(f"ds_write_b128 v{8 + j//2}, v[{acc2(j,t)}:{acc2(j,t)+3}] offset:{(j%2)*20480 + t*1024}" for t in range(5))
    def hookA(k):
        if k == ENV("K3_SBK", -1):
            vm.wait("hsB")
            a("s_barrier")
            signal.var = 9; signal(1)
    if ENV("K3_SBK", -1) < 0:
        vm.wait("hsB")
        a("s_barrier")
        signal.var = 9; signal(1)
    g2tile(0, hookA)
    def hookB(k):
        if k == ENV("K3_PBK", 0):
            a(f"buffer_load_dword v30, v29, s[72:75], s63 offen offset:128 sc1"); vm.issue("pB")
        if k == ENV("K3_PBC", 3):
            stamp(a, 5)
            while hq: nxt()
            a("s_mov_b32 s35, 0")
            vm.wait("pB")
            a("s_branch K3_PB_CHK")
            a.label("K3_PB")
            a(f"buffer_load_dword v30, v29, s[72:75], s63 offen offset:128 sc1")
            a("s_waitcnt vmcnt(0)")
            a.label("K3_PB_CHK")
            a("v_readfirstlane_b32 s14, v30")
            a("s_add_u32 s35, s35, 1")
            a("s_cmp_ge_u32 s14, 4")
            a("s_cbranch_scc1 K3_GOB")
            a("s_cmp_lt_u32 s35, 0x8000")
            a("s_cbranch_scc1 K3_PB")
            a.label("K3_GOB")
            stamp(a, 6)
            hq.extend((2, kk) for kk in range(12))
            for _ in range(4): nxt()
    g2tile(1, hookB)
    hq.extend((3, kk) for kk in range(12))
    RD = [10, 11, 13]
    def finalize(hf, R, U):
        out = []
        for q in range(3):
            for w in range(4):
                out.append(f"ds_read_b128 v[{R+16*q+4*w}:{R+16*q+4*w+3}], v{RD[q]} offset:{hf*40960 + w*5120}")
        for q in range(3):
            for e in range(2):
                out.append(f"v_lshlrev_b32 v{U+4*q+2*e}, 16, v{HR+6*hf+2*q+e}")
                out.append(f"v_and_b32 v{U+4*q+2*e+1}, 0xffff0000, v{HR+6*hf+2*q+e}")
            if hf: out.append(f"s_add_u32 s{28+q}, s{28+q}, 81920")
        for q in range(3):
            b = R + 16 * q
            out.append(f"s_waitcnt lgkmcnt({8 - 4*q})")
            for e in (0, 2):
                out.append(f"v_pk_add_f32 v[{b+e}:{b+e+1}], v[{b+e}:{b+e+1}], v[{b+4+e}:{b+5+e}]")
                out.append(f"v_pk_add_f32 v[{b+8+e}:{b+9+e}], v[{b+8+e}:{b+9+e}], v[{b+12+e}:{b+13+e}]")
            for e in (0, 2):
                out.append(f"v_pk_add_f32 v[{b+e}:{b+e+1}], v[{b+e}:{b+e+1}], v[{b+8+e}:{b+9+e}]")
            for e in range(2):
                out.append(f"v_cvt_pk_bf16_f32 v{b+4+e}, v{b+2*e}, v{b+2*e+1}")
            for e in range(2):
                out.append(f"v_lshlrev_b32 v{b+2*e}, 16, v{b+4+e}")
                out.append(f"v_and_b32 v{b+2*e+1}, 0xffff0000, v{b+4+e}")
            for e in (0, 2):
                out.append(f"v_pk_add_f32 v[{b+e}:{b+e+1}], v[{b+e}:{b+e+1}], v[{U+4*q+e}:{U+4*q+e+1}]")
            for e in range(2):
                out.append(f"v_cvt_pk_bf16_f32 v{b+4+e}, v{b+2*e}, v{b+2*e+1}")
            out.append(f"buffer_store_dwordx2 v[{b+4}:{b+5}], v5, s[52:55], s{28+q} offen")
        return out
    for _ in range(ENV("K3_HB2", 12)):
        nxt()
        if wr: a(wr.pop(0))
    while wr: a(wr.pop(0))
    a("s_waitcnt lgkmcnt(0)")
    a("s_barrier")
    for t in finalize(0, 80, 16):
        a(t)
        if t.startswith("buffer"): vm.issue("o")
        if t.startswith("v_pk") and hq: nxt()
    while hq: nxt()
    g2tile(2); g2tile(3)
    while wr: a(wr.pop(0))
    a("s_waitcnt lgkmcnt(0)")
    a("s_barrier")
    for t in finalize(1, 32, 16): a(t)
    a.label("K3_END")
    a("s_endpgm")
```

```python
import os
from asmlib import *
from layout import *
from k1 import srd
from k34 import stat_finalize_steps
import asmlib
BST = os.environ.get("K3_BST") if "os" in dir() else None
K35_LDS = 163840
ENV = lambda k, d: int(os.environ.get(k, d))

_stamp = stamp
def stamp(a, i, alt=None):
    if os.environ.get("STSET", "M") != "M": return
    if (alt or "") == (BST or ""): _stamp(a, i)
    elif alt is None and i < 2 and BST == "B": _stamp(a, i)

def mlp_ids(a):
    a("s_bfe_u32 s4, s2, 0x20001")
    a("s_lshl_b32 s4, s4, 2")
    a("s_bfe_u32 s5, s2, 0x20003")
    a("s_add_u32 s4, s4, s5")
    a("s_lshr_b32 s18, s2, 5")
    a("s_and_b32 s19, s2, 1")
    a("s_lshl_b32 s5, s18, 1")
    a("s_add_u32 s5, s5, s19")

def gen_k38_unused(a):
    a.raw(kernel_header("mlp_kernel"))
    if os.environ.get("K3_DROP"): a.drop = os.environ["K3_DROP"].split(",")
    a("s_cmp_ge_u32 s2, 256")
    a("s_cbranch_scc1 K3_END")
    a("s_load_dwordx2 s[38:39], s[0:1], 88")
    a("s_load_dwordx2 s[40:41], s[0:1], 104")
    a("v_lshrrev_b32 v2, 6, v0")
    a("v_and_b32 v1, 63, v0")
    a("v_readfirstlane_b32 s3, v2")
    mlp_body(a, False)

def mlp_body(a, fused, gate=None):
    SC1 = " sc1" if fused else ""
    a("v_lshlrev_b32 v2, 4, v1")
    a("s_bfe_u32 s4, s2, 0x20001")
    a("s_lshl_b32 s4, s4, 2")
    a("s_bfe_u32 s5, s2, 0x20003")
    a("s_add_u32 s4, s4, s5")
    a("s_lshr_b32 s18, s2, 5")
    a("s_and_b32 s19, s2, 1")
    a("s_lshl_b32 s5, s18, 1")
    a("s_add_u32 s5, s5, s19")
    a("s_mul_i32 s6, s3, 20480")
    a("s_mul_i32 s20, s4, 163840")
    a("s_add_u32 s7, s20, s6")
    a("s_lshl_b32 s8, s5, 2")
    a("s_add_u32 s8, s8, s3")
    a("s_mul_i32 s9, s8, 61440")
    a("s_and_b32 s21, s18, 3")
    a("s_mul_i32 s21, s21, 20480")
    a("s_add_u32 s21, s21, s20")
    a("s_mul_i32 s10, s3, 5120")
    a("s_add_u32 s21, s21, s10")
    a("s_mul_i32 s22, s18, 245760")
    a("s_mul_i32 s10, s3, 61440")
    a("s_add_u32 s22, s22, s10")
    a("s_waitcnt lgkmcnt(0)")
    srd(a, 44, 40, H_OFF, SZ_X); srd(a, 48, 40, W13_OFF, 3932160)
    vm = Cnt(a, "vmcnt", 63); ds = Cnt(a, "lgkmcnt", 15)
    ACC = 32; HB = 128; STR = 192; CSR = 16
    acc = lambda i, t: ACC + 4 * (3 * i + t)
    hb = lambda n, i: HB + 16 * (n & 1) + 4 * i
    SF = 160; SFB = 192; CQ = 228
    PRE = ENV("K3_PRE", 0) or fused
    if PRE and not fused:
        for idx in range(60):
            if idx % 4 == 0: a(f"s_add_u32 s11, s9, {idx * 1024}")
            a(f"buffer_load_dwordx4 a[{4*idx}:{4*idx+3}], v2, s[48:51], s11 offen offset:{(idx&3)*1024}")
        a("s_waitcnt vmcnt(0)")
        a("s_barrier")
        a("s_memrealtime s[96:97]")
        a("s_waitcnt lgkmcnt(0)")
    def first_loads():
        for i in range(5):
            if i == 4: a("s_add_u32 s21, s21, 4096")
            a(f"buffer_load_dwordx4 v[{SF+4*i}:{SF+4*i+3}], v2, s[44:47], s21 offen offset:{(i%4)*1024}{SC1}"); vm.issue("sf")
        for _ in range(ENV("K3_PRO", 12 if fused else 14)): issue_item()
    items = []
    NPRE = ENV("A_NPRE", 36)
    GB = ENV("A_GB", 10)
    for s in range(20):
        items += [("h", s, 0)] + [("w", s, t) for t in range(3) if 3 * s + t >= NPRE]
    items.append(("cs", 0, 0))
    items.append(("sfb", 0, 0))
    HBE = ENV("K3_HBE", 8)
    for s in range(HBE): items.append(("h", 20 + s, 1))
    items.append(("st", 0, 0))
    for s in range(20):
        if s + HBE < 20: items.append(("h", 20 + s + HBE, 1))
        items += [("w2", 3 * s + t, 0) for t in range(3)]
    stepA = [0]
    cur = [-1]
    def issue_item():
        if not items or len(vm.q) >= 60: return False
        kd, s, x = items[0]
        if kd == "w2" and s // 3 > cur[0]: return False
        if kd == "st" and stepA[0] < ENV("K3_STI", 18): return False
        if kd == "sfb" and stepA[0] <= GB: return False
        items.pop(0)
        if kd == "h":
            ss = s % 20
            off = x * 81920 + (ss & ~3) * 1024
            if ss % 4 == 0:
                a(f"s_add_u32 m0, s6, {off}")
                a(f"s_add_u32 s10, s7, {off}")
            a(f"buffer_load_dwordx4 v2, s[44:47], s10 offen offset:{(ss&3)*1024}{SC1} lds"); vm.issue(s)
        elif kd == "w":
            idx = 3 * s + x
            if idx % 4 == 0 or idx == NPRE: a(f"s_add_u32 s11, s9, {(idx & ~3) * 1024}")
            a(f"buffer_load_dwordx4 a[{4*idx}:{4*idx+3}], v2, s[48:51], s11 offen offset:{(idx&3)*1024}{SC1}"); vm.issue(s)
        elif kd == "w2" and os.environ.get("K3_NOW2"): pass
        elif kd == "w2":
            if s % 4 == 0: a(f"s_add_u32 s11, s22, {(s & ~3) * 1024}")
            a(f"buffer_load_dwordx4 a[{4*s}:{4*s+3}], v2, s[68:71], s11 offen offset:{(s&3)*1024}{SC1}"); vm.issue(("w2", s))
        elif kd == "cs":
            a(f"buffer_load_dwordx4 v[{CQ}:{CQ+3}], v2, s[52:55], s17 offen sc1"); vm.issue("cs")
        elif kd == "st":
            st_loads(0)
        elif kd == "sfb":
            a(f"s_add_u32 s21, s21, {81920 - 4096}")
            for i in range(5):
                if i == 4: a("s_add_u32 s21, s21, 4096")
                a(f"buffer_load_dwordx4 v[{SFB+4*i}:{SFB+4*i+3}], v2, s[44:47], s21 offen offset:{(i%4)*1024} sc1"); vm.issue("sfb")
        return True
    def st_loads(hf):
        a(f"buffer_load_dwordx2 v[176:177], v186, s[72:75], s24 offen offset:{512*hf} sc1"); vm.issue("st")
    if not fused: first_loads()
    srd(a, 52, 40, CSQ_OFF, 64*1024); srd(a, 56, 40, HM_OFF, 6291456)
    srd(a, 68, 40, W2_OFF, 1966080); srd(a, 72, 40, ST_OFF, 0x4000 + 128*128)
    a("v_and_b32 v6, 15, v1")
    a("v_lshrrev_b32 v7, 4, v1")
    a("v_lshrrev_b32 v3, 1, v7")
    a("v_lshlrev_b32 v3, 5, v3")
    a("v_and_b32 v4, 1, v7")
    a("v_lshl_add_u32 v3, v4, 3, v3")
    a("v_lshlrev_b32 v186, 3, v1")
    a("v_add_u32 v185, s6, v2")
    a("v_add_u32 v183, s6, v186")
    a("s_lshl_b32 s17, s8, 10")
    a("v_lshlrev_b32 v5, 3, v6")
    a("s_lshl_b32 s24, s4, 10")
    a("v_add_u32 v3, s6, v3")
    a("v_add_u32 v187, 5120, v3")
    a("v_add_u32 v184, s6, v5")
    for i in range(8):
        a(f"s_add_u32 s13, s3, {i}")
        a("s_and_b32 s13, s13, 3")
        if i >= 4: a("s_add_u32 s13, s13, 4")
        a("s_mul_i32 s14, s13, 20480")
        a(f"v_add_u32 v{8+i}, s14, v186")
    if fused:
        gate()
        first_loads()
    a("s_mov_b32 s16, 0x3f803f80")
    SCR = [7 * 20480 + 19 * 1024, 6144]
    a("s_lshl_b32 s13, s3, 7")
    a("v_and_b32 v182, 7, v1")
    a("v_lshlrev_b32 v182, 4, v182")
    a("v_add_u32 v182, s13, v182")
    def stat_block(S, hf, interleave):
        T = 252
        for r in range(20):
            for k in range(2):
                d = T + 2 * ((r % 4) // 2) + k
                src2 = "s16" if k == 0 else f"v{S+r}"
                a(f"v_dot2_f32_bf16 v{d}, v{S+r}, {src2}, {'0' if r in (0, 2) else 'v%d' % d}")
            if interleave and r % 2 == 1: issue_item()
        for sw in ("v_permlane32_swap_b32", "v_permlane16_swap_b32"):
            for r in range(4): a(f"v_mov_b32 v{S+r}, v{T+r}")
            for r in range(4): a(f"{sw} v{T+r}, v{S+r}")
            for r in (0, 2): a(f"v_pk_add_f32 v[{T+r}:{T+r+1}], v[{T+r}:{T+r+1}], v[{S+r}:{S+r+1}]")
        for r in range(4): a(f"v_add_f32_dpp v{T+r}, v{T+r}, v{T+r} row_ror:8 row_mask:0xf bank_mask:0xf")
        a(f"v_add_u32 v6, {SCR[hf]}, v182")
        a(f"ds_write_b128 v6, v[{T}:{T+3}]"); ds.issue("sb")
    vm.wait("sf")
    stat_block(SF, 0, True)
    a("s_waitcnt lgkmcnt(0)"); ds.q = []
    def hread(n, i):
        sl = i + 4 * (n // 20)
        a(f"ds_read2st64_b64 v[{hb(n,i)}:{hb(n,i)+3}], v{8+sl} offset0:{2*(n%20)} offset1:{2*(n%20)+1}"); ds.issue((n, i))
    vm.wait(0)
    stamp(a, 0)
    a("s_barrier")
    for i in range(4): hread(0, i)
    P = 240
    def stat_fin(hf):
        o = [("v", f"v_add_u32 v7, {SCR[hf]}, v5")]
        o += [("ds", f"ds_read_b64 v[{P+2*i}:{P+2*i+1}], v7 offset:{i*128}") for i in range(4)]
        o += [("v", f"v_mov_b32 v{P+8}, {f2u(1.0/640):#x}"),
              ("v", "s_lshr_b32 s13, s18, 2"), ("v", "s_lshl_b32 s13, s13, 1"), ("v", "s_add_u32 s13, s13, s19"),
              ("v", "s_lshl_b32 s13, s13, 2"), ("v", "s_lshl_b64 s[32:33], 15, s13"),
              ("v", "s_lshl_b32 s13, s4, 3"), ("v", "s_and_b32 s14, s18, 3"), ("v", "s_add_u32 s13, s13, s14"),
              ("v", f"s_add_u32 s13, s13, {4*hf}"), ("v", "s_lshl_b32 s34, s13, 7"),
              ("w", None),
              ("v", f"v_add_f32 v{P}, v{P}, v{P+2}"), ("v", f"v_add_f32 v{P+1}, v{P+1}, v{P+3}"),
              ("v", f"v_add_f32 v{P+4}, v{P+4}, v{P+6}"), ("v", f"v_add_f32 v{P+5}, v{P+5}, v{P+7}"),
              ("v", f"v_add_f32 v{P}, v{P}, v{P+4}"), ("v", f"v_add_f32 v{P+1}, v{P+1}, v{P+5}")]
        o += [("v", st(P, P + 1, P + 2)) for st in stat_finalize_steps(P + 8)]
        o += [("x", None)]
        return o
    side = []
    prep = []
    prep += ["s_lshl_b32 s13, s4, 3", "s_add_u32 s13, s13, s3", "s_mul_i32 s13, s13, 49152", "s_mul_i32 s14, s5, 3072",
             "s_add_u32 s60, s13, s14", "s_add_u32 s61, s60, 196608"]
    prep += ["s_lshl_b32 s13, s4, 2", "s_lshr_b32 s14, s5, 2", "s_add_u32 s14, s14, s13", "s_lshl_b32 s14, s14, 8",
             "s_add_u32 s62, s14, 0x4000",
             "s_add_u32 s13, s13, s3", "s_lshl_b32 s13, s13, 8", "s_add_u32 s63, s13, 0x4000"]
    prep += ["s_lshl_b32 s13, s4, 3", "s_lshl_b32 s14, s19, 1", "s_add_u32 s23, s13, s14",
             "s_mul_i32 s13, s23, 49152", "s_mul_i32 s14, s3, 12288", "s_add_u32 s64, s13, s14",
             "s_add_u32 s65, s64, 49152", "s_add_u32 s66, s64, 196608", "s_add_u32 s67, s64, 245760"]
    side += [("v", t) for t in prep]
    def do_side():
        if not side: return False
        k, t = side.pop(0)
        if k == "ds": a(t); ds.issue("sp")
        elif k == "w": ds.wait("sp")
        elif k == "v": a(t)
        else:
            a("s_mov_b64 exec, s[32:33]")
            a(f"buffer_store_dwordx2 v[{P}:{P+1}], v5, s[72:75], s34 offen sc1"); vm.issue("gs")
            a("s_mov_b64 exec, -1")
        return True
    def mfma(i, t, s, n, first):
        c = f"v[{acc(i,t)}:{acc(i,t)+3}]"; w = 4 * (3 * s + t)
        a(f"v_mfma_f32_16x16x32_bf16 {c}, a[{w}:{w+3}], v[{hb(n,i%4)}:{hb(n,i%4)+3}], {0 if first else c}")
    STCHK = 99; STB = ENV('K3_STB', 1)
    def stchk(var, hf):
        while side: do_side()
        a("s_mov_b32 s35, 0")
        a.label(f"K3_STCHK{hf}{var}")
        vm.wait("st")
        saved_q = list(vm.q)
        a("v_cmp_eq_u32 vcc, 0, v177")
        a(f"s_cbranch_vccz K3_STOK{hf}{var}")
        a("s_add_u32 s35, s35, 1")
        a("s_cmp_ge_u32 s35, 0x4000")
        a(f"s_cbranch_scc1 K3_STOK{hf}{var}")
        a("s_sleep 2")
        st_loads(hf)
        a("s_waitcnt vmcnt(0)")
        a(f"s_branch K3_STCHK{hf}{var}")
        a.label(f"K3_STOK{hf}{var}")
        vm.q = saved_q
        side.append(("ds", f"ds_write_b64 v183, v[176:177] offset:{4096 + 512*hf}"))
        if hf == 0:
            vm.wait("cs")
            for sw in ("v_permlane32_swap_b32", "v_permlane16_swap_b32"):
                side.extend(("v", f"v_mov_b32 v{CQ+4+r}, v{CQ+r}") for r in range(4))
                side.extend(("v", f"{sw} v{CQ+r}, v{CQ+4+r}") for r in range(4))
                side.extend(("v", f"v_add_f32 v{CQ+r}, v{CQ+r}, v{CQ+4+r}") for r in range(4))
            side.append(("ds", f"ds_write_b128 v185, v[{CQ}:{CQ+3}] offset:5120"))
        sl = range(4 * hf, 4 * hf + 4)
        for i in sl:
            rt = ((var + i) & 3) + 4 * (i >> 2)
            side.append(("ds", f"ds_read_b64 v[{STR+4*i}:{STR+4*i+1}], v184 offset:{4096 + rt*128}"))
        if hf == 0:
            for t in range(3):
                side.append(("ds", f"ds_read2_b64 v[{CSR+4*t}:{CSR+4*t+3}], v187 offset0:{8*t} offset1:{8*t+2}"))
            side.extend([("v", "v_mov_b32 v28, 1"), ("v", "v_mov_b32 v29, 0"), ("v", f"v_mov_b32 v4, {f2u(-LOG2E):#x}")])
        side.append(("w", None))
        side.extend(("v", f"v_rcp_f32 v{STR+4*i+2}, v{STR+4*i+1}") for i in sl)
        side.extend(("v", f"v_mul_f32 v{STR+4*i+1}, v{STR+4*i+1}, v{STR+4*i+1}") for i in sl)
        side.extend(("v", f"v_mul_f32 v{STR+4*i+2}, v{STR+4*i+2}, v4") for i in sl)
    def phase_a(var):
        if var == 0: side[:0] = stat_fin(0)
        for s in range(20):
            stepA[0] = s
            if s % 3 == 0: stamp(a, s // 3, "A")
            assert not any(kd in "hw" and x == s + 1 for kd, x, _ in items), s
            vm.wait(s + 1)
            a("s_barrier")
            ds.wait((s, 3))
            nl = 5 if s % ENV("K3_AX", 2) == 0 else 4
            if PRE: nl = ENV("K3_NL", 3 if fused else 2)
            for i in range(4):
                for t in range(3):
                    mfma(i, t, s, s, s == 0)
                    if t == 0: hread(s + 1, i)
                    if i == var:
                        for _ in range(2 if t or nl == 5 and False else 1):
                            if nl: issue_item(); nl -= 1
                    elif t: do_side(); do_side()
            if s == GB - 4: gate.b_issue(vm)
            if s == GB: gate.b_check(vm, var)
            if s == 12: gate.w2_issue(vm)
            if s == 18: gate.w2_check(vm, var)
            if s == ENV("A_SB", GB + 6):
                assert ("sfb", 0, 0) not in items
                vm.wait("sfb")
                stat_block(SFB, 1, False)
                ds.wait("sb")
            if s == ENV("A_SB", GB + 6) + 1 and var == 0: side.extend(stat_fin(1))
        while side: do_side()
        stamp(a, 1)
    PK = ENV("K3_PK", 0)
    def epi(i, var, pk):
        S = STR + 4 * i; O = 224 + 4 * (i % 2); out = []; seqs = []
        for t in range(3):
            c = acc(i, t); e = 232 + 2 * t; cs = CSR + 4 * t
            if pk:
                seqs.append([
                f"v_pk_fma_f32 v[{c}:{c+1}], v[{cs}:{cs+1}], v[{S}:{S+1}], v[{c}:{c+1}] op_sel_hi:[1,0,1] neg_lo:[0,1,0] neg_hi:[0,1,0]",
                f"v_pk_fma_f32 v[{c+2}:{c+3}], v[{cs+2}:{cs+3}], v[{S}:{S+1}], v[{c+2}:{c+3}] op_sel_hi:[1,0,1] neg_lo:[0,1,0] neg_hi:[0,1,0]",
                f"v_pk_mul_f32 v[{e}:{e+1}], v[{c}:{c+1}], v[{S+2}:{S+3}] op_sel_hi:[1,0]",
                f"v_exp_f32 v{e}, v{e}",
                f"v_exp_f32 v{e+1}, v{e+1}",
                f"v_pk_mul_f32 v[{c}:{c+1}], v[{c}:{c+1}], v[{c+2}:{c+3}]",
                f"v_pk_fma_f32 v[{e}:{e+1}], v[{e}:{e+1}], v[{S}:{S+1}], v[{S}:{S+1}] op_sel:[0,1,1] op_sel_hi:[1,1,1]",
                f"v_rcp_f32 v{e}, v{e}",
                f"v_rcp_f32 v{e+1}, v{e+1}",
                f"v_pk_mul_f32 v[{c}:{c+1}], v[{c}:{c+1}], v[{e}:{e+1}]",
                f"v_cvt_pk_bf16_f32 v{O+t}, v{c}, v{c+1}"])
            else:
                seqs.append(
                [f"v_fma_f32 v{c+r}, -v{S}, v{cs+r}, v{c+r}" for r in range(2)] +
                [f"v_mul_f32 v{e+r}, v{c+r}, v{S+2}" for r in range(2)] +
                [f"v_exp_f32 v{e}, v{e}", f"v_fma_f32 v{c+2}, -v{S}, v{cs+2}, v{c+2}",
                 f"v_exp_f32 v{e+1}, v{e+1}", f"v_fma_f32 v{c+3}, -v{S}, v{cs+3}, v{c+3}"] +
                [f"v_mul_f32 v{c+r}, v{c+r}, v{c+2+r}" for r in range(2)] +
                [f"v_fma_f32 v{e+r}, v{e+r}, v{S+1}, v{S+1}" for r in range(2)] +
                [f"v_rcp_f32 v{e+r}, v{e+r}" for r in range(2)] +
                [f"v_mul_f32 v{c+r}, v{c+r}, v{e+r}" for r in range(2)] +
                [f"v_cvt_pk_bf16_f32 v{O+t}, v{c}, v{c+1}"])
        for j in range(len(seqs[0])):
            for sq in seqs:
                if not os.environ.get("K3_NOEPI"): out.append(sq[j])
        out.append(f"v_add_u32 v6, v{8+i}, v186")
        if var < 3:
            out.append(f"ds_write_b96 v6, v[{O}:{O+2}] offset:{var*1024}")
        else:
            out += [f"ds_write_b32 v6, v{O+t} offset:{t*1024 + 12}" for t in range(3)]
        return out
    pre = [f"v_mov_b32 v4, {f2u(-LOG2E):#x}"]
    pre += [f"v_rcp_f32 v{STR+4*i+2}, v{STR+4*i+1}" for i in range(8)]
    pre += [f"v_mul_f32 v{STR+4*i+1}, v{STR+4*i+1}, v{STR+4*i+1}" for i in range(8)]
    pre += [f"v_mul_f32 v{STR+4*i+2}, v{STR+4*i+2}, v4" for i in range(8)]
    PB = 160
    def signal(hf):
        if signal.var < 4:
            if signal.var == 0:
                a("s_mov_b64 exec, 1")
                a(f"buffer_atomic_add v28, v29, s[72:75], s62 offen offset:{hf*128} sc1"); vm.issue("sig")
                a("s_mov_b64 exec, -1")
            return
        a("s_cmp_lg_u32 s3, 0")
        lab = f"K3_NOSIG{hf}_{signal.var}"
        a(f"s_cbranch_scc1 {lab}")
        a("s_mov_b64 exec, 1")
        a(f"buffer_atomic_add v28, v29, s[72:75], s62 offen offset:{hf*128} sc1")
        a("s_mov_b64 exec, -1")
        a.label(lab)
        vm.q.append("sig")
        vm.q.pop()
    A2 = 80; HR = 224
    acc2 = lambda j, t: A2 + 4 * (5 * j + t)
    HMR = [32 + 4 * i for i in range(12)] + [160 + 4 * i for i in range(8)] + [240 + 4 * i for i in range(4)]
    hm = lambda j, k: HMR[12 * (j % 2) + k]
    hq = []
    def ld_hm(j, k):
        if k % 4 == 0: a(f"s_add_u32 s10, s{64+j}, {(k & ~3)*1024}")
        a(f"buffer_load_dwordx4 v[{hm(j,k)}:{hm(j,k)+3}], v2, s[56:59], s10 offen offset:{(k&3)*1024}{os.environ.get('K3_HMSC', ' sc1')}"); vm.issue((j, k))
    saves = (list(items), list(vm.q), list(ds.q), list(side))
    for w in range(1, 4):
        a(f"s_cmp_eq_u32 s3, {w}")
        a(f"s_cbranch_scc1 K3_VAR{w}")
    for var in range(4):
        if var:
            a.label(f"K3_VAR{var}")
            items[:] = saves[0]; vm.q = list(saves[1]); ds.q = list(saves[2]); cur[0] = -1; side[:] = saves[3]
        signal.var = var
        phase_a(var)
        sj = []
        if STCHK < 20:
            for i in range(4): sj += epi(i, var, PK)
        def emit_side(budget):
            while side and budget > 0:
                do_side(); budget -= 4
            while sj and budget > 0:
                t = sj.pop(0); a(t)
                if t.startswith("ds_"): ds.issue("e")
                budget -= 8 if t.split()[0] in TRANS else 4
        state = 0
        for s in range(20):
            n = 20 + s
            if s % 4 == 3: stamp(a, 2 + s // 4, "B")
            if s + 1 < 20:
                assert not any(kd == "h" and x == n + 1 for kd, x, _ in items)
                vm.wait(n + 1)
            if state == 0 and s > STB and not sj and not hasattr(emit_side, "nat"):
                emit_side.nat = s; print("epilogue A natural finish at step", s, "var", var)
            if state == 0 and s == ENV("K3_SA", 15 if STCHK >= 20 else 11):
                emit_side(100000)
                ds.wait("e"); state = 1
                a("s_barrier")
                for ph in range(3):
                    a(f"ds_read_b128 v[{PB+4*ph}:{PB+4*ph+3}], v185 offset:{ph*1024}"); ds.issue("pb")
            elif state == 1:
                a("s_barrier")
                ds.wait("pb")
                for ph in range(3):
                    a(f"buffer_store_dwordx4 v[{PB+4*ph}:{PB+4*ph+3}], v2, s[56:59], s60 offen offset:{ph*1024} sc1"); vm.issue("hsA")
                state = 2; s_st = s
            elif state == 2 and (s >= s_st + ENV("K3_DRAIN", 4) or s == 19):
                vm.wait("hsA")
                a("s_barrier")
                signal(0); state = 4
                stamp(a, 2)
            elif s + 1 < 20:
                a("s_barrier")
            ds.wait((n, 3))
            for i in range(4):
                for t in range(3):
                    mfma(4 + i, t, s, n, s == 0)
                    if t == 0 and s + 1 < 20: hread(n + 1, i)
                    if i == var:
                        issue_item()
                        if t == 2 and ENV("K3_BN", 4) == 4: issue_item()
                    else: emit_side(ENV("K3_B0", 8) if t == 0 else ENV("K3_B1", 12))
            cur[0] = s
            if STCHK >= 20 and s == STB:
                stchk(var, 0)
                for i in range(4): sj += epi(i, var, PK)
            if s == ENV("A_STB1", 13): st_loads(1)
            if s == ENV("A_STB2", 17): stchk(var, 1)
            if s == ENV("K3_PAS", 18):
                a(f"buffer_load_dword v30, v29, s[72:75], s63 offen sc1"); vm.issue("pA")
        assert state == 4, state
        while side: do_side()
        for i in range(4, 8): sj += epi(i, var, 1)
        n_eb = ENV("K3_EBN", 4)
        while sj:
            emit_side(ENV("K3_EB", 200))
            if n_eb and issue_item(): n_eb -= 1
        left = list(items)
        if var < 3: a("s_branch K3_EPIDONE")
    a.label("K3_EPIDONE")
    a("s_waitcnt lgkmcnt(0)"); ds.q = []
    stamp(a, 3)
    a("s_barrier")
    PB2 = 192
    a("v_add_u32 v12, 81920, v185")
    for ph in range(3):
        a(f"ds_read_b128 v[{PB2+4*ph}:{PB2+4*ph+3}], v12 offset:{ph*1024}")
    a("s_mul_i32 s13, s3, 5120")
    a("v_add_u32 v8, s13, v2")
    a("v_add_u32 v9, 40960, v8")
    a("v_lshrrev_b32 v4, 5, v1")
    a("v_lshlrev_b32 v4, 7, v4")
    a("v_and_b32 v5, 15, v1")
    a("v_lshl_add_u32 v4, v5, 3, v4")
    a("v_bfe_u32 v6, v1, 4, 1")
    a("v_lshl_add_u32 v4, v6, 9, v4")
    a("v_mul_u32_u24 v5, 1280, v5")
    a("v_lshrrev_b32 v7, 4, v1")
    a("v_lshl_add_u32 v5, v7, 3, v5")
    a("s_mul_i32 s16, s18, 5")
    a("s_mul_i32 s17, s18, 160")
    for q in range(3):
        a(f"s_add_u32 s12, s3, {4*q}")
        if q == 2:
            a("s_cmp_ge_u32 s12, 10")
            a("s_cselect_b32 s13, 2, 0")
            a("s_sub_u32 s12, s12, s13")
        a("s_cmp_ge_u32 s12, 5")
        a("s_cselect_b32 s13, 1, 0")
        a("s_mul_i32 s14, s13, 5")
        a("s_sub_u32 s12, s12, s14")
        a("s_mul_i32 s14, s13, 20480")
        a("s_lshl_b32 s15, s12, 10")
        a("s_add_u32 s15, s15, s14")
        a(f"v_add_u32 v{10+q}, s15, v2") if q < 2 else a("v_add_u32 v13, s15, v2")
        a("s_add_u32 s13, s13, s23")
        a("s_mul_i32 s13, s13, 20480")
        a("s_add_u32 s14, s12, s16")
        a("s_lshr_b32 s15, s14, 1")
        a("s_lshl_b32 s15, s15, 10")
        a("s_and_b32 s14, s14, 1")
        a("s_lshl_b32 s14, s14, 8")
        a("s_add_u32 s14, s14, s15")
        a(f"s_add_u32 s{24+q}, s13, s14")
        a("s_mul_i32 s15, s4, 81920")
        a("s_sub_u32 s13, s13, s15")
        a("s_lshl_b32 s14, s12, 5")
        a("s_add_u32 s14, s14, s17")
        a(f"s_add_u32 s{28+q}, s13, s14")
    srd(a, 52, 38, 0, SZ_X)
    for ph in range(3):
        a(f"s_waitcnt lgkmcnt({2-ph})")
        a(f"buffer_store_dwordx4 v[{PB2+4*ph}:{PB2+4*ph+3}], v2, s[56:59], s61 offen offset:{ph*1024} sc1"); vm.issue("hsB")
    vm.wait("pA")
    a("s_mov_b32 s35, 0")
    a("s_branch K3_PA_CHK")
    a.label("K3_PA")
    a(f"buffer_load_dword v30, v29, s[72:75], s63 offen sc1")
    a("s_waitcnt vmcnt(0)")
    a.label("K3_PA_CHK")
    a("v_readfirstlane_b32 s14, v30")
    a("s_add_u32 s35, s35, 1")
    a("s_cmp_ge_u32 s14, 4")
    a("s_cbranch_scc1 K3_GOA")
    a("s_cmp_lt_u32 s35, 0x8000")
    a("s_cbranch_scc1 K3_PA")
    a.label("K3_GOA")
    def res_loads():
        for hf in range(2):
            for q in range(3):
                if hf: a(f"s_add_u32 s{24+q}, s{24+q}, 81920")
                a(f"buffer_load_dwordx2 v[{HR+6*hf+2*q}:{HR+6*hf+2*q+1}], v4, s[44:47], s{24+q} offen{SC1}"); vm.issue("res")
    H0 = ENV("K3_H0", 6)
    hq[:] = [(0, kk) for kk in range(H0)] + ["w2"] * len(items) + [(0, kk) for kk in range(H0, 12)] + [(1, kk) for kk in range(12)] + ["res"]
    _ld = ld_hm
    def nxt():
        x = hq.pop(0)
        if x == "w2": assert issue_item()
        elif x == "res": res_loads()
        else: _ld(*x)
    for _ in range(ENV("K3_NPA", 8)): nxt()
    stamp(a, 4)
    wr = []
    def g2tile(j, hook=None):
        for k in range(12):
            while (j, k) in hq or (j == 0 and ("w2", 5 * k + 4, 0) in items): nxt()
            vm.wait((j, k)); vm.wait(("w2", 5 * k + 4))
            for t in range(5):
                c = f"v[{acc2(j,t)}:{acc2(j,t)+3}]"; w = 4 * (5 * k + t)
                a(f"v_mfma_f32_16x16x32_bf16 {c}, a[{w}:{w+3}], v[{hm(j,k)}:{hm(j,k)+3}], {c if k else 0}")
                if t == 2 and wr and k >= 1: a(wr.pop(0))
                if t in (0, 3) and hq: nxt()
            if hook: hook(k)
        wr.extend(f"ds_write_b128 v{8 + j//2}, v[{acc2(j,t)}:{acc2(j,t)+3}] offset:{(j%2)*20480 + t*1024}" for t in range(5))
    def hookA(k):
        if k == ENV("K3_SBK", -1):
            vm.wait("hsB")
            a("s_barrier")
            signal.var = 9; signal(1)
    if ENV("K3_SBK", -1) < 0:
        vm.wait("hsB")
        a("s_barrier")
        signal.var = 9; signal(1)
    g2tile(0, hookA)
    def hookB(k):
        if k == ENV("K3_PBK", 0):
            a(f"buffer_load_dword v30, v29, s[72:75], s63 offen offset:128 sc1"); vm.issue("pB")
        if k == ENV("K3_PBC", 3):
            stamp(a, 5)
            while hq: nxt()
            a("s_mov_b32 s35, 0")
            vm.wait("pB")
            a("s_branch K3_PB_CHK")
            a.label("K3_PB")
            a(f"buffer_load_dword v30, v29, s[72:75], s63 offen offset:128 sc1")
            a("s_waitcnt vmcnt(0)")
            a.label("K3_PB_CHK")
            a("v_readfirstlane_b32 s14, v30")
            a("s_add_u32 s35, s35, 1")
            a("s_cmp_ge_u32 s14, 4")
            a("s_cbranch_scc1 K3_GOB")
            a("s_cmp_lt_u32 s35, 0x8000")
            a("s_cbranch_scc1 K3_PB")
            a.label("K3_GOB")
            stamp(a, 6)
            hq.extend((2, kk) for kk in range(12))
            for _ in range(4): nxt()
    g2tile(1, hookB)
    hq.extend((3, kk) for kk in range(12))
    RD = [10, 11, 13]
    def finalize(hf, R, U):
        out = []
        for q in range(3):
            for w in range(4):
                out.append(f"ds_read_b128 v[{R+16*q+4*w}:{R+16*q+4*w+3}], v{RD[q]} offset:{hf*40960 + w*5120}")
        for q in range(3):
            for e in range(2):
                out.append(f"v_lshlrev_b32 v{U+4*q+2*e}, 16, v{HR+6*hf+2*q+e}")
                out.append(f"v_and_b32 v{U+4*q+2*e+1}, 0xffff0000, v{HR+6*hf+2*q+e}")
            if hf: out.append(f"s_add_u32 s{28+q}, s{28+q}, {64*20480}")
        for q in range(3):
            b = R + 16 * q
            out.append(f"s_waitcnt lgkmcnt({8 - 4*q})")
            for e in (0, 2):
                out.append(f"v_pk_add_f32 v[{b+e}:{b+e+1}], v[{b+e}:{b+e+1}], v[{b+4+e}:{b+5+e}]")
                out.append(f"v_pk_add_f32 v[{b+8+e}:{b+9+e}], v[{b+8+e}:{b+9+e}], v[{b+12+e}:{b+13+e}]")
            for e in (0, 2):
                out.append(f"v_pk_add_f32 v[{b+e}:{b+e+1}], v[{b+e}:{b+e+1}], v[{b+8+e}:{b+9+e}]")
            for e in range(2):
                out.append(f"v_cvt_pk_bf16_f32 v{b+4+e}, v{b+2*e}, v{b+2*e+1}")
            for e in range(2):
                out.append(f"v_lshlrev_b32 v{b+2*e}, 16, v{b+4+e}")
                out.append(f"v_and_b32 v{b+2*e+1}, 0xffff0000, v{b+4+e}")
            for e in (0, 2):
                out.append(f"v_pk_add_f32 v[{b+e}:{b+e+1}], v[{b+e}:{b+e+1}], v[{U+4*q+e}:{U+4*q+e+1}]")
            for e in range(2):
                out.append(f"v_cvt_pk_bf16_f32 v{b+4+e}, v{b+2*e}, v{b+2*e+1}")
            out.append(f"buffer_store_dwordx2 v[{b+4}:{b+5}], v5, s[52:55], s{28+q} offen")
        return out
    for _ in range(ENV("K3_HB2", 12)):
        nxt()
        if wr: a(wr.pop(0))
    while wr: a(wr.pop(0))
    a("s_waitcnt lgkmcnt(0)")
    a("s_barrier")
    for t in finalize(0, 80, 16):
        a(t)
        if t.startswith("buffer"): vm.issue("o")
        if t.startswith("v_pk") and hq: nxt()
    while hq: nxt()
    g2tile(2); g2tile(3)
    while wr: a(wr.pop(0))
    a("s_waitcnt lgkmcnt(0)")
    a("s_barrier")
    for t in finalize(1, 32, 16): a(t)
    a.label("K3_END")
    a("s_endpgm")
```

```python
import os
from asmlib import *
from layout import *
from k1 import srd
import kf4, k36, k38
SPLIT = int(os.environ.get('A_SPLIT', '1'))
ENV = lambda k, d: int(os.environ.get(k, d))
NPRE = ENV("A_NPRE", 36)
NAME = "sequential_preLN__ssm_conv_s4d__glu_gated_swiglu__prompt_kernel"

class Fused:
    def __init__(self, a): self.a = a; self.n = 0
    def setup(self):
        a = self.a
        srd(a, 92, kf4.WS, FLG_OFF, 512 * 128); srd(a, 28, kf4.WS, W13_OFF, 3932160)
        a("s_lshr_b32 s32, s2, 5")
        a("s_lshl_b32 s32, s32, 1")
        a("s_and_b32 s33, s2, 1")
        a("s_add_u32 s32, s32, s33")
        a("s_mul_i32 s34, s32, 3")
        a("s_lshr_b32 s34, s34, 1")
        a("s_lshl_b32 s34, s34, 9")
        a("s_lshl_b32 s32, s32, 2")
        a("s_add_u32 s32, s32, s3")
        a("s_mul_i32 s32, s32, 61440")
        a("v_and_b32 v8, 7, v1")
        a("v_lshlrev_b32 v8, 7, v8")
        a("v_lshlrev_b32 v2, 4, v1")
    def flag(self, sidx, base, tag, vr=12):
        a = self.a
        a("s_cmp_lg_u32 s3, 0")
        a(f"s_cbranch_scc1 FLG_{tag}")
        srd(a, 92, kf4.WS, FLG_OFF, 512 * 128)
        a(f"s_lshl_b32 s35, {sidx}, 7")
        a(f"v_mov_b32 v{vr}, s90")
        a(f"v_mov_b32 v{vr+1}, s91")
        a(f"v_mov_b32 v{vr+2}, {base*128}")
        a("s_mov_b64 exec, 1")
        a(f"buffer_store_dwordx2 v[{vr}:{vr+1}], v{vr+2}, s[92:95], s35 offen sc1")
        a("s_mov_b64 exec, -1")
        a.label(f"FLG_{tag}")
    def poll_issue(self):
        self.a("buffer_load_dwordx2 v[10:11], v8, s[92:95], s34 offen sc1")
    def check(self, notready, wait=True):
        a = self.a
        if wait: a("s_waitcnt vmcnt(0)")
        a("v_cmp_ne_u64 vcc, s[90:91], v[10:11]")
        a(f"s_cbranch_vccnz {notready}")
        a("s_mov_b32 s33, 1")
    def wait(self, tag):
        a = self.a
        a("s_mov_b32 s35, 0")
        a.label(f"W13W_{tag}")
        self.poll_issue()
        a("s_waitcnt vmcnt(0)")
        a("v_cmp_ne_u64 vcc, s[90:91], v[10:11]")
        a(f"s_cbranch_vccz W13K_{tag}")
        a("s_sleep 4")
        a("s_add_u32 s35, s35, 1")
        a("s_cmp_lt_u32 s35, 0x8000")
        a(f"s_cbranch_scc1 W13W_{tag}")
        a.label(f"W13K_{tag}")
    def load(self, idx):
        a = self.a
        if idx % 4 == 0 or idx == self.first: a(f"s_add_u32 s35, s32, {(idx & ~3) * 1024}")
        a(f"buffer_load_dwordx4 a[{4*idx}:{4*idx+3}], v2, s[28:31], s35 offen offset:{(idx&3)*1024} sc1")
    def load_one(self):
        if self.n >= NPRE: return False
        self.first = 0
        self.load(self.n); self.n += 1
        return True

def gen_all(a):
    a.raw(kernel_header(NAME))
    a("s_cmp_ge_u32 s2, 256")
    a("s_cbranch_scc1 K3_END")
    kf4.front_entry(a)
    F = Fused(a)
    def early_poll():
        a("v_min_u32 v189, 39, v1")
        a("v_lshlrev_b32 v189, 7, v189")
        a("s_mul_i32 s37, s3, 5120")
        a(f"s_add_u32 s37, s37, {192*128}")
        a("buffer_load_dwordx2 v[190:191], v189, s[92:95], s37 offen sc1")
    a(f"s_cmp_lt_u32 s2, {kf4.N_LN}")
    a("s_cbranch_scc1 F_LN")
    kf4.conv_wg(a, F, SPLIT)
    gs = lambda i: kf4._stamp(a, i) if os.environ.get("STSET") == "G" else None
    if SPLIT:
        early_poll()
        assert NPRE <= 44
        a("s_mov_b32 s36, 2")
        a("s_cmp_eq_u32 s33, 0")
        a("s_cbranch_scc1 C_ALL")
        n0 = F.n; F.first = n0
        NE = min(ENV("A_NE", 6), NPRE - n0)
        for i in range(n0, n0 + NE): F.load(i)
        a(f"s_waitcnt vmcnt({NE})")
        a("s_barrier")
        F.flag("s5", 352, "H1")
        F.first = n0 + NE
        for i in range(n0 + NE, NPRE): F.load(i)
        a("s_branch M_START")
        a.label("C_ALL")
        a("s_waitcnt vmcnt(0)")
        a("s_barrier")
        F.flag("s5", 352, "H2")
        a("s_branch M_LOADALL")
    else:
        a("s_cmp_eq_u32 s33, 0")
        a("s_cbranch_scc1 C_ALL")
        gs(0)
        n0 = F.n; F.first = n0
        NE = min(ENV("A_NE", 6), NPRE - n0)
        for i in range(n0, n0 + NE): F.load(i)
        a(f"s_waitcnt vmcnt({NE})")
        gs(1)
        a("s_barrier")
        a(f"s_sub_u32 s5, s2, {kf4.N_LN}")
        F.flag("s5", 352 if SPLIT else 192, "H1")
        gs(2)
        F.first = n0 + NE
        for i in range(n0 + NE, NPRE): F.load(i)
        a("s_branch M_START")
        a.label("C_ALL")
        gs(6)
        a("s_waitcnt vmcnt(0)")
        a("s_barrier")
        a(f"s_sub_u32 s5, s2, {kf4.N_LN}")
        F.flag("s5", 352 if SPLIT else 192, "H2")
        a("s_branch M_LOADALL")

    a.label("F_LN")
    kf4.ln_wg(a, F)
    F.setup()
    a("s_waitcnt vmcnt(0)")
    a("s_barrier")
    F.flag("s2", 96, "W2")
    a("s_mov_b32 s36, 0")
    if SPLIT: a("v_mov_b32 v190, 0")
    F.first = 0
    NW2 = ENV("A_W2PF", 0)
    if NW2:
        F.wait("L")
        for i in range(NPRE): F.load(i)
        srd(a, 44, kf4.WS, W2_OFF, 1966080)
        a("s_lshr_b32 s4, s2, 3")
        a("s_lshl_b32 s4, s4, 2")
        a("s_add_u32 s4, s4, s3")
        a(f"s_mul_i32 s4, s4, {NW2*1024}")
        a(f"s_waitcnt vmcnt({63 - NW2})")
        for i in range(NW2):
            if i % 4 == 0: a(f"s_add_u32 s5, s4, {i*1024}")
            a(f"buffer_load_dwordx4 v[{40+4*(i%40)}:{43+4*(i%40)}], v2, s[44:47], s5 offen offset:{(i%4)*1024}")
        a("s_branch M_START")
    a.label("M_LOADALL")
    F.wait("C")
    for i in range(NPRE): F.load(i)
    a.label("M_START")
    a("s_load_dwordx2 s[38:39], s[0:1], 88")
    a("s_load_dwordx2 s[40:41], s[0:1], 104")
    def gate():
        a("v_min_u32 v189, 39, v1")
        a("v_lshlrev_b32 v189, 7, v189")
        a("v_min_u32 v188, 23, v1")
        a("v_lshlrev_b32 v188, 7, v188")
        a("s_mov_b32 s35, 0")
        a("s_mul_i32 s14, s3, 5120")
        a(f"s_add_u32 s14, s14, {192*128}")
        a(f"s_add_u32 s12, s14, {160*128}")
        gs(3)
        if SPLIT:
            a(f"s_waitcnt vmcnt({min(NPRE, 63)})") if False else None
            a("s_cmp_eq_u32 s36, 0")
            a("s_cbranch_scc1 HW")
            a(f"s_waitcnt vmcnt({gate.behind})")
            a("v_cmp_ne_u64 vcc, s[90:91], v[190:191]")
            a("s_cbranch_vccz HOK")
        a.label("HW")
        a("buffer_load_dwordx2 v[190:191], v189, s[92:95], s14 offen sc1")
        a("s_waitcnt vmcnt(0)")
        a("v_cmp_ne_u64 vcc, s[90:91], v[190:191]")
        a("s_cbranch_vccz HOK")
        a(f"s_sleep {ENV('A_SLEEP', 4)}")
        a("s_add_u32 s35, s35, 1")
        a("s_cmp_lt_u32 s35, 0x8000")
        a("s_cbranch_scc1 HW")
        a.label("HOK")
        a("s_mul_i32 s37, s3, 3072")
        a(f"s_add_u32 s37, s37, {96*128}")
        gs(4)
        a("s_waitcnt lgkmcnt(0)")
        a("s_barrier")
        if SPLIT: flag_b()
        kf4._stamp(a, 5) if os.environ.get("STSET", "x") in "FG" else None
    gate.behind = 63
    def flag_b():
        a("s_cmp_lg_u32 s36, 1")
        a("s_cbranch_scc1 FB_SKIP")
        a(f"s_sub_u32 s13, s2, {kf4.N_LN}")
        F.flag("s13", 352, "HB", 248)
        a.label("FB_SKIP")
    gate.flag_b = flag_b
    def w2_issue(vm):
        a("buffer_load_dwordx2 v[190:191], v188, s[92:95], s37 offen sc1"); vm.issue("w2f")
    def w2_check(vm, var):
        vm.wait("w2f"); sv = list(vm.q)
        a("s_mov_b32 s35, 0")
        a.label(f"W2W{var}")
        a("v_cmp_ne_u64 vcc, s[90:91], v[190:191]")
        a(f"s_cbranch_vccz W2K{var}")
        a("s_add_u32 s35, s35, 1")
        a("s_cmp_ge_u32 s35, 0x8000")
        a(f"s_cbranch_scc1 W2K{var}")
        a("s_sleep 2")
        a("buffer_load_dwordx2 v[190:191], v188, s[92:95], s37 offen sc1")
        a("s_waitcnt vmcnt(0)")
        a(f"s_branch W2W{var}")
        a.label(f"W2K{var}")
        vm.q = sv
    def b_issue(vm):
        a("buffer_load_dwordx2 v[180:181], v189, s[92:95], s12 offen sc1"); vm.issue("hbf")
    def b_check(vm, var):
        vm.wait("hbf"); sv = list(vm.q)
        a("s_mov_b32 s35, 0")
        a.label(f"HBW{var}")
        a("v_cmp_ne_u64 vcc, s[90:91], v[180:181]")
        a(f"s_cbranch_vccz HBK{var}")
        a("s_add_u32 s35, s35, 1")
        a("s_cmp_ge_u32 s35, 0x8000")
        a(f"s_cbranch_scc1 HBK{var}")
        a("s_sleep 1")
        a("buffer_load_dwordx2 v[180:181], v189, s[92:95], s12 offen sc1")
        a("s_waitcnt vmcnt(0)")
        a(f"s_branch HBW{var}")
        a.label(f"HBK{var}")
        vm.q = sv
    gate.w2_issue = w2_issue; gate.w2_check = w2_check; gate.b_issue = b_issue; gate.b_check = b_check
    (k38 if SPLIT else k36).mlp_body(a, True, gate)
```

```python
import os
from asmlib import *
from layout import *
from k1 import srd, cmul, interleave, Rec, wave_reduce_sum
from kp2 import w2_ids, w2_dma_setup, w2_out_setup
ENV = lambda k, d: int(os.environ.get(k, d))
N_LN = 96
_stamp = stamp
def stamp(a, i):
    if os.environ.get('STSET', 'F') == 'F': _stamp(a, i)
UB = 0; UPAD = 2048; SB = UPAD + 32768; RS = 4352; ROWP = 272; WREG = 2 * RS
KB = SB + 12 * WREG; KP = 4416; TB = KB + 4 * KP; PK = UB + UPAD
assert TB + 4 * 1536 <= 163840
STG = 65536; XP = 272
WS = 42
XQ_OFF = UR_OFF

def front_entry(a):
    code_prefetch(a, 4, 132, "F4")
    a("s_load_dwordx16 s[16:31], s[0:1], 0")
    a("s_load_dwordx8 s[32:39], s[0:1], 64")
    a("s_load_dwordx4 s[40:43], s[0:1], 96")
    a("v_lshrrev_b32 v2, 6, v0")
    a("v_and_b32 v1, 63, v0")
    a("v_readfirstlane_b32 s3, v2")

def gen_front4(a):
    a.raw(kernel_header("front_kernel"))
    a("s_cmp_ge_u32 s2, 256")
    a("s_cbranch_scc1 F_END")
    front_entry(a)
    a(f"s_cmp_lt_u32 s2, {N_LN}")
    a("s_cbranch_scc1 F_LN")
    conv_wg(a)
    a("s_endpgm")
    a.label("F_LN")
    ln_wg(a)
    a.label("F_END")
    a("s_endpgm")

def epoch_wait(a, tag, vr, vz):
    a("s_mov_b32 s8, 0")
    a.label(f"EPW{tag}")
    a(f"v_readfirstlane_b32 s9, v{vr}")
    a("s_cmp_lg_u32 s9, 0")
    a(f"s_cbranch_scc1 EPOK{tag}")
    a("s_add_u32 s8, s8, 1")
    a("s_cmp_ge_u32 s8, 0x8000")
    a(f"s_cbranch_scc1 EPOK{tag}")
    a(f"buffer_load_dwordx2 v[{vr}:{vr+1}], v{vz}, s[48:51], 0 offen sc1")
    a("s_waitcnt vmcnt(0)")
    a(f"s_branch EPW{tag}")
    a.label(f"EPOK{tag}")

def l_w13(a):
    m3 = magic(3, 256, 16)
    a("s_lshr_b32 s62, s2, 2")
    a("s_and_b32 s63, s2, 3")
    a("v_lshrrev_b32 v120, 3, v1")
    a("v_mul_u32_u24 v120, 3072, v120")
    a("v_and_b32 v3, 7, v1")
    a("v_lshl_add_u32 v120, v3, 4, v120")
    a(f"s_mul_i32 s52, s63, {5*98304}")
    a("s_lshl_b32 s53, s62, 7")
    a("s_add_u32 s52, s52, s53")
    a("s_and_b32 s53, s3, 1")
    a("s_mul_i32 s53, s53, 49152")
    a("s_add_u32 s52, s52, s53")
    a("s_cmp_lt_u32 s3, 2")
    a("s_cselect_b32 s44, s32, s34")
    a("s_cselect_b32 s45, s33, s35")
    a("s_mov_b32 s46, 1966080")
    a("s_mov_b32 s47, 0x20000")
    a("s_lshl_b32 s55, s3, 11")
    for n in range(5):
        for r in range(2):
            a(f"s_add_u32 m0, s55, {n*8192 + r*1024}")
            a(f"s_add_u32 s53, s52, {n*98304 + r*24576}")
            a("buffer_load_dwordx4 v120, s[44:47], s53 offen lds")
    for e in range(2):
        a("s_lshl_b32 s12, s62, 2")
        a("s_add_u32 s12, s12, s3")
        a("s_lshl_b32 s12, s12, 1")
        if e: a("s_add_u32 s12, s12, 1")
        a(f"s_mul_i32 s6, s12, {m3}")
        a("s_lshr_b32 s6, s6, 16")
        a(f"s_mul_i32 s{64+e}, s6, 58368")
        a("s_lshl_b32 s55, s12, 10")
        a(f"s_add_u32 s{64+e}, s{64+e}, s55")
        a(f"s_mul_i32 s55, s63, {5*3072}")
        a(f"s_add_u32 s{64+e}, s{64+e}, s55")
        a(f"s_mul_i32 s{66+e}, s6, {1024 - 192}")
        a("s_lshl_b32 s55, s12, 6")
        a(f"s_add_u32 s{66+e}, s{66+e}, s55")
        a("s_lshl_b32 s55, s63, 8")
        a(f"s_add_u32 s{66+e}, s{66+e}, s55")
    a("v_lshrrev_b32 v121, 4, v1")
    a("v_bfe_u32 v3, v1, 2, 2")
    a("v_lshl_add_u32 v121, v121, 3, v3")
    a("v_lshlrev_b32 v121, 7, v121")
    a("v_and_b32 v3, 1, v1")
    a("v_lshl_add_u32 v121, v3, 12, v121")
    a("v_bfe_u32 v3, v1, 1, 1")
    a("v_lshl_add_u32 v121, v3, 3, v121")
    a("s_lshl_b32 s14, s3, 5")
    a("v_add_u32 v121, s14, v121")
    a("v_bfe_u32 v122, v1, 3, 1")
    a("v_lshlrev_b32 v122, 3, v122")
    a("v_bfe_u32 v3, v1, 1, 1")
    a("v_lshl_add_u32 v122, v3, 2, v122")
    a("v_and_b32 v3, 1, v1")
    a("v_add_u32 v122, v122, v3")
    a("v_bfe_u32 v3, v1, 2, 1")
    a("v_lshl_add_u32 v122, v3, 1, v122")
    a("v_lshrrev_b32 v3, 4, v1")
    a("v_lshlrev_b32 v123, 4, v3")
    a("v_lshlrev_b32 v3, 8, v3")
    a("v_lshl_add_u32 v122, v122, 4, v3")
    srd(a, 44, WS, W13_OFF, 3932160); srd(a, 52, WS, CSQ_OFF, 64*1024)
    for i in range(4): a(f"v_mov_b32 v{8+i}, 0x3f803f80")
    a("s_mov_b32 s12, 0x00010001")
    a("s_mov_b32 s13, 0x00010001")
    a("s_waitcnt vmcnt(0)")
    if os.environ.get("STSET") == "G": _stamp(a, 1)
    a("s_barrier")
    for n in range(5):
        for e in range(2):
            for h in range(2):
                r = 64 + 4 * (2 * n + e)
                a(f"ds_read_b64_tr_b16 v[{r+2*h}:{r+2*h+1}], v121 offset:{n*8192 + h*512 + e*16}")
    for n in range(5):
        for e in range(2):
            r = 64 + 4 * (2 * n + e)
            a(f"s_waitcnt lgkmcnt({min(15, 18 - 4*n - 2*e)})")
            a(f"buffer_store_dwordx4 v[{r}:{r+3}], v122, s[44:47], s{64+e} offen sc1")
            c = f"v[{12+4*e}:{15+4*e}]"
            a(f"v_mfma_f32_16x16x32_bf16 {c}, v[{r}:{r+3}], v[8:11], {c if n else 0}")
            if n < 4: a(f"s_add_u32 s{64+e}, s{64+e}, 3072")
    a("s_mov_b64 exec, s[12:13]")
    for e in range(2):
        a(f"buffer_store_dwordx4 v[{12+4*e}:{15+4*e}], v123, s[52:55], s{66+e} offen sc1")
    a("s_mov_b64 exec, -1")

def ln_wg(a, fused=None):
    a("s_memrealtime s[60:61]")
    a("v_mov_b32 v6, 0")
    a("s_waitcnt lgkmcnt(0)")
    srd(a, 48, 40, 0, 8)
    a("s_cmp_ge_u32 s2, 64")
    a("s_cbranch_scc1 F_SPARE")
    a("s_lshl_b32 s4, s2, 3")
    a("s_lshl_b32 s5, s3, 1")
    a("s_add_u32 s4, s4, s5")
    a("s_mul_i32 s5, s4, 5120")
    a("v_lshlrev_b32 v4, 2, v1")
    a("v_add_u32 v5, 2560, v4")
    srd(a, 44, 16, 0, SZ_X)
    a("s_add_u32 s7, s5, 5120")
    XD = ENV("F_XDMA", 0)
    if XD:
        a("v_lshlrev_b32 v3, 4, v1")
        a("s_mul_i32 s12, s3, 10240")
        a("v_add_u32 v5, s12, v4")
        for i in range(10):
            if i % 4 == 0:
                a(f"s_add_u32 m0, s12, {i*1024}")
                a(f"s_add_u32 s7, s5, {i*1024}")
            a(f"buffer_load_dwordx4 v3, s[44:47], s7 offen offset:{(i%4)*1024} lds")
    else:
        for i in range(8):
            for q in range(5):
                a(f"buffer_load_dword v{8+5*i+q}, v{4 if i % 4 < 2 else 5}, s[44:47], s{5 if i < 4 else 7} offen offset:{(i%2)*1280 + q*256}")
    a("s_lshl_b32 s9, s2, 2")
    a("s_add_u32 s9, s9, s3")
    a("s_cmp_lg_u32 s9, 0")
    a("s_cbranch_scc1 F_NOEP")
    a("s_or_b32 s60, s60, 1")
    a("v_mov_b32 v50, s60")
    a("v_mov_b32 v51, s61")
    a("v_mov_b32 v52, 0")
    a("v_mov_b32 v53, 0")
    a("v_lshlrev_b32 v48, 3, v1")
    a("buffer_atomic_cmpswap_x2 v[50:53], v48, s[48:51], 0 offen sc1")
    a.label("F_NOEP")
    srd(a, 52, WS, ST_OFF, 0x8000)
    a("s_lshl_b32 s9, s9, 7")
    a("s_mov_b64 exec, 0xffffffff")
    a("buffer_store_dword v6, v4, s[52:55], s9 offen sc1")
    a("s_mov_b64 exec, -1")
    srd(a, 52, WS, S1_OFF, 16384); srd(a, 56, WS, XQ_OFF, 160*16384)
    a("s_mov_b32 s10, 0x05040100")
    a("s_mov_b32 s11, 0x07060302")
    a("v_lshrrev_b32 v54, 1, v1")
    a(f"v_mul_u32_u24 v54, {XP}, v54")
    a("v_and_b32 v55, 1, v1")
    a("v_lshl_add_u32 v54, v55, 4, v54")
    a("s_lshl_b32 s9, s3, 6")
    a(f"s_add_u32 s9, s9, {STG}")
    a("v_add_u32 v54, s9, v54")
    a("v_lshrrev_b32 v57, 4, v0")
    a("v_and_b32 v58, 15, v0")
    a(f"v_mul_u32_u24 v55, {XP}, v57")
    a("v_lshl_add_u32 v55, v58, 4, v55")
    a(f"v_add_u32 v55, {STG}, v55")
    a("v_lshlrev_b32 v56, 14, v57")
    a("v_lshl_add_u32 v56, v58, 4, v56")
    a("s_lshl_b32 s68, s2, 8")
    a("s_lshl_b32 s6, s4, 5")
    a(f"v_mov_b32 v7, {f2u(1.0/640):#x}")
    a("s_waitcnt vmcnt(0)")
    stamp(a, 0)
    a("buffer_load_dwordx2 v[50:51], v6, s[48:51], 0 offen sc1")
    if XD:
        for q in range(5):
            for i in range(4): a(f"ds_read_b32 v{8+5*i+q}, v5 offset:{i*1280 + q*256}")
        for q in range(5):
            for i in range(4, 8): a(f"ds_read_b32 v{8+5*i+q}, v5 offset:{i*1280 + q*256}")
        a("s_waitcnt lgkmcnt(15)")
        a("s_waitcnt lgkmcnt(0)")
    for g in range(2):
        for q in range(5):
            d = 60 + 4 * (5 * g + q); b = 8 + 20 * g
            a(f"v_perm_b32 v{d}, v{b+5+q}, v{b+q}, s10")
            a(f"v_perm_b32 v{d+1}, v{b+15+q}, v{b+10+q}, s10")
            a(f"v_perm_b32 v{d+2}, v{b+5+q}, v{b+q}, s11")
            a(f"v_perm_b32 v{d+3}, v{b+15+q}, v{b+10+q}, s11")
            a(f"ds_write_b128 v54, v[{d}:{d+3}] offset:{q*32*XP + g*32}")
    a("s_waitcnt lgkmcnt(0)")
    a("s_barrier")
    for kk in range(10):
        a(f"ds_read_b128 v[{60+4*kk}:{63+4*kk}], v55 offset:{kk*16*XP}")
    for kk in range(10):
        a(f"s_add_u32 s69, s68, {kk*16*16384}")
        a(f"s_waitcnt lgkmcnt({9-kk})")
        a(f"buffer_store_dwordx4 v[{60+4*kk}:{63+4*kk}], v56, s[56:59], s69 offen sc1")
    stamp(a, 2)
    X = lambda i, q: 104 + 2 * (5 * i + q)
    SUM = lambda i: 184 + 2 * i
    MEAN = lambda i: 200 + 2 * i
    for i in range(8):
        for q in range(5):
            a(f"v_lshlrev_b32 v{X(i,q)}, 16, v{8+5*i+q}")
            a(f"v_and_b32 v{X(i,q)+1}, 0xffff0000, v{8+5*i+q}")
    for q in range(1, 5):
        for i in range(8):
            s = SUM(i); src = X(i, 0) if q == 1 else s
            a(f"v_pk_add_f32 v[{s}:{s+1}], v[{src}:{src+1}], v[{X(i,q)}:{X(i,q)+1}]")
    for i in range(8): a(f"v_add_f32 v{SUM(i)}, v{SUM(i)}, v{SUM(i)+1}")
    wave_reduce_sum(a, [SUM(i) for i in range(8)])
    for i in range(8): a(f"v_readlane_b32 s{60+i}, v{SUM(i)}, 63")
    for i in range(8): a(f"v_mul_f32 v{MEAN(i)}, s{60+i}, v7")
    for q in range(5):
        for i in range(8):
            x = X(i, q); m = MEAN(i)
            a(f"v_pk_add_f32 v[{x}:{x+1}], v[{x}:{x+1}], v[{m}:{m+1}] op_sel_hi:[1,0] neg_lo:[0,1] neg_hi:[0,1]")
    for q in range(5):
        for i in range(8):
            x = X(i, q); s = SUM(i)
            if q == 0: a(f"v_pk_mul_f32 v[{s}:{s+1}], v[{x}:{x+1}], v[{x}:{x+1}]")
            else: a(f"v_pk_fma_f32 v[{s}:{s+1}], v[{x}:{x+1}], v[{x}:{x+1}], v[{s}:{s+1}]")
    for i in range(8): a(f"v_add_f32 v{SUM(i)}, v{SUM(i)}, v{SUM(i)+1}")
    wave_reduce_sum(a, [SUM(i) for i in range(8)])
    for i in range(8): a(f"v_readlane_b32 s{60+i}, v{SUM(i)}, 63")
    R = lambda i: 16 + i
    G = lambda i: 24 + 4 * (i // 2) + (i % 2)
    steps = [
        lambda i: f"v_mul_f32 v{R(i)}, s{60+i}, v7",
        lambda i: f"v_cvt_pk_bf16_f32 v{R(i)}, v{R(i)}, v{R(i)}",
        lambda i: f"v_lshlrev_b32 v{R(i)}, 16, v{R(i)}",
        lambda i: f"v_add_f32 v{R(i)}, {f2u(1e-5):#x}, v{R(i)}",
        lambda i: f"v_cvt_pk_bf16_f32 v{R(i)}, v{R(i)}, v{R(i)}",
        lambda i: f"v_lshlrev_b32 v{R(i)}, 16, v{R(i)}",
        lambda i: f"v_sqrt_f32 v{R(i)}, v{R(i)}",
        lambda i: f"v_cvt_pk_bf16_f32 v{G(i)}, v{MEAN(i)}, v{R(i)}",
    ]
    for st in steps:
        for i in range(8): a(st(i))
    stamp(a, 1)
    a("s_waitcnt vmcnt(10)")
    epoch_wait(a, "L", 50, 6)
    for k in range(4):
        a(f"v_mov_b32 v{26+4*k}, v50")
        a(f"v_mov_b32 v{27+4*k}, v51")
    a("s_lshl_b32 s9, s3, 6")
    a(f"s_add_u32 s9, s9, {STG - 1024}")
    a("v_mov_b32 v40, s9")
    for k in range(4):
        a(f"ds_write_b128 v40, v[{24+4*k}:{27+4*k}] offset:{16*k}")
    a("v_lshlrev_b32 v41, 4, v1")
    a(f"v_add_u32 v42, {STG - 1024}, v41")
    a("s_lshl_b32 s6, s2, 8")
    a("s_waitcnt vmcnt(0) lgkmcnt(0)")
    stamp(a, 3)
    a("s_barrier")
    a("s_cmp_lg_u32 s3, 0")
    a("s_cbranch_scc1 F_W2")
    a("ds_read_b128 v[44:47], v42")
    a("s_mov_b64 exec, 0xffff")
    a("s_waitcnt lgkmcnt(0)")
    a("buffer_store_dwordx4 v[44:47], v41, s[52:55], s6 offen sc1")
    a("s_mov_b64 exec, -1")
    a("s_branch F_W2")
    a.label("F_SPARE")
    a("v_mov_b32 v50, 0")
    a.label("F_W2")
    if ENV("F_NOPACK", 0): a("s_endpgm")
    if ENV("F_PSLEEP", 0):
        for _ in range(ENV("F_PSLEEP", 0)): a("s_sleep 32")
    l_w13(a)
    if fused:
        epoch_wait(a, "S", 50, 6)
        a("v_readfirstlane_b32 s90, v50")
        a("v_readfirstlane_b32 s91, v51")
        a("s_waitcnt vmcnt(0)")
        a("s_barrier")
        fused.flag("s2", 0, "W", 20)
        if os.environ.get("STSET") == "G": _stamp(a, 0)
    a("s_mul_i32 s9, s2, 3")
    a("s_add_u32 s9, s9, s3")
    a("s_cmp_eq_u32 s3, 3")
    a("s_cselect_b32 s9, 240, s9")
    a("s_min_u32 s9, s9, 240")
    a("s_mov_b32 s40, s42"); a("s_mov_b32 s41, s43")
    w2_ids(a, 9)
    w2_dma_setup(a, 120, 121, 122, 123)
    a("s_cmp_eq_u32 s9, 240")
    a("s_cselect_b32 s50, 0, s50")
    a("s_lshl_b32 s8, s3, 13")
    a("s_add_u32 s8, s8, 40960")
    for i in range(8):
        a(f"s_add_u32 m0, s8, {i*1024}")
        a(f"s_add_u32 s70, s69, {(i>>1)*2560}")
        a(f"buffer_load_dwordx4 v{120 + (i&1)}, s[48:51], s70 offen lds")
    w2_out_setup(a, 0)
    a("s_cmp_eq_u32 s9, 240")
    a("s_cselect_b32 s54, 0, s54")
    a("v_add_u32 v6, s8, v6")
    a("s_waitcnt vmcnt(0)")
    for i in range(8):
        for h in range(2):
            a(f"ds_read_b64_tr_b16 v[{16+4*i+2*h}:{17+4*i+2*h}], v6 offset:{h*1024 + i*32}")
    for i in range(8):
        a(f"s_waitcnt lgkmcnt({14-2*i})")
        a(f"buffer_store_dwordx4 v[{16+4*i}:{19+4*i}], v8, s[52:55], s{56+i} offen sc1")

def kgen_stream(m):
    B = 16 + 70 * m; L = m * 4 * WREG; A = 64 * m
    ADT = m < ENV('F_ADT', 2)
    if m == 2: L = 0
    wa, ra = (3, 4) if m < 2 else (234, 235)
    W = lambda t, off: f"ds_write_addtid_b32 v{t} offset:{off}" if ADT else f"ds_write_b32 v{wa}, v{t} offset:{off}"
    o = []
    a = o.append
    for r in range(4): a(f"v_lshlrev_b32 v{B+r}, 16, v{B+r}")
    W1, W8, W128, W16 = B + 4, B + 6, B + 8, B + 10
    tmp = [B + 12 + i for i in range(4)]; ringr = [B + 16 + 2 * i for i in range(4)]
    Q = {q: B + 36 + 2 * q for q in range(17)}
    a(f"v_mul_f32 v{B}, v{B}, v15")
    a(f"v_exp_f32 v{B}, v{B}")
    a(f"v_mul_f32 v{B+1}, v{B+1}, v14")
    a(f"v_mul_f32 v{Q[0]}, v{B+2}, v9")
    a(f"v_mul_f32 v{Q[0]+1}, v{B+3}, v9")
    a(f"v_cvt_pk_bf16_f32 v{B}, v{B}, v{B}")
    a(f"v_mul_f32 v{B+1}, {f2u(INV2PI):#x}, v{B+1}")
    a(f"v_lshlrev_b32 v{B}, 16, v{B}")
    a(f"v_mul_f32 v{B}, v{B}, v14")
    a(f"v_mul_f32 v{B}, v{B}, v15")
    E = B + 12; F = B + 16
    for k, p in enumerate((1.0, 8.0, 128.0)):
        a(f"v_mul_f32 v{F+k}, {f2u(p):#x}, v{B+1}")
        a(f"v_mul_f32 v{E+k}, {f2u(-p):#x}, v{B}")
    for k in range(3):
        a(f"v_fract_f32 v{F+k}, v{F+k}")
        a(f"v_exp_f32 v{E+k}, v{E+k}")
    for k in range(3):
        a(f"v_cos_f32 v{W1+2*k}, v{F+k}")
        a(f"v_sin_f32 v{W1+1+2*k}, v{F+k}")
    for k in range(3):
        a(f"v_mul_f32 v{W1+2*k}, v{W1+2*k}, v{E+k}")
        a(f"v_mul_f32 v{W1+1+2*k}, v{W1+1+2*k}, v{E+k}")
    tctr = [0]
    def put(r, reg, row, val, neg=False):
        t = tmp[tctr[0] % 4]; tctr[0] += 1
        r(f"v_cvt_pk_bf16_f32 v{t}, v{val}, {'-' if neg else ''}v{val+1}")
        r(W(t, L + reg*RS + row*ROWP))
    rb = Rec()
    rb(W(13, L))
    cmul(rb, W16, W8, W8)
    put(rb, 0, 1, W8, True); put(rb, 0, 2, W16, True)
    ring = {1: W8, 2: W16}
    for b in range(3, 16):
        d = ringr[b % 4]
        cmul(rb, d, ring[b-2], W16); ring[b] = d
        put(rb, 0, b, d, True)
    wc = {1: W1}; rw = Rec()
    for c, (x, y) in ((2, (1, 1)), (3, (2, 1)), (4, (2, 2)), (5, (4, 1)), (6, (4, 2)), (7, (4, 3))):
        wc[c] = B + 24 + 2 * (c - 2); cmul(rw, wc[c], wc[x], wc[y])
    rq = Rec()
    for q in range(1, 17): cmul(rq, Q[q], Q[q-1], W128)
    o += interleave(rb.l, rw.l + rq.l)
    def rd(which, reg):
        for s in range(4):
            a(("rd", (m, which), f"ds_read_b128 a[{A+16*which+4*s}:{A+16*which+4*s+3}], v{ra} offset:{L + reg*RS + s*64}"))
    def mf(t):
        for s in range(4):
            c = f"a[{192+4*t}:{195+4*t}]"
            a(("mf", (m, t + 1), f"v_mfma_f32_16x16x32_bf16 {c}, a[{A+16*(t+1)+4*s}:{A+16*(t+1)+4*s+3}], a[{A+4*s}:{A+4*s+3}], {c}"))
    rd(0, 0)
    pc = [0]
    def run(jobs):
        for reg, row, x, y in jobs:
            if y is None: put(a, reg, row, x); continue
            d = ringr[pc[0] % 4]; pc[0] += 1
            cmul(a, d, x, y); put(a, reg, row, d)
    run([(1, 8*ap + c, Q[ap], wc[c] if c else None) for ap in range(2) for c in range(8)])
    rd(1, 1)
    run([(0, 4*ap + c, Q[2+ap], wc[2*c] if c else None) for ap in range(2) for c in range(4)])
    mf(0)
    run([(0, 8 + 2*ap + c, Q[4+ap], wc[4] if c else None) for ap in range(4) for c in range(2)])
    rd(2, 0)
    for q in range(8, 17): put(a, 1, q - 8, Q[q])
    rd(3, 1)
    mf(1); mf(2)
    return o

def kgen_all(a, hooks):
    ds = Cnt(a, "lgkmcnt", 15)
    streams = [kgen_stream(m) for m in range(3)]
    lag = ENV("F_LAG", 12)
    seq = []
    n = max(len(s) + i * lag for i, s in enumerate(streams))
    for k in range(n):
        for i, s in enumerate(streams):
            j = k - i * lag
            if 0 <= j < len(s):
                if j == 0 and i: seq.append(("vm", i))
                seq.append(s[j])
    for idx, e in enumerate(seq):
        if idx in hooks: hooks[idx]()
        if isinstance(e, tuple):
            if e[0] == "vm": a(f"s_waitcnt vmcnt({8 - 4*e[1]})"); continue
            if e[0] == "rd": a(e[2]); ds.issue(e[1]); continue
            ds.wait(e[1]); a(e[2]); continue
        a(e)
        if e.startswith("ds_"): ds.issue("w")
    return len(seq)

NB = 120
def st_loads(a):
    a(f"buffer_load_dwordx2 v[{NB}:{NB+1}], v229, s[48:51], 0 offen sc1")
    for g in range(2):
        b = NB + 4 + 12 * g
        a(f"buffer_load_dwordx4 v[{b}:{b+3}], v228, s[44:47], 0 offen offset:{32*g} sc1")
        a(f"buffer_load_dwordx4 v[{b+4}:{b+7}], v228, s[44:47], 0 offen offset:{32*g+16} sc1")

def conv_wg(a, fused=None, split=False):
    a(f"s_sub_u32 s5, s2, {N_LN}")
    a("s_and_b32 s6, s5, 7")
    a("s_mul_i32 s6, s6, 20")
    a("s_lshr_b32 s4, s5, 3")
    a("s_add_u32 s4, s4, s6")
    a("s_lshl_b32 s7, s4, 2")
    a("s_add_u32 s7, s7, s3")
    a("s_mul_i32 s8, s7, 384")
    a("v_lshlrev_b32 v2, 1, v1")
    a("v_add_u32 v2, s8, v2")
    a("s_lshr_b32 s9, s7, 1")
    a("s_lshl_b32 s9, s9, 2")
    a("s_lshl_b32 s12, s4, 3")
    a("s_waitcnt lgkmcnt(0)")
    a("s_load_dword s10, s[26:27], s9")
    a("s_load_dwordx2 s[68:69], s[28:29], s12")
    for m in range(3):
        for r in range(4):
            a(f"global_load_ushort v{16+70*m+r}, v2, s[{18+2*r}:{19+2*r}] offset:{128*m}")
    srd(a, 44, WS, S1_OFF, 16384); srd(a, 48, 40, 0, 8); srd(a, 56, WS, H_OFF, SZ_X); srd(a, 36, WS, XQ_OFF, 160*16384)
    a("s_mul_i32 s11, s3, 1536")
    a(f"s_add_u32 s11, s11, {TB}")
    a(f"s_mul_i32 s13, s3, {KP}")
    a(f"s_add_u32 s13, s13, {KB}")
    a("v_lshlrev_b32 v2, 4, v1")
    a("v_add_u32 v226, s13, v2")
    a("v_lshrrev_b32 v227, 3, v0")
    a("v_lshlrev_b32 v227, 8, v227")
    a("s_bfe_u32 s9, s4, 0x20002")
    a("s_lshl_b32 s9, s9, 6")
    a("v_add_u32 v227, s9, v227")
    a("v_lshlrev_b32 v228, 6, v0")
    a("v_mov_b32 v229, 0")
    a("s_mov_b32 s15, 8192")
    for i in range(12): a(f"v_accvgpr_write_b32 a{192+i}, 0")
    a("v_and_b32 v5, 15, v1")
    a("v_lshrrev_b32 v6, 4, v1")
    a("v_lshrrev_b32 v236, 1, v6")
    a("v_lshlrev_b32 v236, 8, v236")
    a("v_and_b32 v7, 1, v6")
    a("v_lshl_add_u32 v236, v7, 3, v236")
    a("v_lshl_add_u32 v236, v5, 4, v236")
    a("v_add_u32 v236, s11, v236")
    a("v_cmp_gt_u32 vcc, 2, v6")
    a("v_lshlrev_b32 v237, 3, v5")
    a("v_lshlrev_b32 v7, 2, v5")
    a("v_mov_b32 v238, 64")
    a("v_cndmask_b32 v237, v7, v237, vcc")
    a("v_cndmask_b32 v238, v238, 4, vcc")
    a("v_lshl_add_u32 v237, v6, 7, v237")
    a("v_add_u32 v237, s11, v237")
    a("v_add_u32 v238, v238, v237")
    a("v_lshlrev_b32 v239, 1, v5")
    a("v_lshl_add_u32 v239, v6, 7, v239")
    a("v_add_u32 v239, s11, v239")
    a("v_cmp_gt_u32 s[6:7], 32, v1".replace("s[6:7]", "vcc"))
    a("v_lshlrev_b32 v240, 4, v1")
    a("v_lshlrev_b32 v7, 3, v1")
    a("v_add_u32 v7, 256, v7")
    a("v_cndmask_b32 v240, v7, v240, vcc")
    a("v_add_u32 v240, s11, v240")
    a("v_lshlrev_b32 v241, 2, v1")
    a("v_add_u32 v241, s11, v241")
    a("v_lshlrev_b32 v242, 1, v1")
    a("v_add_u32 v242, s11, v242")
    a("v_mov_b32 v7, 0x01000100"); a("v_mov_b32 v8, 0x03020100"); a("v_cndmask_b32 v243, v7, v8, vcc")
    a("v_mov_b32 v7, 0x05040302"); a("v_mov_b32 v8, 0x07060504"); a("v_cndmask_b32 v244, v7, v8, vcc")
    a("v_mov_b32 v7, 0x01000100"); a("v_cndmask_b32 v245, v7, v8, vcc")
    a("v_and_b32 v7, 1, v1")
    a("v_cmp_eq_u32 vcc, 0, v7")
    a("v_mov_b32 v7, 0x05040504"); a("v_mov_b32 v8, 0x05040100"); a("v_cndmask_b32 v246, v7, v8, vcc")
    a("v_lshrrev_b32 v10, 4, v1")
    a("v_bfe_u32 v11, v1, 2, 2")
    a("v_and_b32 v12, 3, v1")
    a("v_lshlrev_b32 v247, 6, v10")
    a("v_lshl_add_u32 v247, v11, 3, v247")
    a("v_lshl_add_u32 v247, v12, 5, v247")
    a("v_add_u32 v247, s13, v247")
    a("s_lshr_b32 s14, s3, 1")
    a("s_and_b32 s12, s3, 1")
    a("s_lshl_b32 s12, s12, 3")
    for h in range(2):
        a(f"v_add_u32 v6, {44 - 4*h}, v12")
        a("v_sub_u32 v6, v6, v11")
        a("v_lshlrev_b32 v7, 3, v10")
        a("v_sub_u32 v6, v6, v7")
        a("v_lshrrev_b32 v7, 2, v6")
        a("v_add_u32 v7, s14, v7")
        a("v_and_b32 v7, 3, v7")
        a("v_lshlrev_b32 v6, 6, v6")
        a("v_lshl_add_u32 v6, v7, 4, v6")
        a(f"v_add_u32 v{248+h}, s12, v6")
    a("v_and_b32 v250, 1, v1")
    a("v_lshlrev_b32 v250, 7, v250")
    a("v_and_b32 v6, 62, v1")
    a("v_add3_u32 v250, s13, v250, v6")
    a("v_lshrrev_b32 v6, 1, v0")
    a("v_lshlrev_b32 v7, 7, v0")
    a(f"v_add_u32 v7, {UB + UPAD}, v7")
    for n in range(4):
        a(f"v_add_u32 v8, {n}, v6")
        a("v_and_b32 v8, 3, v8")
        a(f"v_lshl_add_u32 v{251+n}, v8, 4, v7")
    a(f"s_mul_i32 s8, s3, {WREG}")
    a(f"s_add_u32 s8, s8, {SB}")
    a("s_mov_b32 s14, s8")
    a("v_lshlrev_b32 v3, 2, v1")
    a("v_add_u32 v3, s8, v3")
    a("v_and_b32 v4, 15, v1")
    a(f"v_mul_u32_u24 v4, {ROWP}, v4")
    a("v_lshrrev_b32 v5, 4, v1")
    a("v_lshl_add_u32 v4, v5, 4, v4")
    a("v_add_u32 v4, s8, v4")
    a(f"v_add_u32 v234, {8*WREG}, v3")
    a(f"v_add_u32 v235, {8*WREG}, v4")
    a("s_mov_b32 m0, s14")
    a("v_mov_b32 v7, 0")
    a("v_lshlrev_b32 v6, 3, v0")
    a("v_mov_b32 v8, 0")
    a(f"ds_write_b64 v6, v[7:8] offset:{UB}".replace("v[7:8]", "v[6:7]") if False else "v_mov_b32 v9, 0")
    a(f"ds_write_b64 v6, v[8:9] offset:{UB}")
    a("v_and_b32 v6, 31, v1")
    a("v_lshlrev_b32 v6, 2, v6")
    a("v_add_u32 v6, s13, v6")
    a("ds_write_b32 v6, v7")
    a("s_waitcnt lgkmcnt(0)")
    a("s_lshl_b32 s9, s10, 16")
    a("s_and_b32 s10, s10, 0xffff0000")
    a("s_bitcmp1_b32 s7, 0")
    a("s_cselect_b32 s10, s10, s9")
    for e in range(2):
        a(f"s_lshl_b32 s{64+2+2*e}, s{68+e}, 16".replace(f"s{66+2*e}", f"s{84+2*e}"))
        a(f"s_and_b32 s{85+2*e}, s{68+e}, 0xffff0000")
    a(f"v_mov_b32 v15, {f2u(LOG2E):#x}")
    a("v_mul_f32 v14, s10, v15")
    a("v_exp_f32 v14, v14")
    a("v_cvt_pk_bf16_f32 v14, v14, v14")
    a("v_lshlrev_b32 v14, 16, v14")
    a("v_add_f32 v9, v14, v14")
    a("v_mov_b32 v13, 0x3f80")
    if ENV("F_ST5", 0): stamp(a, 6)
    a("s_waitcnt vmcnt(8)")
    stamp(a, 0)
    if os.environ.get("F_DROP"): a.drop = os.environ["F_DROP"].split(",")
    if os.environ.get("F_DROP"): a.drop = os.environ["F_DROP"].split(",")
    kgen_all(a, {})
    a.drop = None
    a.drop = None
    stamp(a, 1)
    for i in range(12): a(f"v_accvgpr_read_b32 v{16+i}, a{192+i}")
    st_loads(a)
    for t in range(3):
        a(f"v_cvt_pk_bf16_f32 v{28+2*t}, v{16+4*t}, v{17+4*t}")
        a(f"v_cvt_pk_bf16_f32 v{29+2*t}, v{18+4*t}, v{19+4*t}")
    a("ds_write_b64 v236, v[28:29]")
    a("ds_write_b32 v237, v30 offset:512")
    a("ds_write_b32 v238, v31 offset:512")
    a("ds_write_b16 v239, v32 offset:1024")
    a("ds_write_b16_d16_hi v239, v32 offset:1056")
    a("ds_write_b16 v239, v33 offset:1088")
    a("ds_write_b16_d16_hi v239, v33 offset:1120")
    a("ds_read2_b64 v[40:43], v240 offset0:0 offset1:1")
    a("ds_read2_b32 v[44:45], v241 offset0:192 offset1:193")
    for r in range(2):
        a(f"ds_read_u16 v{46+2*r}, v242 offset:{1024 + 128*r}")
        a(f"ds_read_u16 v{47+2*r}, v242 offset:{1026 + 128*r}")
    for i, r in enumerate((247, 248, 249, 250, 251, 252, 253, 254)): a(f"v_mov_b32 v{16+i}, v{r}")
    a("v_mov_b32 v3, v10"); a("v_mov_b32 v4, v11"); a("v_mov_b32 v5, v12")
    a("s_mov_b32 s8, 0x01000100")
    a("s_mov_b32 s9, 0x03020100")
    a("s_mov_b32 s10, 0x03020302")
    a("s_mov_b32 s12, 0x05040302")
    a("v_cmp_gt_u32 vcc, 32, v1")
    a("s_waitcnt lgkmcnt(5)")
    a("v_perm_b32 v52, v40, v40, v243")
    a("v_perm_b32 v53, v41, v40, v244")
    a("v_perm_b32 v54, v42, v41, v245")
    a("v_perm_b32 v55, v42, v41, s12")
    a("v_cndmask_b32 v55, v55, v43, vcc")
    a("ds_write_b128 v226, v[52:55] offset:128")
    a("s_waitcnt lgkmcnt(5)")
    a("v_perm_b32 v56, v44, v44, s8")
    a("v_mov_b32 v57, v44")
    a("v_perm_b32 v58, v44, v44, s10")
    a("v_perm_b32 v59, v45, v45, s8")
    a("ds_write_b128 v226, v[56:59] offset:1152")
    a("s_waitcnt lgkmcnt(2)")
    for r in range(2):
        d = 60 + 4 * r
        a(f"v_perm_b32 v{d}, v{46+2*r}, v{46+2*r}, s8")
        a(f"v_mov_b32 v{d+1}, v{d}")
        a(f"v_perm_b32 v{d+2}, v{47+2*r}, v{46+2*r}, v246")
        a(f"v_perm_b32 v{d+3}, v{47+2*r}, v{47+2*r}, s8")
        a(f"ds_write_b128 v226, v[{d}:{d+3}] offset:{128 + (2+r)*1024}")
    FR = 24; GR = 88; NG = 8; AR = 120; T2 = 248
    for Q in range(15, -1, -1):
        for h in range(2):
            a(f"ds_read_b64_tr_b16 v[{FR+4*Q+2*h}:{FR+4*Q+2*h+1}], v16 offset:{32 + 256*Q + 32*h}")
    a("s_lshl_b32 s9, s4, 14")
    a("s_add_u32 s12, s9, 8192")
    a("s_mov_b32 s52, 0")
    a.label("F_STW")
    a("s_waitcnt vmcnt(0)")
    a(f"v_cmp_eq_u32 vcc, 0, v{NB}")
    for off in (6, 10, 18, 22):
        a(f"v_cmp_ne_u64 s[10:11], v[{NB}:{NB+1}], v[{NB+off}:{NB+off+1}]")
        a("s_or_b64 vcc, vcc, s[10:11]")
    a("s_cbranch_vccz F_STOK")
    a("s_add_u32 s52, s52, 1")
    a("s_cmp_ge_u32 s52, 0x8000")
    a("s_cbranch_scc1 F_STOK")
    a(f"s_sleep {ENV('F_SLEEP', 2)}")
    st_loads(a)
    a("s_branch F_STW")
    a.label("F_STOK")
    stamp(a, 2)
    a(f"v_readfirstlane_b32 s90, v{NB}")
    a(f"v_readfirstlane_b32 s91, v{NB+1}")
    XR = 152
    for g in range(2):
        for hh in range(2):
            a(f"buffer_load_dwordx4 v[{XR+8*g+4*hh}:{XR+8*g+4*hh+3}], v228, s[36:39], s9 offen offset:{32*g + 16*hh} sc1")
    RSr = 176; NM = 184; X = lambda g, c, h: 192 + 16 * g + 4 * c + 2 * h; U = lambda c, h: 224 + 4 * c + 2 * h
    Gs = lambda g, i: NB + 4 + 12 * g + (0, 1, 4, 5)[i]
    for g in range(2):
        for i in range(4): a(f"v_and_b32 v{RSr+4*g+i}, 0xffff0000, v{Gs(g,i)}")
    for i in range(8): a(f"v_rcp_f32 v{RSr+i}, v{RSr+i}")
    for g in range(2):
        for i in range(4): a(f"v_lshlrev_b32 v{NM+4*g+i}, 16, v{Gs(g,i)}")
    for i in range(8): a(f"v_mul_f32 v{NM+i}, -v{NM+i}, v{RSr+i}")
    a("s_mov_b32 s70, 0"); a("s_mov_b32 s71, 0x80000000")
    a("s_mov_b32 s72, 0"); a("s_mov_b32 s73, 0xc0000000")
    a("s_mov_b32 s74, 0"); a("s_mov_b32 s75, 0xe0000000")
    for g in range(2):
        a(f"s_waitcnt vmcnt({2 - 2*g})")
        for c in range(4):
            for h in range(2):
                a(f"v_lshlrev_b32 v{X(g,c,h)}, 16, v{XR+8*g+2*c+h}")
                a(f"v_and_b32 v{X(g,c,h)+1}, 0xffff0000, v{XR+8*g+2*c+h}")
        for c in range(4):
            for h in range(2):
                a(f"v_pk_fma_f32 v[{U(c,h)}:{U(c,h)+1}], v[{X(g,c,h)}:{X(g,c,h)+1}], v[{RSr+4*g+2*h}:{RSr+4*g+2*h+1}], v[{NM+4*g+2*h}:{NM+4*g+2*h+1}]")
        O = 240
        for c in range(4):
            for h in range(2):
                a(f"v_cvt_pk_bf16_f32 v{O+2*c+h}, v{U(c,h)}, v{U(c,h)+1}")
            if c % 2: a(f"ds_write_b128 v{20+c//2}, v[{O+2*c-2}:{O+2*c+1}] offset:{g*64}")
        for c in range(4):
            o = c % 2
            for h in range(2):
                a(f"v_pk_fma_f32 v[{X(g,c,h)}:{X(g,c,h)+1}], v[{U(c,h)}:{U(c,h)+1}], s[{84+2*(c//2)}:{85+2*(c//2)}], v[{X(g,c,h)}:{X(g,c,h)+1}] op_sel:[0,{o},0] op_sel_hi:[1,{o},1]")
    for par in range(2):
        for c in range(4):
            for g in range(2):
                a(f"v_cvt_pk_bf16_f32 v{XR+8*par+2*c+g}, v{X(g,c,0)+par}, v{X(g,c,1)+par}")
            if c % 2: a(f"ds_write_b128 v{22+c//2}, v[{XR+8*par+2*c-2}:{XR+8*par+2*c+1}] offset:{par*64}")
    a("s_waitcnt lgkmcnt(0)")
    stamp(a, 3)
    a("s_barrier")
    ds = Cnt(a, "lgkmcnt", 15)
    acc = lambda T: AR + 4 * T
    def gread(d):
        g = GR + 4 * (d % NG)
        for h in range(2):
            a(f"ds_read_b64_tr_b16 v[{g+2*h}:{g+2*h+1}], v{17+h} offset:{UB + 1024*d}"); ds.issue(("G", d))
    PDG = 6
    if split:
        for d in range(16):
            for h in range(2):
                a(f"ds_read_b64_tr_b16 a[{176+4*d+2*h}:{177+4*d+2*h}], v{17+h} offset:{UB + 1024*d}"); ds.issue(("G", d))
    else:
        for d in range(PDG): gread(d)
    started = set(); pend = []
    def combine(T):
        t = T2 + 4 * (T % 2); D = acc(T); out = []
        for e, m in ((3, 74), (2, 72), (1, 70)):
            prev = f"v{acc(T-1)+e}" if T > 0 else "0"
            out.append(f"v_cndmask_b32 v{t+e}, v{D+e}, {prev}, s[{m}:{m+1}]")
        out.append(f"v_add_f32_dpp v{t+2}, v{t+3}, v{t+2} wave_ror:1 row_mask:0xf bank_mask:0xf")
        out.append(f"v_add_f32_dpp v{t+1}, v{t+2}, v{t+1} wave_ror:1 row_mask:0xf bank_mask:0xf")
        out.append(f"v_add_f32_dpp v{t}, v{t+1}, v{D} wave_ror:1 row_mask:0xf bank_mask:0xf")
        out.append(f"v_cvt_pk_bf16_f32 v{t}, v{t}, v{t}")
        out.append(f"ds_write_b16 v19, v{t} offset:{128 + (T>>1)*256 + (T&1)*64}")
        return out
    def side(n):
        for _ in range(n):
            if pend:
                t = pend.pop(0); a(t)
                if t.startswith("ds_"): ds.issue("Y")
    if split:
        conv_split(a, fused, ds, gread, combine, side, pend, acc, FR, GR, NG, PDG)
        return
    def run_deltas(d0, d1, hook=None):
        for d in range(d0, d1):
            ds.wait(("G", d))
            g = GR + 4 * (d % NG)
            for T in range(d, 32, 2):
                Q = (T - d) // 2
                c = f"v[{acc(T)}:{acc(T)+3}]"
                a(f"v_mfma_f32_16x16x32_bf16 {c}, v[{FR+4*Q}:{FR+4*Q+3}], v[{g}:{g+3}], {c if d >= 2 else 0}")
                if not (hook and hook()): side(1 if d < 20 else 2)
            if d + PDG < 32: gread(d + PDG)
            if d >= 1: pend.extend(combine(d - 1))
        if d1 == 32:
            pend.extend(combine(31)); side(200)
    if not fused:
        run_deltas(0, 32)
    else:
        D1 = ENV("F_D1", 18); D2 = ENV("F_D2", 22)
        fused.setup()
        run_deltas(0, D1)
        fused.poll_issue()
        run_deltas(D1, D2)
        fused.check("F_NOW13")
        sv = (list(pend), list(ds.q))
        cnt = [0]
        def hook():
            cnt[0] += 1
            return cnt[0] % ENV("F_WGAP", 2) == 0 and fused.load_one()
        run_deltas(D2, 32, hook)
        a("s_branch F_CONVDONE")
        a.label("F_NOW13")
        pend[:] = sv[0]; ds.q = sv[1]
        a("s_mov_b32 s33, 0")
        run_deltas(D2, 32)
        a.label("F_CONVDONE")
    a(f"v_mul_u32_u24 v16, {KP}, v4")
    a("v_lshl_add_u32 v16, v3, 5, v16")
    a("v_lshl_add_u32 v16, v5, 3, v16")
    a("s_lshl_b32 s13, s3, 8")
    a(f"s_add_u32 s13, s13, {KB}")
    a("v_add_u32 v16, s13, v16")
    a("v_lshl_add_u32 v6, v3, 2, v5")
    a("v_lshrrev_b32 v7, 1, v6")
    a("v_lshlrev_b32 v6, 7, v6")
    a("v_and_b32 v20, 1, v4")
    a("v_lshl_add_u32 v6, v20, 3, v6")
    a("s_lshl_b32 s12, s3, 11")
    a("v_add_u32 v6, s12, v6")
    a("v_lshrrev_b32 v20, 1, v4")
    a("v_add3_u32 v7, v7, v20, 2")
    a("v_and_b32 v7, 3, v7")
    a("v_lshl_add_u32 v17, v7, 4, v6")
    a("v_lshrrev_b32 v19, 3, v1")
    a("v_mul_u32_u24 v19, 20480, v19")
    a("v_and_b32 v6, 7, v1")
    a("v_lshl_add_u32 v19, v6, 4, v19")
    a("s_mul_i32 s13, s3, 163840")
    a("s_lshr_b32 s14, s4, 3")
    a("s_lshl_b32 s14, s14, 10")
    a("s_add_u32 s13, s13, s14")
    a("s_and_b32 s14, s4, 1")
    a("s_lshl_b32 s14, s14, 9")
    a("s_add_u32 s13, s13, s14")
    a("s_bfe_u32 s14, s4, 0x20001")
    a("s_lshl_b32 s14, s14, 7")
    a("s_add_u32 s13, s13, s14")
    a("s_waitcnt lgkmcnt(0)")
    stamp(a, 4)
    a("s_barrier")
    for i in range(4):
        for par in range(2):
            a(f"ds_read_b64_tr_b16 v[{24+8*i+2*par}:{25+8*i+2*par}], v16 offset:{128 + i*1024 + par*128}")
            a(f"ds_read_b64_tr_b16 v[{28+8*i+2*par}:{29+8*i+2*par}], v17 offset:{UB + UPAD + i*8192 + par*64}")
    HSC = " sc1" if (ENV("F_HSC", 0) or fused) else ""
    for i in range(4):
        Y = 24 + 8 * i; A = 64 + 16 * i
        a(f"s_waitcnt lgkmcnt({12 - 4*i})")
        for q in range(4):
            a(f"v_lshlrev_b32 v{A+2*q}, 16, v{Y+q}")
            a(f"v_and_b32 v{A+2*q+1}, 0xffff0000, v{Y+q}")
            a(f"v_lshlrev_b32 v{A+8+2*q}, 16, v{Y+4+q}")
            a(f"v_and_b32 v{A+8+2*q+1}, 0xffff0000, v{Y+4+q}")
        for q in range(4):
            a(f"v_pk_add_f32 v[{A+2*q}:{A+2*q+1}], v[{A+2*q}:{A+2*q+1}], v[{A+8+2*q}:{A+8+2*q+1}]")
        a(f"s_add_u32 s14, s13, {i*4*163840}")
        for q in range(4):
            a(f"v_cvt_pk_bf16_f32 v{Y+q}, v{A+2*q}, v{A+2*q+1}")
        a(f"buffer_store_dwordx4 v[{Y}:{Y+3}], v19, s[56:59], s14 offen{HSC}")


def conv_split(a, fused, ds, gread, combine, side, pend, acc, FR, GR, NG, PDG):
    a(f"v_mul_u32_u24 v12, {KP}, v4")
    a("v_lshl_add_u32 v12, v3, 5, v12")
    a("v_lshl_add_u32 v12, v5, 3, v12")
    a("s_lshl_b32 s13, s3, 8")
    a(f"s_add_u32 s13, s13, {KB}")
    a("v_add_u32 v12, s13, v12")
    a("v_lshl_add_u32 v6, v3, 2, v5")
    a("v_lshrrev_b32 v7, 1, v6")
    a("v_lshlrev_b32 v6, 7, v6")
    a("v_and_b32 v20, 1, v4")
    a("v_lshl_add_u32 v6, v20, 3, v6")
    a("s_lshl_b32 s12, s3, 11")
    a("v_add_u32 v6, s12, v6")
    a("v_lshrrev_b32 v20, 1, v4")
    a("v_add3_u32 v7, v7, v20, 2")
    a("v_and_b32 v7, 3, v7")
    a("v_lshl_add_u32 v13, v7, 4, v6")
    a("v_bfe_u32 v14, v1, 3, 2")
    a("v_lshrrev_b32 v6, 5, v1")
    a("v_lshl_add_u32 v14, v6, 3, v14")
    a("v_mul_u32_u24 v14, 20480, v14")
    a("v_and_b32 v6, 7, v1")
    a("v_lshl_add_u32 v14, v6, 4, v14")
    a("s_mul_i32 s13, s3, 327680")
    a("s_lshr_b32 s14, s4, 3")
    a("s_lshl_b32 s14, s14, 10")
    a("s_add_u32 s13, s13, s14")
    a("s_and_b32 s14, s4, 1")
    a("s_lshl_b32 s14, s14, 9")
    a("s_add_u32 s13, s13, s14")
    a("s_bfe_u32 s14, s4, 0x20001")
    a("s_lshl_b32 s14, s14, 7")
    a("s_add_u32 s13, s13, s14")
    a(f"s_sub_u32 s5, s2, {N_LN}")
    fused.setup()
    def fin(hf, Y0, A0):
        o = []
        for i in range(2):
            for par in range(2):
                o.append(f"ds_read_b64_tr_b16 v[{Y0+8*i+2*par}:{Y0+1+8*i+2*par}], v12 offset:{128 + (2*hf+i)*1024 + par*128}")
                o.append(f"ds_read_b64_tr_b16 v[{Y0+4+8*i+2*par}:{Y0+5+8*i+2*par}], v13 offset:{UB + UPAD + (2*hf+i)*8192 + par*64}")
        for i in range(2):
            Y = Y0 + 8 * i; A = A0 + 16 * i
            o.append(("wait", i))
            for q in range(4):
                o.append(f"v_lshlrev_b32 v{A+2*q}, 16, v{Y+q}")
                o.append(f"v_and_b32 v{A+2*q+1}, 0xffff0000, v{Y+q}")
                o.append(f"v_lshlrev_b32 v{A+8+2*q}, 16, v{Y+4+q}")
                o.append(f"v_and_b32 v{A+8+2*q+1}, 0xffff0000, v{Y+4+q}")
            for q in range(8): o.append(f"v_add_f32 v{A+q}, v{A+q}, v{A+8+q}")
            o.append(f"s_add_u32 s14, s13, {i*4*327680 + hf*81920}")
            for q in range(4): o.append(f"v_cvt_pk_bf16_f32 v{Y+q}, v{A+2*q}, v{A+2*q+1}")
            o.append(f"buffer_store_dwordx4 v[{Y}:{Y+3}], v14, s[56:59], s14 offen sc1")
        return o
    fq = []; fc = [0]
    def emit(n):
        for _ in range(n):
            if pend: side(1); continue
            if not fq: return
            t = fq.pop(0)
            if isinstance(t, tuple): ds.wait(("fin", t[1])); continue
            a(t)
            if t.startswith("ds_"): ds.issue(("fin", fc[0] // 4)); fc[0] += 1
    seq = list(range(16)) + list(range(32))
    def gr(n):
        d = seq[n]; g = GR + 4 * (n % NG)
        if d < 16: return
        for h in range(2):
            a(f"ds_read_b64_tr_b16 v[{g+2*h}:{g+2*h+1}], v{17+h} offset:{UB + 1024*d}"); ds.issue(("G", n))
    def run(n0, n1, hook=None):
        for n in range(n0, n1):
            d = seq[n]; lo = 0 if n < 16 else 16; hi = lo + 16
            ds.wait(("G", n))
            g = f"v[{GR+4*(n%NG)}:{GR+4*(n%NG)+3}]" if d >= 16 else f"a[{176+4*d}:{179+4*d}]"
            for T in range(max(d, lo + (d & 1)), hi, 2):
                Q = (T - d) // 2
                c = f"v[{acc(T)}:{acc(T)+3}]"
                a(f"v_mfma_f32_16x16x32_bf16 {c}, v[{FR+4*Q}:{FR+4*Q+3}], {g}, {c if d >= 2 else 0}")
                if not (hook and hook()): emit(ENV("F_EM", 2))
            if n + PDG < len(seq): gr(n + PDG)
            if n < 16 and d >= 1: pend.extend(combine(d - 1))
            if n == 16: pend.extend(combine(15))
            if n > 16 and d - 1 >= 16: pend.extend(combine(d - 1))
        if n1 == len(seq):
            pend.extend(combine(31)); emit(200)
    B1 = 16 + ENV("F_B1", 6); D1 = 16 + ENV("F_D1", 12); D2 = 16 + ENV("F_D2", 17)
    run(0, B1)
    if pend: print("conv_split: flushing", len(pend), "at B1")
    emit(100)
    a("s_waitcnt lgkmcnt(0)"); ds.q = []
    a("s_barrier")
    fq.extend(fin(0, 120, 136))
    run(B1, D1)
    if fq: print("conv_split: flushing", len(fq), "at D1")
    emit(200)
    fused.poll_issue()
    run(D1, D2)
    a("s_waitcnt vmcnt(0)")
    a("s_barrier")
    fused.flag("s5", 192, "HA", 20)
    stamp(a, 6)
    fused.check("F_NOW13", wait=False)
    sv = (list(pend), list(ds.q))
    cnt = [0]
    def hook():
        cnt[0] += 1
        return cnt[0] % ENV("F_WGAP", 2) == 0 and fused.load_one()
    run(D2, len(seq), hook)
    a("s_branch F_CONVDONE")
    a.label("F_NOW13")
    pend[:] = sv[0]; ds.q = sv[1]
    a("s_mov_b32 s33, 0")
    run(D2, len(seq))
    a.label("F_CONVDONE")
    a("s_waitcnt lgkmcnt(0)"); ds.q = []
    stamp(a, 4)
    a("s_barrier")
    fc[0] = 0
    fq.extend(fin(1, 24, 64))
    emit(500)
```

```python
import os
from asmlib import *
from layout import *
from k1 import srd
import kf4, k36, k38
SPLIT = int(os.environ.get('A_SPLIT', '1'))
ENV = lambda k, d: int(os.environ.get(k, d))
NPRE = ENV("A_NPRE", 36)
NAME = "sequential_preLN__ssm_conv_s4d__glu_gated_swiglu__prompt_kernel"

class Fused:
    def __init__(self, a): self.a = a; self.n = 0
    def setup(self):
        a = self.a
        srd(a, 92, kf4.WS, FLG_OFF, 512 * 128); srd(a, 28, kf4.WS, W13_OFF, 3932160)
        a("s_lshr_b32 s32, s2, 5")
        a("s_lshl_b32 s32, s32, 1")
        a("s_and_b32 s33, s2, 1")
        a("s_add_u32 s32, s32, s33")
        a("s_mul_i32 s34, s32, 3")
        a("s_lshr_b32 s34, s34, 1")
        a("s_lshl_b32 s34, s34, 9")
        a("s_lshl_b32 s32, s32, 2")
        a("s_add_u32 s32, s32, s3")
        a("s_mul_i32 s32, s32, 61440")
        a("v_and_b32 v8, 7, v1")
        a("v_lshlrev_b32 v8, 7, v8")
        a("v_lshlrev_b32 v2, 4, v1")
    def flag(self, sidx, base, tag, vr=12):
        a = self.a
        a("s_cmp_lg_u32 s3, 0")
        a(f"s_cbranch_scc1 FLG_{tag}")
        srd(a, 92, kf4.WS, FLG_OFF, 512 * 128)
        a(f"s_lshl_b32 s35, {sidx}, 7")
        a(f"v_mov_b32 v{vr}, s90")
        a(f"v_mov_b32 v{vr+1}, s91")
        a(f"v_mov_b32 v{vr+2}, {base*128}")
        a("s_mov_b64 exec, 1")
        a(f"buffer_store_dwordx2 v[{vr}:{vr+1}], v{vr+2}, s[92:95], s35 offen sc1")
        a("s_mov_b64 exec, -1")
        a.label(f"FLG_{tag}")
    def poll_issue(self):
        self.a("buffer_load_dwordx2 v[10:11], v8, s[92:95], s34 offen sc1")
    def check(self, notready, wait=True):
        a = self.a
        if wait: a("s_waitcnt vmcnt(0)")
        a("v_cmp_ne_u64 vcc, s[90:91], v[10:11]")
        a(f"s_cbranch_vccnz {notready}")
        a("s_mov_b32 s33, 1")
    def wait(self, tag):
        a = self.a
        a("s_mov_b32 s35, 0")
        a.label(f"W13W_{tag}")
        self.poll_issue()
        a("s_waitcnt vmcnt(0)")
        a("v_cmp_ne_u64 vcc, s[90:91], v[10:11]")
        a(f"s_cbranch_vccz W13K_{tag}")
        a("s_sleep 4")
        a("s_add_u32 s35, s35, 1")
        a("s_cmp_lt_u32 s35, 0x8000")
        a(f"s_cbranch_scc1 W13W_{tag}")
        a.label(f"W13K_{tag}")
    def load(self, idx):
        a = self.a
        if idx % 4 == 0 or idx == self.first: a(f"s_add_u32 s35, s32, {(idx & ~3) * 1024}")
        a(f"buffer_load_dwordx4 a[{4*idx}:{4*idx+3}], v2, s[28:31], s35 offen offset:{(idx&3)*1024} sc1")
    def load_one(self):
        if self.n >= NPRE: return False
        if self.n == 0: self.first = 0
        self.load(self.n); self.n += 1
        return True

def gen_all(a):
    a.raw(kernel_header(NAME))
    a("s_cmp_ge_u32 s2, 256")
    a("s_cbranch_scc1 K3_END")
    kf4.front_entry(a)
    F = Fused(a)
    def early_poll():
        a("v_min_u32 v189, 39, v1")
        a("v_lshlrev_b32 v189, 7, v189")
        a("s_mul_i32 s37, s3, 5120")
        a(f"s_add_u32 s37, s37, {192*128}")
        a("buffer_load_dwordx2 v[190:191], v189, s[92:95], s37 offen sc1")
    a(f"s_cmp_lt_u32 s2, {kf4.N_LN}")
    a("s_cbranch_scc1 F_LN")
    kf4.conv_wg(a, F, SPLIT)
    gs = lambda i: kf4._stamp(a, i) if os.environ.get("STSET") == "G" else None
    if SPLIT:
        early_poll()
        assert NPRE <= 44
        a("s_mov_b32 s36, 2")
        a("s_cmp_eq_u32 s33, 0")
        a("s_cbranch_scc1 C_ALL")
        n0 = F.n; F.first = n0
        NE = min(ENV("A_NE", 10), NPRE - n0)
        for i in range(n0, n0 + NE): F.load(i)
        a(f"s_waitcnt vmcnt({NE})")
        a("s_barrier")
        F.flag("s5", 352, "H1")
        F.first = n0 + NE
        for i in range(n0 + NE, NPRE): F.load(i)
        a("s_branch M_START")
        a.label("C_ALL")
        a("s_waitcnt vmcnt(0)")
        a("s_barrier")
        F.flag("s5", 352, "H2")
        a("s_branch M_LOADALL")
    else:
        a("s_cmp_eq_u32 s33, 0")
        a("s_cbranch_scc1 C_ALL")
        gs(0)
        n0 = F.n; F.first = n0
        NE = min(ENV("A_NE", 6), NPRE - n0)
        for i in range(n0, n0 + NE): F.load(i)
        a(f"s_waitcnt vmcnt({NE})")
        gs(1)
        a("s_barrier")
        a(f"s_sub_u32 s5, s2, {kf4.N_LN}")
        F.flag("s5", 352 if SPLIT else 192, "H1")
        gs(2)
        F.first = n0 + NE
        for i in range(n0 + NE, NPRE): F.load(i)
        a("s_branch M_START")
        a.label("C_ALL")
        gs(6)
        a("s_waitcnt vmcnt(0)")
        a("s_barrier")
        a(f"s_sub_u32 s5, s2, {kf4.N_LN}")
        F.flag("s5", 352 if SPLIT else 192, "H2")
        a("s_branch M_LOADALL")

    a.label("F_LN")
    kf4.ln_wg(a, F)
    F.setup()
    if not SPLIT:
        a("s_waitcnt vmcnt(0)")
        a("s_barrier")
        F.flag("s2", 96, "W2")
    a("s_mov_b32 s36, 0")
    if SPLIT: a("v_mov_b32 v190, 0")
    F.first = 0
    NW2 = ENV("A_W2PF", 0)
    if NW2:
        F.wait("L")
        for i in range(NPRE): F.load(i)
        srd(a, 44, kf4.WS, W2_OFF, 1966080)
        a("s_lshr_b32 s4, s2, 3")
        a("s_lshl_b32 s4, s4, 2")
        a("s_add_u32 s4, s4, s3")
        a(f"s_mul_i32 s4, s4, {NW2*1024}")
        a(f"s_waitcnt vmcnt({63 - NW2})")
        for i in range(NW2):
            if i % 4 == 0: a(f"s_add_u32 s5, s4, {i*1024}")
            a(f"buffer_load_dwordx4 v[{40+4*(i%40)}:{43+4*(i%40)}], v2, s[44:47], s5 offen offset:{(i%4)*1024}")
        a("s_branch M_START")
    a.label("M_LOADALL")
    F.wait("C")
    for i in range(NPRE): F.load(i)
    a.label("M_START")
    a("s_load_dwordx2 s[38:39], s[0:1], 88")
    a("s_load_dwordx2 s[40:41], s[0:1], 104")
    def gate():
        a("v_min_u32 v189, 39, v1")
        a("v_lshlrev_b32 v189, 7, v189")
        a("v_min_u32 v188, 23, v1")
        a("v_lshlrev_b32 v188, 7, v188")
        a("s_mov_b32 s35, 0")
        a("s_mul_i32 s14, s3, 5120")
        a(f"s_add_u32 s14, s14, {192*128}")
        a(f"s_add_u32 s12, s14, {160*128}")
        gs(3)
        if SPLIT:
            a(f"s_waitcnt vmcnt({min(NPRE, 63)})") if False else None
            a("s_cmp_eq_u32 s36, 0")
            a("s_cbranch_scc1 HW")
            a(f"s_waitcnt vmcnt({gate.behind})")
            a("v_cmp_ne_u64 vcc, s[90:91], v[190:191]")
            a("s_cbranch_vccz HOK")
        a.label("HW")
        a("buffer_load_dwordx2 v[190:191], v189, s[92:95], s14 offen sc1")
        a("s_waitcnt vmcnt(0)")
        a("v_cmp_ne_u64 vcc, s[90:91], v[190:191]")
        a("s_cbranch_vccz HOK")
        a(f"s_sleep {ENV('A_SLEEP', 4)}")
        a("s_add_u32 s35, s35, 1")
        a("s_cmp_lt_u32 s35, 0x8000")
        a("s_cbranch_scc1 HW")
        a.label("HOK")
        a("s_mul_i32 s37, s3, 3072")
        a(f"s_add_u32 s37, s37, {96*128}")
        gs(4)
        a("s_waitcnt lgkmcnt(0)")
        a("s_barrier")
        if SPLIT: flag_b()
        kf4._stamp(a, 5) if os.environ.get("STSET", "x") in "FG" else None
    gate.behind = 63
    def flag_b():
        a("s_cmp_lg_u32 s36, 0")
        a("s_cbranch_scc1 FB_SKIP")
        F.flag("s2", 96, "W2", 248)
        a.label("FB_SKIP")
    gate.flag_b = flag_b
    def w2_issue(vm):
        a("buffer_load_dwordx2 v[190:191], v188, s[92:95], s37 offen sc1"); vm.issue("w2f")
    def w2_check(vm, var):
        vm.wait("w2f"); sv = list(vm.q)
        a("s_mov_b32 s35, 0")
        a.label(f"W2W{var}")
        a("v_cmp_ne_u64 vcc, s[90:91], v[190:191]")
        a(f"s_cbranch_vccz W2K{var}")
        a("s_add_u32 s35, s35, 1")
        a("s_cmp_ge_u32 s35, 0x8000")
        a(f"s_cbranch_scc1 W2K{var}")
        a("s_sleep 2")
        a("buffer_load_dwordx2 v[190:191], v188, s[92:95], s37 offen sc1")
        a("s_waitcnt vmcnt(0)")
        a(f"s_branch W2W{var}")
        a.label(f"W2K{var}")
        vm.q = sv
    def b_issue(vm):
        a("buffer_load_dwordx2 v[180:181], v189, s[92:95], s12 offen sc1"); vm.issue("hbf")
    def b_check(vm, var):
        vm.wait("hbf"); sv = list(vm.q)
        a("s_mov_b32 s35, 0")
        a.label(f"HBW{var}")
        a("v_cmp_ne_u64 vcc, s[90:91], v[180:181]")
        a(f"s_cbranch_vccz HBK{var}")
        a("s_add_u32 s35, s35, 1")
        a("s_cmp_ge_u32 s35, 0x8000")
        a(f"s_cbranch_scc1 HBK{var}")
        a("s_sleep 1")
        a("buffer_load_dwordx2 v[180:181], v189, s[92:95], s12 offen sc1")
        a("s_waitcnt vmcnt(0)")
        a(f"s_branch HBW{var}")
        a.label(f"HBK{var}")
        vm.q = sv
    gate.w2_issue = w2_issue; gate.w2_check = w2_check; gate.b_issue = b_issue; gate.b_check = b_check
    (k38 if SPLIT else k36).mlp_body(a, True, gate)
```

```python
import os
from asmlib import *
from layout import *
from k1 import srd, cmul, interleave, Rec, wave_reduce_sum
from kp2 import w2_ids, w2_dma_setup, w2_out_setup
ENV = lambda k, d: int(os.environ.get(k, d))
N_LN = 96
_stamp = stamp
def stamp(a, i):
    if os.environ.get('STSET', 'F') == 'F': _stamp(a, i)
UB = 0; UPAD = 2048; SB = UPAD + 32768; RS = 4352; ROWP = 272; WREG = 2 * RS
KB = SB + 12 * WREG; KP = 4416; TB = KB + 4 * KP; PK = UB + UPAD
assert TB + 4 * 1536 <= 163840
STG = 65536; XP = 272
WS = 42
XQ_OFF = UR_OFF

def front_entry(a):
    code_prefetch(a, 4, 132, "F4")
    a("s_load_dwordx16 s[16:31], s[0:1], 0")
    a("s_load_dwordx8 s[32:39], s[0:1], 64")
    a("s_load_dwordx4 s[40:43], s[0:1], 96")
    a("v_lshrrev_b32 v2, 6, v0")
    a("v_and_b32 v1, 63, v0")
    a("v_readfirstlane_b32 s3, v2")

def gen_front4(a):
    a.raw(kernel_header("front_kernel"))
    a("s_cmp_ge_u32 s2, 256")
    a("s_cbranch_scc1 F_END")
    front_entry(a)
    a(f"s_cmp_lt_u32 s2, {N_LN}")
    a("s_cbranch_scc1 F_LN")
    conv_wg(a)
    a("s_endpgm")
    a.label("F_LN")
    ln_wg(a)
    a.label("F_END")
    a("s_endpgm")

def epoch_wait(a, tag, vr, vz):
    a("s_mov_b32 s8, 0")
    a.label(f"EPW{tag}")
    a(f"v_readfirstlane_b32 s9, v{vr}")
    a("s_cmp_lg_u32 s9, 0")
    a(f"s_cbranch_scc1 EPOK{tag}")
    a("s_add_u32 s8, s8, 1")
    a("s_cmp_ge_u32 s8, 0x8000")
    a(f"s_cbranch_scc1 EPOK{tag}")
    a(f"buffer_load_dwordx2 v[{vr}:{vr+1}], v{vz}, s[48:51], 0 offen sc1")
    a("s_waitcnt vmcnt(0)")
    a(f"s_branch EPW{tag}")
    a.label(f"EPOK{tag}")

def l_w13(a, mid=None):
    m3 = magic(3, 256, 16)
    a("s_lshr_b32 s62, s2, 2")
    a("s_and_b32 s63, s2, 3")
    a("v_lshrrev_b32 v120, 3, v1")
    a("v_mul_u32_u24 v120, 3072, v120")
    a("v_and_b32 v3, 7, v1")
    a("v_lshl_add_u32 v120, v3, 4, v120")
    a(f"s_mul_i32 s52, s63, {5*98304}")
    a("s_lshl_b32 s53, s62, 7")
    a("s_add_u32 s52, s52, s53")
    a("s_and_b32 s53, s3, 1")
    a("s_mul_i32 s53, s53, 49152")
    a("s_add_u32 s52, s52, s53")
    a("s_cmp_lt_u32 s3, 2")
    a("s_cselect_b32 s44, s32, s34")
    a("s_cselect_b32 s45, s33, s35")
    a("s_mov_b32 s46, 1966080")
    a("s_mov_b32 s47, 0x20000")
    a("s_lshl_b32 s55, s3, 11")
    for n in range(5):
        for r in range(2):
            a(f"s_add_u32 m0, s55, {n*8192 + r*1024}")
            a(f"s_add_u32 s53, s52, {n*98304 + r*24576}")
            a("buffer_load_dwordx4 v120, s[44:47], s53 offen lds")
    if mid: mid()
    for e in range(2):
        a("s_lshl_b32 s12, s62, 2")
        a("s_add_u32 s12, s12, s3")
        a("s_lshl_b32 s12, s12, 1")
        if e: a("s_add_u32 s12, s12, 1")
        a(f"s_mul_i32 s6, s12, {m3}")
        a("s_lshr_b32 s6, s6, 16")
        a(f"s_mul_i32 s{64+e}, s6, 58368")
        a("s_lshl_b32 s55, s12, 10")
        a(f"s_add_u32 s{64+e}, s{64+e}, s55")
        a(f"s_mul_i32 s55, s63, {5*3072}")
        a(f"s_add_u32 s{64+e}, s{64+e}, s55")
        a(f"s_mul_i32 s{66+e}, s6, {1024 - 192}")
        a("s_lshl_b32 s55, s12, 6")
        a(f"s_add_u32 s{66+e}, s{66+e}, s55")
        a("s_lshl_b32 s55, s63, 8")
        a(f"s_add_u32 s{66+e}, s{66+e}, s55")
    a("v_lshrrev_b32 v121, 4, v1")
    a("v_bfe_u32 v3, v1, 2, 2")
    a("v_lshl_add_u32 v121, v121, 3, v3")
    a("v_lshlrev_b32 v121, 7, v121")
    a("v_and_b32 v3, 1, v1")
    a("v_lshl_add_u32 v121, v3, 12, v121")
    a("v_bfe_u32 v3, v1, 1, 1")
    a("v_lshl_add_u32 v121, v3, 3, v121")
    a("s_lshl_b32 s14, s3, 5")
    a("v_add_u32 v121, s14, v121")
    a("v_bfe_u32 v122, v1, 3, 1")
    a("v_lshlrev_b32 v122, 3, v122")
    a("v_bfe_u32 v3, v1, 1, 1")
    a("v_lshl_add_u32 v122, v3, 2, v122")
    a("v_and_b32 v3, 1, v1")
    a("v_add_u32 v122, v122, v3")
    a("v_bfe_u32 v3, v1, 2, 1")
    a("v_lshl_add_u32 v122, v3, 1, v122")
    a("v_lshrrev_b32 v3, 4, v1")
    a("v_lshlrev_b32 v123, 4, v3")
    a("v_lshlrev_b32 v3, 8, v3")
    a("v_lshl_add_u32 v122, v122, 4, v3")
    srd(a, 44, WS, W13_OFF, 3932160); srd(a, 52, WS, CSQ_OFF, 64*1024)
    for i in range(4): a(f"v_mov_b32 v{8+i}, 0x3f803f80")
    a("s_mov_b32 s12, 0x00010001")
    a("s_mov_b32 s13, 0x00010001")
    a(f"s_waitcnt vmcnt({8 if mid else 0})")
    if os.environ.get("STSET") == "G": _stamp(a, 1)
    a("s_barrier")
    for n in range(5):
        for e in range(2):
            for h in range(2):
                r = 64 + 4 * (2 * n + e)
                a(f"ds_read_b64_tr_b16 v[{r+2*h}:{r+2*h+1}], v121 offset:{n*8192 + h*512 + e*16}")
    for n in range(5):
        for e in range(2):
            r = 64 + 4 * (2 * n + e)
            a(f"s_waitcnt lgkmcnt({min(15, 18 - 4*n - 2*e)})")
            a(f"buffer_store_dwordx4 v[{r}:{r+3}], v122, s[44:47], s{64+e} offen sc1")
            c = f"v[{12+4*e}:{15+4*e}]"
            a(f"v_mfma_f32_16x16x32_bf16 {c}, v[{r}:{r+3}], v[8:11], {c if n else 0}")
            if n < 4: a(f"s_add_u32 s{64+e}, s{64+e}, 3072")
    a("s_mov_b64 exec, s[12:13]")
    for e in range(2):
        a(f"buffer_store_dwordx4 v[{12+4*e}:{15+4*e}], v123, s[52:55], s{66+e} offen sc1")
    a("s_mov_b64 exec, -1")

def ln_wg(a, fused=None):
    a("s_memrealtime s[60:61]")
    a("v_mov_b32 v6, 0")
    a("s_waitcnt lgkmcnt(0)")
    srd(a, 48, 40, 0, 8)
    a("s_cmp_ge_u32 s2, 64")
    a("s_cbranch_scc1 F_SPARE")
    a("s_lshl_b32 s4, s2, 3")
    a("s_lshl_b32 s5, s3, 1")
    a("s_add_u32 s4, s4, s5")
    a("s_mul_i32 s5, s4, 5120")
    a("v_lshlrev_b32 v4, 2, v1")
    a("v_add_u32 v5, 2560, v4")
    srd(a, 44, 16, 0, SZ_X)
    a("s_add_u32 s7, s5, 5120")
    XD = ENV("F_XDMA", 0)
    if XD:
        a("v_lshlrev_b32 v3, 4, v1")
        a("s_mul_i32 s12, s3, 10240")
        a("v_add_u32 v5, s12, v4")
        for i in range(10):
            if i % 4 == 0:
                a(f"s_add_u32 m0, s12, {i*1024}")
                a(f"s_add_u32 s7, s5, {i*1024}")
            a(f"buffer_load_dwordx4 v3, s[44:47], s7 offen offset:{(i%4)*1024} lds")
    else:
        for i in range(8):
            for q in range(5):
                a(f"buffer_load_dword v{8+5*i+q}, v{4 if i % 4 < 2 else 5}, s[44:47], s{5 if i < 4 else 7} offen offset:{(i%2)*1280 + q*256}")
    a("s_lshl_b32 s9, s2, 2")
    a("s_add_u32 s9, s9, s3")
    a("s_cmp_lg_u32 s9, 0")
    a("s_cbranch_scc1 F_NOEP")
    a("s_or_b32 s60, s60, 1")
    a("v_mov_b32 v50, s60")
    a("v_mov_b32 v51, s61")
    a("v_mov_b32 v52, 0")
    a("v_mov_b32 v53, 0")
    a("v_lshlrev_b32 v48, 3, v1")
    a("buffer_atomic_cmpswap_x2 v[50:53], v48, s[48:51], 0 offen sc1")
    a.label("F_NOEP")
    srd(a, 52, WS, ST_OFF, 0x8000)
    a("s_lshl_b32 s9, s9, 7")
    a("s_mov_b64 exec, 0xffffffff")
    a("buffer_store_dword v6, v4, s[52:55], s9 offen sc1")
    a("s_mov_b64 exec, -1")
    srd(a, 52, WS, S1_OFF, 16384); srd(a, 56, WS, XQ_OFF, 160*16384)
    a("s_mov_b32 s10, 0x05040100")
    a("s_mov_b32 s11, 0x07060302")
    a("v_lshrrev_b32 v54, 1, v1")
    a(f"v_mul_u32_u24 v54, {XP}, v54")
    a("v_and_b32 v55, 1, v1")
    a("v_lshl_add_u32 v54, v55, 4, v54")
    a("s_lshl_b32 s9, s3, 6")
    a(f"s_add_u32 s9, s9, {STG}")
    a("v_add_u32 v54, s9, v54")
    a("v_lshrrev_b32 v57, 4, v0")
    a("v_and_b32 v58, 15, v0")
    a(f"v_mul_u32_u24 v55, {XP}, v57")
    a("v_lshl_add_u32 v55, v58, 4, v55")
    a(f"v_add_u32 v55, {STG}, v55")
    a("v_lshlrev_b32 v56, 14, v57")
    a("v_lshl_add_u32 v56, v58, 4, v56")
    a("s_lshl_b32 s68, s2, 8")
    a("s_lshl_b32 s6, s4, 5")
    a(f"v_mov_b32 v7, {f2u(1.0/640):#x}")
    a("s_waitcnt vmcnt(0)")
    stamp(a, 0)
    a("buffer_load_dwordx2 v[50:51], v6, s[48:51], 0 offen sc1")
    if XD:
        for q in range(5):
            for i in range(4): a(f"ds_read_b32 v{8+5*i+q}, v5 offset:{i*1280 + q*256}")
        for q in range(5):
            for i in range(4, 8): a(f"ds_read_b32 v{8+5*i+q}, v5 offset:{i*1280 + q*256}")
        a("s_waitcnt lgkmcnt(15)")
        a("s_waitcnt lgkmcnt(0)")
    for g in range(2):
        for q in range(5):
            d = 60 + 4 * (5 * g + q); b = 8 + 20 * g
            a(f"v_perm_b32 v{d}, v{b+5+q}, v{b+q}, s10")
            a(f"v_perm_b32 v{d+1}, v{b+15+q}, v{b+10+q}, s10")
            a(f"v_perm_b32 v{d+2}, v{b+5+q}, v{b+q}, s11")
            a(f"v_perm_b32 v{d+3}, v{b+15+q}, v{b+10+q}, s11")
            a(f"ds_write_b128 v54, v[{d}:{d+3}] offset:{q*32*XP + g*32}")
    a("s_waitcnt lgkmcnt(0)")
    a("s_barrier")
    for kk in range(10):
        a(f"ds_read_b128 v[{60+4*kk}:{63+4*kk}], v55 offset:{kk*16*XP}")
    for kk in range(10):
        a(f"s_add_u32 s69, s68, {kk*16*16384}")
        a(f"s_waitcnt lgkmcnt({9-kk})")
        a(f"buffer_store_dwordx4 v[{60+4*kk}:{63+4*kk}], v56, s[56:59], s69 offen sc1")
    stamp(a, 2)
    X = lambda i, q: 104 + 2 * (5 * i + q)
    SUM = lambda i: 184 + 2 * i
    MEAN = lambda i: 200 + 2 * i
    for i in range(8):
        for q in range(5):
            a(f"v_lshlrev_b32 v{X(i,q)}, 16, v{8+5*i+q}")
            a(f"v_and_b32 v{X(i,q)+1}, 0xffff0000, v{8+5*i+q}")
    for q in range(1, 5):
        for i in range(8):
            s = SUM(i); src = X(i, 0) if q == 1 else s
            a(f"v_pk_add_f32 v[{s}:{s+1}], v[{src}:{src+1}], v[{X(i,q)}:{X(i,q)+1}]")
    for i in range(8): a(f"v_add_f32 v{SUM(i)}, v{SUM(i)}, v{SUM(i)+1}")
    wave_reduce_sum(a, [SUM(i) for i in range(8)])
    for i in range(8): a(f"v_readlane_b32 s{60+i}, v{SUM(i)}, 63")
    for i in range(8): a(f"v_mul_f32 v{MEAN(i)}, s{60+i}, v7")
    for q in range(5):
        for i in range(8):
            x = X(i, q); m = MEAN(i)
            a(f"v_pk_add_f32 v[{x}:{x+1}], v[{x}:{x+1}], v[{m}:{m+1}] op_sel_hi:[1,0] neg_lo:[0,1] neg_hi:[0,1]")
    for q in range(5):
        for i in range(8):
            x = X(i, q); s = SUM(i)
            if q == 0: a(f"v_pk_mul_f32 v[{s}:{s+1}], v[{x}:{x+1}], v[{x}:{x+1}]")
            else: a(f"v_pk_fma_f32 v[{s}:{s+1}], v[{x}:{x+1}], v[{x}:{x+1}], v[{s}:{s+1}]")
    for i in range(8): a(f"v_add_f32 v{SUM(i)}, v{SUM(i)}, v{SUM(i)+1}")
    wave_reduce_sum(a, [SUM(i) for i in range(8)])
    for i in range(8): a(f"v_readlane_b32 s{60+i}, v{SUM(i)}, 63")
    R = lambda i: 16 + i
    G = lambda i: 24 + 4 * (i // 2) + (i % 2)
    steps = [
        lambda i: f"v_mul_f32 v{R(i)}, s{60+i}, v7",
        lambda i: f"v_cvt_pk_bf16_f32 v{R(i)}, v{R(i)}, v{R(i)}",
        lambda i: f"v_lshlrev_b32 v{R(i)}, 16, v{R(i)}",
        lambda i: f"v_add_f32 v{R(i)}, {f2u(1e-5):#x}, v{R(i)}",
        lambda i: f"v_cvt_pk_bf16_f32 v{R(i)}, v{R(i)}, v{R(i)}",
        lambda i: f"v_lshlrev_b32 v{R(i)}, 16, v{R(i)}",
        lambda i: f"v_sqrt_f32 v{R(i)}, v{R(i)}",
        lambda i: f"v_cvt_pk_bf16_f32 v{G(i)}, v{MEAN(i)}, v{R(i)}",
    ]
    for st in steps:
        for i in range(8): a(st(i))
    stamp(a, 1)
    a("s_waitcnt vmcnt(10)")
    epoch_wait(a, "L", 50, 6)
    for k in range(4):
        a(f"v_mov_b32 v{26+4*k}, v50")
        a(f"v_mov_b32 v{27+4*k}, v51")
    a("s_lshl_b32 s9, s3, 6")
    a(f"s_add_u32 s9, s9, {STG - 1024}")
    a("v_mov_b32 v40, s9")
    for k in range(4):
        a(f"ds_write_b128 v40, v[{24+4*k}:{27+4*k}] offset:{16*k}")
    a("v_lshlrev_b32 v41, 4, v1")
    a(f"v_add_u32 v42, {STG - 1024}, v41")
    a("s_lshl_b32 s6, s2, 8")
    a("s_waitcnt vmcnt(0) lgkmcnt(0)")
    stamp(a, 3)
    a("s_barrier")
    a("s_cmp_lg_u32 s3, 0")
    a("s_cbranch_scc1 F_W2")
    a("ds_read_b128 v[44:47], v42")
    a("s_mov_b64 exec, 0xffff")
    a("s_waitcnt lgkmcnt(0)")
    a("buffer_store_dwordx4 v[44:47], v41, s[52:55], s6 offen sc1")
    a("s_mov_b64 exec, -1")
    a("s_branch F_W2")
    a.label("F_SPARE")
    a("v_mov_b32 v50, 0")
    a.label("F_W2")
    if ENV("F_NOPACK", 0): a("s_endpgm")
    if ENV("F_PSLEEP", 0):
        for _ in range(ENV("F_PSLEEP", 0)): a("s_sleep 32")
    def w2_start():
        a("s_mul_i32 s9, s2, 3")
        a("s_add_u32 s9, s9, s3")
        a("s_cmp_eq_u32 s3, 3")
        a("s_cselect_b32 s9, 240, s9")
        a("s_min_u32 s9, s9, 240")
        a("s_mov_b32 s28, s48"); a("s_mov_b32 s29, s49")
        a("s_mov_b32 s40, s42"); a("s_mov_b32 s41, s43")
        w2_ids(a, 9)
        w2_dma_setup(a, 124, 125, 126, 127)
        a("s_cmp_eq_u32 s9, 240")
        a("s_cselect_b32 s50, 0, s50")
        a("s_lshl_b32 s8, s3, 13")
        a("s_add_u32 s8, s8, 40960")
        for i in range(8):
            a(f"s_add_u32 m0, s8, {i*1024}")
            a(f"s_add_u32 s70, s69, {(i>>1)*2560}")
            a(f"buffer_load_dwordx4 v{124 + (i&1)}, s[48:51], s70 offen lds")
        a("s_mov_b32 s30, s65"); a("s_mov_b32 s31, s66")
        srd(a, 48, 28, 0, 8)
    l_w13(a, w2_start)
    a("s_mov_b32 s65, s30"); a("s_mov_b32 s66, s31")
    a("v_mov_b32 v7, 0")
    if fused:
        epoch_wait(a, "S", 50, 7)
        a("v_readfirstlane_b32 s90, v50")
        a("v_readfirstlane_b32 s91, v51")
    a("s_mul_i32 s9, s2, 3")
    a("s_add_u32 s9, s9, s3")
    a("s_cmp_eq_u32 s3, 3")
    a("s_cselect_b32 s9, 240, s9")
    a("s_min_u32 s9, s9, 240")
    w2_out_setup(a, 0)
    a("s_cmp_eq_u32 s9, 240")
    a("s_cselect_b32 s54, 0, s54")
    a("s_lshl_b32 s8, s3, 13")
    a("s_add_u32 s8, s8, 40960")
    a("v_add_u32 v6, s8, v6")
    a("s_waitcnt vmcnt(12)")
    for i in range(8):
        for h in range(2):
            a(f"ds_read_b64_tr_b16 v[{24+4*i+2*h}:{25+4*i+2*h}], v6 offset:{h*1024 + i*32}")
    if fused:
        a("s_waitcnt vmcnt(0)")
        a("s_barrier")
        fused.flag("s2", 0, "W", 20)
        if os.environ.get("STSET") == "G": _stamp(a, 0)
    for i in range(8):
        a(f"s_waitcnt lgkmcnt({14-2*i})")
        a(f"buffer_store_dwordx4 v[{24+4*i}:{27+4*i}], v8, s[52:55], s{56+i} offen sc1")

def kgen_stream(m):
    B = 16 + 70 * m; L = m * 4 * WREG; A = 64 * m
    ADT = m < ENV('F_ADT', 2)
    if m == 2: L = 0
    wa, ra = (3, 4) if m < 2 else (234, 235)
    W = lambda t, off: f"ds_write_addtid_b32 v{t} offset:{off}" if ADT else f"ds_write_b32 v{wa}, v{t} offset:{off}"
    o = []
    a = o.append
    for r in range(4): a(f"v_lshlrev_b32 v{B+r}, 16, v{B+r}")
    W1, W8, W128, W16 = B + 4, B + 6, B + 8, B + 10
    tmp = [B + 12 + i for i in range(4)]; ringr = [B + 16 + 2 * i for i in range(4)]
    Q = {q: B + 36 + 2 * q for q in range(17)}
    a(f"v_mul_f32 v{B}, v{B}, v15")
    a(f"v_exp_f32 v{B}, v{B}")
    a(f"v_mul_f32 v{B+1}, v{B+1}, v14")
    a(f"v_mul_f32 v{Q[0]}, v{B+2}, v9")
    a(f"v_mul_f32 v{Q[0]+1}, v{B+3}, v9")
    a(f"v_cvt_pk_bf16_f32 v{B}, v{B}, v{B}")
    a(f"v_mul_f32 v{B+1}, {f2u(INV2PI):#x}, v{B+1}")
    a(f"v_lshlrev_b32 v{B}, 16, v{B}")
    a(f"v_mul_f32 v{B}, v{B}, v14")
    a(f"v_mul_f32 v{B}, v{B}, v15")
    E = B + 12; F = B + 16
    for k, p in enumerate((1.0, 8.0, 128.0)):
        a(f"v_mul_f32 v{F+k}, {f2u(p):#x}, v{B+1}")
        a(f"v_mul_f32 v{E+k}, {f2u(-p):#x}, v{B}")
    for k in range(3):
        a(f"v_fract_f32 v{F+k}, v{F+k}")
        a(f"v_exp_f32 v{E+k}, v{E+k}")
    for k in range(3):
        a(f"v_cos_f32 v{W1+2*k}, v{F+k}")
        a(f"v_sin_f32 v{W1+1+2*k}, v{F+k}")
    for k in range(3):
        a(f"v_mul_f32 v{W1+2*k}, v{W1+2*k}, v{E+k}")
        a(f"v_mul_f32 v{W1+1+2*k}, v{W1+1+2*k}, v{E+k}")
    tctr = [0]
    def put(r, reg, row, val, neg=False):
        t = tmp[tctr[0] % 4]; tctr[0] += 1
        r(f"v_cvt_pk_bf16_f32 v{t}, v{val}, {'-' if neg else ''}v{val+1}")
        r(W(t, L + reg*RS + row*ROWP))
    rb = Rec()
    rb(W(13, L))
    cmul(rb, W16, W8, W8)
    put(rb, 0, 1, W8, True); put(rb, 0, 2, W16, True)
    ring = {1: W8, 2: W16}
    for b in range(3, 16):
        d = ringr[b % 4]
        cmul(rb, d, ring[b-2], W16); ring[b] = d
        put(rb, 0, b, d, True)
    wc = {1: W1}; rw = Rec()
    for c, (x, y) in ((2, (1, 1)), (3, (2, 1)), (4, (2, 2)), (5, (4, 1)), (6, (4, 2)), (7, (4, 3))):
        wc[c] = B + 24 + 2 * (c - 2); cmul(rw, wc[c], wc[x], wc[y])
    rq = Rec()
    for q in range(1, 17): cmul(rq, Q[q], Q[q-1], W128)
    o += interleave(rb.l, rw.l + rq.l)
    def rd(which, reg):
        for s in range(4):
            a(("rd", (m, which), f"ds_read_b128 a[{A+16*which+4*s}:{A+16*which+4*s+3}], v{ra} offset:{L + reg*RS + s*64}"))
    def mf(t):
        for s in range(4):
            c = f"a[{192+4*t}:{195+4*t}]"
            a(("mf", (m, t + 1), f"v_mfma_f32_16x16x32_bf16 {c}, a[{A+16*(t+1)+4*s}:{A+16*(t+1)+4*s+3}], a[{A+4*s}:{A+4*s+3}], {c}"))
    rd(0, 0)
    pc = [0]
    def run(jobs):
        for reg, row, x, y in jobs:
            if y is None: put(a, reg, row, x); continue
            d = ringr[pc[0] % 4]; pc[0] += 1
            cmul(a, d, x, y); put(a, reg, row, d)
    run([(1, 8*ap + c, Q[ap], wc[c] if c else None) for ap in range(2) for c in range(8)])
    rd(1, 1)
    run([(0, 4*ap + c, Q[2+ap], wc[2*c] if c else None) for ap in range(2) for c in range(4)])
    mf(0)
    run([(0, 8 + 2*ap + c, Q[4+ap], wc[4] if c else None) for ap in range(4) for c in range(2)])
    rd(2, 0)
    for q in range(8, 17): put(a, 1, q - 8, Q[q])
    rd(3, 1)
    mf(1); mf(2)
    return o

def kgen_all(a, hooks):
    ds = Cnt(a, "lgkmcnt", 15)
    streams = [kgen_stream(m) for m in range(3)]
    lag = ENV("F_LAG", 12)
    seq = []
    n = max(len(s) + i * lag for i, s in enumerate(streams))
    for k in range(n):
        for i, s in enumerate(streams):
            j = k - i * lag
            if 0 <= j < len(s):
                if j == 0 and i: seq.append(("vm", i))
                seq.append(s[j])
    for idx, e in enumerate(seq):
        if idx in hooks: hooks[idx]()
        if isinstance(e, tuple):
            if e[0] == "vm": a(f"s_waitcnt vmcnt({8 - 4*e[1]})"); continue
            if e[0] == "rd": a(e[2]); ds.issue(e[1]); continue
            ds.wait(e[1]); a(e[2]); continue
        a(e)
        if e.startswith("ds_"): ds.issue("w")
    return len(seq)

NB = 120
def st_loads(a):
    a(f"buffer_load_dwordx2 v[{NB}:{NB+1}], v229, s[48:51], 0 offen sc1")
    for g in range(2):
        b = NB + 4 + 12 * g
        a(f"buffer_load_dwordx4 v[{b}:{b+3}], v228, s[44:47], 0 offen offset:{32*g} sc1")
        a(f"buffer_load_dwordx4 v[{b+4}:{b+7}], v228, s[44:47], 0 offen offset:{32*g+16} sc1")

def conv_wg(a, fused=None, split=False):
    a(f"s_sub_u32 s5, s2, {N_LN}")
    a("s_and_b32 s6, s5, 7")
    a("s_mul_i32 s6, s6, 20")
    a("s_lshr_b32 s4, s5, 3")
    a("s_add_u32 s4, s4, s6")
    a("s_lshl_b32 s7, s4, 2")
    a("s_add_u32 s7, s7, s3")
    a("s_mul_i32 s8, s7, 384")
    a("v_lshlrev_b32 v2, 1, v1")
    a("v_add_u32 v2, s8, v2")
    a("s_lshr_b32 s9, s7, 1")
    a("s_lshl_b32 s9, s9, 2")
    a("s_lshl_b32 s12, s4, 3")
    a("s_waitcnt lgkmcnt(0)")
    a("s_load_dword s10, s[26:27], s9")
    a("s_load_dwordx2 s[68:69], s[28:29], s12")
    for m in range(3):
        for r in range(4):
            a(f"global_load_ushort v{16+70*m+r}, v2, s[{18+2*r}:{19+2*r}] offset:{128*m}")
    srd(a, 44, WS, S1_OFF, 16384); srd(a, 48, 40, 0, 8); srd(a, 56, WS, H_OFF, SZ_X); srd(a, 36, WS, XQ_OFF, 160*16384)
    a("s_mul_i32 s11, s3, 1536")
    a(f"s_add_u32 s11, s11, {TB}")
    a(f"s_mul_i32 s13, s3, {KP}")
    a(f"s_add_u32 s13, s13, {KB}")
    a("v_lshlrev_b32 v2, 4, v1")
    a("v_add_u32 v226, s13, v2")
    a("v_lshrrev_b32 v227, 3, v0")
    a("v_lshlrev_b32 v227, 8, v227")
    a("s_bfe_u32 s9, s4, 0x20002")
    a("s_lshl_b32 s9, s9, 6")
    a("v_add_u32 v227, s9, v227")
    a("v_lshlrev_b32 v228, 6, v0")
    a("v_mov_b32 v229, 0")
    a("s_mov_b32 s15, 8192")
    for i in range(12): a(f"v_accvgpr_write_b32 a{192+i}, 0")
    a("v_and_b32 v5, 15, v1")
    a("v_lshrrev_b32 v6, 4, v1")
    a("v_lshrrev_b32 v236, 1, v6")
    a("v_lshlrev_b32 v236, 8, v236")
    a("v_and_b32 v7, 1, v6")
    a("v_lshl_add_u32 v236, v7, 3, v236")
    a("v_lshl_add_u32 v236, v5, 4, v236")
    a("v_add_u32 v236, s11, v236")
    a("v_cmp_gt_u32 vcc, 2, v6")
    a("v_lshlrev_b32 v237, 3, v5")
    a("v_lshlrev_b32 v7, 2, v5")
    a("v_mov_b32 v238, 64")
    a("v_cndmask_b32 v237, v7, v237, vcc")
    a("v_cndmask_b32 v238, v238, 4, vcc")
    a("v_lshl_add_u32 v237, v6, 7, v237")
    a("v_add_u32 v237, s11, v237")
    a("v_add_u32 v238, v238, v237")
    a("v_lshlrev_b32 v239, 1, v5")
    a("v_lshl_add_u32 v239, v6, 7, v239")
    a("v_add_u32 v239, s11, v239")
    a("v_cmp_gt_u32 s[6:7], 32, v1".replace("s[6:7]", "vcc"))
    a("v_lshlrev_b32 v240, 4, v1")
    a("v_lshlrev_b32 v7, 3, v1")
    a("v_add_u32 v7, 256, v7")
    a("v_cndmask_b32 v240, v7, v240, vcc")
    a("v_add_u32 v240, s11, v240")
    a("v_lshlrev_b32 v241, 2, v1")
    a("v_add_u32 v241, s11, v241")
    a("v_lshlrev_b32 v242, 1, v1")
    a("v_add_u32 v242, s11, v242")
    a("v_mov_b32 v7, 0x01000100"); a("v_mov_b32 v8, 0x03020100"); a("v_cndmask_b32 v243, v7, v8, vcc")
    a("v_mov_b32 v7, 0x05040302"); a("v_mov_b32 v8, 0x07060504"); a("v_cndmask_b32 v244, v7, v8, vcc")
    a("v_mov_b32 v7, 0x01000100"); a("v_cndmask_b32 v245, v7, v8, vcc")
    a("v_and_b32 v7, 1, v1")
    a("v_cmp_eq_u32 vcc, 0, v7")
    a("v_mov_b32 v7, 0x05040504"); a("v_mov_b32 v8, 0x05040100"); a("v_cndmask_b32 v246, v7, v8, vcc")
    a("v_lshrrev_b32 v10, 4, v1")
    a("v_bfe_u32 v11, v1, 2, 2")
    a("v_and_b32 v12, 3, v1")
    a("v_lshlrev_b32 v247, 6, v10")
    a("v_lshl_add_u32 v247, v11, 3, v247")
    a("v_lshl_add_u32 v247, v12, 5, v247")
    a("v_add_u32 v247, s13, v247")
    a("s_lshr_b32 s14, s3, 1")
    a("s_and_b32 s12, s3, 1")
    a("s_lshl_b32 s12, s12, 3")
    for h in range(2):
        a(f"v_add_u32 v6, {44 - 4*h}, v12")
        a("v_sub_u32 v6, v6, v11")
        a("v_lshlrev_b32 v7, 3, v10")
        a("v_sub_u32 v6, v6, v7")
        a("v_lshrrev_b32 v7, 2, v6")
        a("v_add_u32 v7, s14, v7")
        a("v_and_b32 v7, 3, v7")
        a("v_lshlrev_b32 v6, 6, v6")
        a("v_lshl_add_u32 v6, v7, 4, v6")
        a(f"v_add_u32 v{248+h}, s12, v6")
    a("v_and_b32 v250, 1, v1")
    a("v_lshlrev_b32 v250, 7, v250")
    a("v_and_b32 v6, 62, v1")
    a("v_add3_u32 v250, s13, v250, v6")
    a("v_lshrrev_b32 v6, 1, v0")
    a("v_lshlrev_b32 v7, 7, v0")
    a(f"v_add_u32 v7, {UB + UPAD}, v7")
    for n in range(4):
        a(f"v_add_u32 v8, {n}, v6")
        a("v_and_b32 v8, 3, v8")
        a(f"v_lshl_add_u32 v{251+n}, v8, 4, v7")
    a(f"s_mul_i32 s8, s3, {WREG}")
    a(f"s_add_u32 s8, s8, {SB}")
    a("s_mov_b32 s14, s8")
    a("v_lshlrev_b32 v3, 2, v1")
    a("v_add_u32 v3, s8, v3")
    a("v_and_b32 v4, 15, v1")
    a(f"v_mul_u32_u24 v4, {ROWP}, v4")
    a("v_lshrrev_b32 v5, 4, v1")
    a("v_lshl_add_u32 v4, v5, 4, v4")
    a("v_add_u32 v4, s8, v4")
    a(f"v_add_u32 v234, {8*WREG}, v3")
    a(f"v_add_u32 v235, {8*WREG}, v4")
    a("s_mov_b32 m0, s14")
    a("v_mov_b32 v7, 0")
    a("v_lshlrev_b32 v6, 3, v0")
    a("v_mov_b32 v8, 0")
    a(f"ds_write_b64 v6, v[7:8] offset:{UB}".replace("v[7:8]", "v[6:7]") if False else "v_mov_b32 v9, 0")
    a(f"ds_write_b64 v6, v[8:9] offset:{UB}")
    a("v_and_b32 v6, 31, v1")
    a("v_lshlrev_b32 v6, 2, v6")
    a("v_add_u32 v6, s13, v6")
    a("ds_write_b32 v6, v7")
    a("s_waitcnt lgkmcnt(0)")
    a("s_lshl_b32 s9, s10, 16")
    a("s_and_b32 s10, s10, 0xffff0000")
    a("s_bitcmp1_b32 s7, 0")
    a("s_cselect_b32 s10, s10, s9")
    for e in range(2):
        a(f"s_lshl_b32 s{64+2+2*e}, s{68+e}, 16".replace(f"s{66+2*e}", f"s{84+2*e}"))
        a(f"s_and_b32 s{85+2*e}, s{68+e}, 0xffff0000")
    a(f"v_mov_b32 v15, {f2u(LOG2E):#x}")
    a("v_mul_f32 v14, s10, v15")
    a("v_exp_f32 v14, v14")
    a("v_cvt_pk_bf16_f32 v14, v14, v14")
    a("v_lshlrev_b32 v14, 16, v14")
    a("v_add_f32 v9, v14, v14")
    a("v_mov_b32 v13, 0x3f80")
    if ENV("F_ST5", 0): stamp(a, 6)
    a("s_waitcnt vmcnt(8)")
    stamp(a, 0)
    if os.environ.get("F_DROP"): a.drop = os.environ["F_DROP"].split(",")
    if os.environ.get("F_DROP"): a.drop = os.environ["F_DROP"].split(",")
    kgen_all(a, {})
    a.drop = None
    a.drop = None
    stamp(a, 1)
    for i in range(12): a(f"v_accvgpr_read_b32 v{16+i}, a{192+i}")
    st_loads(a)
    for t in range(3):
        a(f"v_cvt_pk_bf16_f32 v{28+2*t}, v{16+4*t}, v{17+4*t}")
        a(f"v_cvt_pk_bf16_f32 v{29+2*t}, v{18+4*t}, v{19+4*t}")
    a("ds_write_b64 v236, v[28:29]")
    a("ds_write_b32 v237, v30 offset:512")
    a("ds_write_b32 v238, v31 offset:512")
    a("ds_write_b16 v239, v32 offset:1024")
    a("ds_write_b16_d16_hi v239, v32 offset:1056")
    a("ds_write_b16 v239, v33 offset:1088")
    a("ds_write_b16_d16_hi v239, v33 offset:1120")
    a("ds_read2_b64 v[40:43], v240 offset0:0 offset1:1")
    a("ds_read2_b32 v[44:45], v241 offset0:192 offset1:193")
    for r in range(2):
        a(f"ds_read_u16 v{46+2*r}, v242 offset:{1024 + 128*r}")
        a(f"ds_read_u16 v{47+2*r}, v242 offset:{1026 + 128*r}")
    for i, r in enumerate((247, 248, 249, 250, 251, 252, 253, 254)): a(f"v_mov_b32 v{16+i}, v{r}")
    a("v_mov_b32 v3, v10"); a("v_mov_b32 v4, v11"); a("v_mov_b32 v5, v12")
    a("s_mov_b32 s8, 0x01000100")
    a("s_mov_b32 s9, 0x03020100")
    a("s_mov_b32 s10, 0x03020302")
    a("s_mov_b32 s12, 0x05040302")
    a("v_cmp_gt_u32 vcc, 32, v1")
    a("s_waitcnt lgkmcnt(5)")
    a("v_perm_b32 v52, v40, v40, v243")
    a("v_perm_b32 v53, v41, v40, v244")
    a("v_perm_b32 v54, v42, v41, v245")
    a("v_perm_b32 v55, v42, v41, s12")
    a("v_cndmask_b32 v55, v55, v43, vcc")
    a("ds_write_b128 v226, v[52:55] offset:128")
    a("s_waitcnt lgkmcnt(5)")
    a("v_perm_b32 v56, v44, v44, s8")
    a("v_mov_b32 v57, v44")
    a("v_perm_b32 v58, v44, v44, s10")
    a("v_perm_b32 v59, v45, v45, s8")
    a("ds_write_b128 v226, v[56:59] offset:1152")
    a("s_waitcnt lgkmcnt(2)")
    for r in range(2):
        d = 60 + 4 * r
        a(f"v_perm_b32 v{d}, v{46+2*r}, v{46+2*r}, s8")
        a(f"v_mov_b32 v{d+1}, v{d}")
        a(f"v_perm_b32 v{d+2}, v{47+2*r}, v{46+2*r}, v246")
        a(f"v_perm_b32 v{d+3}, v{47+2*r}, v{47+2*r}, s8")
        a(f"ds_write_b128 v226, v[{d}:{d+3}] offset:{128 + (2+r)*1024}")
    FR = 24; GR = 88; NG = 8; AR = 120; T2 = 248
    for Q in range(15, -1, -1):
        for h in range(2):
            a(f"ds_read_b64_tr_b16 v[{FR+4*Q+2*h}:{FR+4*Q+2*h+1}], v16 offset:{32 + 256*Q + 32*h}")
    a("s_lshl_b32 s9, s4, 14")
    a("s_add_u32 s12, s9, 8192")
    a("s_mov_b32 s52, 0")
    a.label("F_STW")
    a("s_waitcnt vmcnt(0)")
    a(f"v_cmp_eq_u32 vcc, 0, v{NB}")
    for off in (6, 10, 18, 22):
        a(f"v_cmp_ne_u64 s[10:11], v[{NB}:{NB+1}], v[{NB+off}:{NB+off+1}]")
        a("s_or_b64 vcc, vcc, s[10:11]")
    a("s_cbranch_vccz F_STOK")
    a("s_add_u32 s52, s52, 1")
    a("s_cmp_ge_u32 s52, 0x8000")
    a("s_cbranch_scc1 F_STOK")
    a(f"s_sleep {ENV('F_SLEEP', 2)}")
    st_loads(a)
    a("s_branch F_STW")
    a.label("F_STOK")
    stamp(a, 2)
    a(f"v_readfirstlane_b32 s90, v{NB}")
    a(f"v_readfirstlane_b32 s91, v{NB+1}")
    XR = 152
    for g in range(2):
        for hh in range(2):
            a(f"buffer_load_dwordx4 v[{XR+8*g+4*hh}:{XR+8*g+4*hh+3}], v228, s[36:39], s9 offen offset:{32*g + 16*hh} sc1")
    RSr = 176; NM = 184; X = lambda g, c, h: 192 + 16 * g + 4 * c + 2 * h; U = lambda c, h: 224 + 4 * c + 2 * h
    Gs = lambda g, i: NB + 4 + 12 * g + (0, 1, 4, 5)[i]
    for g in range(2):
        for i in range(4): a(f"v_and_b32 v{RSr+4*g+i}, 0xffff0000, v{Gs(g,i)}")
    for i in range(8): a(f"v_rcp_f32 v{RSr+i}, v{RSr+i}")
    for g in range(2):
        for i in range(4): a(f"v_lshlrev_b32 v{NM+4*g+i}, 16, v{Gs(g,i)}")
    for i in range(8): a(f"v_mul_f32 v{NM+i}, -v{NM+i}, v{RSr+i}")
    a("s_mov_b32 s70, 0"); a("s_mov_b32 s71, 0x80000000")
    a("s_mov_b32 s72, 0"); a("s_mov_b32 s73, 0xc0000000")
    a("s_mov_b32 s74, 0"); a("s_mov_b32 s75, 0xe0000000")
    for g in range(2):
        a(f"s_waitcnt vmcnt({2 - 2*g})")
        for c in range(4):
            for h in range(2):
                a(f"v_lshlrev_b32 v{X(g,c,h)}, 16, v{XR+8*g+2*c+h}")
                a(f"v_and_b32 v{X(g,c,h)+1}, 0xffff0000, v{XR+8*g+2*c+h}")
        for c in range(4):
            for h in range(2):
                a(f"v_pk_fma_f32 v[{U(c,h)}:{U(c,h)+1}], v[{X(g,c,h)}:{X(g,c,h)+1}], v[{RSr+4*g+2*h}:{RSr+4*g+2*h+1}], v[{NM+4*g+2*h}:{NM+4*g+2*h+1}]")
        O = 240
        for c in range(4):
            for h in range(2):
                a(f"v_cvt_pk_bf16_f32 v{O+2*c+h}, v{U(c,h)}, v{U(c,h)+1}")
            if c % 2: a(f"ds_write_b128 v{20+c//2}, v[{O+2*c-2}:{O+2*c+1}] offset:{g*64}")
        for c in range(4):
            o = c % 2
            for h in range(2):
                a(f"v_pk_fma_f32 v[{X(g,c,h)}:{X(g,c,h)+1}], v[{U(c,h)}:{U(c,h)+1}], s[{84+2*(c//2)}:{85+2*(c//2)}], v[{X(g,c,h)}:{X(g,c,h)+1}] op_sel:[0,{o},0] op_sel_hi:[1,{o},1]")
    for par in range(2):
        for c in range(4):
            for g in range(2):
                a(f"v_cvt_pk_bf16_f32 v{XR+8*par+2*c+g}, v{X(g,c,0)+par}, v{X(g,c,1)+par}")
            if c % 2: a(f"ds_write_b128 v{22+c//2}, v[{XR+8*par+2*c-2}:{XR+8*par+2*c+1}] offset:{par*64}")
    a("s_waitcnt lgkmcnt(0)")
    stamp(a, 3)
    a("s_barrier")
    ds = Cnt(a, "lgkmcnt", 15)
    acc = lambda T: AR + 4 * T
    def gread(d):
        g = GR + 4 * (d % NG)
        for h in range(2):
            a(f"ds_read_b64_tr_b16 v[{g+2*h}:{g+2*h+1}], v{17+h} offset:{UB + 1024*d}"); ds.issue(("G", d))
    PDG = 6
    if split:
        for d in range(16):
            for h in range(2):
                a(f"ds_read_b64_tr_b16 a[{176+4*d+2*h}:{177+4*d+2*h}], v{17+h} offset:{UB + 1024*d}"); ds.issue(("G", d))
    else:
        for d in range(PDG): gread(d)
    started = set(); pend = []
    def combine(T):
        t = T2 + 4 * (T % 2); D = acc(T); out = []
        for e, m in ((3, 74), (2, 72), (1, 70)):
            prev = f"v{acc(T-1)+e}" if T > 0 else "0"
            out.append(f"v_cndmask_b32 v{t+e}, v{D+e}, {prev}, s[{m}:{m+1}]")
        out.append(f"v_add_f32_dpp v{t+2}, v{t+3}, v{t+2} wave_ror:1 row_mask:0xf bank_mask:0xf")
        out.append(f"v_add_f32_dpp v{t+1}, v{t+2}, v{t+1} wave_ror:1 row_mask:0xf bank_mask:0xf")
        out.append(f"v_add_f32_dpp v{t}, v{t+1}, v{D} wave_ror:1 row_mask:0xf bank_mask:0xf")
        out.append(f"v_cvt_pk_bf16_f32 v{t}, v{t}, v{t}")
        out.append(f"ds_write_b16 v19, v{t} offset:{128 + (T>>1)*256 + (T&1)*64}")
        return out
    def side(n):
        for _ in range(n):
            if pend:
                t = pend.pop(0); a(t)
                if t.startswith("ds_"): ds.issue("Y")
    if split:
        conv_split(a, fused, ds, gread, combine, side, pend, acc, FR, GR, NG, PDG)
        return
    def run_deltas(d0, d1, hook=None):
        for d in range(d0, d1):
            ds.wait(("G", d))
            g = GR + 4 * (d % NG)
            for T in range(d, 32, 2):
                Q = (T - d) // 2
                c = f"v[{acc(T)}:{acc(T)+3}]"
                a(f"v_mfma_f32_16x16x32_bf16 {c}, v[{FR+4*Q}:{FR+4*Q+3}], v[{g}:{g+3}], {c if d >= 2 else 0}")
                if not (hook and hook()): side(1 if d < 20 else 2)
            if d + PDG < 32: gread(d + PDG)
            if d >= 1: pend.extend(combine(d - 1))
        if d1 == 32:
            pend.extend(combine(31)); side(200)
    if not fused:
        run_deltas(0, 32)
    else:
        D1 = ENV("F_D1", 18); D2 = ENV("F_D2", 22)
        fused.setup()
        run_deltas(0, D1)
        fused.poll_issue()
        run_deltas(D1, D2)
        fused.check("F_NOW13")
        sv = (list(pend), list(ds.q))
        cnt = [0]
        def hook():
            cnt[0] += 1
            return cnt[0] % ENV("F_WGAP", 2) == 0 and fused.load_one()
        run_deltas(D2, 32, hook)
        a("s_branch F_CONVDONE")
        a.label("F_NOW13")
        pend[:] = sv[0]; ds.q = sv[1]
        a("s_mov_b32 s33, 0")
        run_deltas(D2, 32)
        a.label("F_CONVDONE")
    a(f"v_mul_u32_u24 v16, {KP}, v4")
    a("v_lshl_add_u32 v16, v3, 5, v16")
    a("v_lshl_add_u32 v16, v5, 3, v16")
    a("s_lshl_b32 s13, s3, 8")
    a(f"s_add_u32 s13, s13, {KB}")
    a("v_add_u32 v16, s13, v16")
    a("v_lshl_add_u32 v6, v3, 2, v5")
    a("v_lshrrev_b32 v7, 1, v6")
    a("v_lshlrev_b32 v6, 7, v6")
    a("v_and_b32 v20, 1, v4")
    a("v_lshl_add_u32 v6, v20, 3, v6")
    a("s_lshl_b32 s12, s3, 11")
    a("v_add_u32 v6, s12, v6")
    a("v_lshrrev_b32 v20, 1, v4")
    a("v_add3_u32 v7, v7, v20, 2")
    a("v_and_b32 v7, 3, v7")
    a("v_lshl_add_u32 v17, v7, 4, v6")
    a("v_lshrrev_b32 v19, 3, v1")
    a("v_mul_u32_u24 v19, 20480, v19")
    a("v_and_b32 v6, 7, v1")
    a("v_lshl_add_u32 v19, v6, 4, v19")
    a("s_mul_i32 s13, s3, 163840")
    a("s_lshr_b32 s14, s4, 3")
    a("s_lshl_b32 s14, s14, 10")
    a("s_add_u32 s13, s13, s14")
    a("s_and_b32 s14, s4, 1")
    a("s_lshl_b32 s14, s14, 9")
    a("s_add_u32 s13, s13, s14")
    a("s_bfe_u32 s14, s4, 0x20001")
    a("s_lshl_b32 s14, s14, 7")
    a("s_add_u32 s13, s13, s14")
    a("s_waitcnt lgkmcnt(0)")
    stamp(a, 4)
    a("s_barrier")
    for i in range(4):
        for par in range(2):
            a(f"ds_read_b64_tr_b16 v[{24+8*i+2*par}:{25+8*i+2*par}], v16 offset:{128 + i*1024 + par*128}")
            a(f"ds_read_b64_tr_b16 v[{28+8*i+2*par}:{29+8*i+2*par}], v17 offset:{UB + UPAD + i*8192 + par*64}")
    HSC = " sc1" if (ENV("F_HSC", 0) or fused) else ""
    for i in range(4):
        Y = 24 + 8 * i; A = 64 + 16 * i
        a(f"s_waitcnt lgkmcnt({12 - 4*i})")
        for q in range(4):
            a(f"v_lshlrev_b32 v{A+2*q}, 16, v{Y+q}")
            a(f"v_and_b32 v{A+2*q+1}, 0xffff0000, v{Y+q}")
            a(f"v_lshlrev_b32 v{A+8+2*q}, 16, v{Y+4+q}")
            a(f"v_and_b32 v{A+8+2*q+1}, 0xffff0000, v{Y+4+q}")
        for q in range(4):
            a(f"v_pk_add_f32 v[{A+2*q}:{A+2*q+1}], v[{A+2*q}:{A+2*q+1}], v[{A+8+2*q}:{A+8+2*q+1}]")
        a(f"s_add_u32 s14, s13, {i*4*163840}")
        for q in range(4):
            a(f"v_cvt_pk_bf16_f32 v{Y+q}, v{A+2*q}, v{A+2*q+1}")
        a(f"buffer_store_dwordx4 v[{Y}:{Y+3}], v19, s[56:59], s14 offen{HSC}")


def conv_split(a, fused, ds, gread, combine, side, pend, acc, FR, GR, NG, PDG):
    cst = lambda i: _stamp(a, i + 1) if os.environ.get("STSET") == "C" else None
    if os.environ.get("STSET") == "C": _stamp(a, 0); ds.q = []
    a(f"v_mul_u32_u24 v12, {KP}, v4")
    a("v_lshl_add_u32 v12, v3, 5, v12")
    a("v_lshl_add_u32 v12, v5, 3, v12")
    a("s_lshl_b32 s13, s3, 8")
    a(f"s_add_u32 s13, s13, {KB}")
    a("v_add_u32 v12, s13, v12")
    a("v_lshl_add_u32 v6, v3, 2, v5")
    a("v_lshrrev_b32 v7, 1, v6")
    a("v_lshlrev_b32 v6, 7, v6")
    a("v_and_b32 v20, 1, v4")
    a("v_lshl_add_u32 v6, v20, 3, v6")
    a("s_lshl_b32 s12, s3, 11")
    a("v_add_u32 v6, s12, v6")
    a("v_lshrrev_b32 v20, 1, v4")
    a("v_add3_u32 v7, v7, v20, 2")
    a("v_and_b32 v7, 3, v7")
    a("v_lshl_add_u32 v13, v7, 4, v6")
    a("v_bfe_u32 v14, v1, 3, 2")
    a("v_lshrrev_b32 v6, 5, v1")
    a("v_lshl_add_u32 v14, v6, 3, v14")
    a("v_mul_u32_u24 v14, 20480, v14")
    a("v_and_b32 v6, 7, v1")
    a("v_lshl_add_u32 v14, v6, 4, v14")
    a("s_mul_i32 s13, s3, 327680")
    a("s_lshr_b32 s14, s4, 3")
    a("s_lshl_b32 s14, s14, 10")
    a("s_add_u32 s13, s13, s14")
    a("s_and_b32 s14, s4, 1")
    a("s_lshl_b32 s14, s14, 9")
    a("s_add_u32 s13, s13, s14")
    a("s_bfe_u32 s14, s4, 0x20001")
    a("s_lshl_b32 s14, s14, 7")
    a("s_add_u32 s13, s13, s14")
    a(f"s_sub_u32 s5, s2, {N_LN}")
    fused.setup()
    def fin(hf, Y0, A0):
        o = []
        for i in range(2):
            for par in range(2):
                o.append(f"ds_read_b64_tr_b16 v[{Y0+8*i+2*par}:{Y0+1+8*i+2*par}], v12 offset:{128 + (2*hf+i)*1024 + par*128}")
                o.append(f"ds_read_b64_tr_b16 v[{Y0+4+8*i+2*par}:{Y0+5+8*i+2*par}], v13 offset:{UB + UPAD + (2*hf+i)*8192 + par*64}")
        for i in range(2):
            Y = Y0 + 8 * i; A = A0 + 16 * i
            o.append(("wait", i))
            for q in range(4):
                o.append(f"v_lshlrev_b32 v{A+2*q}, 16, v{Y+q}")
                o.append(f"v_and_b32 v{A+2*q+1}, 0xffff0000, v{Y+q}")
                o.append(f"v_lshlrev_b32 v{A+8+2*q}, 16, v{Y+4+q}")
                o.append(f"v_and_b32 v{A+8+2*q+1}, 0xffff0000, v{Y+4+q}")
            for q in range(8): o.append(f"v_add_f32 v{A+q}, v{A+q}, v{A+8+q}")
            o.append(f"s_add_u32 s14, s13, {i*4*327680 + hf*81920}")
            for q in range(4): o.append(f"v_cvt_pk_bf16_f32 v{Y+q}, v{A+2*q}, v{A+2*q+1}")
            o.append(f"buffer_store_dwordx4 v[{Y}:{Y+3}], v14, s[56:59], s14 offen sc1")
        return o
    fq = []; fc = [0]
    def emit(n):
        for _ in range(n):
            if pend: side(1); continue
            if not fq: return
            t = fq.pop(0)
            if isinstance(t, tuple): ds.wait(("fin", t[1])); continue
            a(t)
            if t.startswith("ds_"): ds.issue(("fin", fc[0] // 4)); fc[0] += 1
    seq = list(range(16)) + list(range(32))
    def gr(n):
        d = seq[n]; g = GR + 4 * (n % NG)
        if d < 16: return
        for h in range(2):
            a(f"ds_read_b64_tr_b16 v[{g+2*h}:{g+2*h+1}], v{17+h} offset:{UB + 1024*d}"); ds.issue(("G", n))
    def run(n0, n1, hook=None):
        for n in range(n0, n1):
            d = seq[n]; lo = 0 if n < 16 else 16; hi = lo + 16
            ds.wait(("G", n))
            g = f"v[{GR+4*(n%NG)}:{GR+4*(n%NG)+3}]" if d >= 16 else f"a[{176+4*d}:{179+4*d}]"
            for T in range(max(d, lo + (d & 1)), hi, 2):
                Q = (T - d) // 2
                c = f"v[{acc(T)}:{acc(T)+3}]"
                a(f"v_mfma_f32_16x16x32_bf16 {c}, v[{FR+4*Q}:{FR+4*Q+3}], {g}, {c if d >= 2 else 0}")
                if not (hook and hook()): emit(ENV("F_EM1", 3) if n < B1 else ENV("F_EM", 2))
            if n + PDG < len(seq): gr(n + PDG)
            if n < 16 and d >= 1: pend.extend(combine(d - 1))
            if n == 16: pend.extend(combine(15))
            if n > 16 and d - 1 >= 16: pend.extend(combine(d - 1))
        if n1 == len(seq):
            pend.extend(combine(31)); emit(200)
    B1 = 16 + ENV("F_B1", 6); D1 = 16 + ENV("F_D1", 12); D2 = 16 + ENV("F_D2", 17)
    run(0, B1)
    if pend: print("conv_split: flushing", len(pend), "at B1")
    emit(100)
    a("s_waitcnt lgkmcnt(0)"); ds.q = []
    cst(0)
    a("s_barrier")
    cst(1)
    fq.extend(fin(0, 120, 136))
    run(B1, D1)
    if fq: print("conv_split: flushing", len(fq), "at D1")
    emit(200)
    cst(2)
    fused.poll_issue()
    run(D1, D2)
    cst(3)
    a("s_waitcnt vmcnt(0)")
    a("s_barrier")
    cst(4)
    fused.flag("s5", 192, "HA", 20)
    stamp(a, 6)
    fused.check("F_NOW13", wait=False)
    sv = (list(pend), list(ds.q))
    cnt = [0]
    def hook():
        cnt[0] += 1
        return cnt[0] % ENV("F_WGAP", 2) == 0 and fused.load_one()
    run(D2, len(seq), hook)
    a("s_branch F_CONVDONE")
    a.label("F_NOW13")
    pend[:] = sv[0]; ds.q = sv[1]
    a("s_mov_b32 s33, 0")
    run(D2, len(seq))
    a.label("F_CONVDONE")
    a("s_waitcnt lgkmcnt(0)"); ds.q = []
    cst(5)
    stamp(a, 4)
    a("s_barrier")
    fc[0] = 0
    fq.extend(fin(1, 24, 64))
    emit(500)
```

```python
import os
from asmlib import *
from layout import *
from k1 import srd
from k34 import stat_finalize_steps
import asmlib
BST = os.environ.get("K3_BST") if "os" in dir() else None
K35_LDS = 163840
ENV = lambda k, d: int(os.environ.get(k, d))

_stamp = stamp
def stamp(a, i, alt=None):
    if os.environ.get("STSET", "M") != "M": return
    if (alt or "") == (BST or ""): _stamp(a, i)
    elif alt is None and i < 2 and BST == "B": _stamp(a, i)

def mlp_ids(a):
    a("s_bfe_u32 s4, s2, 0x20001")
    a("s_lshl_b32 s4, s4, 2")
    a("s_bfe_u32 s5, s2, 0x20003")
    a("s_add_u32 s4, s4, s5")
    a("s_lshr_b32 s18, s2, 5")
    a("s_and_b32 s19, s2, 1")
    a("s_lshl_b32 s5, s18, 1")
    a("s_add_u32 s5, s5, s19")

def gen_k38_unused(a):
    a.raw(kernel_header("mlp_kernel"))
    if os.environ.get("K3_DROP"): a.drop = os.environ["K3_DROP"].split(",")
    a("s_cmp_ge_u32 s2, 256")
    a("s_cbranch_scc1 K3_END")
    a("s_load_dwordx2 s[38:39], s[0:1], 88")
    a("s_load_dwordx2 s[40:41], s[0:1], 104")
    a("v_lshrrev_b32 v2, 6, v0")
    a("v_and_b32 v1, 63, v0")
    a("v_readfirstlane_b32 s3, v2")
    mlp_body(a, False)

def mlp_body(a, fused, gate=None):
    SC1 = " sc1" if fused else ""
    a("v_lshlrev_b32 v2, 4, v1")
    a("s_bfe_u32 s4, s2, 0x20001")
    a("s_lshl_b32 s4, s4, 2")
    a("s_bfe_u32 s5, s2, 0x20003")
    a("s_add_u32 s4, s4, s5")
    a("s_lshr_b32 s18, s2, 5")
    a("s_and_b32 s19, s2, 1")
    a("s_lshl_b32 s5, s18, 1")
    a("s_add_u32 s5, s5, s19")
    a("s_mul_i32 s6, s3, 20480")
    a("s_mul_i32 s20, s4, 163840")
    a("s_add_u32 s7, s20, s6")
    a("s_lshl_b32 s8, s5, 2")
    a("s_add_u32 s8, s8, s3")
    a("s_mul_i32 s9, s8, 61440")
    a("s_and_b32 s21, s18, 3")
    a("s_mul_i32 s21, s21, 20480")
    a("s_add_u32 s21, s21, s20")
    a("s_mul_i32 s10, s3, 5120")
    a("s_add_u32 s21, s21, s10")
    a("s_mul_i32 s22, s18, 245760")
    a("s_mul_i32 s10, s3, 61440")
    a("s_add_u32 s22, s22, s10")
    a("s_waitcnt lgkmcnt(0)")
    srd(a, 44, 40, H_OFF, SZ_X); srd(a, 48, 40, W13_OFF, 3932160)
    vm = Cnt(a, "vmcnt", 63); ds = Cnt(a, "lgkmcnt", 15)
    ACC = 32; HB = 128; STR = 192; CSR = 16
    acc = lambda i, t: ACC + 4 * (3 * i + t)
    hb = lambda n, i: HB + 16 * (n & 1) + 4 * i
    SF = 160; SFB = 192; CQ = 228
    PRE = ENV("K3_PRE", 0) or fused
    if PRE and not fused:
        for idx in range(60):
            if idx % 4 == 0: a(f"s_add_u32 s11, s9, {idx * 1024}")
            a(f"buffer_load_dwordx4 a[{4*idx}:{4*idx+3}], v2, s[48:51], s11 offen offset:{(idx&3)*1024}")
        a("s_waitcnt vmcnt(0)")
        a("s_barrier")
        a("s_memrealtime s[96:97]")
        a("s_waitcnt lgkmcnt(0)")
    def first_loads():
        for i in range(5):
            if i == 4: a("s_add_u32 s21, s21, 4096")
            a(f"buffer_load_dwordx4 v[{SF+4*i}:{SF+4*i+3}], v2, s[44:47], s21 offen offset:{(i%4)*1024}{SC1}"); vm.issue("sf")
        for _ in range(ENV("K3_PRO", 12 if fused else 14)): issue_item()
    items = []
    NPRE = ENV("A_NPRE", 36)
    GB = ENV("A_GB", 10)
    for s in range(20):
        items += [("h", s, 0)] + [("w", s, t) for t in range(3) if 3 * s + t >= NPRE]
    items.append(("cs", 0, 0))
    items.append(("sfb", 0, 0))
    HBE = ENV("K3_HBE", 8)
    for s in range(HBE): items.append(("h", 20 + s, 1))
    items.append(("st", 0, 0))
    for s in range(20):
        if s + HBE < 20: items.append(("h", 20 + s + HBE, 1))
        items += [("w2", 3 * s + t, 0) for t in range(3)]
    stepA = [0]
    cur = [-1]
    def issue_item():
        if not items or len(vm.q) >= 60: return False
        kd, s, x = items[0]
        if kd == "w2" and s // 3 > cur[0]: return False
        if kd == "st" and stepA[0] < ENV("K3_STI", 18): return False
        if kd == "sfb" and stepA[0] <= GB: return False
        items.pop(0)
        if kd == "h":
            ss = s % 20
            off = x * 81920 + (ss & ~3) * 1024
            if ss % 4 == 0:
                a(f"s_add_u32 m0, s6, {off}")
                a(f"s_add_u32 s10, s7, {off}")
            a(f"buffer_load_dwordx4 v2, s[44:47], s10 offen offset:{(ss&3)*1024}{SC1} lds"); vm.issue(s)
        elif kd == "w":
            idx = 3 * s + x
            if idx % 4 == 0 or idx == NPRE: a(f"s_add_u32 s11, s9, {(idx & ~3) * 1024}")
            a(f"buffer_load_dwordx4 a[{4*idx}:{4*idx+3}], v2, s[48:51], s11 offen offset:{(idx&3)*1024}{SC1}"); vm.issue(s)
        elif kd == "w2" and os.environ.get("K3_NOW2"): pass
        elif kd == "w2":
            if s % 4 == 0: a(f"s_add_u32 s11, s22, {(s & ~3) * 1024}")
            a(f"buffer_load_dwordx4 a[{4*s}:{4*s+3}], v2, s[68:71], s11 offen offset:{(s&3)*1024}{SC1}"); vm.issue(("w2", s))
        elif kd == "cs":
            a(f"buffer_load_dwordx4 v[{CQ}:{CQ+3}], v2, s[52:55], s17 offen sc1"); vm.issue("cs")
        elif kd == "st":
            st_loads(0)
        elif kd == "sfb":
            a(f"s_add_u32 s21, s21, {81920 - 4096}")
            for i in range(5):
                if i == 4: a("s_add_u32 s21, s21, 4096")
                a(f"buffer_load_dwordx4 v[{SFB+4*i}:{SFB+4*i+3}], v2, s[44:47], s21 offen offset:{(i%4)*1024} sc1"); vm.issue("sfb")
        return True
    def st_loads(hf):
        a(f"buffer_load_dwordx2 v[176:177], v186, s[72:75], s24 offen offset:{512*hf} sc1"); vm.issue("st")
    if not fused: first_loads()
    srd(a, 52, 40, CSQ_OFF, 64*1024); srd(a, 56, 40, HM_OFF, 6291456)
    srd(a, 68, 40, W2_OFF, 1966080); srd(a, 72, 40, ST_OFF, 0x4000 + 128*128)
    a("v_and_b32 v6, 15, v1")
    a("v_lshrrev_b32 v7, 4, v1")
    a("v_lshrrev_b32 v3, 1, v7")
    a("v_lshlrev_b32 v3, 5, v3")
    a("v_and_b32 v4, 1, v7")
    a("v_lshl_add_u32 v3, v4, 3, v3")
    a("v_lshlrev_b32 v186, 3, v1")
    a("v_add_u32 v185, s6, v2")
    a("v_add_u32 v183, s6, v186")
    a("s_lshl_b32 s17, s8, 10")
    a("v_lshlrev_b32 v5, 3, v6")
    a("s_lshl_b32 s24, s4, 10")
    a("v_add_u32 v3, s6, v3")
    a("v_add_u32 v187, 5120, v3")
    a("v_add_u32 v184, s6, v5")
    for i in range(8):
        a(f"s_add_u32 s13, s3, {i}")
        a("s_and_b32 s13, s13, 3")
        if i >= 4: a("s_add_u32 s13, s13, 4")
        a("s_mul_i32 s14, s13, 20480")
        a(f"v_add_u32 v{8+i}, s14, v186")
    if fused:
        gate()
        first_loads()
    a("s_mov_b32 s16, 0x3f803f80")
    SCR = [7 * 20480 + 19 * 1024, 6144]
    a("s_lshl_b32 s13, s3, 7")
    a("v_and_b32 v182, 7, v1")
    a("v_lshlrev_b32 v182, 4, v182")
    a("v_add_u32 v182, s13, v182")
    def stat_block(S, hf, interleave):
        T = 252
        for r in range(20):
            for k in range(2):
                d = T + 2 * ((r % 4) // 2) + k
                src2 = "s16" if k == 0 else f"v{S+r}"
                a(f"v_dot2_f32_bf16 v{d}, v{S+r}, {src2}, {'0' if r in (0, 2) else 'v%d' % d}")
            if interleave and r % 2 == 1: issue_item()
        for sw in ("v_permlane32_swap_b32", "v_permlane16_swap_b32"):
            for r in range(4): a(f"v_mov_b32 v{S+r}, v{T+r}")
            for r in range(4): a(f"{sw} v{T+r}, v{S+r}")
            for r in (0, 2): a(f"v_pk_add_f32 v[{T+r}:{T+r+1}], v[{T+r}:{T+r+1}], v[{S+r}:{S+r+1}]")
        for r in range(4): a(f"v_add_f32_dpp v{T+r}, v{T+r}, v{T+r} row_ror:8 row_mask:0xf bank_mask:0xf")
        a(f"v_add_u32 v6, {SCR[hf]}, v182")
        a(f"ds_write_b128 v6, v[{T}:{T+3}]"); ds.issue("sb")
    vm.wait("sf")
    stat_block(SF, 0, True)
    a("s_waitcnt lgkmcnt(0)"); ds.q = []
    def hread(n, i):
        sl = i + 4 * (n // 20)
        a(f"ds_read2st64_b64 v[{hb(n,i)}:{hb(n,i)+3}], v{8+sl} offset0:{2*(n%20)} offset1:{2*(n%20)+1}"); ds.issue((n, i))
    vm.wait(0)
    stamp(a, 0)
    a("s_barrier")
    for i in range(4): hread(0, i)
    P = 240
    def stat_fin(hf):
        o = [("v", f"v_add_u32 v7, {SCR[hf]}, v5")]
        o += [("ds", f"ds_read_b64 v[{P+2*i}:{P+2*i+1}], v7 offset:{i*128}") for i in range(4)]
        o += [("v", f"v_mov_b32 v{P+8}, {f2u(1.0/640):#x}"),
              ("v", "s_lshr_b32 s13, s18, 2"), ("v", "s_lshl_b32 s13, s13, 1"), ("v", "s_add_u32 s13, s13, s19"),
              ("v", "s_lshl_b32 s13, s13, 2"), ("v", "s_lshl_b64 s[32:33], 15, s13"),
              ("v", "s_lshl_b32 s13, s4, 3"), ("v", "s_and_b32 s14, s18, 3"), ("v", "s_add_u32 s13, s13, s14"),
              ("v", f"s_add_u32 s13, s13, {4*hf}"), ("v", "s_lshl_b32 s34, s13, 7"),
              ("w", None),
              ("v", f"v_add_f32 v{P}, v{P}, v{P+2}"), ("v", f"v_add_f32 v{P+1}, v{P+1}, v{P+3}"),
              ("v", f"v_add_f32 v{P+4}, v{P+4}, v{P+6}"), ("v", f"v_add_f32 v{P+5}, v{P+5}, v{P+7}"),
              ("v", f"v_add_f32 v{P}, v{P}, v{P+4}"), ("v", f"v_add_f32 v{P+1}, v{P+1}, v{P+5}")]
        o += [("v", st(P, P + 1, P + 2)) for st in stat_finalize_steps(P + 8)]
        o += [("x", None)]
        return o
    side = []
    prep = []
    prep += ["s_lshl_b32 s13, s4, 3", "s_add_u32 s13, s13, s3", "s_mul_i32 s13, s13, 49152", "s_mul_i32 s14, s5, 3072",
             "s_add_u32 s60, s13, s14", "s_add_u32 s61, s60, 196608"]
    prep += ["s_lshl_b32 s13, s4, 2", "s_lshr_b32 s14, s5, 2", "s_add_u32 s14, s14, s13", "s_lshl_b32 s14, s14, 8",
             "s_add_u32 s62, s14, 0x4000",
             "s_add_u32 s13, s13, s3", "s_lshl_b32 s13, s13, 8", "s_add_u32 s63, s13, 0x4000"]
    prep += ["s_lshl_b32 s13, s4, 3", "s_lshl_b32 s14, s19, 1", "s_add_u32 s23, s13, s14",
             "s_mul_i32 s13, s23, 49152", "s_mul_i32 s14, s3, 12288", "s_add_u32 s64, s13, s14",
             "s_add_u32 s65, s64, 49152", "s_add_u32 s66, s64, 196608", "s_add_u32 s67, s64, 245760"]
    side += [("v", t) for t in prep]
    def do_side():
        if not side: return False
        k, t = side.pop(0)
        if k == "ds": a(t); ds.issue("sp")
        elif k == "w": ds.wait("sp")
        elif k == "v": a(t)
        else:
            a("s_mov_b64 exec, s[32:33]")
            a(f"buffer_store_dwordx2 v[{P}:{P+1}], v5, s[72:75], s34 offen sc1"); vm.issue("gs")
            a("s_mov_b64 exec, -1")
        return True
    def mfma(i, t, s, n, first):
        c = f"v[{acc(i,t)}:{acc(i,t)+3}]"; w = 4 * (3 * s + t)
        a(f"v_mfma_f32_16x16x32_bf16 {c}, a[{w}:{w+3}], v[{hb(n,i%4)}:{hb(n,i%4)+3}], {0 if first else c}")
    STCHK = 99; STB = ENV('K3_STB', 1)
    def stchk(var, hf):
        while side: do_side()
        a("s_mov_b32 s35, 0")
        a.label(f"K3_STCHK{hf}{var}")
        vm.wait("st")
        saved_q = list(vm.q)
        a("v_cmp_eq_u32 vcc, 0, v177")
        a(f"s_cbranch_vccz K3_STOK{hf}{var}")
        a("s_add_u32 s35, s35, 1")
        a("s_cmp_ge_u32 s35, 0x4000")
        a(f"s_cbranch_scc1 K3_STOK{hf}{var}")
        a("s_sleep 2")
        st_loads(hf)
        a("s_waitcnt vmcnt(0)")
        a(f"s_branch K3_STCHK{hf}{var}")
        a.label(f"K3_STOK{hf}{var}")
        vm.q = saved_q
        side.append(("ds", f"ds_write_b64 v183, v[176:177] offset:{4096 + 512*hf}"))
        if hf == 0:
            vm.wait("cs")
            for sw in ("v_permlane32_swap_b32", "v_permlane16_swap_b32"):
                side.extend(("v", f"v_mov_b32 v{CQ+4+r}, v{CQ+r}") for r in range(4))
                side.extend(("v", f"{sw} v{CQ+r}, v{CQ+4+r}") for r in range(4))
                side.extend(("v", f"v_add_f32 v{CQ+r}, v{CQ+r}, v{CQ+4+r}") for r in range(4))
            side.append(("ds", f"ds_write_b128 v185, v[{CQ}:{CQ+3}] offset:5120"))
        sl = range(4 * hf, 4 * hf + 4)
        for i in sl:
            rt = ((var + i) & 3) + 4 * (i >> 2)
            side.append(("ds", f"ds_read_b64 v[{STR+4*i}:{STR+4*i+1}], v184 offset:{4096 + rt*128}"))
        if hf == 0:
            for t in range(3):
                side.append(("ds", f"ds_read2_b64 v[{CSR+4*t}:{CSR+4*t+3}], v187 offset0:{8*t} offset1:{8*t+2}"))
            side.extend([("v", "v_mov_b32 v28, 1"), ("v", "v_mov_b32 v29, 0"), ("v", f"v_mov_b32 v4, {f2u(-LOG2E):#x}")])
        side.append(("w", None))
        side.extend(("v", f"v_rcp_f32 v{STR+4*i+2}, v{STR+4*i+1}") for i in sl)
        side.extend(("v", f"v_mul_f32 v{STR+4*i+1}, v{STR+4*i+1}, v{STR+4*i+1}") for i in sl)
        side.extend(("v", f"v_mul_f32 v{STR+4*i+2}, v{STR+4*i+2}, v4") for i in sl)
    def phase_a(var):
        if var == 0: side[:0] = stat_fin(0)
        for s in range(20):
            stepA[0] = s
            if s % 3 == 0: stamp(a, s // 3, "A")
            assert not any(kd in "hw" and x == s + 1 for kd, x, _ in items), s
            vm.wait(s + 1)
            a("s_barrier")
            ds.wait((s, 3))
            nl = 5 if s % ENV("K3_AX", 2) == 0 else 4
            if PRE: nl = ENV("K3_NL", 3 if fused else 2)
            for i in range(4):
                for t in range(3):
                    mfma(i, t, s, s, s == 0)
                    if t == 0: hread(s + 1, i)
                    if i == var:
                        for _ in range(2 if t or nl == 5 and False else 1):
                            if nl: issue_item(); nl -= 1
                    elif t: do_side(); do_side()
            if s == GB - 4: gate.b_issue(vm)
            if s == GB: gate.b_check(vm, var)
            if s == 12: gate.w2_issue(vm)
            if s == 18: gate.w2_check(vm, var)
            if s == ENV("A_SB", GB + 6):
                assert ("sfb", 0, 0) not in items
                vm.wait("sfb")
                stat_block(SFB, 1, False)
                ds.wait("sb")
            if s == ENV("A_SB", GB + 6) + 1 and var == 0: side.extend(stat_fin(1))
        while side: do_side()
        stamp(a, 1)
    PK = ENV("K3_PK", 0)
    def epi(i, var, pk):
        S = STR + 4 * i; O = 224 + 4 * (i % 2); out = []; seqs = []
        for t in range(3):
            c = acc(i, t); e = 232 + 2 * t; cs = CSR + 4 * t
            if pk:
                seqs.append([
                f"v_pk_fma_f32 v[{c}:{c+1}], v[{cs}:{cs+1}], v[{S}:{S+1}], v[{c}:{c+1}] op_sel_hi:[1,0,1] neg_lo:[0,1,0] neg_hi:[0,1,0]",
                f"v_pk_fma_f32 v[{c+2}:{c+3}], v[{cs+2}:{cs+3}], v[{S}:{S+1}], v[{c+2}:{c+3}] op_sel_hi:[1,0,1] neg_lo:[0,1,0] neg_hi:[0,1,0]",
                f"v_pk_mul_f32 v[{e}:{e+1}], v[{c}:{c+1}], v[{S+2}:{S+3}] op_sel_hi:[1,0]",
                f"v_exp_f32 v{e}, v{e}",
                f"v_exp_f32 v{e+1}, v{e+1}",
                f"v_pk_mul_f32 v[{c}:{c+1}], v[{c}:{c+1}], v[{c+2}:{c+3}]",
                f"v_pk_fma_f32 v[{e}:{e+1}], v[{e}:{e+1}], v[{S}:{S+1}], v[{S}:{S+1}] op_sel:[0,1,1] op_sel_hi:[1,1,1]",
                f"v_rcp_f32 v{e}, v{e}",
                f"v_rcp_f32 v{e+1}, v{e+1}",
                f"v_pk_mul_f32 v[{c}:{c+1}], v[{c}:{c+1}], v[{e}:{e+1}]",
                f"v_cvt_pk_bf16_f32 v{O+t}, v{c}, v{c+1}"])
            else:
                seqs.append(
                [f"v_fma_f32 v{c+r}, -v{S}, v{cs+r}, v{c+r}" for r in range(2)] +
                [f"v_mul_f32 v{e+r}, v{c+r}, v{S+2}" for r in range(2)] +
                [f"v_exp_f32 v{e}, v{e}", f"v_fma_f32 v{c+2}, -v{S}, v{cs+2}, v{c+2}",
                 f"v_exp_f32 v{e+1}, v{e+1}", f"v_fma_f32 v{c+3}, -v{S}, v{cs+3}, v{c+3}"] +
                [f"v_mul_f32 v{c+r}, v{c+r}, v{c+2+r}" for r in range(2)] +
                [f"v_fma_f32 v{e+r}, v{e+r}, v{S+1}, v{S+1}" for r in range(2)] +
                [f"v_rcp_f32 v{e+r}, v{e+r}" for r in range(2)] +
                [f"v_mul_f32 v{c+r}, v{c+r}, v{e+r}" for r in range(2)] +
                [f"v_cvt_pk_bf16_f32 v{O+t}, v{c}, v{c+1}"])
        for j in range(len(seqs[0])):
            for sq in seqs:
                if not os.environ.get("K3_NOEPI"): out.append(sq[j])
        out.append(f"v_add_u32 v6, v{8+i}, v186")
        if var < 3:
            out.append(f"ds_write_b96 v6, v[{O}:{O+2}] offset:{var*1024}")
        else:
            out += [f"ds_write_b32 v6, v{O+t} offset:{t*1024 + 12}" for t in range(3)]
        return out
    pre = [f"v_mov_b32 v4, {f2u(-LOG2E):#x}"]
    pre += [f"v_rcp_f32 v{STR+4*i+2}, v{STR+4*i+1}" for i in range(8)]
    pre += [f"v_mul_f32 v{STR+4*i+1}, v{STR+4*i+1}, v{STR+4*i+1}" for i in range(8)]
    pre += [f"v_mul_f32 v{STR+4*i+2}, v{STR+4*i+2}, v4" for i in range(8)]
    PB = 160
    def signal(hf):
        if signal.var < 4:
            if signal.var == 0:
                a("s_mov_b64 exec, 1")
                a(f"buffer_atomic_add v28, v29, s[72:75], s62 offen offset:{hf*128} sc1"); vm.issue("sig")
                a("s_mov_b64 exec, -1")
            return
        a("s_cmp_lg_u32 s3, 0")
        lab = f"K3_NOSIG{hf}_{signal.var}"
        a(f"s_cbranch_scc1 {lab}")
        a("s_mov_b64 exec, 1")
        a(f"buffer_atomic_add v28, v29, s[72:75], s62 offen offset:{hf*128} sc1")
        a("s_mov_b64 exec, -1")
        a.label(lab)
        vm.q.append("sig")
        vm.q.pop()
    A2 = 80; HR = 224
    acc2 = lambda j, t: A2 + 4 * (5 * j + t)
    HMR = [32 + 4 * i for i in range(12)] + [160 + 4 * i for i in range(8)] + [240 + 4 * i for i in range(4)]
    hm = lambda j, k: HMR[12 * (j % 2) + k]
    hq = []
    def ld_hm(j, k):
        if k % 4 == 0: a(f"s_add_u32 s10, s{64+j}, {(k & ~3)*1024}")
        a(f"buffer_load_dwordx4 v[{hm(j,k)}:{hm(j,k)+3}], v2, s[56:59], s10 offen offset:{(k&3)*1024}{os.environ.get('K3_HMSC', ' sc1')}"); vm.issue((j, k))
    saves = (list(items), list(vm.q), list(ds.q), list(side))
    for w in range(1, 4):
        a(f"s_cmp_eq_u32 s3, {w}")
        a(f"s_cbranch_scc1 K3_VAR{w}")
    for var in range(4):
        if var:
            a.label(f"K3_VAR{var}")
            items[:] = saves[0]; vm.q = list(saves[1]); ds.q = list(saves[2]); cur[0] = -1; side[:] = saves[3]
        signal.var = var
        phase_a(var)
        sj = []
        if STCHK < 20:
            for i in range(4): sj += epi(i, var, PK)
        def emit_side(budget):
            while side and budget > 0:
                do_side(); budget -= 4
            while sj and budget > 0:
                t = sj.pop(0); a(t)
                if t.startswith("ds_"): ds.issue("e")
                budget -= 8 if t.split()[0] in TRANS else 4
        state = 0
        for s in range(20):
            n = 20 + s
            if s % 4 == 3: stamp(a, 2 + s // 4, "B")
            if s + 1 < 20:
                assert not any(kd == "h" and x == n + 1 for kd, x, _ in items)
                vm.wait(n + 1)
            if state == 0 and s > STB and not sj and not hasattr(emit_side, "nat"):
                emit_side.nat = s; print("epilogue A natural finish at step", s, "var", var)
            if state == 0 and s == ENV("K3_SA", 15 if STCHK >= 20 else 11):
                emit_side(100000)
                ds.wait("e"); state = 1
                a("s_barrier")
                for ph in range(3):
                    a(f"ds_read_b128 v[{PB+4*ph}:{PB+4*ph+3}], v185 offset:{ph*1024}"); ds.issue("pb")
            elif state == 1:
                a("s_barrier")
                ds.wait("pb")
                for ph in range(3):
                    a(f"buffer_store_dwordx4 v[{PB+4*ph}:{PB+4*ph+3}], v2, s[56:59], s60 offen offset:{ph*1024} sc1"); vm.issue("hsA")
                state = 2; s_st = s
            elif state == 2 and (s >= s_st + ENV("K3_DRAIN", 4) or s == 19):
                vm.wait("hsA")
                a("s_barrier")
                signal(0); state = 4
                stamp(a, 2)
            elif s + 1 < 20:
                a("s_barrier")
            ds.wait((n, 3))
            for i in range(4):
                for t in range(3):
                    mfma(4 + i, t, s, n, s == 0)
                    if t == 0 and s + 1 < 20: hread(n + 1, i)
                    if i == var:
                        issue_item()
                        if t == 2 and ENV("K3_BN", 4) == 4: issue_item()
                    else: emit_side(ENV("K3_B0", 8) if t == 0 else ENV("K3_B1", 12))
            cur[0] = s
            if STCHK >= 20 and s == STB:
                stchk(var, 0)
                for i in range(4): sj += epi(i, var, PK)
            if s == ENV("A_STB1", 13): st_loads(1)
            if s == ENV("A_STB2", 17): stchk(var, 1)
            if s == ENV("K3_PAS", 18):
                a(f"buffer_load_dword v30, v29, s[72:75], s63 offen sc1"); vm.issue("pA")
        assert state == 4, state
        while side: do_side()
        for i in range(4, 8): sj += epi(i, var, 1)
        n_eb = ENV("K3_EBN", 4)
        while sj:
            emit_side(ENV("K3_EB", 200))
            if n_eb and issue_item(): n_eb -= 1
        left = list(items)
        if var < 3: a("s_branch K3_EPIDONE")
    a.label("K3_EPIDONE")
    a("s_waitcnt lgkmcnt(0)"); ds.q = []
    stamp(a, 3)
    a("s_barrier")
    PB2 = 192
    a("v_add_u32 v12, 81920, v185")
    for ph in range(3):
        a(f"ds_read_b128 v[{PB2+4*ph}:{PB2+4*ph+3}], v12 offset:{ph*1024}")
    a("s_mul_i32 s13, s3, 5120")
    a("v_add_u32 v8, s13, v2")
    a("v_add_u32 v9, 40960, v8")
    a("v_lshrrev_b32 v4, 5, v1")
    a("v_lshlrev_b32 v4, 7, v4")
    a("v_and_b32 v5, 15, v1")
    a("v_lshl_add_u32 v4, v5, 3, v4")
    a("v_bfe_u32 v6, v1, 4, 1")
    a("v_lshl_add_u32 v4, v6, 9, v4")
    a("v_mul_u32_u24 v5, 1280, v5")
    a("v_lshrrev_b32 v7, 4, v1")
    a("v_lshl_add_u32 v5, v7, 3, v5")
    a("s_mul_i32 s16, s18, 5")
    a("s_mul_i32 s17, s18, 160")
    for q in range(3):
        a(f"s_add_u32 s12, s3, {4*q}")
        if q == 2:
            a("s_cmp_ge_u32 s12, 10")
            a("s_cselect_b32 s13, 2, 0")
            a("s_sub_u32 s12, s12, s13")
        a("s_cmp_ge_u32 s12, 5")
        a("s_cselect_b32 s13, 1, 0")
        a("s_mul_i32 s14, s13, 5")
        a("s_sub_u32 s12, s12, s14")
        a("s_mul_i32 s14, s13, 20480")
        a("s_lshl_b32 s15, s12, 10")
        a("s_add_u32 s15, s15, s14")
        a(f"v_add_u32 v{10+q}, s15, v2") if q < 2 else a("v_add_u32 v13, s15, v2")
        a("s_add_u32 s13, s13, s23")
        a("s_mul_i32 s13, s13, 20480")
        a("s_add_u32 s14, s12, s16")
        a("s_lshr_b32 s15, s14, 1")
        a("s_lshl_b32 s15, s15, 10")
        a("s_and_b32 s14, s14, 1")
        a("s_lshl_b32 s14, s14, 8")
        a("s_add_u32 s14, s14, s15")
        a(f"s_add_u32 s{24+q}, s13, s14")
        a("s_mul_i32 s15, s4, 81920")
        a("s_sub_u32 s13, s13, s15")
        a("s_lshl_b32 s14, s12, 5")
        a("s_add_u32 s14, s14, s17")
        a(f"s_add_u32 s{28+q}, s13, s14")
    srd(a, 52, 38, 0, SZ_X)
    for ph in range(3):
        a(f"s_waitcnt lgkmcnt({2-ph})")
        a(f"buffer_store_dwordx4 v[{PB2+4*ph}:{PB2+4*ph+3}], v2, s[56:59], s61 offen offset:{ph*1024} sc1"); vm.issue("hsB")
    vm.wait("pA")
    a("s_mov_b32 s35, 0")
    a("s_branch K3_PA_CHK")
    a.label("K3_PA")
    a(f"buffer_load_dword v30, v29, s[72:75], s63 offen sc1")
    a("s_waitcnt vmcnt(0)")
    a.label("K3_PA_CHK")
    a("v_readfirstlane_b32 s14, v30")
    a("s_add_u32 s35, s35, 1")
    a("s_cmp_ge_u32 s14, 4")
    a("s_cbranch_scc1 K3_GOA")
    a("s_cmp_lt_u32 s35, 0x8000")
    a("s_cbranch_scc1 K3_PA")
    a.label("K3_GOA")
    def res_loads():
        for hf in range(2):
            for q in range(3):
                if hf: a(f"s_add_u32 s{24+q}, s{24+q}, 81920")
                a(f"buffer_load_dwordx2 v[{HR+6*hf+2*q}:{HR+6*hf+2*q+1}], v4, s[44:47], s{24+q} offen{SC1}"); vm.issue("res")
    H0 = ENV("K3_H0", 6)
    hq[:] = [(0, kk) for kk in range(H0)] + ["w2"] * len(items) + [(0, kk) for kk in range(H0, 12)] + [(1, kk) for kk in range(12)] + ["res"]
    _ld = ld_hm
    def nxt():
        x = hq.pop(0)
        if x == "w2": assert issue_item()
        elif x == "res": res_loads()
        else: _ld(*x)
    for _ in range(ENV("K3_NPA", 8)): nxt()
    stamp(a, 4)
    wr = []
    def g2tile(j, hook=None):
        for k in range(12):
            while (j, k) in hq or (j == 0 and ("w2", 5 * k + 4, 0) in items): nxt()
            vm.wait((j, k)); vm.wait(("w2", 5 * k + 4))
            for t in range(5):
                c = f"v[{acc2(j,t)}:{acc2(j,t)+3}]"; w = 4 * (5 * k + t)
                a(f"v_mfma_f32_16x16x32_bf16 {c}, a[{w}:{w+3}], v[{hm(j,k)}:{hm(j,k)+3}], {c if k else 0}")
                if t == 2 and wr and k >= 1: a(wr.pop(0))
                if t in (0, 3) and hq: nxt()
            if hook: hook(k)
        wr.extend(f"ds_write_b128 v{8 + j//2}, v[{acc2(j,t)}:{acc2(j,t)+3}] offset:{(j%2)*20480 + t*1024}" for t in range(5))
    def hookA(k):
        if k == ENV("K3_SBK", -1):
            vm.wait("hsB")
            a("s_barrier")
            signal.var = 9; signal(1)
    if ENV("K3_SBK", -1) < 0:
        vm.wait("hsB")
        a("s_barrier")
        signal.var = 9; signal(1)
    g2tile(0, hookA)
    def hookB(k):
        if k == ENV("K3_PBK", 0):
            a(f"buffer_load_dword v30, v29, s[72:75], s63 offen offset:128 sc1"); vm.issue("pB")
        if k == ENV("K3_PBC", 3):
            stamp(a, 5)
            while hq: nxt()
            a("s_mov_b32 s35, 0")
            vm.wait("pB")
            a("s_branch K3_PB_CHK")
            a.label("K3_PB")
            a(f"buffer_load_dword v30, v29, s[72:75], s63 offen offset:128 sc1")
            a("s_waitcnt vmcnt(0)")
            a.label("K3_PB_CHK")
            a("v_readfirstlane_b32 s14, v30")
            a("s_add_u32 s35, s35, 1")
            a("s_cmp_ge_u32 s14, 4")
            a("s_cbranch_scc1 K3_GOB")
            a("s_cmp_lt_u32 s35, 0x8000")
            a("s_cbranch_scc1 K3_PB")
            a.label("K3_GOB")
            stamp(a, 6)
            hq.extend((2, kk) for kk in range(12))
            for _ in range(4): nxt()
    g2tile(1, hookB)
    hq.extend((3, kk) for kk in range(12))
    RD = [10, 11, 13]
    def finalize(hf, R, U):
        out = []
        for q in range(3):
            for w in range(4):
                out.append(f"ds_read_b128 v[{R[q]+4*w}:{R[q]+4*w+3}], v{RD[q]} offset:{hf*40960 + w*5120}")
        for q in range(3):
            for e in range(2):
                out.append(f"v_lshlrev_b32 v{U+4*q+2*e}, 16, v{HR+6*hf+2*q+e}")
                out.append(f"v_and_b32 v{U+4*q+2*e+1}, 0xffff0000, v{HR+6*hf+2*q+e}")
            if hf: out.append(f"s_add_u32 s{28+q}, s{28+q}, {64*20480}")
        for q in range(3):
            b = R[q]
            out.append(f"s_waitcnt lgkmcnt({8 - 4*q})")
            for e in (0, 2):
                out.append(f"v_pk_add_f32 v[{b+e}:{b+e+1}], v[{b+e}:{b+e+1}], v[{b+4+e}:{b+5+e}]")
                out.append(f"v_pk_add_f32 v[{b+8+e}:{b+9+e}], v[{b+8+e}:{b+9+e}], v[{b+12+e}:{b+13+e}]")
            for e in (0, 2):
                out.append(f"v_pk_add_f32 v[{b+e}:{b+e+1}], v[{b+e}:{b+e+1}], v[{b+8+e}:{b+9+e}]")
            for e in range(2):
                out.append(f"v_cvt_pk_bf16_f32 v{b+4+e}, v{b+2*e}, v{b+2*e+1}")
            for e in range(2):
                out.append(f"v_lshlrev_b32 v{b+2*e}, 16, v{b+4+e}")
                out.append(f"v_and_b32 v{b+2*e+1}, 0xffff0000, v{b+4+e}")
            for e in (0, 2):
                out.append(f"v_pk_add_f32 v[{b+e}:{b+e+1}], v[{b+e}:{b+e+1}], v[{U+4*q+e}:{U+4*q+e+1}]")
            for e in range(2):
                out.append(f"v_cvt_pk_bf16_f32 v{b+4+e}, v{b+2*e}, v{b+2*e+1}")
            out.append(f"buffer_store_dwordx2 v[{b+4}:{b+5}], v5, s[52:55], s{28+q} offen")
        return out
    fin = []
    def emit_fin():
        for _ in range(ENV("K3_FN", 10)):
            if fin:
                t = fin.pop(0); a(t)
                if t.startswith("buffer"): vm.issue("o")
    def hook2(k):
        if k == ENV("K3_FK", 4):
            while wr: a(wr.pop(0))
            while "res" in hq: nxt()
            vm.wait("res")
            a("s_waitcnt lgkmcnt(0)")
            a("s_barrier")
            fin.extend(finalize(0, [80, 96, 192], 16))
        emit_fin()
    g2tile(2, hook2)
    pend_wr = list(wr); wr[:] = []
    def hook3(k):
        emit_fin()
        if not fin and pend_wr:
            wr.extend(pend_wr); pend_wr[:] = []
    g2tile(3, hook3)
    assert not fin and not pend_wr
    while wr: a(wr.pop(0))
    a("s_waitcnt lgkmcnt(0)")
    a("s_barrier")
    for t in finalize(1, [32, 48, 64], 16): a(t)
    a.label("K3_END")
    a("s_endpgm")
```

```python
import os
from asmlib import *
from layout import *
from k1 import srd, cmul, interleave, Rec, wave_reduce_sum
from kp2 import w2_ids, w2_dma_setup, w2_out_setup
ENV = lambda k, d: int(os.environ.get(k, d))
N_LN = 96
_stamp = stamp
def stamp(a, i):
    if os.environ.get('STSET', 'F') == 'F': _stamp(a, i)
UB = 0; UPAD = 2048; SB = UPAD + 32768; RS = 4352; ROWP = 272; WREG = 2 * RS
KB = SB + 12 * WREG; KP = 4416; TB = KB + 4 * KP; PK = UB + UPAD
assert TB + 4 * 1536 <= 163840
STG = 65536; XP = 272
WS = 42
XQ_OFF = UR_OFF

def front_entry(a):
    code_prefetch(a, 4, 132, "F4")
    a("s_load_dwordx16 s[16:31], s[0:1], 0")
    a("s_load_dwordx8 s[32:39], s[0:1], 64")
    a("s_load_dwordx4 s[40:43], s[0:1], 96")
    a("v_lshrrev_b32 v2, 6, v0")
    a("v_and_b32 v1, 63, v0")
    a("v_readfirstlane_b32 s3, v2")

def gen_front4(a):
    a.raw(kernel_header("front_kernel"))
    a("s_cmp_ge_u32 s2, 256")
    a("s_cbranch_scc1 F_END")
    front_entry(a)
    a(f"s_cmp_lt_u32 s2, {N_LN}")
    a("s_cbranch_scc1 F_LN")
    conv_wg(a)
    a("s_endpgm")
    a.label("F_LN")
    ln_wg(a)
    a.label("F_END")
    a("s_endpgm")

def epoch_wait(a, tag, vr, vz):
    a("s_mov_b32 s8, 0")
    a.label(f"EPW{tag}")
    a(f"v_readfirstlane_b32 s9, v{vr}")
    a("s_cmp_lg_u32 s9, 0")
    a(f"s_cbranch_scc1 EPOK{tag}")
    a("s_add_u32 s8, s8, 1")
    a("s_cmp_ge_u32 s8, 0x8000")
    a(f"s_cbranch_scc1 EPOK{tag}")
    a(f"buffer_load_dwordx2 v[{vr}:{vr+1}], v{vz}, s[48:51], 0 offen sc1")
    a("s_waitcnt vmcnt(0)")
    a(f"s_branch EPW{tag}")
    a.label(f"EPOK{tag}")

def l_w13_dma(a):
    m3 = magic(3, 256, 16)
    a("s_lshr_b32 s14, s2, 2")
    a("s_and_b32 s15, s2, 3")
    a("v_lshrrev_b32 v216, 3, v1")
    a("v_mul_u32_u24 v216, 3072, v216")
    a("v_and_b32 v3, 7, v1")
    a("v_lshl_add_u32 v216, v3, 4, v216")
    a(f"s_mul_i32 s70, s15, {5*98304}")
    a("s_lshl_b32 s71, s14, 7")
    a("s_add_u32 s70, s70, s71")
    a("s_and_b32 s71, s3, 1")
    a("s_mul_i32 s71, s71, 49152")
    a("s_add_u32 s70, s70, s71")
    a("s_cmp_lt_u32 s3, 2")
    a("s_cselect_b32 s72, s32, s34")
    a("s_cselect_b32 s73, s33, s35")
    a("s_mov_b32 s74, 1966080")
    a("s_mov_b32 s75, 0x20000")
    a("s_lshl_b32 s69, s3, 11")
    for n in range(5):
        for r in range(2):
            a(f"s_add_u32 m0, s69, {n*8192 + r*1024}")
            a(f"s_add_u32 s71, s70, {n*98304 + r*24576}")
            a("buffer_load_dwordx4 v216, s[72:75], s71 offen lds")

def l_w13(a, mid=None, early=False):
    m3 = magic(3, 256, 16)
    if not early: l_w13_dma(a)
    a("s_lshr_b32 s62, s2, 2")
    a("s_and_b32 s63, s2, 3")
    if mid: mid()
    for e in range(2):
        a("s_lshl_b32 s12, s62, 2")
        a("s_add_u32 s12, s12, s3")
        a("s_lshl_b32 s12, s12, 1")
        if e: a("s_add_u32 s12, s12, 1")
        a(f"s_mul_i32 s6, s12, {m3}")
        a("s_lshr_b32 s6, s6, 16")
        a(f"s_mul_i32 s{64+e}, s6, 58368")
        a("s_lshl_b32 s55, s12, 10")
        a(f"s_add_u32 s{64+e}, s{64+e}, s55")
        a(f"s_mul_i32 s55, s63, {5*3072}")
        a(f"s_add_u32 s{64+e}, s{64+e}, s55")
        a(f"s_mul_i32 s{66+e}, s6, {1024 - 192}")
        a("s_lshl_b32 s55, s12, 6")
        a(f"s_add_u32 s{66+e}, s{66+e}, s55")
        a("s_lshl_b32 s55, s63, 8")
        a(f"s_add_u32 s{66+e}, s{66+e}, s55")
    a("v_lshrrev_b32 v217, 4, v1")
    a("v_bfe_u32 v3, v1, 2, 2")
    a("v_lshl_add_u32 v217, v217, 3, v3")
    a("v_lshlrev_b32 v217, 7, v217")
    a("v_and_b32 v3, 1, v1")
    a("v_lshl_add_u32 v217, v3, 12, v217")
    a("v_bfe_u32 v3, v1, 1, 1")
    a("v_lshl_add_u32 v217, v3, 3, v217")
    a("s_lshl_b32 s14, s3, 5")
    a("v_add_u32 v217, s14, v217")
    a("v_bfe_u32 v218, v1, 3, 1")
    a("v_lshlrev_b32 v218, 3, v218")
    a("v_bfe_u32 v3, v1, 1, 1")
    a("v_lshl_add_u32 v218, v3, 2, v218")
    a("v_and_b32 v3, 1, v1")
    a("v_add_u32 v218, v218, v3")
    a("v_bfe_u32 v3, v1, 2, 1")
    a("v_lshl_add_u32 v218, v3, 1, v218")
    a("v_lshrrev_b32 v3, 4, v1")
    a("v_lshlrev_b32 v219, 4, v3")
    a("v_lshlrev_b32 v3, 8, v3")
    a("v_lshl_add_u32 v218, v218, 4, v3")
    srd(a, 44, WS, W13_OFF, 3932160); srd(a, 52, WS, CSQ_OFF, 64*1024)
    for i in range(4): a(f"v_mov_b32 v{8+i}, 0x3f803f80")
    a("s_mov_b32 s12, 0x00010001")
    a("s_mov_b32 s13, 0x00010001")
    a(f"s_waitcnt vmcnt({8 if mid else 0})")
    if os.environ.get("STSET") == "G": _stamp(a, 1)
    a("s_barrier")
    for n in range(5):
        for e in range(2):
            for h in range(2):
                r = 64 + 4 * (2 * n + e)
                a(f"ds_read_b64_tr_b16 v[{r+2*h}:{r+2*h+1}], v217 offset:{n*8192 + h*512 + e*16}")
    for n in range(5):
        for e in range(2):
            r = 64 + 4 * (2 * n + e)
            a(f"s_waitcnt lgkmcnt({min(15, 18 - 4*n - 2*e)})")
            a(f"buffer_store_dwordx4 v[{r}:{r+3}], v218, s[44:47], s{64+e} offen sc1")
            c = f"v[{12+4*e}:{15+4*e}]"
            a(f"v_mfma_f32_16x16x32_bf16 {c}, v[{r}:{r+3}], v[8:11], {c if n else 0}")
            if n < 4: a(f"s_add_u32 s{64+e}, s{64+e}, 3072")
    a("s_mov_b64 exec, s[12:13]")
    for e in range(2):
        a(f"buffer_store_dwordx4 v[{12+4*e}:{15+4*e}], v219, s[52:55], s{66+e} offen sc1")
    a("s_mov_b64 exec, -1")

def ln_wg(a, fused=None):
    a("s_memrealtime s[60:61]")
    a("v_mov_b32 v6, 0")
    a("s_waitcnt lgkmcnt(0)")
    srd(a, 48, 40, 0, 8)
    a("s_cmp_ge_u32 s2, 64")
    a("s_cbranch_scc1 F_SPARE")
    a("s_lshl_b32 s4, s2, 3")
    a("s_lshl_b32 s5, s3, 1")
    a("s_add_u32 s4, s4, s5")
    a("s_mul_i32 s5, s4, 5120")
    a("v_lshlrev_b32 v4, 2, v1")
    a("v_add_u32 v5, 2560, v4")
    srd(a, 44, 16, 0, SZ_X)
    a("s_add_u32 s7, s5, 5120")
    XD = ENV("F_XDMA", 0)
    if XD:
        a("v_lshlrev_b32 v3, 4, v1")
        a("s_mul_i32 s12, s3, 10240")
        a("v_add_u32 v5, s12, v4")
        for i in range(10):
            if i % 4 == 0:
                a(f"s_add_u32 m0, s12, {i*1024}")
                a(f"s_add_u32 s7, s5, {i*1024}")
            a(f"buffer_load_dwordx4 v3, s[44:47], s7 offen offset:{(i%4)*1024} lds")
    else:
        for i in range(8):
            for q in range(5):
                a(f"buffer_load_dword v{8+5*i+q}, v{4 if i % 4 < 2 else 5}, s[44:47], s{5 if i < 4 else 7} offen offset:{(i%2)*1280 + q*256}")
    if ENV("F_W13E", 0): l_w13_dma(a)
    a("s_lshl_b32 s9, s2, 2")
    a("s_add_u32 s9, s9, s3")
    a("s_cmp_lg_u32 s9, 0")
    a("s_cbranch_scc1 F_NOEP")
    a("s_or_b32 s60, s60, 1")
    a("v_mov_b32 v50, s60")
    a("v_mov_b32 v51, s61")
    a("v_mov_b32 v52, 0")
    a("v_mov_b32 v53, 0")
    a("v_lshlrev_b32 v48, 3, v1")
    a("buffer_atomic_cmpswap_x2 v[50:53], v48, s[48:51], 0 offen sc1")
    a.label("F_NOEP")
    srd(a, 52, WS, ST_OFF, 0x8000)
    a("s_lshl_b32 s9, s9, 7")
    a("s_mov_b64 exec, 0xffffffff")
    a("buffer_store_dword v6, v4, s[52:55], s9 offen sc1")
    a("s_mov_b64 exec, -1")
    srd(a, 52, WS, S1_OFF, 16384); srd(a, 56, WS, XQ_OFF, 160*16384)
    a("s_mov_b32 s10, 0x05040100")
    a("s_mov_b32 s11, 0x07060302")
    a("v_lshrrev_b32 v54, 1, v1")
    a(f"v_mul_u32_u24 v54, {XP}, v54")
    a("v_and_b32 v55, 1, v1")
    a("v_lshl_add_u32 v54, v55, 4, v54")
    a("s_lshl_b32 s9, s3, 6")
    a(f"s_add_u32 s9, s9, {STG}")
    a("v_add_u32 v54, s9, v54")
    a("v_lshrrev_b32 v57, 4, v0")
    a("v_and_b32 v58, 15, v0")
    a(f"v_mul_u32_u24 v55, {XP}, v57")
    a("v_lshl_add_u32 v55, v58, 4, v55")
    a(f"v_add_u32 v55, {STG}, v55")
    a("v_lshlrev_b32 v56, 14, v57")
    a("v_lshl_add_u32 v56, v58, 4, v56")
    a("s_lshl_b32 s68, s2, 8")
    a("s_lshl_b32 s6, s4, 5")
    a(f"v_mov_b32 v7, {f2u(1.0/640):#x}")
    a(f"s_waitcnt vmcnt({11 if ENV('F_W13E', 0) else 0})")
    stamp(a, 0)
    a("buffer_load_dwordx2 v[50:51], v6, s[48:51], 0 offen sc1")
    if XD:
        for q in range(5):
            for i in range(4): a(f"ds_read_b32 v{8+5*i+q}, v5 offset:{i*1280 + q*256}")
        for q in range(5):
            for i in range(4, 8): a(f"ds_read_b32 v{8+5*i+q}, v5 offset:{i*1280 + q*256}")
        a("s_waitcnt lgkmcnt(15)")
        a("s_waitcnt lgkmcnt(0)")
    for g in range(2):
        for q in range(5):
            d = 60 + 4 * (5 * g + q); b = 8 + 20 * g
            a(f"v_perm_b32 v{d}, v{b+5+q}, v{b+q}, s10")
            a(f"v_perm_b32 v{d+1}, v{b+15+q}, v{b+10+q}, s10")
            a(f"v_perm_b32 v{d+2}, v{b+5+q}, v{b+q}, s11")
            a(f"v_perm_b32 v{d+3}, v{b+15+q}, v{b+10+q}, s11")
            a(f"ds_write_b128 v54, v[{d}:{d+3}] offset:{q*32*XP + g*32}")
    a("s_waitcnt lgkmcnt(0)")
    a("s_barrier")
    for kk in range(10):
        a(f"ds_read_b128 v[{60+4*kk}:{63+4*kk}], v55 offset:{kk*16*XP}")
    for kk in range(10):
        a(f"s_add_u32 s69, s68, {kk*16*16384}")
        a(f"s_waitcnt lgkmcnt({9-kk})")
        a(f"buffer_store_dwordx4 v[{60+4*kk}:{63+4*kk}], v56, s[56:59], s69 offen sc1")
    stamp(a, 2)
    X = lambda i, q: 104 + 2 * (5 * i + q)
    SUM = lambda i: 184 + 2 * i
    MEAN = lambda i: 200 + 2 * i
    for i in range(8):
        for q in range(5):
            a(f"v_lshlrev_b32 v{X(i,q)}, 16, v{8+5*i+q}")
            a(f"v_and_b32 v{X(i,q)+1}, 0xffff0000, v{8+5*i+q}")
    for q in range(1, 5):
        for i in range(8):
            s = SUM(i); src = X(i, 0) if q == 1 else s
            a(f"v_pk_add_f32 v[{s}:{s+1}], v[{src}:{src+1}], v[{X(i,q)}:{X(i,q)+1}]")
    for i in range(8): a(f"v_add_f32 v{SUM(i)}, v{SUM(i)}, v{SUM(i)+1}")
    wave_reduce_sum(a, [SUM(i) for i in range(8)])
    for i in range(8): a(f"v_readlane_b32 s{60+i}, v{SUM(i)}, 63")
    for i in range(8): a(f"v_mul_f32 v{MEAN(i)}, s{60+i}, v7")
    for q in range(5):
        for i in range(8):
            x = X(i, q); m = MEAN(i)
            a(f"v_pk_add_f32 v[{x}:{x+1}], v[{x}:{x+1}], v[{m}:{m+1}] op_sel_hi:[1,0] neg_lo:[0,1] neg_hi:[0,1]")
    for q in range(5):
        for i in range(8):
            x = X(i, q); s = SUM(i)
            if q == 0: a(f"v_pk_mul_f32 v[{s}:{s+1}], v[{x}:{x+1}], v[{x}:{x+1}]")
            else: a(f"v_pk_fma_f32 v[{s}:{s+1}], v[{x}:{x+1}], v[{x}:{x+1}], v[{s}:{s+1}]")
    for i in range(8): a(f"v_add_f32 v{SUM(i)}, v{SUM(i)}, v{SUM(i)+1}")
    wave_reduce_sum(a, [SUM(i) for i in range(8)])
    for i in range(8): a(f"v_readlane_b32 s{60+i}, v{SUM(i)}, 63")
    R = lambda i: 16 + i
    G = lambda i: 24 + 4 * (i // 2) + (i % 2)
    steps = [
        lambda i: f"v_mul_f32 v{R(i)}, s{60+i}, v7",
        lambda i: f"v_cvt_pk_bf16_f32 v{R(i)}, v{R(i)}, v{R(i)}",
        lambda i: f"v_lshlrev_b32 v{R(i)}, 16, v{R(i)}",
        lambda i: f"v_add_f32 v{R(i)}, {f2u(1e-5):#x}, v{R(i)}",
        lambda i: f"v_cvt_pk_bf16_f32 v{R(i)}, v{R(i)}, v{R(i)}",
        lambda i: f"v_lshlrev_b32 v{R(i)}, 16, v{R(i)}",
        lambda i: f"v_sqrt_f32 v{R(i)}, v{R(i)}",
        lambda i: f"v_cvt_pk_bf16_f32 v{G(i)}, v{MEAN(i)}, v{R(i)}",
    ]
    for st in steps:
        for i in range(8): a(st(i))
    stamp(a, 1)
    a("s_waitcnt vmcnt(10)")
    epoch_wait(a, "L", 50, 6)
    for k in range(4):
        a(f"v_mov_b32 v{26+4*k}, v50")
        a(f"v_mov_b32 v{27+4*k}, v51")
    a("s_lshl_b32 s9, s3, 6")
    a(f"s_add_u32 s9, s9, {STG - 1024}")
    a("v_mov_b32 v40, s9")
    for k in range(4):
        a(f"ds_write_b128 v40, v[{24+4*k}:{27+4*k}] offset:{16*k}")
    a("v_lshlrev_b32 v41, 4, v1")
    a(f"v_add_u32 v42, {STG - 1024}, v41")
    a("s_lshl_b32 s6, s2, 8")
    a("s_waitcnt vmcnt(0) lgkmcnt(0)")
    stamp(a, 3)
    a("s_barrier")
    a("s_cmp_lg_u32 s3, 0")
    a("s_cbranch_scc1 F_W2")
    a("ds_read_b128 v[44:47], v42")
    a("s_mov_b64 exec, 0xffff")
    a("s_waitcnt lgkmcnt(0)")
    a("buffer_store_dwordx4 v[44:47], v41, s[52:55], s6 offen sc1")
    a("s_mov_b64 exec, -1")
    a("s_branch F_W2")
    a.label("F_SPARE")
    a("v_mov_b32 v50, 0")
    if ENV("F_W13E", 0): l_w13_dma(a)
    a.label("F_W2")
    if ENV("F_NOPACK", 0): a("s_endpgm")
    if ENV("F_PSLEEP", 0):
        for _ in range(ENV("F_PSLEEP", 0)): a("s_sleep 32")
    def w2_start():
        a("s_mul_i32 s9, s2, 3")
        a("s_add_u32 s9, s9, s3")
        a("s_cmp_eq_u32 s3, 3")
        a("s_cselect_b32 s9, 240, s9")
        a("s_min_u32 s9, s9, 240")
        a("s_mov_b32 s28, s48"); a("s_mov_b32 s29, s49")
        a("s_mov_b32 s40, s42"); a("s_mov_b32 s41, s43")
        w2_ids(a, 9)
        w2_dma_setup(a, 124, 125, 126, 127)
        a("s_cmp_eq_u32 s9, 240")
        a("s_cselect_b32 s50, 0, s50")
        a("s_lshl_b32 s8, s3, 13")
        a("s_add_u32 s8, s8, 40960")
        for i in range(8):
            a(f"s_add_u32 m0, s8, {i*1024}")
            a(f"s_add_u32 s70, s69, {(i>>1)*2560}")
            a(f"buffer_load_dwordx4 v{124 + (i&1)}, s[48:51], s70 offen lds")
        a("s_mov_b32 s30, s65"); a("s_mov_b32 s31, s66")
        srd(a, 48, 28, 0, 8)
    l_w13(a, w2_start, ENV('F_W13E', 0))
    a("s_mov_b32 s65, s30"); a("s_mov_b32 s66, s31")
    a("v_mov_b32 v7, 0")
    if fused:
        epoch_wait(a, "S", 50, 7)
        a("v_readfirstlane_b32 s90, v50")
        a("v_readfirstlane_b32 s91, v51")
    a("s_mul_i32 s9, s2, 3")
    a("s_add_u32 s9, s9, s3")
    a("s_cmp_eq_u32 s3, 3")
    a("s_cselect_b32 s9, 240, s9")
    a("s_min_u32 s9, s9, 240")
    w2_out_setup(a, 0)
    a("s_cmp_eq_u32 s9, 240")
    a("s_cselect_b32 s54, 0, s54")
    a("s_lshl_b32 s8, s3, 13")
    a("s_add_u32 s8, s8, 40960")
    a("v_add_u32 v6, s8, v6")
    a("s_waitcnt vmcnt(0)")
    for i in range(8):
        for h in range(2):
            a(f"ds_read_b64_tr_b16 v[{24+4*i+2*h}:{25+4*i+2*h}], v6 offset:{h*1024 + i*32}")
    if fused:
        a("s_barrier")
        fused.flag("s2", 0, "W", 20)
        if os.environ.get("STSET") == "G": _stamp(a, 0)
    for i in range(8):
        a(f"s_waitcnt lgkmcnt({14-2*i})")
        a(f"buffer_store_dwordx4 v[{24+4*i}:{27+4*i}], v8, s[52:55], s{56+i} offen sc1")

def kgen_stream(m):
    B = 16 + 70 * m; L = m * 4 * WREG; A = 64 * m
    ADT = m < ENV('F_ADT', 2)
    if m == 2: L = 0
    wa, ra = (3, 4) if m < 2 else (234, 235)
    W = lambda t, off: f"ds_write_addtid_b32 v{t} offset:{off}" if ADT else f"ds_write_b32 v{wa}, v{t} offset:{off}"
    o = []
    a = o.append
    for r in range(4): a(f"v_lshlrev_b32 v{B+r}, 16, v{B+r}")
    W1, W8, W128, W16 = B + 4, B + 6, B + 8, B + 10
    tmp = [B + 12 + i for i in range(4)]; ringr = [B + 16 + 2 * i for i in range(4)]
    Q = {q: B + 36 + 2 * q for q in range(17)}
    a(f"v_mul_f32 v{B}, v{B}, v15")
    a(f"v_exp_f32 v{B}, v{B}")
    a(f"v_mul_f32 v{B+1}, v{B+1}, v14")
    a(f"v_mul_f32 v{Q[0]}, v{B+2}, v9")
    a(f"v_mul_f32 v{Q[0]+1}, v{B+3}, v9")
    a(f"v_cvt_pk_bf16_f32 v{B}, v{B}, v{B}")
    a(f"v_mul_f32 v{B+1}, {f2u(INV2PI):#x}, v{B+1}")
    a(f"v_lshlrev_b32 v{B}, 16, v{B}")
    a(f"v_mul_f32 v{B}, v{B}, v14")
    a(f"v_mul_f32 v{B}, v{B}, v15")
    E = B + 12; F = B + 16
    for k, p in enumerate((1.0, 8.0, 128.0)):
        a(f"v_mul_f32 v{F+k}, {f2u(p):#x}, v{B+1}")
        a(f"v_mul_f32 v{E+k}, {f2u(-p):#x}, v{B}")
    for k in range(3):
        a(f"v_fract_f32 v{F+k}, v{F+k}")
        a(f"v_exp_f32 v{E+k}, v{E+k}")
    for k in range(3):
        a(f"v_cos_f32 v{W1+2*k}, v{F+k}")
        a(f"v_sin_f32 v{W1+1+2*k}, v{F+k}")
    for k in range(3):
        a(f"v_mul_f32 v{W1+2*k}, v{W1+2*k}, v{E+k}")
        a(f"v_mul_f32 v{W1+1+2*k}, v{W1+1+2*k}, v{E+k}")
    tctr = [0]
    def put(r, reg, row, val, neg=False):
        t = tmp[tctr[0] % 4]; tctr[0] += 1
        r(f"v_cvt_pk_bf16_f32 v{t}, v{val}, {'-' if neg else ''}v{val+1}")
        r(W(t, L + reg*RS + row*ROWP))
    rb = Rec()
    rb(W(13, L))
    cmul(rb, W16, W8, W8)
    put(rb, 0, 1, W8, True); put(rb, 0, 2, W16, True)
    ring = {1: W8, 2: W16}
    for b in range(3, 16):
        d = ringr[b % 4]
        cmul(rb, d, ring[b-2], W16); ring[b] = d
        put(rb, 0, b, d, True)
    wc = {1: W1}; rw = Rec()
    for c, (x, y) in ((2, (1, 1)), (3, (2, 1)), (4, (2, 2)), (5, (4, 1)), (6, (4, 2)), (7, (4, 3))):
        wc[c] = B + 24 + 2 * (c - 2); cmul(rw, wc[c], wc[x], wc[y])
    rq = Rec()
    for q in range(1, 17): cmul(rq, Q[q], Q[q-1], W128)
    o += interleave(rb.l, rw.l + rq.l)
    def rd(which, reg):
        for s in range(4):
            a(("rd", (m, which), f"ds_read_b128 a[{A+16*which+4*s}:{A+16*which+4*s+3}], v{ra} offset:{L + reg*RS + s*64}"))
    def mf(t):
        for s in range(4):
            c = f"a[{192+4*t}:{195+4*t}]"
            a(("mf", (m, t + 1), f"v_mfma_f32_16x16x32_bf16 {c}, a[{A+16*(t+1)+4*s}:{A+16*(t+1)+4*s+3}], a[{A+4*s}:{A+4*s+3}], {c}"))
    rd(0, 0)
    pc = [0]
    def run(jobs):
        for reg, row, x, y in jobs:
            if y is None: put(a, reg, row, x); continue
            d = ringr[pc[0] % 4]; pc[0] += 1
            cmul(a, d, x, y); put(a, reg, row, d)
    run([(1, 8*ap + c, Q[ap], wc[c] if c else None) for ap in range(2) for c in range(8)])
    rd(1, 1)
    run([(0, 4*ap + c, Q[2+ap], wc[2*c] if c else None) for ap in range(2) for c in range(4)])
    mf(0)
    run([(0, 8 + 2*ap + c, Q[4+ap], wc[4] if c else None) for ap in range(4) for c in range(2)])
    rd(2, 0)
    for q in range(8, 17): put(a, 1, q - 8, Q[q])
    rd(3, 1)
    mf(1); mf(2)
    return o

def kgen_all(a, hooks):
    ds = Cnt(a, "lgkmcnt", 15)
    streams = [kgen_stream(m) for m in range(3)]
    lag = ENV("F_LAG", 12)
    seq = []
    n = max(len(s) + i * lag for i, s in enumerate(streams))
    for k in range(n):
        for i, s in enumerate(streams):
            j = k - i * lag
            if 0 <= j < len(s):
                if j == 0 and i: seq.append(("vm", i))
                seq.append(s[j])
    for idx, e in enumerate(seq):
        if idx in hooks: hooks[idx]()
        if isinstance(e, tuple):
            if e[0] == "vm": a(f"s_waitcnt vmcnt({8 - 4*e[1]})"); continue
            if e[0] == "rd": a(e[2]); ds.issue(e[1]); continue
            ds.wait(e[1]); a(e[2]); continue
        a(e)
        if e.startswith("ds_"): ds.issue("w")
    return len(seq)

NB = 120
def st_loads(a):
    a(f"buffer_load_dwordx2 v[{NB}:{NB+1}], v229, s[48:51], 0 offen sc1")
    for g in range(2):
        b = NB + 4 + 12 * g
        a(f"buffer_load_dwordx4 v[{b}:{b+3}], v228, s[44:47], 0 offen offset:{32*g} sc1")
        a(f"buffer_load_dwordx4 v[{b+4}:{b+7}], v228, s[44:47], 0 offen offset:{32*g+16} sc1")

def conv_wg(a, fused=None, split=False):
    a(f"s_sub_u32 s5, s2, {N_LN}")
    a("s_and_b32 s6, s5, 7")
    a("s_mul_i32 s6, s6, 20")
    a("s_lshr_b32 s4, s5, 3")
    a("s_add_u32 s4, s4, s6")
    a("s_lshl_b32 s7, s4, 2")
    a("s_add_u32 s7, s7, s3")
    a("s_mul_i32 s8, s7, 384")
    a("v_lshlrev_b32 v2, 1, v1")
    a("v_add_u32 v2, s8, v2")
    a("s_lshr_b32 s9, s7, 1")
    a("s_lshl_b32 s9, s9, 2")
    a("s_lshl_b32 s12, s4, 3")
    a("s_waitcnt lgkmcnt(0)")
    a("s_load_dword s10, s[26:27], s9")
    a("s_load_dwordx2 s[68:69], s[28:29], s12")
    for m in range(3):
        for r in range(4):
            a(f"global_load_ushort v{16+70*m+r}, v2, s[{18+2*r}:{19+2*r}] offset:{128*m}")
    a("s_mov_b32 s60, s36"); a("s_mov_b32 s61, s37")
    srd(a, 44, WS, S1_OFF, 16384); srd(a, 48, 40, 0, 8); srd(a, 56, WS, H_OFF, SZ_X); srd(a, 36, WS, XQ_OFF, 160*16384)
    a("s_mul_i32 s11, s3, 1536")
    a(f"s_add_u32 s11, s11, {TB}")
    a(f"s_mul_i32 s13, s3, {KP}")
    a(f"s_add_u32 s13, s13, {KB}")
    a("v_lshlrev_b32 v2, 4, v1")
    a("v_add_u32 v226, s13, v2")
    a("s_lshl_b32 s9, s5, 2")
    a("s_add_u32 s9, s9, s3")
    a("s_mul_i32 s9, s9, 3072")
    a("v_add_u32 v227, s9, v2")
    a("v_lshlrev_b32 v228, 6, v0")
    a("v_mov_b32 v229, 0")
    a("s_mov_b32 s15, 8192")
    for i in range(12): a(f"v_accvgpr_write_b32 a{192+i}, 0")
    a("v_and_b32 v5, 15, v1")
    a("v_lshrrev_b32 v6, 4, v1")
    a("v_lshrrev_b32 v236, 1, v6")
    a("v_lshlrev_b32 v236, 8, v236")
    a("v_and_b32 v7, 1, v6")
    a("v_lshl_add_u32 v236, v7, 3, v236")
    a("v_lshl_add_u32 v236, v5, 4, v236")
    a("v_add_u32 v236, s11, v236")
    a("v_cmp_gt_u32 vcc, 2, v6")
    a("v_lshlrev_b32 v237, 3, v5")
    a("v_lshlrev_b32 v7, 2, v5")
    a("v_mov_b32 v238, 64")
    a("v_cndmask_b32 v237, v7, v237, vcc")
    a("v_cndmask_b32 v238, v238, 4, vcc")
    a("v_lshl_add_u32 v237, v6, 7, v237")
    a("v_add_u32 v237, s11, v237")
    a("v_add_u32 v238, v238, v237")
    a("v_lshlrev_b32 v239, 1, v5")
    a("v_lshl_add_u32 v239, v6, 7, v239")
    a("v_add_u32 v239, s11, v239")
    a("v_cmp_gt_u32 s[6:7], 32, v1".replace("s[6:7]", "vcc"))
    a("v_lshlrev_b32 v240, 4, v1")
    a("v_lshlrev_b32 v7, 3, v1")
    a("v_add_u32 v7, 256, v7")
    a("v_cndmask_b32 v240, v7, v240, vcc")
    a("v_add_u32 v240, s11, v240")
    a("v_lshlrev_b32 v241, 2, v1")
    a("v_add_u32 v241, s11, v241")
    a("v_lshlrev_b32 v242, 1, v1")
    a("v_add_u32 v242, s11, v242")
    a("v_mov_b32 v7, 0x01000100"); a("v_mov_b32 v8, 0x03020100"); a("v_cndmask_b32 v243, v7, v8, vcc")
    a("v_mov_b32 v7, 0x05040302"); a("v_mov_b32 v8, 0x07060504"); a("v_cndmask_b32 v244, v7, v8, vcc")
    a("v_mov_b32 v7, 0x01000100"); a("v_cndmask_b32 v245, v7, v8, vcc")
    a("v_and_b32 v7, 1, v1")
    a("v_cmp_eq_u32 vcc, 0, v7")
    a("v_mov_b32 v7, 0x05040504"); a("v_mov_b32 v8, 0x05040100"); a("v_cndmask_b32 v246, v7, v8, vcc")
    a("v_lshrrev_b32 v10, 4, v1")
    a("v_bfe_u32 v11, v1, 2, 2")
    a("v_and_b32 v12, 3, v1")
    a("v_lshlrev_b32 v247, 6, v10")
    a("v_lshl_add_u32 v247, v11, 3, v247")
    a("v_lshl_add_u32 v247, v12, 5, v247")
    a("v_add_u32 v247, s13, v247")
    a("s_lshr_b32 s14, s3, 1")
    a("s_and_b32 s12, s3, 1")
    a("s_lshl_b32 s12, s12, 3")
    for h in range(2):
        a(f"v_add_u32 v6, {44 - 4*h}, v12")
        a("v_sub_u32 v6, v6, v11")
        a("v_lshlrev_b32 v7, 3, v10")
        a("v_sub_u32 v6, v6, v7")
        a("v_lshrrev_b32 v7, 2, v6")
        a("v_add_u32 v7, s14, v7")
        a("v_and_b32 v7, 3, v7")
        a("v_lshlrev_b32 v6, 6, v6")
        a("v_lshl_add_u32 v6, v7, 4, v6")
        a(f"v_add_u32 v{248+h}, s12, v6")
    a("v_and_b32 v250, 1, v1")
    a("v_lshlrev_b32 v250, 7, v250")
    a("v_and_b32 v6, 62, v1")
    a("v_add3_u32 v250, s13, v250, v6")
    a("v_lshrrev_b32 v6, 1, v0")
    a("v_lshlrev_b32 v7, 7, v0")
    a(f"v_add_u32 v7, {UB + UPAD}, v7")
    for n in range(4):
        a(f"v_add_u32 v8, {n}, v6")
        a("v_and_b32 v8, 3, v8")
        a(f"v_lshl_add_u32 v{251+n}, v8, 4, v7")
    a(f"s_mul_i32 s8, s3, {WREG}")
    a(f"s_add_u32 s8, s8, {SB}")
    a("s_mov_b32 s14, s8")
    a("v_lshlrev_b32 v3, 2, v1")
    a("v_add_u32 v3, s8, v3")
    a("v_and_b32 v4, 15, v1")
    a(f"v_mul_u32_u24 v4, {ROWP}, v4")
    a("v_lshrrev_b32 v5, 4, v1")
    a("v_lshl_add_u32 v4, v5, 4, v4")
    a("v_add_u32 v4, s8, v4")
    a(f"v_add_u32 v234, {8*WREG}, v3")
    a(f"v_add_u32 v235, {8*WREG}, v4")
    a("s_mov_b32 m0, s14")
    a("v_mov_b32 v7, 0")
    a("v_lshlrev_b32 v6, 3, v0")
    a("v_mov_b32 v8, 0")
    a(f"ds_write_b64 v6, v[7:8] offset:{UB}".replace("v[7:8]", "v[6:7]") if False else "v_mov_b32 v9, 0")
    a(f"ds_write_b64 v6, v[8:9] offset:{UB}")
    a("v_and_b32 v6, 31, v1")
    a("v_lshlrev_b32 v6, 2, v6")
    a("v_add_u32 v6, s13, v6")
    a("ds_write_b32 v6, v7")
    a("s_waitcnt lgkmcnt(0)")
    a("s_lshl_b32 s9, s10, 16")
    a("s_and_b32 s10, s10, 0xffff0000")
    a("s_bitcmp1_b32 s7, 0")
    a("s_cselect_b32 s10, s10, s9")
    for e in range(2):
        a(f"s_lshl_b32 s{64+2+2*e}, s{68+e}, 16".replace(f"s{66+2*e}", f"s{84+2*e}"))
        a(f"s_and_b32 s{85+2*e}, s{68+e}, 0xffff0000")
    a(f"v_mov_b32 v15, {f2u(LOG2E):#x}")
    a("v_mul_f32 v14, s10, v15")
    a("v_exp_f32 v14, v14")
    a("v_cvt_pk_bf16_f32 v14, v14, v14")
    a("v_lshlrev_b32 v14, 16, v14")
    a("v_add_f32 v9, v14, v14")
    a("v_mov_b32 v13, 0x3f80")
    if ENV("F_ST5", 0): stamp(a, 6)
    a("s_waitcnt vmcnt(8)")
    stamp(a, 0)
    if os.environ.get("F_DROP"): a.drop = os.environ["F_DROP"].split(",")
    if os.environ.get("F_DROP"): a.drop = os.environ["F_DROP"].split(",")
    def wpf():
        for m, p in enumerate((32, 34, 60)):
            for i in range(3):
                a(f"global_load_dwordx4 a[{208+12*m+4*i}:{211+12*m+4*i}], v235x, s[{p}:{p+1}] offset:{i*1024}".replace("v235x", "v227"))
    kgen_all(a, {ENV("F_WPF", 250): wpf} if ENV("F_WPF", 250) else {})
    a.drop = None
    a.drop = None
    stamp(a, 1)
    for i in range(12): a(f"v_accvgpr_read_b32 v{16+i}, a{192+i}")
    st_loads(a)
    for t in range(3):
        a(f"v_cvt_pk_bf16_f32 v{28+2*t}, v{16+4*t}, v{17+4*t}")
        a(f"v_cvt_pk_bf16_f32 v{29+2*t}, v{18+4*t}, v{19+4*t}")
    a("ds_write_b64 v236, v[28:29]")
    a("ds_write_b32 v237, v30 offset:512")
    a("ds_write_b32 v238, v31 offset:512")
    a("ds_write_b16 v239, v32 offset:1024")
    a("ds_write_b16_d16_hi v239, v32 offset:1056")
    a("ds_write_b16 v239, v33 offset:1088")
    a("ds_write_b16_d16_hi v239, v33 offset:1120")
    a("ds_read2_b64 v[40:43], v240 offset0:0 offset1:1")
    a("ds_read2_b32 v[44:45], v241 offset0:192 offset1:193")
    for r in range(2):
        a(f"ds_read_u16 v{46+2*r}, v242 offset:{1024 + 128*r}")
        a(f"ds_read_u16 v{47+2*r}, v242 offset:{1026 + 128*r}")
    for i, r in enumerate((247, 248, 249, 250, 251, 252, 253, 254)): a(f"v_mov_b32 v{16+i}, v{r}")
    a("v_mov_b32 v3, v10"); a("v_mov_b32 v4, v11"); a("v_mov_b32 v5, v12")
    a("s_mov_b32 s8, 0x01000100")
    a("s_mov_b32 s9, 0x03020100")
    a("s_mov_b32 s10, 0x03020302")
    a("s_mov_b32 s12, 0x05040302")
    a("v_cmp_gt_u32 vcc, 32, v1")
    a("s_waitcnt lgkmcnt(5)")
    a("v_perm_b32 v52, v40, v40, v243")
    a("v_perm_b32 v53, v41, v40, v244")
    a("v_perm_b32 v54, v42, v41, v245")
    a("v_perm_b32 v55, v42, v41, s12")
    a("v_cndmask_b32 v55, v55, v43, vcc")
    a("ds_write_b128 v226, v[52:55] offset:128")
    a("s_waitcnt lgkmcnt(5)")
    a("v_perm_b32 v56, v44, v44, s8")
    a("v_mov_b32 v57, v44")
    a("v_perm_b32 v58, v44, v44, s10")
    a("v_perm_b32 v59, v45, v45, s8")
    a("ds_write_b128 v226, v[56:59] offset:1152")
    a("s_waitcnt lgkmcnt(2)")
    for r in range(2):
        d = 60 + 4 * r
        a(f"v_perm_b32 v{d}, v{46+2*r}, v{46+2*r}, s8")
        a(f"v_mov_b32 v{d+1}, v{d}")
        a(f"v_perm_b32 v{d+2}, v{47+2*r}, v{46+2*r}, v246")
        a(f"v_perm_b32 v{d+3}, v{47+2*r}, v{47+2*r}, s8")
        a(f"ds_write_b128 v226, v[{d}:{d+3}] offset:{128 + (2+r)*1024}")
    FR = 24; GR = 88; NG = 8; AR = 120; T2 = 248
    for Q in range(15, -1, -1):
        for h in range(2):
            a(f"ds_read_b64_tr_b16 v[{FR+4*Q+2*h}:{FR+4*Q+2*h+1}], v16 offset:{32 + 256*Q + 32*h}")
    a("s_lshl_b32 s9, s4, 14")
    a("s_add_u32 s12, s9, 8192")
    a("s_mov_b32 s52, 0")
    a.label("F_STW")
    a("s_waitcnt vmcnt(0)")
    a(f"v_cmp_eq_u32 vcc, 0, v{NB}")
    for off in (6, 10, 18, 22):
        a(f"v_cmp_ne_u64 s[10:11], v[{NB}:{NB+1}], v[{NB+off}:{NB+off+1}]")
        a("s_or_b64 vcc, vcc, s[10:11]")
    a("s_cbranch_vccz F_STOK")
    a("s_add_u32 s52, s52, 1")
    a("s_cmp_ge_u32 s52, 0x8000")
    a("s_cbranch_scc1 F_STOK")
    a(f"s_sleep {ENV('F_SLEEP', 2)}")
    st_loads(a)
    a("s_branch F_STW")
    a.label("F_STOK")
    stamp(a, 2)
    a(f"v_readfirstlane_b32 s90, v{NB}")
    a(f"v_readfirstlane_b32 s91, v{NB+1}")
    XR = 152
    for g in range(2):
        for hh in range(2):
            a(f"buffer_load_dwordx4 v[{XR+8*g+4*hh}:{XR+8*g+4*hh+3}], v228, s[36:39], s9 offen offset:{32*g + 16*hh} sc1")
    RSr = 176; NM = 184; X = lambda g, c, h: 192 + 16 * g + 4 * c + 2 * h; U = lambda c, h: 224 + 4 * c + 2 * h
    Gs = lambda g, i: NB + 4 + 12 * g + (0, 1, 4, 5)[i]
    for g in range(2):
        for i in range(4): a(f"v_and_b32 v{RSr+4*g+i}, 0xffff0000, v{Gs(g,i)}")
    for i in range(8): a(f"v_rcp_f32 v{RSr+i}, v{RSr+i}")
    for g in range(2):
        for i in range(4): a(f"v_lshlrev_b32 v{NM+4*g+i}, 16, v{Gs(g,i)}")
    for i in range(8): a(f"v_mul_f32 v{NM+i}, -v{NM+i}, v{RSr+i}")
    a("s_mov_b32 s70, 0"); a("s_mov_b32 s71, 0x80000000")
    a("s_mov_b32 s72, 0"); a("s_mov_b32 s73, 0xc0000000")
    a("s_mov_b32 s74, 0"); a("s_mov_b32 s75, 0xe0000000")
    for g in range(2):
        a(f"s_waitcnt vmcnt({2 - 2*g})")
        for c in range(4):
            for h in range(2):
                a(f"v_lshlrev_b32 v{X(g,c,h)}, 16, v{XR+8*g+2*c+h}")
                a(f"v_and_b32 v{X(g,c,h)+1}, 0xffff0000, v{XR+8*g+2*c+h}")
        for c in range(4):
            for h in range(2):
                a(f"v_pk_fma_f32 v[{U(c,h)}:{U(c,h)+1}], v[{X(g,c,h)}:{X(g,c,h)+1}], v[{RSr+4*g+2*h}:{RSr+4*g+2*h+1}], v[{NM+4*g+2*h}:{NM+4*g+2*h+1}]")
        O = 240
        for c in range(4):
            for h in range(2):
                a(f"v_cvt_pk_bf16_f32 v{O+2*c+h}, v{U(c,h)}, v{U(c,h)+1}")
            if c % 2: a(f"ds_write_b128 v{20+c//2}, v[{O+2*c-2}:{O+2*c+1}] offset:{g*64}")
        for c in range(4):
            o = c % 2
            for h in range(2):
                a(f"v_pk_fma_f32 v[{X(g,c,h)}:{X(g,c,h)+1}], v[{U(c,h)}:{U(c,h)+1}], s[{84+2*(c//2)}:{85+2*(c//2)}], v[{X(g,c,h)}:{X(g,c,h)+1}] op_sel:[0,{o},0] op_sel_hi:[1,{o},1]")
    for par in range(2):
        for c in range(4):
            for g in range(2):
                a(f"v_cvt_pk_bf16_f32 v{XR+8*par+2*c+g}, v{X(g,c,0)+par}, v{X(g,c,1)+par}")
            if c % 2: a(f"ds_write_b128 v{22+c//2}, v[{XR+8*par+2*c-2}:{XR+8*par+2*c+1}] offset:{par*64}")
    a("s_waitcnt lgkmcnt(0)")
    stamp(a, 3)
    a("s_barrier")
    ds = Cnt(a, "lgkmcnt", 15)
    acc = lambda T: AR + 4 * T
    def gread(d):
        g = GR + 4 * (d % NG)
        for h in range(2):
            a(f"ds_read_b64_tr_b16 v[{g+2*h}:{g+2*h+1}], v{17+h} offset:{UB + 1024*d}"); ds.issue(("G", d))
    PDG = 6
    if split:
        for d in range(16):
            for h in range(2):
                a(f"ds_read_b64_tr_b16 a[{176+4*d+2*h}:{177+4*d+2*h}], v{17+h} offset:{UB + 1024*d}"); ds.issue(("G", d))
    else:
        for d in range(PDG): gread(d)
    started = set(); pend = []
    def combine(T):
        t = T2 + 4 * (T % 2); D = acc(T); out = []
        for e, m in ((3, 74), (2, 72), (1, 70)):
            prev = f"v{acc(T-1)+e}" if T > 0 else "0"
            out.append(f"v_cndmask_b32 v{t+e}, v{D+e}, {prev}, s[{m}:{m+1}]")
        out.append(f"v_add_f32_dpp v{t+2}, v{t+3}, v{t+2} wave_ror:1 row_mask:0xf bank_mask:0xf")
        out.append(f"v_add_f32_dpp v{t+1}, v{t+2}, v{t+1} wave_ror:1 row_mask:0xf bank_mask:0xf")
        out.append(f"v_add_f32_dpp v{t}, v{t+1}, v{D} wave_ror:1 row_mask:0xf bank_mask:0xf")
        out.append(f"v_cvt_pk_bf16_f32 v{t}, v{t}, v{t}")
        out.append(f"ds_write_b16 v19, v{t} offset:{128 + (T>>1)*256 + (T&1)*64}")
        return out
    def side(n):
        for _ in range(n):
            if pend:
                t = pend.pop(0); a(t)
                if t.startswith("ds_"): ds.issue("Y")
    if split:
        conv_split(a, fused, ds, gread, combine, side, pend, acc, FR, GR, NG, PDG)
        return
    def run_deltas(d0, d1, hook=None):
        for d in range(d0, d1):
            ds.wait(("G", d))
            g = GR + 4 * (d % NG)
            for T in range(d, 32, 2):
                Q = (T - d) // 2
                c = f"v[{acc(T)}:{acc(T)+3}]"
                a(f"v_mfma_f32_16x16x32_bf16 {c}, v[{FR+4*Q}:{FR+4*Q+3}], v[{g}:{g+3}], {c if d >= 2 else 0}")
                if not (hook and hook()): side(1 if d < 20 else 2)
            if d + PDG < 32: gread(d + PDG)
            if d >= 1: pend.extend(combine(d - 1))
        if d1 == 32:
            pend.extend(combine(31)); side(200)
    if not fused:
        run_deltas(0, 32)
    else:
        D1 = ENV("F_D1", 18); D2 = ENV("F_D2", 22)
        fused.setup()
        run_deltas(0, D1)
        fused.poll_issue()
        run_deltas(D1, D2)
        fused.check("F_NOW13")
        sv = (list(pend), list(ds.q))
        cnt = [0]
        def hook():
            cnt[0] += 1
            return cnt[0] % ENV("F_WGAP", 2) == 0 and fused.load_one()
        run_deltas(D2, 32, hook)
        a("s_branch F_CONVDONE")
        a.label("F_NOW13")
        pend[:] = sv[0]; ds.q = sv[1]
        a("s_mov_b32 s33, 0")
        run_deltas(D2, 32)
        a.label("F_CONVDONE")
    a(f"v_mul_u32_u24 v16, {KP}, v4")
    a("v_lshl_add_u32 v16, v3, 5, v16")
    a("v_lshl_add_u32 v16, v5, 3, v16")
    a("s_lshl_b32 s13, s3, 8")
    a(f"s_add_u32 s13, s13, {KB}")
    a("v_add_u32 v16, s13, v16")
    a("v_lshl_add_u32 v6, v3, 2, v5")
    a("v_lshrrev_b32 v7, 1, v6")
    a("v_lshlrev_b32 v6, 7, v6")
    a("v_and_b32 v20, 1, v4")
    a("v_lshl_add_u32 v6, v20, 3, v6")
    a("s_lshl_b32 s12, s3, 11")
    a("v_add_u32 v6, s12, v6")
    a("v_lshrrev_b32 v20, 1, v4")
    a("v_add3_u32 v7, v7, v20, 2")
    a("v_and_b32 v7, 3, v7")
    a("v_lshl_add_u32 v17, v7, 4, v6")
    a("v_lshrrev_b32 v19, 3, v1")
    a("v_mul_u32_u24 v19, 20480, v19")
    a("v_and_b32 v6, 7, v1")
    a("v_lshl_add_u32 v19, v6, 4, v19")
    a("s_mul_i32 s13, s3, 163840")
    a("s_lshr_b32 s14, s4, 3")
    a("s_lshl_b32 s14, s14, 10")
    a("s_add_u32 s13, s13, s14")
    a("s_and_b32 s14, s4, 1")
    a("s_lshl_b32 s14, s14, 9")
    a("s_add_u32 s13, s13, s14")
    a("s_bfe_u32 s14, s4, 0x20001")
    a("s_lshl_b32 s14, s14, 7")
    a("s_add_u32 s13, s13, s14")
    a("s_waitcnt lgkmcnt(0)")
    stamp(a, 4)
    a("s_barrier")
    for i in range(4):
        for par in range(2):
            a(f"ds_read_b64_tr_b16 v[{24+8*i+2*par}:{25+8*i+2*par}], v16 offset:{128 + i*1024 + par*128}")
            a(f"ds_read_b64_tr_b16 v[{28+8*i+2*par}:{29+8*i+2*par}], v17 offset:{UB + UPAD + i*8192 + par*64}")
    HSC = " sc1" if (ENV("F_HSC", 0) or fused) else ""
    for i in range(4):
        Y = 24 + 8 * i; A = 64 + 16 * i
        a(f"s_waitcnt lgkmcnt({12 - 4*i})")
        for q in range(4):
            a(f"v_lshlrev_b32 v{A+2*q}, 16, v{Y+q}")
            a(f"v_and_b32 v{A+2*q+1}, 0xffff0000, v{Y+q}")
            a(f"v_lshlrev_b32 v{A+8+2*q}, 16, v{Y+4+q}")
            a(f"v_and_b32 v{A+8+2*q+1}, 0xffff0000, v{Y+4+q}")
        for q in range(4):
            a(f"v_pk_add_f32 v[{A+2*q}:{A+2*q+1}], v[{A+2*q}:{A+2*q+1}], v[{A+8+2*q}:{A+8+2*q+1}]")
        a(f"s_add_u32 s14, s13, {i*4*163840}")
        for q in range(4):
            a(f"v_cvt_pk_bf16_f32 v{Y+q}, v{A+2*q}, v{A+2*q+1}")
        a(f"buffer_store_dwordx4 v[{Y}:{Y+3}], v19, s[56:59], s14 offen{HSC}")


def conv_split(a, fused, ds, gread, combine, side, pend, acc, FR, GR, NG, PDG):
    cst = lambda i: _stamp(a, i + 1) if os.environ.get("STSET") == "C" else None
    if os.environ.get("STSET") == "C": _stamp(a, 0); ds.q = []
    a(f"v_mul_u32_u24 v12, {KP}, v4")
    a("v_lshl_add_u32 v12, v3, 5, v12")
    a("v_lshl_add_u32 v12, v5, 3, v12")
    a("s_lshl_b32 s13, s3, 8")
    a(f"s_add_u32 s13, s13, {KB}")
    a("v_add_u32 v12, s13, v12")
    a("v_lshl_add_u32 v6, v3, 2, v5")
    a("v_lshrrev_b32 v7, 1, v6")
    a("v_lshlrev_b32 v6, 7, v6")
    a("v_and_b32 v20, 1, v4")
    a("v_lshl_add_u32 v6, v20, 3, v6")
    a("s_lshl_b32 s12, s3, 11")
    a("v_add_u32 v6, s12, v6")
    a("v_lshrrev_b32 v20, 1, v4")
    a("v_add3_u32 v7, v7, v20, 2")
    a("v_and_b32 v7, 3, v7")
    a("v_lshl_add_u32 v13, v7, 4, v6")
    a("v_bfe_u32 v14, v1, 3, 2")
    a("v_lshrrev_b32 v6, 5, v1")
    a("v_lshl_add_u32 v14, v6, 3, v14")
    a("v_mul_u32_u24 v14, 20480, v14")
    a("v_and_b32 v6, 7, v1")
    a("v_lshl_add_u32 v14, v6, 4, v14")
    a("s_mul_i32 s13, s3, 327680")
    a("s_lshr_b32 s14, s4, 3")
    a("s_lshl_b32 s14, s14, 10")
    a("s_add_u32 s13, s13, s14")
    a("s_and_b32 s14, s4, 1")
    a("s_lshl_b32 s14, s14, 9")
    a("s_add_u32 s13, s13, s14")
    a("s_bfe_u32 s14, s4, 0x20001")
    a("s_lshl_b32 s14, s14, 7")
    a("s_add_u32 s13, s13, s14")
    a(f"s_sub_u32 s5, s2, {N_LN}")
    fused.setup()
    def fin(hf, Y0, A0):
        o = []
        for i in range(2):
            for par in range(2):
                o.append(f"ds_read_b64_tr_b16 v[{Y0+8*i+2*par}:{Y0+1+8*i+2*par}], v12 offset:{128 + (2*hf+i)*1024 + par*128}")
                o.append(f"ds_read_b64_tr_b16 v[{Y0+4+8*i+2*par}:{Y0+5+8*i+2*par}], v13 offset:{UB + UPAD + (2*hf+i)*8192 + par*64}")
        for i in range(2):
            Y = Y0 + 8 * i; A = A0 + 16 * i
            o.append(("wait", i))
            for q in range(4):
                o.append(f"v_lshlrev_b32 v{A+2*q}, 16, v{Y+q}")
                o.append(f"v_and_b32 v{A+2*q+1}, 0xffff0000, v{Y+q}")
                o.append(f"v_lshlrev_b32 v{A+8+2*q}, 16, v{Y+4+q}")
                o.append(f"v_and_b32 v{A+8+2*q+1}, 0xffff0000, v{Y+4+q}")
            for q in range(8): o.append(f"v_add_f32 v{A+q}, v{A+q}, v{A+8+q}")
            o.append(f"s_add_u32 s14, s13, {i*4*327680 + hf*81920}")
            for q in range(4): o.append(f"v_cvt_pk_bf16_f32 v{Y+q}, v{A+2*q}, v{A+2*q+1}")
            o.append(f"buffer_store_dwordx4 v[{Y}:{Y+3}], v14, s[56:59], s14 offen sc1")
        return o
    fq = []; fc = [0]
    def emit(n):
        for _ in range(n):
            if pend: side(1); continue
            if not fq: return
            t = fq.pop(0)
            if isinstance(t, tuple): ds.wait(("fin", t[1])); continue
            a(t)
            if t.startswith("ds_"): ds.issue(("fin", fc[0] // 4)); fc[0] += 1
    seq = list(range(16)) + list(range(32))
    def gr(n):
        d = seq[n]; g = GR + 4 * (n % NG)
        if d < 16: return
        for h in range(2):
            a(f"ds_read_b64_tr_b16 v[{g+2*h}:{g+2*h+1}], v{17+h} offset:{UB + 1024*d}"); ds.issue(("G", n))
    def run(n0, n1, hook=None):
        for n in range(n0, n1):
            d = seq[n]; lo = 0 if n < 16 else 16; hi = lo + 16
            ds.wait(("G", n))
            g = f"v[{GR+4*(n%NG)}:{GR+4*(n%NG)+3}]" if d >= 16 else f"a[{176+4*d}:{179+4*d}]"
            for T in range(max(d, lo + (d & 1)), hi, 2):
                Q = (T - d) // 2
                c = f"v[{acc(T)}:{acc(T)+3}]"
                a(f"v_mfma_f32_16x16x32_bf16 {c}, v[{FR+4*Q}:{FR+4*Q+3}], {g}, {c if d >= 2 else 0}")
                if not (hook and hook()): emit(ENV("F_EM1", 3) if n < B1 else ENV("F_EM", 2))
            if n + PDG < len(seq): gr(n + PDG)
            if n < 16 and d >= 1: pend.extend(combine(d - 1))
            if n == 16: pend.extend(combine(15))
            if n > 16 and d - 1 >= 16: pend.extend(combine(d - 1))
        if n1 == len(seq):
            pend.extend(combine(31)); emit(200)
    if ENV("F_EARLYW", 0):
        B1 = 16 + ENV("F_B1", 4); D1 = 16 + ENV("F_D1", 10); D2 = 16 + ENV("F_D2", 19); E0 = ENV("F_E0", 8)
        cnt = [0]; nld = [0]
        def hook():
            cnt[0] += 1
            if cnt[0] % ENV("F_WGAP", 5) == 0 and fused.load_one():
                nld[0] += 1; return True
            return False
        fused.poll_issue()
        run(0, E0)
        a("s_waitcnt vmcnt(0)")
        a("v_cmp_ne_u64 vcc, s[90:91], v[10:11]")
        a("s_cbranch_vccz W13K_E")
        fused.wait("E")
        a("s_mov_b32 s33, 1")
        run(E0, B1, hook)
        emit(100)
        a("s_waitcnt lgkmcnt(0)"); ds.q = []
        a("s_barrier")
        fq.extend(fin(0, 120, 136))
        run(B1, D1, hook)
        emit(200)
        nld[0] = 0
        run(D1, D2, hook)
        a(f"s_waitcnt vmcnt({nld[0]})")
        a("s_barrier")
        fused.flag("s5", 192, "HA", 20)
        fused.first = fused.n
        stamp(a, 6)
        run(D2, len(seq), hook)
    else:
        B1 = 16 + ENV("F_B1", 4); D1 = 16 + ENV("F_D1", 8); D2 = 16 + ENV("F_D2", 12)
        run(0, B1)
        if pend: print("conv_split: flushing", len(pend), "at B1")
        emit(100)
        a("s_waitcnt lgkmcnt(0)"); ds.q = []
        cst(0)
        a("s_barrier")
        cst(1)
        fq.extend(fin(0, 120, 136))
        run(B1, D1)
        if fq: print("conv_split: flushing", len(fq), "at D1")
        emit(200)
        cst(2)
        fused.poll_issue()
        run(D1, D2)
        cst(3)
        a("s_waitcnt vmcnt(0)")
        a("s_barrier")
        cst(4)
        fused.flag("s5", 192, "HA", 20)
        stamp(a, 6)
        fused.check("F_NOW13", wait=False)
        sv = (list(pend), list(ds.q))
        cnt = [0]
        def hook():
            cnt[0] += 1
            return cnt[0] % ENV("F_WGAP", 4) == 0 and fused.load_one()
        run(D2, len(seq), hook)
        a("s_branch F_CONVDONE")
        a.label("F_NOW13")
        pend[:] = sv[0]; ds.q = sv[1]
        a("s_mov_b32 s33, 0")
        run(D2, len(seq))
    a.label("F_CONVDONE")
    a("s_waitcnt lgkmcnt(0)"); ds.q = []
    cst(5)
    stamp(a, 4)
    a("s_barrier")
    fc[0] = 0
    fq.extend(fin(1, 24, 64))
    emit(500)
```

```python
import os
from asmlib import *
from layout import *
from k1 import srd, cmul, interleave, Rec, wave_reduce_sum
from kp2 import w2_ids, w2_dma_setup, w2_out_setup
ENV = lambda k, d: int(os.environ.get(k, d))
N_LN = 96
_stamp = stamp
def stamp(a, i):
    if os.environ.get('STSET', 'F') == 'F': _stamp(a, i)
UB = 0; UPAD = 2048; SB = UPAD + 32768; RS = 4352; ROWP = 272; WREG = 2 * RS
KB = SB + 12 * WREG; KP = 4416; TB = KB + 4 * KP; PK = UB + UPAD
assert TB + 4 * 1536 <= 163840
STG = 65536; XP = 272
WS = 42
XQ_OFF = UR_OFF

def front_entry(a):
    code_prefetch(a, 4, 132, "F4")
    a("s_load_dwordx16 s[16:31], s[0:1], 0")
    a("s_load_dwordx8 s[32:39], s[0:1], 64")
    a("s_load_dwordx4 s[40:43], s[0:1], 96")
    a("v_lshrrev_b32 v2, 6, v0")
    a("v_and_b32 v1, 63, v0")
    a("v_readfirstlane_b32 s3, v2")

def gen_front4(a):
    a.raw(kernel_header("front_kernel"))
    a("s_cmp_ge_u32 s2, 256")
    a("s_cbranch_scc1 F_END")
    front_entry(a)
    a(f"s_cmp_lt_u32 s2, {N_LN}")
    a("s_cbranch_scc1 F_LN")
    conv_wg(a)
    a("s_endpgm")
    a.label("F_LN")
    ln_wg(a)
    a.label("F_END")
    a("s_endpgm")

def epoch_wait(a, tag, vr, vz):
    a("s_mov_b32 s8, 0")
    a.label(f"EPW{tag}")
    a(f"v_readfirstlane_b32 s9, v{vr}")
    a("s_cmp_lg_u32 s9, 0")
    a(f"s_cbranch_scc1 EPOK{tag}")
    a("s_add_u32 s8, s8, 1")
    a("s_cmp_ge_u32 s8, 0x8000")
    a(f"s_cbranch_scc1 EPOK{tag}")
    a(f"buffer_load_dwordx2 v[{vr}:{vr+1}], v{vz}, s[48:51], 0 offen sc1")
    a("s_waitcnt vmcnt(0)")
    a(f"s_branch EPW{tag}")
    a.label(f"EPOK{tag}")

def l_w13_dma(a):
    m3 = magic(3, 256, 16)
    a("s_lshr_b32 s14, s2, 2")
    a("s_and_b32 s15, s2, 3")
    a("v_lshrrev_b32 v216, 3, v1")
    a("v_mul_u32_u24 v216, 3072, v216")
    a("v_and_b32 v3, 7, v1")
    a("v_lshl_add_u32 v216, v3, 4, v216")
    a(f"s_mul_i32 s70, s15, {5*98304}")
    a("s_lshl_b32 s71, s14, 7")
    a("s_add_u32 s70, s70, s71")
    a("s_and_b32 s71, s3, 1")
    a("s_mul_i32 s71, s71, 49152")
    a("s_add_u32 s70, s70, s71")
    a("s_cmp_lt_u32 s3, 2")
    a("s_cselect_b32 s72, s32, s34")
    a("s_cselect_b32 s73, s33, s35")
    a("s_mov_b32 s74, 1966080")
    a("s_mov_b32 s75, 0x20000")
    a("s_lshl_b32 s69, s3, 11")
    for n in range(5):
        for r in range(2):
            a(f"s_add_u32 m0, s69, {n*8192 + r*1024}")
            a(f"s_add_u32 s71, s70, {n*98304 + r*24576}")
            a("buffer_load_dwordx4 v216, s[72:75], s71 offen lds")

def l_w13(a, mid=None, early=False):
    m3 = magic(3, 256, 16)
    if not early: l_w13_dma(a)
    a("s_lshr_b32 s62, s2, 2")
    a("s_and_b32 s63, s2, 3")
    if mid: mid()
    for e in range(2):
        a("s_lshl_b32 s12, s62, 2")
        a("s_add_u32 s12, s12, s3")
        a("s_lshl_b32 s12, s12, 1")
        if e: a("s_add_u32 s12, s12, 1")
        a(f"s_mul_i32 s6, s12, {m3}")
        a("s_lshr_b32 s6, s6, 16")
        a(f"s_mul_i32 s{64+e}, s6, 58368")
        a("s_lshl_b32 s55, s12, 10")
        a(f"s_add_u32 s{64+e}, s{64+e}, s55")
        a(f"s_mul_i32 s55, s63, {5*3072}")
        a(f"s_add_u32 s{64+e}, s{64+e}, s55")
        a(f"s_mul_i32 s{66+e}, s6, {1024 - 192}")
        a("s_lshl_b32 s55, s12, 6")
        a(f"s_add_u32 s{66+e}, s{66+e}, s55")
        a("s_lshl_b32 s55, s63, 8")
        a(f"s_add_u32 s{66+e}, s{66+e}, s55")
    a("v_lshrrev_b32 v217, 4, v1")
    a("v_bfe_u32 v3, v1, 2, 2")
    a("v_lshl_add_u32 v217, v217, 3, v3")
    a("v_lshlrev_b32 v217, 7, v217")
    a("v_and_b32 v3, 1, v1")
    a("v_lshl_add_u32 v217, v3, 12, v217")
    a("v_bfe_u32 v3, v1, 1, 1")
    a("v_lshl_add_u32 v217, v3, 3, v217")
    a("s_lshl_b32 s14, s3, 5")
    a("v_add_u32 v217, s14, v217")
    a("v_bfe_u32 v218, v1, 3, 1")
    a("v_lshlrev_b32 v218, 3, v218")
    a("v_bfe_u32 v3, v1, 1, 1")
    a("v_lshl_add_u32 v218, v3, 2, v218")
    a("v_and_b32 v3, 1, v1")
    a("v_add_u32 v218, v218, v3")
    a("v_bfe_u32 v3, v1, 2, 1")
    a("v_lshl_add_u32 v218, v3, 1, v218")
    a("v_lshrrev_b32 v3, 4, v1")
    a("v_lshlrev_b32 v219, 4, v3")
    a("v_lshlrev_b32 v3, 8, v3")
    a("v_lshl_add_u32 v218, v218, 4, v3")
    srd(a, 44, WS, W13_OFF, 3932160); srd(a, 52, WS, CSQ_OFF, 64*1024)
    for i in range(4): a(f"v_mov_b32 v{8+i}, 0x3f803f80")
    a("s_mov_b32 s12, 0x00010001")
    a("s_mov_b32 s13, 0x00010001")
    a(f"s_waitcnt vmcnt({8 if mid else 0})")
    if os.environ.get("STSET") == "G": _stamp(a, 1)
    a("s_barrier")
    for n in range(5):
        for e in range(2):
            for h in range(2):
                r = 64 + 4 * (2 * n + e)
                a(f"ds_read_b64_tr_b16 v[{r+2*h}:{r+2*h+1}], v217 offset:{n*8192 + h*512 + e*16}")
    for n in range(5):
        for e in range(2):
            r = 64 + 4 * (2 * n + e)
            a(f"s_waitcnt lgkmcnt({min(15, 18 - 4*n - 2*e)})")
            a(f"buffer_store_dwordx4 v[{r}:{r+3}], v218, s[44:47], s{64+e} offen sc1")
            c = f"v[{12+4*e}:{15+4*e}]"
            a(f"v_mfma_f32_16x16x32_bf16 {c}, v[{r}:{r+3}], v[8:11], {c if n else 0}")
            if n < 4: a(f"s_add_u32 s{64+e}, s{64+e}, 3072")
    a("s_mov_b64 exec, s[12:13]")
    for e in range(2):
        a(f"buffer_store_dwordx4 v[{12+4*e}:{15+4*e}], v219, s[52:55], s{66+e} offen sc1")
    a("s_mov_b64 exec, -1")

def ln_wg(a, fused=None):
    a("s_memrealtime s[60:61]")
    a("v_mov_b32 v6, 0")
    a("s_waitcnt lgkmcnt(0)")
    srd(a, 48, 40, 0, 8)
    a("s_cmp_ge_u32 s2, 64")
    a("s_cbranch_scc1 F_SPARE")
    a("s_lshl_b32 s4, s2, 3")
    a("s_lshl_b32 s5, s3, 1")
    a("s_add_u32 s4, s4, s5")
    a("s_mul_i32 s5, s4, 5120")
    a("v_lshlrev_b32 v4, 2, v1")
    a("v_add_u32 v5, 2560, v4")
    srd(a, 44, 16, 0, SZ_X)
    a("s_add_u32 s7, s5, 5120")
    XD = ENV("F_XDMA", 0)
    if XD:
        a("v_lshlrev_b32 v3, 4, v1")
        a("s_mul_i32 s12, s3, 10240")
        a("v_add_u32 v5, s12, v4")
        for i in range(10):
            if i % 4 == 0:
                a(f"s_add_u32 m0, s12, {i*1024}")
                a(f"s_add_u32 s7, s5, {i*1024}")
            a(f"buffer_load_dwordx4 v3, s[44:47], s7 offen offset:{(i%4)*1024} lds")
    else:
        for i in range(8):
            for q in range(5):
                a(f"buffer_load_dword v{8+5*i+q}, v{4 if i % 4 < 2 else 5}, s[44:47], s{5 if i < 4 else 7} offen offset:{(i%2)*1280 + q*256}")
    if ENV("F_W13E", 0): l_w13_dma(a)
    a("s_lshl_b32 s9, s2, 2")
    a("s_add_u32 s9, s9, s3")
    a("s_cmp_lg_u32 s9, 0")
    a("s_cbranch_scc1 F_NOEP")
    a("s_or_b32 s60, s60, 1")
    a("v_mov_b32 v50, s60")
    a("v_mov_b32 v51, s61")
    a("v_mov_b32 v52, 0")
    a("v_mov_b32 v53, 0")
    a("v_lshlrev_b32 v48, 3, v1")
    a("buffer_atomic_cmpswap_x2 v[50:53], v48, s[48:51], 0 offen sc1")
    a.label("F_NOEP")
    srd(a, 52, WS, ST_OFF, 0x8000)
    a("s_lshl_b32 s9, s9, 7")
    a("s_mov_b64 exec, 0xffffffff")
    a("buffer_store_dword v6, v4, s[52:55], s9 offen sc1")
    a("s_mov_b64 exec, -1")
    srd(a, 52, WS, S1_OFF, 16384); srd(a, 56, WS, XQ_OFF, 160*16384)
    a("s_mov_b32 s10, 0x05040100")
    a("s_mov_b32 s11, 0x07060302")
    a("v_lshrrev_b32 v54, 1, v1")
    a(f"v_mul_u32_u24 v54, {XP}, v54")
    a("v_and_b32 v55, 1, v1")
    a("v_lshl_add_u32 v54, v55, 4, v54")
    a("s_lshl_b32 s9, s3, 6")
    a(f"s_add_u32 s9, s9, {STG}")
    a("v_add_u32 v54, s9, v54")
    a("v_lshrrev_b32 v57, 4, v0")
    a("v_and_b32 v58, 15, v0")
    a(f"v_mul_u32_u24 v55, {XP}, v57")
    a("v_lshl_add_u32 v55, v58, 4, v55")
    a(f"v_add_u32 v55, {STG}, v55")
    a("v_lshlrev_b32 v56, 14, v57")
    a("v_lshl_add_u32 v56, v58, 4, v56")
    a("s_lshl_b32 s68, s2, 8")
    a("s_lshl_b32 s6, s4, 5")
    a(f"v_mov_b32 v7, {f2u(1.0/640):#x}")
    a(f"s_waitcnt vmcnt({11 if ENV('F_W13E', 0) else 0})")
    stamp(a, 0)
    a("buffer_load_dwordx2 v[50:51], v6, s[48:51], 0 offen sc1")
    if XD:
        for q in range(5):
            for i in range(4): a(f"ds_read_b32 v{8+5*i+q}, v5 offset:{i*1280 + q*256}")
        for q in range(5):
            for i in range(4, 8): a(f"ds_read_b32 v{8+5*i+q}, v5 offset:{i*1280 + q*256}")
        a("s_waitcnt lgkmcnt(15)")
        a("s_waitcnt lgkmcnt(0)")
    for g in range(2):
        for q in range(5):
            d = 60 + 4 * (5 * g + q); b = 8 + 20 * g
            a(f"v_perm_b32 v{d}, v{b+5+q}, v{b+q}, s10")
            a(f"v_perm_b32 v{d+1}, v{b+15+q}, v{b+10+q}, s10")
            a(f"v_perm_b32 v{d+2}, v{b+5+q}, v{b+q}, s11")
            a(f"v_perm_b32 v{d+3}, v{b+15+q}, v{b+10+q}, s11")
            a(f"ds_write_b128 v54, v[{d}:{d+3}] offset:{q*32*XP + g*32}")
    a("s_waitcnt lgkmcnt(0)")
    a("s_barrier")
    for kk in range(10):
        a(f"ds_read_b128 v[{60+4*kk}:{63+4*kk}], v55 offset:{kk*16*XP}")
    for kk in range(10):
        a(f"s_add_u32 s69, s68, {kk*16*16384}")
        a(f"s_waitcnt lgkmcnt({9-kk})")
        a(f"buffer_store_dwordx4 v[{60+4*kk}:{63+4*kk}], v56, s[56:59], s69 offen sc1")
    stamp(a, 2)
    X = lambda i, q: 104 + 2 * (5 * i + q)
    SUM = lambda i: 184 + 2 * i
    MEAN = lambda i: 200 + 2 * i
    for i in range(8):
        for q in range(5):
            a(f"v_lshlrev_b32 v{X(i,q)}, 16, v{8+5*i+q}")
            a(f"v_and_b32 v{X(i,q)+1}, 0xffff0000, v{8+5*i+q}")
    for q in range(1, 5):
        for i in range(8):
            s = SUM(i); src = X(i, 0) if q == 1 else s
            a(f"v_pk_add_f32 v[{s}:{s+1}], v[{src}:{src+1}], v[{X(i,q)}:{X(i,q)+1}]")
    for i in range(8): a(f"v_add_f32 v{SUM(i)}, v{SUM(i)}, v{SUM(i)+1}")
    wave_reduce_sum(a, [SUM(i) for i in range(8)])
    for i in range(8): a(f"v_readlane_b32 s{60+i}, v{SUM(i)}, 63")
    for i in range(8): a(f"v_mul_f32 v{MEAN(i)}, s{60+i}, v7")
    for q in range(5):
        for i in range(8):
            x = X(i, q); m = MEAN(i)
            a(f"v_pk_add_f32 v[{x}:{x+1}], v[{x}:{x+1}], v[{m}:{m+1}] op_sel_hi:[1,0] neg_lo:[0,1] neg_hi:[0,1]")
    for q in range(5):
        for i in range(8):
            x = X(i, q); s = SUM(i)
            if q == 0: a(f"v_pk_mul_f32 v[{s}:{s+1}], v[{x}:{x+1}], v[{x}:{x+1}]")
            else: a(f"v_pk_fma_f32 v[{s}:{s+1}], v[{x}:{x+1}], v[{x}:{x+1}], v[{s}:{s+1}]")
    for i in range(8): a(f"v_add_f32 v{SUM(i)}, v{SUM(i)}, v{SUM(i)+1}")
    wave_reduce_sum(a, [SUM(i) for i in range(8)])
    for i in range(8): a(f"v_readlane_b32 s{60+i}, v{SUM(i)}, 63")
    R = lambda i: 16 + i
    G = lambda i: 24 + 4 * (i // 2) + (i % 2)
    steps = [
        lambda i: f"v_mul_f32 v{R(i)}, s{60+i}, v7",
        lambda i: f"v_cvt_pk_bf16_f32 v{R(i)}, v{R(i)}, v{R(i)}",
        lambda i: f"v_lshlrev_b32 v{R(i)}, 16, v{R(i)}",
        lambda i: f"v_add_f32 v{R(i)}, {f2u(1e-5):#x}, v{R(i)}",
        lambda i: f"v_cvt_pk_bf16_f32 v{R(i)}, v{R(i)}, v{R(i)}",
        lambda i: f"v_lshlrev_b32 v{R(i)}, 16, v{R(i)}",
        lambda i: f"v_sqrt_f32 v{R(i)}, v{R(i)}",
        lambda i: f"v_cvt_pk_bf16_f32 v{G(i)}, v{MEAN(i)}, v{R(i)}",
    ]
    for st in steps:
        for i in range(8): a(st(i))
    stamp(a, 1)
    a("s_waitcnt vmcnt(10)")
    epoch_wait(a, "L", 50, 6)
    for k in range(4):
        a(f"v_mov_b32 v{26+4*k}, v50")
        a(f"v_mov_b32 v{27+4*k}, v51")
    a("s_lshl_b32 s9, s3, 6")
    a(f"s_add_u32 s9, s9, {STG - 1024}")
    a("v_mov_b32 v40, s9")
    for k in range(4):
        a(f"ds_write_b128 v40, v[{24+4*k}:{27+4*k}] offset:{16*k}")
    a("v_lshlrev_b32 v41, 4, v1")
    a(f"v_add_u32 v42, {STG - 1024}, v41")
    a("s_lshl_b32 s6, s2, 8")
    a("s_waitcnt vmcnt(0) lgkmcnt(0)")
    stamp(a, 3)
    a("s_barrier")
    a("s_cmp_lg_u32 s3, 0")
    a("s_cbranch_scc1 F_W2")
    a("ds_read_b128 v[44:47], v42")
    a("s_mov_b64 exec, 0xffff")
    a("s_waitcnt lgkmcnt(0)")
    a("buffer_store_dwordx4 v[44:47], v41, s[52:55], s6 offen sc1")
    a("s_mov_b64 exec, -1")
    a("s_branch F_W2")
    a.label("F_SPARE")
    a("v_mov_b32 v50, 0")
    if ENV("F_SPW", 1): epoch_wait(a, "S0", 50, 6)
    if ENV("F_SPW", 1) > 1:
        srd(a, 52, WS, S1_OFF, 16384)
        a("s_sub_u32 s9, s2, 64")
        a("s_lshl_b32 s9, s9, 8")
        a("v_readfirstlane_b32 s90, v50")
        a("v_readfirstlane_b32 s91, v51")
        a("s_mov_b32 s8, 0")
        a.label("F_SPL")
        a("s_sleep 8")
        a("buffer_load_dwordx2 v[52:53], v6, s[52:55], s9 offen offset:8 sc1")
        a("s_waitcnt vmcnt(0)")
        a("v_cmp_ne_u64 vcc, s[90:91], v[52:53]")
        a("s_cbranch_vccz F_SPK")
        a("s_add_u32 s8, s8, 1")
        a("s_cmp_lt_u32 s8, 0x4000")
        a("s_cbranch_scc1 F_SPL")
        a.label("F_SPK")
    if ENV("F_TLB", 0):
        srd(a, 52, WS, 0, 0x1A00000); srd(a, 56, 38, 0, SZ_X)
        a(f"v_mul_u32_u24 v60, {0x68000 // 4}, v0")
        a("v_mul_u32_u24 v61, 10240, v0")
        a("buffer_load_dword v62, v60, s[52:55], 0 offen")
        a("buffer_load_dword v63, v61, s[56:59], 0 offen")
    if ENV("F_W13E", 0): l_w13_dma(a)
    a.label("F_W2")
    if ENV("F_NOPACK", 0): a("s_endpgm")
    if ENV("F_PSLEEP", 0):
        for _ in range(ENV("F_PSLEEP", 0)): a("s_sleep 32")
    def w2_start():
        a("s_mul_i32 s9, s2, 3")
        a("s_add_u32 s9, s9, s3")
        a("s_cmp_eq_u32 s3, 3")
        a("s_cselect_b32 s9, 240, s9")
        a("s_min_u32 s9, s9, 240")
        a("s_mov_b32 s28, s48"); a("s_mov_b32 s29, s49")
        a("s_mov_b32 s40, s42"); a("s_mov_b32 s41, s43")
        w2_ids(a, 9)
        w2_dma_setup(a, 124, 125, 126, 127)
        a("s_cmp_eq_u32 s9, 240")
        a("s_cselect_b32 s50, 0, s50")
        a("s_lshl_b32 s8, s3, 13")
        a("s_add_u32 s8, s8, 40960")
        for i in range(8):
            a(f"s_add_u32 m0, s8, {i*1024}")
            a(f"s_add_u32 s70, s69, {(i>>1)*2560}")
            a(f"buffer_load_dwordx4 v{124 + (i&1)}, s[48:51], s70 offen lds")
        a("s_mov_b32 s30, s65"); a("s_mov_b32 s31, s66")
        srd(a, 48, 28, 0, 8)
    l_w13(a, w2_start, ENV('F_W13E', 0))
    a("s_mov_b32 s65, s30"); a("s_mov_b32 s66, s31")
    a("v_mov_b32 v7, 0")
    if fused:
        epoch_wait(a, "S", 50, 7)
        a("v_readfirstlane_b32 s90, v50")
        a("v_readfirstlane_b32 s91, v51")
    a("s_mul_i32 s9, s2, 3")
    a("s_add_u32 s9, s9, s3")
    a("s_cmp_eq_u32 s3, 3")
    a("s_cselect_b32 s9, 240, s9")
    a("s_min_u32 s9, s9, 240")
    w2_out_setup(a, 0)
    a("s_cmp_eq_u32 s9, 240")
    a("s_cselect_b32 s54, 0, s54")
    a("s_lshl_b32 s8, s3, 13")
    a("s_add_u32 s8, s8, 40960")
    a("v_add_u32 v6, s8, v6")
    a("s_waitcnt vmcnt(0)")
    for i in range(8):
        for h in range(2):
            a(f"ds_read_b64_tr_b16 v[{24+4*i+2*h}:{25+4*i+2*h}], v6 offset:{h*1024 + i*32}")
    if fused:
        a("s_barrier")
        fused.flag("s2", 0, "W", 20)
        if os.environ.get("STSET") == "G": _stamp(a, 0)
    for i in range(8):
        a(f"s_waitcnt lgkmcnt({14-2*i})")
        a(f"buffer_store_dwordx4 v[{24+4*i}:{27+4*i}], v8, s[52:55], s{56+i} offen sc1")

def kgen_stream(m):
    B = 16 + 70 * m; L = m * 4 * WREG; A = 64 * m
    ADT = m < ENV('F_ADT', 2)
    if m == 2: L = 0
    wa, ra = (3, 4) if m < 2 else (234, 235)
    W = lambda t, off: f"ds_write_addtid_b32 v{t} offset:{off}" if ADT else f"ds_write_b32 v{wa}, v{t} offset:{off}"
    o = []
    a = o.append
    for r in range(4): a(f"v_lshlrev_b32 v{B+r}, 16, v{B+r}")
    W1, W8, W128, W16 = B + 4, B + 6, B + 8, B + 10
    tmp = [B + 12 + i for i in range(4)]; ringr = [B + 16 + 2 * i for i in range(4)]
    Q = {q: B + 36 + 2 * q for q in range(17)}
    a(f"v_mul_f32 v{B}, v{B}, v15")
    a(f"v_exp_f32 v{B}, v{B}")
    a(f"v_mul_f32 v{B+1}, v{B+1}, v14")
    a(f"v_mul_f32 v{Q[0]}, v{B+2}, v9")
    a(f"v_mul_f32 v{Q[0]+1}, v{B+3}, v9")
    a(f"v_cvt_pk_bf16_f32 v{B}, v{B}, v{B}")
    a(f"v_mul_f32 v{B+1}, {f2u(INV2PI):#x}, v{B+1}")
    a(f"v_lshlrev_b32 v{B}, 16, v{B}")
    a(f"v_mul_f32 v{B}, v{B}, v14")
    a(f"v_mul_f32 v{B}, v{B}, v15")
    E = B + 12; F = B + 16
    for k, p in enumerate((1.0, 8.0, 128.0)):
        a(f"v_mul_f32 v{F+k}, {f2u(p):#x}, v{B+1}")
        a(f"v_mul_f32 v{E+k}, {f2u(-p):#x}, v{B}")
    for k in range(3):
        a(f"v_fract_f32 v{F+k}, v{F+k}")
        a(f"v_exp_f32 v{E+k}, v{E+k}")
    for k in range(3):
        a(f"v_cos_f32 v{W1+2*k}, v{F+k}")
        a(f"v_sin_f32 v{W1+1+2*k}, v{F+k}")
    for k in range(3):
        a(f"v_mul_f32 v{W1+2*k}, v{W1+2*k}, v{E+k}")
        a(f"v_mul_f32 v{W1+1+2*k}, v{W1+1+2*k}, v{E+k}")
    tctr = [0]
    def put(r, reg, row, val, neg=False):
        t = tmp[tctr[0] % 4]; tctr[0] += 1
        r(f"v_cvt_pk_bf16_f32 v{t}, v{val}, {'-' if neg else ''}v{val+1}")
        r(W(t, L + reg*RS + row*ROWP))
    rb = Rec()
    rb(W(13, L))
    cmul(rb, W16, W8, W8)
    put(rb, 0, 1, W8, True); put(rb, 0, 2, W16, True)
    ring = {1: W8, 2: W16}
    for b in range(3, 16):
        d = ringr[b % 4]
        cmul(rb, d, ring[b-2], W16); ring[b] = d
        put(rb, 0, b, d, True)
    wc = {1: W1}; rw = Rec()
    for c, (x, y) in ((2, (1, 1)), (3, (2, 1)), (4, (2, 2)), (5, (4, 1)), (6, (4, 2)), (7, (4, 3))):
        wc[c] = B + 24 + 2 * (c - 2); cmul(rw, wc[c], wc[x], wc[y])
    rq = Rec()
    for q in range(1, 17): cmul(rq, Q[q], Q[q-1], W128)
    o += interleave(rb.l, rw.l + rq.l)
    def rd(which, reg):
        for s in range(4):
            a(("rd", (m, which), f"ds_read_b128 a[{A+16*which+4*s}:{A+16*which+4*s+3}], v{ra} offset:{L + reg*RS + s*64}"))
    def mf(t):
        for s in range(4):
            c = f"a[{192+4*t}:{195+4*t}]"
            a(("mf", (m, t + 1), f"v_mfma_f32_16x16x32_bf16 {c}, a[{A+16*(t+1)+4*s}:{A+16*(t+1)+4*s+3}], a[{A+4*s}:{A+4*s+3}], {c}"))
    rd(0, 0)
    pc = [0]
    def run(jobs):
        for reg, row, x, y in jobs:
            if y is None: put(a, reg, row, x); continue
            d = ringr[pc[0] % 4]; pc[0] += 1
            cmul(a, d, x, y); put(a, reg, row, d)
    run([(1, 8*ap + c, Q[ap], wc[c] if c else None) for ap in range(2) for c in range(8)])
    rd(1, 1)
    run([(0, 4*ap + c, Q[2+ap], wc[2*c] if c else None) for ap in range(2) for c in range(4)])
    mf(0)
    run([(0, 8 + 2*ap + c, Q[4+ap], wc[4] if c else None) for ap in range(4) for c in range(2)])
    rd(2, 0)
    for q in range(8, 17): put(a, 1, q - 8, Q[q])
    rd(3, 1)
    mf(1); mf(2)
    return o

def kgen_all(a, hooks):
    ds = Cnt(a, "lgkmcnt", 15)
    streams = [kgen_stream(m) for m in range(3)]
    lag = ENV("F_LAG", 12)
    seq = []
    n = max(len(s) + i * lag for i, s in enumerate(streams))
    for k in range(n):
        for i, s in enumerate(streams):
            j = k - i * lag
            if 0 <= j < len(s):
                if j == 0 and i: seq.append(("vm", i))
                seq.append(s[j])
    for idx, e in enumerate(seq):
        if idx in hooks: hooks[idx]()
        if isinstance(e, tuple):
            if e[0] == "vm": a(f"s_waitcnt vmcnt({8 - 4*e[1]})"); continue
            if e[0] == "rd": a(e[2]); ds.issue(e[1]); continue
            ds.wait(e[1]); a(e[2]); continue
        a(e)
        if e.startswith("ds_"): ds.issue("w")
    return len(seq)

NB = 120
def st_loads(a):
    a(f"buffer_load_dwordx2 v[{NB}:{NB+1}], v229, s[48:51], 0 offen sc1")
    for g in range(2):
        b = NB + 4 + 12 * g
        a(f"buffer_load_dwordx4 v[{b}:{b+3}], v228, s[44:47], 0 offen offset:{32*g} sc1")
        a(f"buffer_load_dwordx4 v[{b+4}:{b+7}], v228, s[44:47], 0 offen offset:{32*g+16} sc1")

def conv_wg(a, fused=None, split=False):
    a(f"s_sub_u32 s5, s2, {N_LN}")
    a("s_and_b32 s6, s5, 7")
    a("s_mul_i32 s6, s6, 20")
    a("s_lshr_b32 s4, s5, 3")
    a("s_add_u32 s4, s4, s6")
    a("s_lshl_b32 s7, s4, 2")
    a("s_add_u32 s7, s7, s3")
    a("s_mul_i32 s8, s7, 384")
    a("v_lshlrev_b32 v2, 1, v1")
    a("v_add_u32 v2, s8, v2")
    a("s_lshr_b32 s9, s7, 1")
    a("s_lshl_b32 s9, s9, 2")
    a("s_lshl_b32 s12, s4, 3")
    a("s_waitcnt lgkmcnt(0)")
    a("s_load_dword s10, s[26:27], s9")
    a("s_load_dwordx2 s[68:69], s[28:29], s12")
    for m in range(3):
        for r in range(4):
            a(f"global_load_ushort v{16+70*m+r}, v2, s[{18+2*r}:{19+2*r}] offset:{128*m}")
    a("s_mov_b32 s60, s36"); a("s_mov_b32 s61, s37")
    srd(a, 44, WS, S1_OFF, 16384); srd(a, 48, 40, 0, 8); srd(a, 56, WS, H_OFF, SZ_X); srd(a, 36, WS, XQ_OFF, 160*16384)
    a("s_mul_i32 s11, s3, 1536")
    a(f"s_add_u32 s11, s11, {TB}")
    a(f"s_mul_i32 s13, s3, {KP}")
    a(f"s_add_u32 s13, s13, {KB}")
    a("v_lshlrev_b32 v2, 4, v1")
    a("v_add_u32 v226, s13, v2")
    a("s_lshl_b32 s9, s5, 2")
    a("s_add_u32 s9, s9, s3")
    a("s_mul_i32 s9, s9, 3072")
    a("v_add_u32 v227, s9, v2")
    a("v_lshlrev_b32 v228, 6, v0")
    a("v_mov_b32 v229, 0")
    a("s_mov_b32 s15, 8192")
    for i in range(12): a(f"v_accvgpr_write_b32 a{192+i}, 0")
    a("v_and_b32 v5, 15, v1")
    a("v_lshrrev_b32 v6, 4, v1")
    a("v_lshrrev_b32 v236, 1, v6")
    a("v_lshlrev_b32 v236, 8, v236")
    a("v_and_b32 v7, 1, v6")
    a("v_lshl_add_u32 v236, v7, 3, v236")
    a("v_lshl_add_u32 v236, v5, 4, v236")
    a("v_add_u32 v236, s11, v236")
    a("v_cmp_gt_u32 vcc, 2, v6")
    a("v_lshlrev_b32 v237, 3, v5")
    a("v_lshlrev_b32 v7, 2, v5")
    a("v_mov_b32 v238, 64")
    a("v_cndmask_b32 v237, v7, v237, vcc")
    a("v_cndmask_b32 v238, v238, 4, vcc")
    a("v_lshl_add_u32 v237, v6, 7, v237")
    a("v_add_u32 v237, s11, v237")
    a("v_add_u32 v238, v238, v237")
    a("v_lshlrev_b32 v239, 1, v5")
    a("v_lshl_add_u32 v239, v6, 7, v239")
    a("v_add_u32 v239, s11, v239")
    a("v_cmp_gt_u32 s[6:7], 32, v1".replace("s[6:7]", "vcc"))
    a("v_lshlrev_b32 v240, 4, v1")
    a("v_lshlrev_b32 v7, 3, v1")
    a("v_add_u32 v7, 256, v7")
    a("v_cndmask_b32 v240, v7, v240, vcc")
    a("v_add_u32 v240, s11, v240")
    a("v_lshlrev_b32 v241, 2, v1")
    a("v_add_u32 v241, s11, v241")
    a("v_lshlrev_b32 v242, 1, v1")
    a("v_add_u32 v242, s11, v242")
    a("v_mov_b32 v7, 0x01000100"); a("v_mov_b32 v8, 0x03020100"); a("v_cndmask_b32 v243, v7, v8, vcc")
    a("v_mov_b32 v7, 0x05040302"); a("v_mov_b32 v8, 0x07060504"); a("v_cndmask_b32 v244, v7, v8, vcc")
    a("v_mov_b32 v7, 0x01000100"); a("v_cndmask_b32 v245, v7, v8, vcc")
    a("v_and_b32 v7, 1, v1")
    a("v_cmp_eq_u32 vcc, 0, v7")
    a("v_mov_b32 v7, 0x05040504"); a("v_mov_b32 v8, 0x05040100"); a("v_cndmask_b32 v246, v7, v8, vcc")
    a("v_lshrrev_b32 v10, 4, v1")
    a("v_bfe_u32 v11, v1, 2, 2")
    a("v_and_b32 v12, 3, v1")
    a("v_lshlrev_b32 v247, 6, v10")
    a("v_lshl_add_u32 v247, v11, 3, v247")
    a("v_lshl_add_u32 v247, v12, 5, v247")
    a("v_add_u32 v247, s13, v247")
    a("s_lshr_b32 s14, s3, 1")
    a("s_and_b32 s12, s3, 1")
    a("s_lshl_b32 s12, s12, 3")
    for h in range(2):
        a(f"v_add_u32 v6, {44 - 4*h}, v12")
        a("v_sub_u32 v6, v6, v11")
        a("v_lshlrev_b32 v7, 3, v10")
        a("v_sub_u32 v6, v6, v7")
        a("v_lshrrev_b32 v7, 2, v6")
        a("v_add_u32 v7, s14, v7")
        a("v_and_b32 v7, 3, v7")
        a("v_lshlrev_b32 v6, 6, v6")
        a("v_lshl_add_u32 v6, v7, 4, v6")
        a(f"v_add_u32 v{248+h}, s12, v6")
    a("v_and_b32 v250, 1, v1")
    a("v_lshlrev_b32 v250, 7, v250")
    a("v_and_b32 v6, 62, v1")
    a("v_add3_u32 v250, s13, v250, v6")
    a("v_lshrrev_b32 v6, 1, v0")
    a("v_lshlrev_b32 v7, 7, v0")
    a(f"v_add_u32 v7, {UB + UPAD}, v7")
    for n in range(4):
        a(f"v_add_u32 v8, {n}, v6")
        a("v_and_b32 v8, 3, v8")
        a(f"v_lshl_add_u32 v{251+n}, v8, 4, v7")
    a(f"s_mul_i32 s8, s3, {WREG}")
    a(f"s_add_u32 s8, s8, {SB}")
    a("s_mov_b32 s14, s8")
    a("v_lshlrev_b32 v3, 2, v1")
    a("v_add_u32 v3, s8, v3")
    a("v_and_b32 v4, 15, v1")
    a(f"v_mul_u32_u24 v4, {ROWP}, v4")
    a("v_lshrrev_b32 v5, 4, v1")
    a("v_lshl_add_u32 v4, v5, 4, v4")
    a("v_add_u32 v4, s8, v4")
    a(f"v_add_u32 v234, {8*WREG}, v3")
    a(f"v_add_u32 v235, {8*WREG}, v4")
    a("s_mov_b32 m0, s14")
    a("v_mov_b32 v7, 0")
    a("v_lshlrev_b32 v6, 3, v0")
    a("v_mov_b32 v8, 0")
    a(f"ds_write_b64 v6, v[7:8] offset:{UB}".replace("v[7:8]", "v[6:7]") if False else "v_mov_b32 v9, 0")
    a(f"ds_write_b64 v6, v[8:9] offset:{UB}")
    a("v_and_b32 v6, 31, v1")
    a("v_lshlrev_b32 v6, 2, v6")
    a("v_add_u32 v6, s13, v6")
    a("ds_write_b32 v6, v7")
    a("s_waitcnt lgkmcnt(0)")
    a("s_lshl_b32 s9, s10, 16")
    a("s_and_b32 s10, s10, 0xffff0000")
    a("s_bitcmp1_b32 s7, 0")
    a("s_cselect_b32 s10, s10, s9")
    for e in range(2):
        a(f"s_lshl_b32 s{64+2+2*e}, s{68+e}, 16".replace(f"s{66+2*e}", f"s{84+2*e}"))
        a(f"s_and_b32 s{85+2*e}, s{68+e}, 0xffff0000")
    a(f"v_mov_b32 v15, {f2u(LOG2E):#x}")
    a("v_mul_f32 v14, s10, v15")
    a("v_exp_f32 v14, v14")
    a("v_cvt_pk_bf16_f32 v14, v14, v14")
    a("v_lshlrev_b32 v14, 16, v14")
    a("v_add_f32 v9, v14, v14")
    a("v_mov_b32 v13, 0x3f80")
    if ENV("F_ST5", 0): stamp(a, 6)
    a("s_waitcnt vmcnt(8)")
    stamp(a, 0)
    if os.environ.get("F_DROP"): a.drop = os.environ["F_DROP"].split(",")
    if os.environ.get("F_DROP"): a.drop = os.environ["F_DROP"].split(",")
    def wpf(k):
        m, i = divmod(k, 3); p = (32, 34, 60)[m]
        return lambda: a(f"global_load_dwordx4 a[{208+12*m+4*i}:{211+12*m+4*i}], v227, s[{p}:{p+1}] offset:{i*1024}")
    W0 = ENV("F_WPF", 250); WSP = ENV("F_WSP", 1)
    kgen_all(a, {W0 + k * WSP: wpf(k) for k in range(9)} if W0 else {})
    a.drop = None
    stamp(a, 1)
    for i in range(12): a(f"v_accvgpr_read_b32 v{16+i}, a{192+i}")
    st_loads(a)
    for t in range(3):
        a(f"v_cvt_pk_bf16_f32 v{28+2*t}, v{16+4*t}, v{17+4*t}")
        a(f"v_cvt_pk_bf16_f32 v{29+2*t}, v{18+4*t}, v{19+4*t}")
    a("ds_write_b64 v236, v[28:29]")
    a("ds_write_b32 v237, v30 offset:512")
    a("ds_write_b32 v238, v31 offset:512")
    a("ds_write_b16 v239, v32 offset:1024")
    a("ds_write_b16_d16_hi v239, v32 offset:1056")
    a("ds_write_b16 v239, v33 offset:1088")
    a("ds_write_b16_d16_hi v239, v33 offset:1120")
    a("ds_read2_b64 v[40:43], v240 offset0:0 offset1:1")
    a("ds_read2_b32 v[44:45], v241 offset0:192 offset1:193")
    for r in range(2):
        a(f"ds_read_u16 v{46+2*r}, v242 offset:{1024 + 128*r}")
        a(f"ds_read_u16 v{47+2*r}, v242 offset:{1026 + 128*r}")
    for i, r in enumerate((247, 248, 249, 250, 251, 252, 253, 254)): a(f"v_mov_b32 v{16+i}, v{r}")
    a("v_mov_b32 v3, v10"); a("v_mov_b32 v4, v11"); a("v_mov_b32 v5, v12")
    a("s_mov_b32 s8, 0x01000100")
    a("s_mov_b32 s9, 0x03020100")
    a("s_mov_b32 s10, 0x03020302")
    a("s_mov_b32 s12, 0x05040302")
    a("v_cmp_gt_u32 vcc, 32, v1")
    a("s_waitcnt lgkmcnt(5)")
    a("v_perm_b32 v52, v40, v40, v243")
    a("v_perm_b32 v53, v41, v40, v244")
    a("v_perm_b32 v54, v42, v41, v245")
    a("v_perm_b32 v55, v42, v41, s12")
    a("v_cndmask_b32 v55, v55, v43, vcc")
    a("ds_write_b128 v226, v[52:55] offset:128")
    a("s_waitcnt lgkmcnt(5)")
    a("v_perm_b32 v56, v44, v44, s8")
    a("v_mov_b32 v57, v44")
    a("v_perm_b32 v58, v44, v44, s10")
    a("v_perm_b32 v59, v45, v45, s8")
    a("ds_write_b128 v226, v[56:59] offset:1152")
    a("s_waitcnt lgkmcnt(2)")
    for r in range(2):
        d = 60 + 4 * r
        a(f"v_perm_b32 v{d}, v{46+2*r}, v{46+2*r}, s8")
        a(f"v_mov_b32 v{d+1}, v{d}")
        a(f"v_perm_b32 v{d+2}, v{47+2*r}, v{46+2*r}, v246")
        a(f"v_perm_b32 v{d+3}, v{47+2*r}, v{47+2*r}, s8")
        a(f"ds_write_b128 v226, v[{d}:{d+3}] offset:{128 + (2+r)*1024}")
    FR = 24; GR = 88; NG = 8; AR = 120; T2 = 248
    for Q in range(15, -1, -1):
        for h in range(2):
            a(f"ds_read_b64_tr_b16 v[{FR+4*Q+2*h}:{FR+4*Q+2*h+1}], v16 offset:{32 + 256*Q + 32*h}")
    a("s_lshl_b32 s9, s4, 14")
    a("s_add_u32 s12, s9, 8192")
    a("s_mov_b32 s52, 0")
    a.label("F_STW")
    a("s_waitcnt vmcnt(0)")
    a(f"v_cmp_eq_u32 vcc, 0, v{NB}")
    for off in (6, 10, 18, 22):
        a(f"v_cmp_ne_u64 s[10:11], v[{NB}:{NB+1}], v[{NB+off}:{NB+off+1}]")
        a("s_or_b64 vcc, vcc, s[10:11]")
    a("s_cbranch_vccz F_STOK")
    a("s_add_u32 s52, s52, 1")
    a("s_cmp_ge_u32 s52, 0x8000")
    a("s_cbranch_scc1 F_STOK")
    a(f"s_sleep {ENV('F_SLEEP', 2)}")
    st_loads(a)
    a("s_branch F_STW")
    a.label("F_STOK")
    stamp(a, 2)
    a(f"v_readfirstlane_b32 s90, v{NB}")
    a(f"v_readfirstlane_b32 s91, v{NB+1}")
    XR = 152
    for g in range(2):
        for hh in range(2):
            a(f"buffer_load_dwordx4 v[{XR+8*g+4*hh}:{XR+8*g+4*hh+3}], v228, s[36:39], s9 offen offset:{32*g + 16*hh} sc1")
    RSr = 176; NM = 184; X = lambda g, c, h: 192 + 16 * g + 4 * c + 2 * h; U = lambda c, h: 224 + 4 * c + 2 * h
    Gs = lambda g, i: NB + 4 + 12 * g + (0, 1, 4, 5)[i]
    for g in range(2):
        for i in range(4): a(f"v_and_b32 v{RSr+4*g+i}, 0xffff0000, v{Gs(g,i)}")
    for i in range(8): a(f"v_rcp_f32 v{RSr+i}, v{RSr+i}")
    for g in range(2):
        for i in range(4): a(f"v_lshlrev_b32 v{NM+4*g+i}, 16, v{Gs(g,i)}")
    for i in range(8): a(f"v_mul_f32 v{NM+i}, -v{NM+i}, v{RSr+i}")
    a("s_mov_b32 s70, 0"); a("s_mov_b32 s71, 0x80000000")
    a("s_mov_b32 s72, 0"); a("s_mov_b32 s73, 0xc0000000")
    a("s_mov_b32 s74, 0"); a("s_mov_b32 s75, 0xe0000000")
    for g in range(2):
        a(f"s_waitcnt vmcnt({2 - 2*g})")
        for c in range(4):
            for h in range(2):
                a(f"v_lshlrev_b32 v{X(g,c,h)}, 16, v{XR+8*g+2*c+h}")
                a(f"v_and_b32 v{X(g,c,h)+1}, 0xffff0000, v{XR+8*g+2*c+h}")
        for c in range(4):
            for h in range(2):
                a(f"v_pk_fma_f32 v[{U(c,h)}:{U(c,h)+1}], v[{X(g,c,h)}:{X(g,c,h)+1}], v[{RSr+4*g+2*h}:{RSr+4*g+2*h+1}], v[{NM+4*g+2*h}:{NM+4*g+2*h+1}]")
        O = 240
        for c in range(4):
            for h in range(2):
                a(f"v_cvt_pk_bf16_f32 v{O+2*c+h}, v{U(c,h)}, v{U(c,h)+1}")
            if c % 2: a(f"ds_write_b128 v{20+c//2}, v[{O+2*c-2}:{O+2*c+1}] offset:{g*64}")
        for c in range(4):
            o = c % 2
            for h in range(2):
                a(f"v_pk_fma_f32 v[{X(g,c,h)}:{X(g,c,h)+1}], v[{U(c,h)}:{U(c,h)+1}], s[{84+2*(c//2)}:{85+2*(c//2)}], v[{X(g,c,h)}:{X(g,c,h)+1}] op_sel:[0,{o},0] op_sel_hi:[1,{o},1]")
    for par in range(2):
        for c in range(4):
            for g in range(2):
                a(f"v_cvt_pk_bf16_f32 v{XR+8*par+2*c+g}, v{X(g,c,0)+par}, v{X(g,c,1)+par}")
            if c % 2: a(f"ds_write_b128 v{22+c//2}, v[{XR+8*par+2*c-2}:{XR+8*par+2*c+1}] offset:{par*64}")
    a("s_waitcnt lgkmcnt(0)")
    stamp(a, 3)
    a("s_barrier")
    ds = Cnt(a, "lgkmcnt", 15)
    acc = lambda T: AR + 4 * T
    def gread(d):
        g = GR + 4 * (d % NG)
        for h in range(2):
            a(f"ds_read_b64_tr_b16 v[{g+2*h}:{g+2*h+1}], v{17+h} offset:{UB + 1024*d}"); ds.issue(("G", d))
    PDG = 6
    if split:
        for d in range(16):
            for h in range(2):
                a(f"ds_read_b64_tr_b16 a[{176+4*d+2*h}:{177+4*d+2*h}], v{17+h} offset:{UB + 1024*d}"); ds.issue(("G", d))
    else:
        for d in range(PDG): gread(d)
    started = set(); pend = []
    def combine(T):
        t = T2 + 4 * (T % 2); D = acc(T); out = []
        for e, m in ((3, 74), (2, 72), (1, 70)):
            prev = f"v{acc(T-1)+e}" if T > 0 else "0"
            out.append(f"v_cndmask_b32 v{t+e}, v{D+e}, {prev}, s[{m}:{m+1}]")
        out.append(f"v_add_f32_dpp v{t+2}, v{t+3}, v{t+2} wave_ror:1 row_mask:0xf bank_mask:0xf")
        out.append(f"v_add_f32_dpp v{t+1}, v{t+2}, v{t+1} wave_ror:1 row_mask:0xf bank_mask:0xf")
        out.append(f"v_add_f32_dpp v{t}, v{t+1}, v{D} wave_ror:1 row_mask:0xf bank_mask:0xf")
        out.append(f"v_cvt_pk_bf16_f32 v{t}, v{t}, v{t}")
        out.append(f"ds_write_b16 v19, v{t} offset:{128 + (T>>1)*256 + (T&1)*64}")
        return out
    def side(n):
        for _ in range(n):
            if pend:
                t = pend.pop(0); a(t)
                if t.startswith("ds_"): ds.issue("Y")
    if split:
        conv_split(a, fused, ds, gread, combine, side, pend, acc, FR, GR, NG, PDG)
        return
    def run_deltas(d0, d1, hook=None):
        for d in range(d0, d1):
            ds.wait(("G", d))
            g = GR + 4 * (d % NG)
            for T in range(d, 32, 2):
                Q = (T - d) // 2
                c = f"v[{acc(T)}:{acc(T)+3}]"
                a(f"v_mfma_f32_16x16x32_bf16 {c}, v[{FR+4*Q}:{FR+4*Q+3}], v[{g}:{g+3}], {c if d >= 2 else 0}")
                if not (hook and hook()): side(1 if d < 20 else 2)
            if d + PDG < 32: gread(d + PDG)
            if d >= 1: pend.extend(combine(d - 1))
        if d1 == 32:
            pend.extend(combine(31)); side(200)
    if not fused:
        run_deltas(0, 32)
    else:
        D1 = ENV("F_D1", 18); D2 = ENV("F_D2", 22)
        fused.setup()
        run_deltas(0, D1)
        fused.poll_issue()
        run_deltas(D1, D2)
        fused.check("F_NOW13")
        sv = (list(pend), list(ds.q))
        cnt = [0]
        def hook():
            cnt[0] += 1
            return cnt[0] % ENV("F_WGAP", 2) == 0 and fused.load_one()
        run_deltas(D2, 32, hook)
        a("s_branch F_CONVDONE")
        a.label("F_NOW13")
        pend[:] = sv[0]; ds.q = sv[1]
        a("s_mov_b32 s33, 0")
        run_deltas(D2, 32)
        a.label("F_CONVDONE")
    a(f"v_mul_u32_u24 v16, {KP}, v4")
    a("v_lshl_add_u32 v16, v3, 5, v16")
    a("v_lshl_add_u32 v16, v5, 3, v16")
    a("s_lshl_b32 s13, s3, 8")
    a(f"s_add_u32 s13, s13, {KB}")
    a("v_add_u32 v16, s13, v16")
    a("v_lshl_add_u32 v6, v3, 2, v5")
    a("v_lshrrev_b32 v7, 1, v6")
    a("v_lshlrev_b32 v6, 7, v6")
    a("v_and_b32 v20, 1, v4")
    a("v_lshl_add_u32 v6, v20, 3, v6")
    a("s_lshl_b32 s12, s3, 11")
    a("v_add_u32 v6, s12, v6")
    a("v_lshrrev_b32 v20, 1, v4")
    a("v_add3_u32 v7, v7, v20, 2")
    a("v_and_b32 v7, 3, v7")
    a("v_lshl_add_u32 v17, v7, 4, v6")
    a("v_lshrrev_b32 v19, 3, v1")
    a("v_mul_u32_u24 v19, 20480, v19")
    a("v_and_b32 v6, 7, v1")
    a("v_lshl_add_u32 v19, v6, 4, v19")
    a("s_mul_i32 s13, s3, 163840")
    a("s_lshr_b32 s14, s4, 3")
    a("s_lshl_b32 s14, s14, 10")
    a("s_add_u32 s13, s13, s14")
    a("s_and_b32 s14, s4, 1")
    a("s_lshl_b32 s14, s14, 9")
    a("s_add_u32 s13, s13, s14")
    a("s_bfe_u32 s14, s4, 0x20001")
    a("s_lshl_b32 s14, s14, 7")
    a("s_add_u32 s13, s13, s14")
    a("s_waitcnt lgkmcnt(0)")
    stamp(a, 4)
    a("s_barrier")
    for i in range(4):
        for par in range(2):
            a(f"ds_read_b64_tr_b16 v[{24+8*i+2*par}:{25+8*i+2*par}], v16 offset:{128 + i*1024 + par*128}")
            a(f"ds_read_b64_tr_b16 v[{28+8*i+2*par}:{29+8*i+2*par}], v17 offset:{UB + UPAD + i*8192 + par*64}")
    HSC = " sc1" if (ENV("F_HSC", 0) or fused) else ""
    for i in range(4):
        Y = 24 + 8 * i; A = 64 + 16 * i
        a(f"s_waitcnt lgkmcnt({12 - 4*i})")
        for q in range(4):
            a(f"v_lshlrev_b32 v{A+2*q}, 16, v{Y+q}")
            a(f"v_and_b32 v{A+2*q+1}, 0xffff0000, v{Y+q}")
            a(f"v_lshlrev_b32 v{A+8+2*q}, 16, v{Y+4+q}")
            a(f"v_and_b32 v{A+8+2*q+1}, 0xffff0000, v{Y+4+q}")
        for q in range(4):
            a(f"v_pk_add_f32 v[{A+2*q}:{A+2*q+1}], v[{A+2*q}:{A+2*q+1}], v[{A+8+2*q}:{A+8+2*q+1}]")
        a(f"s_add_u32 s14, s13, {i*4*163840}")
        for q in range(4):
            a(f"v_cvt_pk_bf16_f32 v{Y+q}, v{A+2*q}, v{A+2*q+1}")
        a(f"buffer_store_dwordx4 v[{Y}:{Y+3}], v19, s[56:59], s14 offen{HSC}")


def conv_split(a, fused, ds, gread, combine, side, pend, acc, FR, GR, NG, PDG):
    cst = lambda i: _stamp(a, i + 1) if os.environ.get("STSET") == "C" else None
    if os.environ.get("STSET") == "C": _stamp(a, 0); ds.q = []
    a(f"v_mul_u32_u24 v12, {KP}, v4")
    a("v_lshl_add_u32 v12, v3, 5, v12")
    a("v_lshl_add_u32 v12, v5, 3, v12")
    a("s_lshl_b32 s13, s3, 8")
    a(f"s_add_u32 s13, s13, {KB}")
    a("v_add_u32 v12, s13, v12")
    a("v_lshl_add_u32 v6, v3, 2, v5")
    a("v_lshrrev_b32 v7, 1, v6")
    a("v_lshlrev_b32 v6, 7, v6")
    a("v_and_b32 v20, 1, v4")
    a("v_lshl_add_u32 v6, v20, 3, v6")
    a("s_lshl_b32 s12, s3, 11")
    a("v_add_u32 v6, s12, v6")
    a("v_lshrrev_b32 v20, 1, v4")
    a("v_add3_u32 v7, v7, v20, 2")
    a("v_and_b32 v7, 3, v7")
    a("v_lshl_add_u32 v13, v7, 4, v6")
    a("v_bfe_u32 v14, v1, 3, 2")
    a("v_lshrrev_b32 v6, 5, v1")
    a("v_lshl_add_u32 v14, v6, 3, v14")
    a("v_mul_u32_u24 v14, 20480, v14")
    a("v_and_b32 v6, 7, v1")
    a("v_lshl_add_u32 v14, v6, 4, v14")
    a("s_mul_i32 s13, s3, 327680")
    a("s_lshr_b32 s14, s4, 3")
    a("s_lshl_b32 s14, s14, 10")
    a("s_add_u32 s13, s13, s14")
    a("s_and_b32 s14, s4, 1")
    a("s_lshl_b32 s14, s14, 9")
    a("s_add_u32 s13, s13, s14")
    a("s_bfe_u32 s14, s4, 0x20001")
    a("s_lshl_b32 s14, s14, 7")
    a("s_add_u32 s13, s13, s14")
    a(f"s_sub_u32 s5, s2, {N_LN}")
    fused.setup()
    def fin(hf, Y0, A0):
        o = []
        for i in range(2):
            for par in range(2):
                o.append(f"ds_read_b64_tr_b16 v[{Y0+8*i+2*par}:{Y0+1+8*i+2*par}], v12 offset:{128 + (2*hf+i)*1024 + par*128}")
                o.append(f"ds_read_b64_tr_b16 v[{Y0+4+8*i+2*par}:{Y0+5+8*i+2*par}], v13 offset:{UB + UPAD + (2*hf+i)*8192 + par*64}")
        for i in range(2):
            Y = Y0 + 8 * i; A = A0 + 16 * i
            o.append(("wait", i))
            for q in range(4):
                o.append(f"v_lshlrev_b32 v{A+2*q}, 16, v{Y+q}")
                o.append(f"v_and_b32 v{A+2*q+1}, 0xffff0000, v{Y+q}")
                o.append(f"v_lshlrev_b32 v{A+8+2*q}, 16, v{Y+4+q}")
                o.append(f"v_and_b32 v{A+8+2*q+1}, 0xffff0000, v{Y+4+q}")
            for q in range(8): o.append(f"v_add_f32 v{A+q}, v{A+q}, v{A+8+q}")
            o.append(f"s_add_u32 s14, s13, {i*4*327680 + hf*81920}")
            for q in range(4): o.append(f"v_cvt_pk_bf16_f32 v{Y+q}, v{A+2*q}, v{A+2*q+1}")
            o.append(f"buffer_store_dwordx4 v[{Y}:{Y+3}], v14, s[56:59], s14 offen sc1")
        return o
    fq = []; fc = [0]
    def emit(n):
        for _ in range(n):
            if pend: side(1); continue
            if not fq: return
            t = fq.pop(0)
            if isinstance(t, tuple): ds.wait(("fin", t[1])); continue
            a(t)
            if t.startswith("ds_"): ds.issue(("fin", fc[0] // 4)); fc[0] += 1
    seq = list(range(16)) + list(range(32))
    def gr(n):
        d = seq[n]; g = GR + 4 * (n % NG)
        if d < 16: return
        for h in range(2):
            a(f"ds_read_b64_tr_b16 v[{g+2*h}:{g+2*h+1}], v{17+h} offset:{UB + 1024*d}"); ds.issue(("G", n))
    def run(n0, n1, hook=None):
        for n in range(n0, n1):
            d = seq[n]; lo = 0 if n < 16 else 16; hi = lo + 16
            ds.wait(("G", n))
            g = f"v[{GR+4*(n%NG)}:{GR+4*(n%NG)+3}]" if d >= 16 else f"a[{176+4*d}:{179+4*d}]"
            for T in range(max(d, lo + (d & 1)), hi, 2):
                Q = (T - d) // 2
                c = f"v[{acc(T)}:{acc(T)+3}]"
                a(f"v_mfma_f32_16x16x32_bf16 {c}, v[{FR+4*Q}:{FR+4*Q+3}], {g}, {c if d >= 2 else 0}")
                if not (hook and hook()): emit(ENV("F_EM1", 3) if n < B1 else ENV("F_EM", 2))
            if n + PDG < len(seq): gr(n + PDG)
            if n < 16 and d >= 1: pend.extend(combine(d - 1))
            if n == 16: pend.extend(combine(15))
            if n > 16 and d - 1 >= 16: pend.extend(combine(d - 1))
        if n1 == len(seq):
            pend.extend(combine(31)); emit(200)
    if ENV("F_EARLYW", 0):
        B1 = 16 + ENV("F_B1", 4); D1 = 16 + ENV("F_D1", 10); D2 = 16 + ENV("F_D2", 19); E0 = ENV("F_E0", 8)
        cnt = [0]; nld = [0]
        def hook():
            cnt[0] += 1
            if cnt[0] % ENV("F_WGAP", 5) == 0 and fused.load_one():
                nld[0] += 1; return True
            return False
        fused.poll_issue()
        run(0, E0)
        a("s_waitcnt vmcnt(0)")
        a("v_cmp_ne_u64 vcc, s[90:91], v[10:11]")
        a("s_cbranch_vccz W13K_E")
        fused.wait("E")
        a("s_mov_b32 s33, 1")
        run(E0, B1, hook)
        emit(100)
        a("s_waitcnt lgkmcnt(0)"); ds.q = []
        a("s_barrier")
        fq.extend(fin(0, 120, 136))
        run(B1, D1, hook)
        emit(200)
        nld[0] = 0
        run(D1, D2, hook)
        a(f"s_waitcnt vmcnt({nld[0]})")
        a("s_barrier")
        fused.flag("s5", 192, "HA", 20)
        fused.first = fused.n
        stamp(a, 6)
        run(D2, len(seq), hook)
    else:
        B1 = 16 + ENV("F_B1", 4); D1 = 16 + ENV("F_D1", 8); D2 = 16 + ENV("F_D2", 12)
        run(0, B1)
        if pend: print("conv_split: flushing", len(pend), "at B1")
        emit(100)
        a("s_waitcnt lgkmcnt(0)"); ds.q = []
        cst(0)
        a("s_barrier")
        cst(1)
        fq.extend(fin(0, 120, 136))
        run(B1, D1)
        if fq: print("conv_split: flushing", len(fq), "at D1")
        emit(200)
        cst(2)
        fused.poll_issue()
        run(D1, D2)
        cst(3)
        a("s_waitcnt vmcnt(0)")
        a("s_barrier")
        cst(4)
        fused.flag("s5", 192, "HA", 20)
        stamp(a, 6)
        fused.check("F_NOW13", wait=False)
        sv = (list(pend), list(ds.q))
        cnt = [0]
        def hook():
            cnt[0] += 1
            return cnt[0] % ENV("F_WGAP", 4) == 0 and fused.load_one()
        PA = len(seq) - ENV("F_PA", 12)
        EA = ENV("A_EARLY", 8)
        run(D2, PA, hook)
        if EA: fused.polla_issue()
        n1 = fused.n
        run(PA, len(seq), hook)
        if EA: a(f"s_waitcnt vmcnt({fused.n - n1})")
        a("s_branch F_CONVDONE")
        a.label("F_NOW13")
        pend[:] = sv[0]; ds.q = sv[1]
        a("s_mov_b32 s33, 0")
        run(D2, PA)
        if EA: fused.polla_issue()
        run(PA, len(seq))
        if EA: a("s_waitcnt vmcnt(0)")
    a.label("F_CONVDONE")
    a("s_waitcnt lgkmcnt(0)"); ds.q = []
    cst(5)
    stamp(a, 4)
    if ENV("A_EARLY", 8): fused.polla_vote()
    a("s_barrier")
    fc[0] = 0
    fq.extend(fin(1, 24, 64))
    emit(8)
    if ENV("A_EARLY", 8): fused.polla_act(ds)
    emit(500)
```

```python
import os
from asmlib import *
from layout import *
from k1 import srd, cmul, interleave, Rec, wave_reduce_sum
from kp2 import w2_ids, w2_dma_setup, w2_out_setup
ENV = lambda k, d: int(os.environ.get(k, d))
N_LN = 96
_stamp = stamp
def stamp(a, i):
    if os.environ.get('STSET', 'F') == 'F': _stamp(a, i)
UB = 0; UPAD = 2048; SB = UPAD + 32768; RS = 4352; ROWP = 272; WREG = 2 * RS
KB = SB + 12 * WREG; KP = 4416; TB = KB + 4 * KP; PK = UB + UPAD
assert TB + 4 * 1536 <= 163840
STG = 65536; XP = 272
WS = 42
XQ_OFF = UR_OFF

def front_entry(a):
    code_prefetch(a, 4, 132, "F4")
    a("s_load_dwordx16 s[16:31], s[0:1], 0")
    a("s_load_dwordx8 s[32:39], s[0:1], 64")
    a("s_load_dwordx4 s[40:43], s[0:1], 96")
    a("v_lshrrev_b32 v2, 6, v0")
    a("v_and_b32 v1, 63, v0")
    a("v_readfirstlane_b32 s3, v2")

def gen_front4(a):
    a.raw(kernel_header("front_kernel"))
    a("s_cmp_ge_u32 s2, 256")
    a("s_cbranch_scc1 F_END")
    front_entry(a)
    a(f"s_cmp_lt_u32 s2, {N_LN}")
    a("s_cbranch_scc1 F_LN")
    conv_wg(a)
    a("s_endpgm")
    a.label("F_LN")
    ln_wg(a)
    a.label("F_END")
    a("s_endpgm")

def epoch_wait(a, tag, vr, vz):
    a("s_mov_b32 s8, 0")
    a.label(f"EPW{tag}")
    a(f"v_readfirstlane_b32 s9, v{vr}")
    a("s_cmp_lg_u32 s9, 0")
    a(f"s_cbranch_scc1 EPOK{tag}")
    a("s_add_u32 s8, s8, 1")
    a("s_cmp_ge_u32 s8, 0x8000")
    a(f"s_cbranch_scc1 EPOK{tag}")
    a(f"buffer_load_dwordx2 v[{vr}:{vr+1}], v{vz}, s[48:51], 0 offen sc1")
    a("s_waitcnt vmcnt(0)")
    a(f"s_branch EPW{tag}")
    a.label(f"EPOK{tag}")

def l_w13_dma(a):
    m3 = magic(3, 256, 16)
    a("s_lshr_b32 s14, s2, 2")
    a("s_and_b32 s15, s2, 3")
    a("v_lshrrev_b32 v216, 3, v1")
    a("v_mul_u32_u24 v216, 3072, v216")
    a("v_and_b32 v3, 7, v1")
    a("v_lshl_add_u32 v216, v3, 4, v216")
    a(f"s_mul_i32 s70, s15, {5*98304}")
    a("s_lshl_b32 s71, s14, 7")
    a("s_add_u32 s70, s70, s71")
    a("s_and_b32 s71, s3, 1")
    a("s_mul_i32 s71, s71, 49152")
    a("s_add_u32 s70, s70, s71")
    a("s_cmp_lt_u32 s3, 2")
    a("s_cselect_b32 s72, s32, s34")
    a("s_cselect_b32 s73, s33, s35")
    a("s_mov_b32 s74, 1966080")
    a("s_mov_b32 s75, 0x20000")
    a("s_lshl_b32 s69, s3, 11")
    for n in range(5):
        for r in range(2):
            a(f"s_add_u32 m0, s69, {n*8192 + r*1024}")
            a(f"s_add_u32 s71, s70, {n*98304 + r*24576}")
            a("buffer_load_dwordx4 v216, s[72:75], s71 offen lds")

def l_w13(a, mid=None, early=False):
    m3 = magic(3, 256, 16)
    if not early: l_w13_dma(a)
    a("s_lshr_b32 s62, s2, 2")
    a("s_and_b32 s63, s2, 3")
    if mid: mid()
    for e in range(2):
        a("s_lshl_b32 s12, s62, 2")
        a("s_add_u32 s12, s12, s3")
        a("s_lshl_b32 s12, s12, 1")
        if e: a("s_add_u32 s12, s12, 1")
        a(f"s_mul_i32 s6, s12, {m3}")
        a("s_lshr_b32 s6, s6, 16")
        a(f"s_mul_i32 s{64+e}, s6, 58368")
        a("s_lshl_b32 s55, s12, 10")
        a(f"s_add_u32 s{64+e}, s{64+e}, s55")
        a(f"s_mul_i32 s55, s63, {5*3072}")
        a(f"s_add_u32 s{64+e}, s{64+e}, s55")
        a(f"s_mul_i32 s{66+e}, s6, {1024 - 192}")
        a("s_lshl_b32 s55, s12, 6")
        a(f"s_add_u32 s{66+e}, s{66+e}, s55")
        a("s_lshl_b32 s55, s63, 8")
        a(f"s_add_u32 s{66+e}, s{66+e}, s55")
    a("v_lshrrev_b32 v217, 4, v1")
    a("v_bfe_u32 v3, v1, 2, 2")
    a("v_lshl_add_u32 v217, v217, 3, v3")
    a("v_lshlrev_b32 v217, 7, v217")
    a("v_and_b32 v3, 1, v1")
    a("v_lshl_add_u32 v217, v3, 12, v217")
    a("v_bfe_u32 v3, v1, 1, 1")
    a("v_lshl_add_u32 v217, v3, 3, v217")
    a("s_lshl_b32 s14, s3, 5")
    a("v_add_u32 v217, s14, v217")
    a("v_bfe_u32 v218, v1, 3, 1")
    a("v_lshlrev_b32 v218, 3, v218")
    a("v_bfe_u32 v3, v1, 1, 1")
    a("v_lshl_add_u32 v218, v3, 2, v218")
    a("v_and_b32 v3, 1, v1")
    a("v_add_u32 v218, v218, v3")
    a("v_bfe_u32 v3, v1, 2, 1")
    a("v_lshl_add_u32 v218, v3, 1, v218")
    a("v_lshrrev_b32 v3, 4, v1")
    a("v_lshlrev_b32 v219, 4, v3")
    a("v_lshlrev_b32 v3, 8, v3")
    a("v_lshl_add_u32 v218, v218, 4, v3")
    srd(a, 44, WS, W13_OFF, 3932160); srd(a, 52, WS, CSQ_OFF, 64*1024)
    for i in range(4): a(f"v_mov_b32 v{8+i}, 0x3f803f80")
    a("s_mov_b32 s12, 0x00010001")
    a("s_mov_b32 s13, 0x00010001")
    a(f"s_waitcnt vmcnt({8 if mid else 0})")
    if os.environ.get("STSET") == "G": _stamp(a, 1)
    a("s_barrier")
    for n in range(5):
        for e in range(2):
            for h in range(2):
                r = 64 + 4 * (2 * n + e)
                a(f"ds_read_b64_tr_b16 v[{r+2*h}:{r+2*h+1}], v217 offset:{n*8192 + h*512 + e*16}")
    for n in range(5):
        for e in range(2):
            r = 64 + 4 * (2 * n + e)
            a(f"s_waitcnt lgkmcnt({min(15, 18 - 4*n - 2*e)})")
            a(f"buffer_store_dwordx4 v[{r}:{r+3}], v218, s[44:47], s{64+e} offen sc1")
            c = f"v[{12+4*e}:{15+4*e}]"
            a(f"v_mfma_f32_16x16x32_bf16 {c}, v[{r}:{r+3}], v[8:11], {c if n else 0}")
            if n < 4: a(f"s_add_u32 s{64+e}, s{64+e}, 3072")
    a("s_mov_b64 exec, s[12:13]")
    for e in range(2):
        a(f"buffer_store_dwordx4 v[{12+4*e}:{15+4*e}], v219, s[52:55], s{66+e} offen sc1")
    a("s_mov_b64 exec, -1")

def ln_wg(a, fused=None):
    a("s_memrealtime s[60:61]")
    a("v_mov_b32 v6, 0")
    a("s_waitcnt lgkmcnt(0)")
    srd(a, 48, 40, 0, 8)
    a("s_cmp_ge_u32 s2, 64")
    a("s_cbranch_scc1 F_SPARE")
    a("s_lshl_b32 s4, s2, 3")
    a("s_lshl_b32 s5, s3, 1")
    a("s_add_u32 s4, s4, s5")
    a("s_mul_i32 s5, s4, 5120")
    a("v_lshlrev_b32 v4, 2, v1")
    a("v_add_u32 v5, 2560, v4")
    srd(a, 44, 16, 0, SZ_X)
    a("s_add_u32 s7, s5, 5120")
    XD = ENV("F_XDMA", 0)
    if XD:
        a("v_lshlrev_b32 v3, 4, v1")
        a("s_mul_i32 s12, s3, 10240")
        a("v_add_u32 v5, s12, v4")
        for i in range(10):
            if i % 4 == 0:
                a(f"s_add_u32 m0, s12, {i*1024}")
                a(f"s_add_u32 s7, s5, {i*1024}")
            a(f"buffer_load_dwordx4 v3, s[44:47], s7 offen offset:{(i%4)*1024} lds")
    else:
        for i in range(8):
            for q in range(5):
                a(f"buffer_load_dword v{8+5*i+q}, v{4 if i % 4 < 2 else 5}, s[44:47], s{5 if i < 4 else 7} offen offset:{(i%2)*1280 + q*256}")
    if ENV("F_W13E", 0): l_w13_dma(a)
    a("s_lshl_b32 s9, s2, 2")
    a("s_add_u32 s9, s9, s3")
    a("s_cmp_lg_u32 s9, 0")
    a("s_cbranch_scc1 F_NOEP")
    a("s_or_b32 s60, s60, 1")
    a("v_mov_b32 v50, s60")
    a("v_mov_b32 v51, s61")
    a("v_mov_b32 v52, 0")
    a("v_mov_b32 v53, 0")
    a("v_lshlrev_b32 v48, 3, v1")
    a("buffer_atomic_cmpswap_x2 v[50:53], v48, s[48:51], 0 offen sc1")
    a.label("F_NOEP")
    srd(a, 52, WS, ST_OFF, 0x8000)
    a("s_lshl_b32 s9, s9, 7")
    a("s_mov_b64 exec, 0xffffffff")
    a("buffer_store_dword v6, v4, s[52:55], s9 offen sc1")
    a("s_mov_b64 exec, -1")
    srd(a, 52, WS, S1_OFF, 16384); srd(a, 56, WS, XQ_OFF, 160*16384)
    a("s_mov_b32 s10, 0x05040100")
    a("s_mov_b32 s11, 0x07060302")
    a("v_lshrrev_b32 v54, 1, v1")
    a(f"v_mul_u32_u24 v54, {XP}, v54")
    a("v_and_b32 v55, 1, v1")
    a("v_lshl_add_u32 v54, v55, 4, v54")
    a("s_lshl_b32 s9, s3, 6")
    a(f"s_add_u32 s9, s9, {STG}")
    a("v_add_u32 v54, s9, v54")
    a("v_lshrrev_b32 v57, 4, v0")
    a("v_and_b32 v58, 15, v0")
    a(f"v_mul_u32_u24 v55, {XP}, v57")
    a("v_lshl_add_u32 v55, v58, 4, v55")
    a(f"v_add_u32 v55, {STG}, v55")
    a("v_lshlrev_b32 v56, 14, v57")
    a("v_lshl_add_u32 v56, v58, 4, v56")
    a("s_lshl_b32 s68, s2, 8")
    a("s_lshl_b32 s6, s4, 5")
    a(f"v_mov_b32 v7, {f2u(1.0/640):#x}")
    a(f"s_waitcnt vmcnt({11 if ENV('F_W13E', 0) else 0})")
    stamp(a, 0)
    a("buffer_load_dwordx2 v[50:51], v6, s[48:51], 0 offen sc1")
    if XD:
        for q in range(5):
            for i in range(4): a(f"ds_read_b32 v{8+5*i+q}, v5 offset:{i*1280 + q*256}")
        for q in range(5):
            for i in range(4, 8): a(f"ds_read_b32 v{8+5*i+q}, v5 offset:{i*1280 + q*256}")
        a("s_waitcnt lgkmcnt(15)")
        a("s_waitcnt lgkmcnt(0)")
    for g in range(2):
        for q in range(5):
            d = 60 + 4 * (5 * g + q); b = 8 + 20 * g
            a(f"v_perm_b32 v{d}, v{b+5+q}, v{b+q}, s10")
            a(f"v_perm_b32 v{d+1}, v{b+15+q}, v{b+10+q}, s10")
            a(f"v_perm_b32 v{d+2}, v{b+5+q}, v{b+q}, s11")
            a(f"v_perm_b32 v{d+3}, v{b+15+q}, v{b+10+q}, s11")
            a(f"ds_write_b128 v54, v[{d}:{d+3}] offset:{q*32*XP + g*32}")
    a("s_waitcnt lgkmcnt(0)")
    a("s_barrier")
    for kk in range(10):
        a(f"ds_read_b128 v[{60+4*kk}:{63+4*kk}], v55 offset:{kk*16*XP}")
    for kk in range(10):
        a(f"s_add_u32 s69, s68, {kk*16*16384}")
        a(f"s_waitcnt lgkmcnt({9-kk})")
        a(f"buffer_store_dwordx4 v[{60+4*kk}:{63+4*kk}], v56, s[56:59], s69 offen sc1")
    stamp(a, 2)
    X = lambda i, q: 104 + 2 * (5 * i + q)
    SUM = lambda i: 184 + 2 * i
    MEAN = lambda i: 200 + 2 * i
    for i in range(8):
        for q in range(5):
            a(f"v_lshlrev_b32 v{X(i,q)}, 16, v{8+5*i+q}")
            a(f"v_and_b32 v{X(i,q)+1}, 0xffff0000, v{8+5*i+q}")
    for q in range(1, 5):
        for i in range(8):
            s = SUM(i); src = X(i, 0) if q == 1 else s
            a(f"v_pk_add_f32 v[{s}:{s+1}], v[{src}:{src+1}], v[{X(i,q)}:{X(i,q)+1}]")
    for i in range(8): a(f"v_add_f32 v{SUM(i)}, v{SUM(i)}, v{SUM(i)+1}")
    wave_reduce_sum(a, [SUM(i) for i in range(8)])
    for i in range(8): a(f"v_readlane_b32 s{60+i}, v{SUM(i)}, 63")
    for i in range(8): a(f"v_mul_f32 v{MEAN(i)}, s{60+i}, v7")
    for q in range(5):
        for i in range(8):
            x = X(i, q); m = MEAN(i)
            a(f"v_pk_add_f32 v[{x}:{x+1}], v[{x}:{x+1}], v[{m}:{m+1}] op_sel_hi:[1,0] neg_lo:[0,1] neg_hi:[0,1]")
    for q in range(5):
        for i in range(8):
            x = X(i, q); s = SUM(i)
            if q == 0: a(f"v_pk_mul_f32 v[{s}:{s+1}], v[{x}:{x+1}], v[{x}:{x+1}]")
            else: a(f"v_pk_fma_f32 v[{s}:{s+1}], v[{x}:{x+1}], v[{x}:{x+1}], v[{s}:{s+1}]")
    for i in range(8): a(f"v_add_f32 v{SUM(i)}, v{SUM(i)}, v{SUM(i)+1}")
    wave_reduce_sum(a, [SUM(i) for i in range(8)])
    for i in range(8): a(f"v_readlane_b32 s{60+i}, v{SUM(i)}, 63")
    R = lambda i: 16 + i
    G = lambda i: 24 + 4 * (i // 2) + (i % 2)
    steps = [
        lambda i: f"v_mul_f32 v{R(i)}, s{60+i}, v7",
        lambda i: f"v_cvt_pk_bf16_f32 v{R(i)}, v{R(i)}, v{R(i)}",
        lambda i: f"v_lshlrev_b32 v{R(i)}, 16, v{R(i)}",
        lambda i: f"v_add_f32 v{R(i)}, {f2u(1e-5):#x}, v{R(i)}",
        lambda i: f"v_cvt_pk_bf16_f32 v{R(i)}, v{R(i)}, v{R(i)}",
        lambda i: f"v_lshlrev_b32 v{R(i)}, 16, v{R(i)}",
        lambda i: f"v_sqrt_f32 v{R(i)}, v{R(i)}",
        lambda i: f"v_cvt_pk_bf16_f32 v{G(i)}, v{MEAN(i)}, v{R(i)}",
    ]
    for st in steps:
        for i in range(8): a(st(i))
    stamp(a, 1)
    a("s_waitcnt vmcnt(10)")
    epoch_wait(a, "L", 50, 6)
    for k in range(4):
        a(f"v_mov_b32 v{26+4*k}, v50")
        a(f"v_mov_b32 v{27+4*k}, v51")
    a("s_lshl_b32 s9, s3, 6")
    a(f"s_add_u32 s9, s9, {STG - 1024}")
    a("v_mov_b32 v40, s9")
    for k in range(4):
        a(f"ds_write_b128 v40, v[{24+4*k}:{27+4*k}] offset:{16*k}")
    a("v_lshlrev_b32 v41, 4, v1")
    a(f"v_add_u32 v42, {STG - 1024}, v41")
    a("s_lshl_b32 s6, s2, 8")
    a("s_waitcnt vmcnt(0) lgkmcnt(0)")
    stamp(a, 3)
    a("s_barrier")
    a("s_cmp_lg_u32 s3, 0")
    a("s_cbranch_scc1 F_W2")
    a("ds_read_b128 v[44:47], v42")
    a("s_mov_b64 exec, 0xffff")
    a("s_waitcnt lgkmcnt(0)")
    a("buffer_store_dwordx4 v[44:47], v41, s[52:55], s6 offen sc1")
    a("s_mov_b64 exec, -1")
    a("s_branch F_W2")
    a.label("F_SPARE")
    a("v_mov_b32 v50, 0")
    if ENV("F_SPW", 1): epoch_wait(a, "S0", 50, 6)
    if ENV("F_SPW", 1) > 1:
        srd(a, 52, WS, S1_OFF, 16384)
        a("s_sub_u32 s9, s2, 64")
        a("s_lshl_b32 s9, s9, 8")
        a("v_readfirstlane_b32 s90, v50")
        a("v_readfirstlane_b32 s91, v51")
        a("s_mov_b32 s8, 0")
        a.label("F_SPL")
        a("s_sleep 8")
        a("buffer_load_dwordx2 v[52:53], v6, s[52:55], s9 offen offset:8 sc1")
        a("s_waitcnt vmcnt(0)")
        a("v_cmp_ne_u64 vcc, s[90:91], v[52:53]")
        a("s_cbranch_vccz F_SPK")
        a("s_add_u32 s8, s8, 1")
        a("s_cmp_lt_u32 s8, 0x4000")
        a("s_cbranch_scc1 F_SPL")
        a.label("F_SPK")
    if ENV("F_TLB", 0):
        srd(a, 52, WS, 0, 0x1A00000); srd(a, 56, 38, 0, SZ_X)
        a(f"v_mul_u32_u24 v60, {0x68000 // 4}, v0")
        a("v_mul_u32_u24 v61, 10240, v0")
        a("buffer_load_dword v62, v60, s[52:55], 0 offen")
        a("buffer_load_dword v63, v61, s[56:59], 0 offen")
    if ENV("F_W13E", 0): l_w13_dma(a)
    a.label("F_W2")
    if ENV("F_NOPACK", 0): a("s_endpgm")
    if ENV("F_PSLEEP", 0):
        for _ in range(ENV("F_PSLEEP", 0)): a("s_sleep 32")
    def w2_start():
        a("s_mul_i32 s9, s2, 3")
        a("s_add_u32 s9, s9, s3")
        a("s_cmp_eq_u32 s3, 3")
        a("s_cselect_b32 s9, 240, s9")
        a("s_min_u32 s9, s9, 240")
        a("s_mov_b32 s28, s48"); a("s_mov_b32 s29, s49")
        a("s_mov_b32 s40, s42"); a("s_mov_b32 s41, s43")
        w2_ids(a, 9)
        w2_dma_setup(a, 124, 125, 126, 127)
        a("s_cmp_eq_u32 s9, 240")
        a("s_cselect_b32 s50, 0, s50")
        a("s_lshl_b32 s8, s3, 13")
        a("s_add_u32 s8, s8, 40960")
        for i in range(8):
            a(f"s_add_u32 m0, s8, {i*1024}")
            a(f"s_add_u32 s70, s69, {(i>>1)*2560}")
            a(f"buffer_load_dwordx4 v{124 + (i&1)}, s[48:51], s70 offen lds")
        a("s_mov_b32 s30, s65"); a("s_mov_b32 s31, s66")
        srd(a, 48, 28, 0, 8)
    l_w13(a, w2_start, ENV('F_W13E', 0))
    a("s_mov_b32 s65, s30"); a("s_mov_b32 s66, s31")
    a("v_mov_b32 v7, 0")
    if fused:
        epoch_wait(a, "S", 50, 7)
        a("v_readfirstlane_b32 s90, v50")
        a("v_readfirstlane_b32 s91, v51")
    a("s_mul_i32 s9, s2, 3")
    a("s_add_u32 s9, s9, s3")
    a("s_cmp_eq_u32 s3, 3")
    a("s_cselect_b32 s9, 240, s9")
    a("s_min_u32 s9, s9, 240")
    w2_out_setup(a, 0)
    a("s_cmp_eq_u32 s9, 240")
    a("s_cselect_b32 s54, 0, s54")
    a("s_lshl_b32 s8, s3, 13")
    a("s_add_u32 s8, s8, 40960")
    a("v_add_u32 v6, s8, v6")
    a("s_waitcnt vmcnt(0)")
    for i in range(8):
        for h in range(2):
            a(f"ds_read_b64_tr_b16 v[{24+4*i+2*h}:{25+4*i+2*h}], v6 offset:{h*1024 + i*32}")
    if fused:
        a("s_barrier")
        fused.flag("s2", 0, "W", 20)
        if os.environ.get("STSET") == "G": _stamp(a, 0)
    for i in range(8):
        a(f"s_waitcnt lgkmcnt({14-2*i})")
        a(f"buffer_store_dwordx4 v[{24+4*i}:{27+4*i}], v8, s[52:55], s{56+i} offen sc1")

def kgen_stream(m):
    B = 16 + 70 * m; L = m * 4 * WREG; A = 64 * m
    ADT = m < ENV('F_ADT', 2)
    if m == 2: L = 0
    wa, ra = (3, 4) if m < 2 else (234, 235)
    W = lambda t, off: f"ds_write_addtid_b32 v{t} offset:{off}" if ADT else f"ds_write_b32 v{wa}, v{t} offset:{off}"
    o = []
    a = o.append
    for r in range(4): a(f"v_lshlrev_b32 v{B+r}, 16, v{B+r}")
    W1, W8, W128, W16 = B + 4, B + 6, B + 8, B + 10
    tmp = [B + 12 + i for i in range(4)]; ringr = [B + 16 + 2 * i for i in range(4)]
    Q = {q: B + 36 + 2 * q for q in range(17)}
    a(f"v_mul_f32 v{B}, v{B}, v15")
    a(f"v_exp_f32 v{B}, v{B}")
    a(f"v_mul_f32 v{B+1}, v{B+1}, v14")
    a(f"v_mul_f32 v{Q[0]}, v{B+2}, v9")
    a(f"v_mul_f32 v{Q[0]+1}, v{B+3}, v9")
    a(f"v_cvt_pk_bf16_f32 v{B}, v{B}, v{B}")
    a(f"v_mul_f32 v{B+1}, {f2u(INV2PI):#x}, v{B+1}")
    a(f"v_lshlrev_b32 v{B}, 16, v{B}")
    a(f"v_mul_f32 v{B}, v{B}, v14")
    a(f"v_mul_f32 v{B}, v{B}, v15")
    E = B + 12; F = B + 16
    for k, p in enumerate((1.0, 8.0, 128.0)):
        a(f"v_mul_f32 v{F+k}, {f2u(p):#x}, v{B+1}")
        a(f"v_mul_f32 v{E+k}, {f2u(-p):#x}, v{B}")
    for k in range(3):
        a(f"v_fract_f32 v{F+k}, v{F+k}")
        a(f"v_exp_f32 v{E+k}, v{E+k}")
    for k in range(3):
        a(f"v_cos_f32 v{W1+2*k}, v{F+k}")
        a(f"v_sin_f32 v{W1+1+2*k}, v{F+k}")
    for k in range(3):
        a(f"v_mul_f32 v{W1+2*k}, v{W1+2*k}, v{E+k}")
        a(f"v_mul_f32 v{W1+1+2*k}, v{W1+1+2*k}, v{E+k}")
    tctr = [0]
    def put(r, reg, row, val, neg=False):
        t = tmp[tctr[0] % 4]; tctr[0] += 1
        r(f"v_cvt_pk_bf16_f32 v{t}, v{val}, {'-' if neg else ''}v{val+1}")
        r(W(t, L + reg*RS + row*ROWP))
    rb = Rec()
    rb(W(13, L))
    cmul(rb, W16, W8, W8)
    put(rb, 0, 1, W8, True); put(rb, 0, 2, W16, True)
    ring = {1: W8, 2: W16}
    for b in range(3, 16):
        d = ringr[b % 4]
        cmul(rb, d, ring[b-2], W16); ring[b] = d
        put(rb, 0, b, d, True)
    wc = {1: W1}; rw = Rec()
    for c, (x, y) in ((2, (1, 1)), (3, (2, 1)), (4, (2, 2)), (5, (4, 1)), (6, (4, 2)), (7, (4, 3))):
        wc[c] = B + 24 + 2 * (c - 2); cmul(rw, wc[c], wc[x], wc[y])
    rq = Rec()
    for q in range(1, 17): cmul(rq, Q[q], Q[q-1], W128)
    o += interleave(rb.l, rw.l + rq.l)
    def rd(which, reg):
        for s in range(4):
            a(("rd", (m, which), f"ds_read_b128 a[{A+16*which+4*s}:{A+16*which+4*s+3}], v{ra} offset:{L + reg*RS + s*64}"))
    def mf(t):
        for s in range(4):
            c = f"a[{192+4*t}:{195+4*t}]"
            a(("mf", (m, t + 1), f"v_mfma_f32_16x16x32_bf16 {c}, a[{A+16*(t+1)+4*s}:{A+16*(t+1)+4*s+3}], a[{A+4*s}:{A+4*s+3}], {c}"))
    rd(0, 0)
    pc = [0]
    def run(jobs):
        for reg, row, x, y in jobs:
            if y is None: put(a, reg, row, x); continue
            d = ringr[pc[0] % 4]; pc[0] += 1
            cmul(a, d, x, y); put(a, reg, row, d)
    run([(1, 8*ap + c, Q[ap], wc[c] if c else None) for ap in range(2) for c in range(8)])
    rd(1, 1)
    run([(0, 4*ap + c, Q[2+ap], wc[2*c] if c else None) for ap in range(2) for c in range(4)])
    mf(0)
    run([(0, 8 + 2*ap + c, Q[4+ap], wc[4] if c else None) for ap in range(4) for c in range(2)])
    rd(2, 0)
    for q in range(8, 17): put(a, 1, q - 8, Q[q])
    rd(3, 1)
    mf(1); mf(2)
    return o

def kgen_all(a, hooks):
    ds = Cnt(a, "lgkmcnt", 15)
    streams = [kgen_stream(m) for m in range(3)]
    lag = ENV("F_LAG", 12)
    seq = []
    n = max(len(s) + i * lag for i, s in enumerate(streams))
    for k in range(n):
        for i, s in enumerate(streams):
            j = k - i * lag
            if 0 <= j < len(s):
                if j == 0 and i: seq.append(("vm", i))
                seq.append(s[j])
    for idx, e in enumerate(seq):
        if idx in hooks: hooks[idx]()
        if isinstance(e, tuple):
            if e[0] == "vm": a(f"s_waitcnt vmcnt({8 - 4*e[1]})"); continue
            if e[0] == "rd": a(e[2]); ds.issue(e[1]); continue
            ds.wait(e[1]); a(e[2]); continue
        a(e)
        if e.startswith("ds_"): ds.issue("w")
    return len(seq)

NB = 120
def st_loads(a):
    a(f"buffer_load_dwordx2 v[{NB}:{NB+1}], v229, s[48:51], 0 offen sc1")
    for g in range(2):
        b = NB + 4 + 12 * g
        a(f"buffer_load_dwordx4 v[{b}:{b+3}], v228, s[44:47], 0 offen offset:{32*g} sc1")
        a(f"buffer_load_dwordx4 v[{b+4}:{b+7}], v228, s[44:47], 0 offen offset:{32*g+16} sc1")

def conv_wg(a, fused=None, split=False):
    a(f"s_sub_u32 s5, s2, {N_LN}")
    a("s_and_b32 s6, s5, 7")
    a("s_mul_i32 s6, s6, 20")
    a("s_lshr_b32 s4, s5, 3")
    a("s_add_u32 s4, s4, s6")
    a("s_lshl_b32 s7, s4, 2")
    a("s_add_u32 s7, s7, s3")
    a("s_mul_i32 s8, s7, 384")
    a("v_lshlrev_b32 v2, 1, v1")
    a("v_add_u32 v2, s8, v2")
    a("s_lshr_b32 s9, s7, 1")
    a("s_lshl_b32 s9, s9, 2")
    a("s_lshl_b32 s12, s4, 3")
    a("s_waitcnt lgkmcnt(0)")
    a("s_load_dword s10, s[26:27], s9")
    a("s_load_dwordx2 s[68:69], s[28:29], s12")
    for m in range(3):
        for r in range(4):
            a(f"global_load_ushort v{16+70*m+r}, v2, s[{18+2*r}:{19+2*r}] offset:{128*m}")
    a("s_mov_b32 s60, s36"); a("s_mov_b32 s61, s37")
    srd(a, 44, WS, S1_OFF, 16384); srd(a, 48, 40, 0, 8); srd(a, 56, WS, H_OFF, SZ_X); srd(a, 36, WS, XQ_OFF, 160*16384)
    a("s_mul_i32 s11, s3, 1536")
    a(f"s_add_u32 s11, s11, {TB}")
    a(f"s_mul_i32 s13, s3, {KP}")
    a(f"s_add_u32 s13, s13, {KB}")
    a("v_lshlrev_b32 v2, 4, v1")
    a("v_add_u32 v226, s13, v2")
    a("s_lshl_b32 s9, s5, 2")
    a("s_add_u32 s9, s9, s3")
    a("s_mul_i32 s9, s9, 3072")
    a("v_add_u32 v227, s9, v2")
    a("v_lshlrev_b32 v228, 6, v0")
    a("v_mov_b32 v229, 0")
    a("s_mov_b32 s15, 8192")
    for i in range(12): a(f"v_accvgpr_write_b32 a{192+i}, 0")
    a("v_and_b32 v5, 15, v1")
    a("v_lshrrev_b32 v6, 4, v1")
    a("v_lshrrev_b32 v236, 1, v6")
    a("v_lshlrev_b32 v236, 8, v236")
    a("v_and_b32 v7, 1, v6")
    a("v_lshl_add_u32 v236, v7, 3, v236")
    a("v_lshl_add_u32 v236, v5, 4, v236")
    a("v_add_u32 v236, s11, v236")
    a("v_cmp_gt_u32 vcc, 2, v6")
    a("v_lshlrev_b32 v237, 3, v5")
    a("v_lshlrev_b32 v7, 2, v5")
    a("v_mov_b32 v238, 64")
    a("v_cndmask_b32 v237, v7, v237, vcc")
    a("v_cndmask_b32 v238, v238, 4, vcc")
    a("v_lshl_add_u32 v237, v6, 7, v237")
    a("v_add_u32 v237, s11, v237")
    a("v_add_u32 v238, v238, v237")
    a("v_lshlrev_b32 v239, 1, v5")
    a("v_lshl_add_u32 v239, v6, 7, v239")
    a("v_add_u32 v239, s11, v239")
    a("v_cmp_gt_u32 s[6:7], 32, v1".replace("s[6:7]", "vcc"))
    a("v_lshlrev_b32 v240, 4, v1")
    a("v_lshlrev_b32 v7, 3, v1")
    a("v_add_u32 v7, 256, v7")
    a("v_cndmask_b32 v240, v7, v240, vcc")
    a("v_add_u32 v240, s11, v240")
    a("v_lshlrev_b32 v241, 2, v1")
    a("v_add_u32 v241, s11, v241")
    a("v_lshlrev_b32 v242, 1, v1")
    a("v_add_u32 v242, s11, v242")
    a("v_mov_b32 v7, 0x01000100"); a("v_mov_b32 v8, 0x03020100"); a("v_cndmask_b32 v243, v7, v8, vcc")
    a("v_mov_b32 v7, 0x05040302"); a("v_mov_b32 v8, 0x07060504"); a("v_cndmask_b32 v244, v7, v8, vcc")
    a("v_mov_b32 v7, 0x01000100"); a("v_cndmask_b32 v245, v7, v8, vcc")
    a("v_and_b32 v7, 1, v1")
    a("v_cmp_eq_u32 vcc, 0, v7")
    a("v_mov_b32 v7, 0x05040504"); a("v_mov_b32 v8, 0x05040100"); a("v_cndmask_b32 v246, v7, v8, vcc")
    a("v_lshrrev_b32 v10, 4, v1")
    a("v_bfe_u32 v11, v1, 2, 2")
    a("v_and_b32 v12, 3, v1")
    a("v_lshlrev_b32 v247, 6, v10")
    a("v_lshl_add_u32 v247, v11, 3, v247")
    a("v_lshl_add_u32 v247, v12, 5, v247")
    a("v_add_u32 v247, s13, v247")
    a("s_lshr_b32 s14, s3, 1")
    a("s_and_b32 s12, s3, 1")
    a("s_lshl_b32 s12, s12, 3")
    for h in range(2):
        a(f"v_add_u32 v6, {44 - 4*h}, v12")
        a("v_sub_u32 v6, v6, v11")
        a("v_lshlrev_b32 v7, 3, v10")
        a("v_sub_u32 v6, v6, v7")
        a("v_lshrrev_b32 v7, 2, v6")
        a("v_add_u32 v7, s14, v7")
        a("v_and_b32 v7, 3, v7")
        a("v_lshlrev_b32 v6, 6, v6")
        a("v_lshl_add_u32 v6, v7, 4, v6")
        a(f"v_add_u32 v{248+h}, s12, v6")
    a("v_and_b32 v250, 1, v1")
    a("v_lshlrev_b32 v250, 7, v250")
    a("v_and_b32 v6, 62, v1")
    a("v_add3_u32 v250, s13, v250, v6")
    a("v_lshrrev_b32 v6, 1, v0")
    a("v_lshlrev_b32 v7, 7, v0")
    a(f"v_add_u32 v7, {UB + UPAD}, v7")
    for n in range(4):
        a(f"v_add_u32 v8, {n}, v6")
        a("v_and_b32 v8, 3, v8")
        a(f"v_lshl_add_u32 v{251+n}, v8, 4, v7")
    a(f"s_mul_i32 s8, s3, {WREG}")
    a(f"s_add_u32 s8, s8, {SB}")
    a("s_mov_b32 s14, s8")
    a("v_lshlrev_b32 v3, 2, v1")
    a("v_add_u32 v3, s8, v3")
    a("v_and_b32 v4, 15, v1")
    a(f"v_mul_u32_u24 v4, {ROWP}, v4")
    a("v_lshrrev_b32 v5, 4, v1")
    a("v_lshl_add_u32 v4, v5, 4, v4")
    a("v_add_u32 v4, s8, v4")
    a(f"v_add_u32 v234, {8*WREG}, v3")
    a(f"v_add_u32 v235, {8*WREG}, v4")
    a("s_mov_b32 m0, s14")
    a("v_mov_b32 v7, 0")
    a("v_lshlrev_b32 v6, 3, v0")
    a("v_mov_b32 v8, 0")
    a(f"ds_write_b64 v6, v[7:8] offset:{UB}".replace("v[7:8]", "v[6:7]") if False else "v_mov_b32 v9, 0")
    a(f"ds_write_b64 v6, v[8:9] offset:{UB}")
    a("v_and_b32 v6, 31, v1")
    a("v_lshlrev_b32 v6, 2, v6")
    a("v_add_u32 v6, s13, v6")
    a("ds_write_b32 v6, v7")
    a("s_waitcnt lgkmcnt(0)")
    a("s_lshl_b32 s9, s10, 16")
    a("s_and_b32 s10, s10, 0xffff0000")
    a("s_bitcmp1_b32 s7, 0")
    a("s_cselect_b32 s10, s10, s9")
    for e in range(2):
        a(f"s_lshl_b32 s{64+2+2*e}, s{68+e}, 16".replace(f"s{66+2*e}", f"s{84+2*e}"))
        a(f"s_and_b32 s{85+2*e}, s{68+e}, 0xffff0000")
    a(f"v_mov_b32 v15, {f2u(LOG2E):#x}")
    a("v_mul_f32 v14, s10, v15")
    a("v_exp_f32 v14, v14")
    a("v_cvt_pk_bf16_f32 v14, v14, v14")
    a("v_lshlrev_b32 v14, 16, v14")
    a("v_add_f32 v9, v14, v14")
    a("v_mov_b32 v13, 0x3f80")
    if ENV("F_ST5", 0): stamp(a, 6)
    a("s_waitcnt vmcnt(8)")
    stamp(a, 0)
    if os.environ.get("F_DROP"): a.drop = os.environ["F_DROP"].split(",")
    if os.environ.get("F_DROP"): a.drop = os.environ["F_DROP"].split(",")
    def wpf(k):
        m, i = divmod(k, 3); p = (32, 34, 60)[m]
        return lambda: a(f"global_load_dwordx4 a[{208+12*m+4*i}:{211+12*m+4*i}], v227, s[{p}:{p+1}] offset:{i*1024}")
    W0 = ENV("F_WPF", 250); WSP = ENV("F_WSP", 1)
    kgen_all(a, {W0 + k * WSP: wpf(k) for k in range(9)} if W0 else {})
    a.drop = None
    stamp(a, 1)
    for i in range(12): a(f"v_accvgpr_read_b32 v{16+i}, a{192+i}")
    st_loads(a)
    for t in range(3):
        a(f"v_cvt_pk_bf16_f32 v{28+2*t}, v{16+4*t}, v{17+4*t}")
        a(f"v_cvt_pk_bf16_f32 v{29+2*t}, v{18+4*t}, v{19+4*t}")
    a("ds_write_b64 v236, v[28:29]")
    a("ds_write_b32 v237, v30 offset:512")
    a("ds_write_b32 v238, v31 offset:512")
    a("ds_write_b16 v239, v32 offset:1024")
    a("ds_write_b16_d16_hi v239, v32 offset:1056")
    a("ds_write_b16 v239, v33 offset:1088")
    a("ds_write_b16_d16_hi v239, v33 offset:1120")
    a("ds_read2_b64 v[40:43], v240 offset0:0 offset1:1")
    a("ds_read2_b32 v[44:45], v241 offset0:192 offset1:193")
    for r in range(2):
        a(f"ds_read_u16 v{46+2*r}, v242 offset:{1024 + 128*r}")
        a(f"ds_read_u16 v{47+2*r}, v242 offset:{1026 + 128*r}")
    for i, r in enumerate((247, 248, 249, 250, 251, 252, 253, 254)): a(f"v_mov_b32 v{16+i}, v{r}")
    a("v_mov_b32 v3, v10"); a("v_mov_b32 v4, v11"); a("v_mov_b32 v5, v12")
    a("s_mov_b32 s8, 0x01000100")
    a("s_mov_b32 s9, 0x03020100")
    a("s_mov_b32 s10, 0x03020302")
    a("s_mov_b32 s12, 0x05040302")
    a("v_cmp_gt_u32 vcc, 32, v1")
    a("s_waitcnt lgkmcnt(5)")
    a("v_perm_b32 v52, v40, v40, v243")
    a("v_perm_b32 v53, v41, v40, v244")
    a("v_perm_b32 v54, v42, v41, v245")
    a("v_perm_b32 v55, v42, v41, s12")
    a("v_cndmask_b32 v55, v55, v43, vcc")
    a("ds_write_b128 v226, v[52:55] offset:128")
    a("s_waitcnt lgkmcnt(5)")
    a("v_perm_b32 v56, v44, v44, s8")
    a("v_mov_b32 v57, v44")
    a("v_perm_b32 v58, v44, v44, s10")
    a("v_perm_b32 v59, v45, v45, s8")
    a("ds_write_b128 v226, v[56:59] offset:1152")
    a("s_waitcnt lgkmcnt(2)")
    for r in range(2):
        d = 60 + 4 * r
        a(f"v_perm_b32 v{d}, v{46+2*r}, v{46+2*r}, s8")
        a(f"v_mov_b32 v{d+1}, v{d}")
        a(f"v_perm_b32 v{d+2}, v{47+2*r}, v{46+2*r}, v246")
        a(f"v_perm_b32 v{d+3}, v{47+2*r}, v{47+2*r}, s8")
        a(f"ds_write_b128 v226, v[{d}:{d+3}] offset:{128 + (2+r)*1024}")
    FR = 24; GR = 88; NG = 8; AR = 120; T2 = 248
    for Q in range(15, -1, -1):
        for h in range(2):
            a(f"ds_read_b64_tr_b16 v[{FR+4*Q+2*h}:{FR+4*Q+2*h+1}], v16 offset:{32 + 256*Q + 32*h}")
    a("s_lshl_b32 s9, s4, 14")
    a("s_add_u32 s12, s9, 8192")
    a("s_mov_b32 s52, 0")
    a.label("F_STW")
    a("s_waitcnt vmcnt(0)")
    a(f"v_cmp_eq_u32 vcc, 0, v{NB}")
    for off in (6, 10, 18, 22):
        a(f"v_cmp_ne_u64 s[10:11], v[{NB}:{NB+1}], v[{NB+off}:{NB+off+1}]")
        a("s_or_b64 vcc, vcc, s[10:11]")
    a("s_cbranch_vccz F_STOK")
    a("s_add_u32 s52, s52, 1")
    a("s_cmp_ge_u32 s52, 0x8000")
    a("s_cbranch_scc1 F_STOK")
    a(f"s_sleep {ENV('F_SLEEP', 2)}")
    st_loads(a)
    a("s_branch F_STW")
    a.label("F_STOK")
    stamp(a, 2)
    a(f"v_readfirstlane_b32 s90, v{NB}")
    a(f"v_readfirstlane_b32 s91, v{NB+1}")
    XR = 152
    for g in range(2):
        for hh in range(2):
            a(f"buffer_load_dwordx4 v[{XR+8*g+4*hh}:{XR+8*g+4*hh+3}], v228, s[36:39], s9 offen offset:{32*g + 16*hh} sc1")
    RSr = 176; NM = 184; X = lambda g, c, h: 192 + 16 * g + 4 * c + 2 * h; U = lambda c, h: 224 + 4 * c + 2 * h
    Gs = lambda g, i: NB + 4 + 12 * g + (0, 1, 4, 5)[i]
    for g in range(2):
        for i in range(4): a(f"v_and_b32 v{RSr+4*g+i}, 0xffff0000, v{Gs(g,i)}")
    for i in range(8): a(f"v_rcp_f32 v{RSr+i}, v{RSr+i}")
    for g in range(2):
        for i in range(4): a(f"v_lshlrev_b32 v{NM+4*g+i}, 16, v{Gs(g,i)}")
    for i in range(8): a(f"v_mul_f32 v{NM+i}, -v{NM+i}, v{RSr+i}")
    a("s_mov_b32 s70, 0"); a("s_mov_b32 s71, 0x80000000")
    a("s_mov_b32 s72, 0"); a("s_mov_b32 s73, 0xc0000000")
    a("s_mov_b32 s74, 0"); a("s_mov_b32 s75, 0xe0000000")
    for g in range(2):
        a(f"s_waitcnt vmcnt({2 - 2*g})")
        for c in range(4):
            for h in range(2):
                a(f"v_lshlrev_b32 v{X(g,c,h)}, 16, v{XR+8*g+2*c+h}")
                a(f"v_and_b32 v{X(g,c,h)+1}, 0xffff0000, v{XR+8*g+2*c+h}")
        for c in range(4):
            for h in range(2):
                a(f"v_pk_fma_f32 v[{U(c,h)}:{U(c,h)+1}], v[{X(g,c,h)}:{X(g,c,h)+1}], v[{RSr+4*g+2*h}:{RSr+4*g+2*h+1}], v[{NM+4*g+2*h}:{NM+4*g+2*h+1}]")
        O = 240
        for c in range(4):
            for h in range(2):
                a(f"v_cvt_pk_bf16_f32 v{O+2*c+h}, v{U(c,h)}, v{U(c,h)+1}")
            if c % 2: a(f"ds_write_b128 v{20+c//2}, v[{O+2*c-2}:{O+2*c+1}] offset:{g*64}")
        for c in range(4):
            o = c % 2
            for h in range(2):
                a(f"v_pk_fma_f32 v[{X(g,c,h)}:{X(g,c,h)+1}], v[{U(c,h)}:{U(c,h)+1}], s[{84+2*(c//2)}:{85+2*(c//2)}], v[{X(g,c,h)}:{X(g,c,h)+1}] op_sel:[0,{o},0] op_sel_hi:[1,{o},1]")
    for par in range(2):
        for c in range(4):
            for g in range(2):
                a(f"v_cvt_pk_bf16_f32 v{XR+8*par+2*c+g}, v{X(g,c,0)+par}, v{X(g,c,1)+par}")
            if c % 2: a(f"ds_write_b128 v{22+c//2}, v[{XR+8*par+2*c-2}:{XR+8*par+2*c+1}] offset:{par*64}")
    a("s_waitcnt lgkmcnt(0)")
    stamp(a, 3)
    a("s_barrier")
    ds = Cnt(a, "lgkmcnt", 15)
    acc = lambda T: AR + 4 * T
    def gread(d):
        g = GR + 4 * (d % NG)
        for h in range(2):
            a(f"ds_read_b64_tr_b16 v[{g+2*h}:{g+2*h+1}], v{17+h} offset:{UB + 1024*d}"); ds.issue(("G", d))
    PDG = 6
    if split:
        for d in range(16):
            for h in range(2):
                a(f"ds_read_b64_tr_b16 a[{176+4*d+2*h}:{177+4*d+2*h}], v{17+h} offset:{UB + 1024*d}"); ds.issue(("G", d))
    else:
        for d in range(PDG): gread(d)
    started = set(); pend = []
    def combine(T):
        t = T2 + 4 * (T % 2); D = acc(T); out = []
        for e, m in ((3, 74), (2, 72), (1, 70)):
            prev = f"v{acc(T-1)+e}" if T > 0 else "0"
            out.append(f"v_cndmask_b32 v{t+e}, v{D+e}, {prev}, s[{m}:{m+1}]")
        out.append(f"v_add_f32_dpp v{t+2}, v{t+3}, v{t+2} wave_ror:1 row_mask:0xf bank_mask:0xf")
        out.append(f"v_add_f32_dpp v{t+1}, v{t+2}, v{t+1} wave_ror:1 row_mask:0xf bank_mask:0xf")
        out.append(f"v_add_f32_dpp v{t}, v{t+1}, v{D} wave_ror:1 row_mask:0xf bank_mask:0xf")
        out.append(f"v_cvt_pk_bf16_f32 v{t}, v{t}, v{t}")
        out.append(f"ds_write_b16 v19, v{t} offset:{128 + (T>>1)*256 + (T&1)*64}")
        return out
    def side(n):
        for _ in range(n):
            if pend:
                t = pend.pop(0); a(t)
                if t.startswith("ds_"): ds.issue("Y")
    if split:
        conv_split(a, fused, ds, gread, combine, side, pend, acc, FR, GR, NG, PDG)
        return
    def run_deltas(d0, d1, hook=None):
        for d in range(d0, d1):
            ds.wait(("G", d))
            g = GR + 4 * (d % NG)
            for T in range(d, 32, 2):
                Q = (T - d) // 2
                c = f"v[{acc(T)}:{acc(T)+3}]"
                a(f"v_mfma_f32_16x16x32_bf16 {c}, v[{FR+4*Q}:{FR+4*Q+3}], v[{g}:{g+3}], {c if d >= 2 else 0}")
                if not (hook and hook()): side(1 if d < 20 else 2)
            if d + PDG < 32: gread(d + PDG)
            if d >= 1: pend.extend(combine(d - 1))
        if d1 == 32:
            pend.extend(combine(31)); side(200)
    if not fused:
        run_deltas(0, 32)
    else:
        D1 = ENV("F_D1", 18); D2 = ENV("F_D2", 22)
        fused.setup()
        run_deltas(0, D1)
        fused.poll_issue()
        run_deltas(D1, D2)
        fused.check("F_NOW13")
        sv = (list(pend), list(ds.q))
        cnt = [0]
        def hook():
            cnt[0] += 1
            return cnt[0] % ENV("F_WGAP", 2) == 0 and fused.load_one()
        run_deltas(D2, 32, hook)
        a("s_branch F_CONVDONE")
        a.label("F_NOW13")
        pend[:] = sv[0]; ds.q = sv[1]
        a("s_mov_b32 s33, 0")
        run_deltas(D2, 32)
        a.label("F_CONVDONE")
    a(f"v_mul_u32_u24 v16, {KP}, v4")
    a("v_lshl_add_u32 v16, v3, 5, v16")
    a("v_lshl_add_u32 v16, v5, 3, v16")
    a("s_lshl_b32 s13, s3, 8")
    a(f"s_add_u32 s13, s13, {KB}")
    a("v_add_u32 v16, s13, v16")
    a("v_lshl_add_u32 v6, v3, 2, v5")
    a("v_lshrrev_b32 v7, 1, v6")
    a("v_lshlrev_b32 v6, 7, v6")
    a("v_and_b32 v20, 1, v4")
    a("v_lshl_add_u32 v6, v20, 3, v6")
    a("s_lshl_b32 s12, s3, 11")
    a("v_add_u32 v6, s12, v6")
    a("v_lshrrev_b32 v20, 1, v4")
    a("v_add3_u32 v7, v7, v20, 2")
    a("v_and_b32 v7, 3, v7")
    a("v_lshl_add_u32 v17, v7, 4, v6")
    a("v_lshrrev_b32 v19, 3, v1")
    a("v_mul_u32_u24 v19, 20480, v19")
    a("v_and_b32 v6, 7, v1")
    a("v_lshl_add_u32 v19, v6, 4, v19")
    a("s_mul_i32 s13, s3, 163840")
    a("s_lshr_b32 s14, s4, 3")
    a("s_lshl_b32 s14, s14, 10")
    a("s_add_u32 s13, s13, s14")
    a("s_and_b32 s14, s4, 1")
    a("s_lshl_b32 s14, s14, 9")
    a("s_add_u32 s13, s13, s14")
    a("s_bfe_u32 s14, s4, 0x20001")
    a("s_lshl_b32 s14, s14, 7")
    a("s_add_u32 s13, s13, s14")
    a("s_waitcnt lgkmcnt(0)")
    stamp(a, 4)
    a("s_barrier")
    for i in range(4):
        for par in range(2):
            a(f"ds_read_b64_tr_b16 v[{24+8*i+2*par}:{25+8*i+2*par}], v16 offset:{128 + i*1024 + par*128}")
            a(f"ds_read_b64_tr_b16 v[{28+8*i+2*par}:{29+8*i+2*par}], v17 offset:{UB + UPAD + i*8192 + par*64}")
    HSC = " sc1" if (ENV("F_HSC", 0) or fused) else ""
    for i in range(4):
        Y = 24 + 8 * i; A = 64 + 16 * i
        a(f"s_waitcnt lgkmcnt({12 - 4*i})")
        for q in range(4):
            a(f"v_lshlrev_b32 v{A+2*q}, 16, v{Y+q}")
            a(f"v_and_b32 v{A+2*q+1}, 0xffff0000, v{Y+q}")
            a(f"v_lshlrev_b32 v{A+8+2*q}, 16, v{Y+4+q}")
            a(f"v_and_b32 v{A+8+2*q+1}, 0xffff0000, v{Y+4+q}")
        for q in range(4):
            a(f"v_pk_add_f32 v[{A+2*q}:{A+2*q+1}], v[{A+2*q}:{A+2*q+1}], v[{A+8+2*q}:{A+8+2*q+1}]")
        a(f"s_add_u32 s14, s13, {i*4*163840}")
        for q in range(4):
            a(f"v_cvt_pk_bf16_f32 v{Y+q}, v{A+2*q}, v{A+2*q+1}")
        a(f"buffer_store_dwordx4 v[{Y}:{Y+3}], v19, s[56:59], s14 offen{HSC}")


def conv_split(a, fused, ds, gread, combine, side, pend, acc, FR, GR, NG, PDG):
    cst = lambda i: _stamp(a, i + 1) if os.environ.get("STSET") == "C" else None
    if os.environ.get("STSET") == "C": _stamp(a, 0); ds.q = []
    a(f"v_mul_u32_u24 v12, {KP}, v4")
    a("v_lshl_add_u32 v12, v3, 5, v12")
    a("v_lshl_add_u32 v12, v5, 3, v12")
    a("s_lshl_b32 s13, s3, 8")
    a(f"s_add_u32 s13, s13, {KB}")
    a("v_add_u32 v12, s13, v12")
    a("v_lshl_add_u32 v6, v3, 2, v5")
    a("v_lshrrev_b32 v7, 1, v6")
    a("v_lshlrev_b32 v6, 7, v6")
    a("v_and_b32 v20, 1, v4")
    a("v_lshl_add_u32 v6, v20, 3, v6")
    a("s_lshl_b32 s12, s3, 11")
    a("v_add_u32 v6, s12, v6")
    a("v_lshrrev_b32 v20, 1, v4")
    a("v_add3_u32 v7, v7, v20, 2")
    a("v_and_b32 v7, 3, v7")
    a("v_lshl_add_u32 v13, v7, 4, v6")
    a("v_bfe_u32 v14, v1, 3, 2")
    a("v_lshrrev_b32 v6, 5, v1")
    a("v_lshl_add_u32 v14, v6, 3, v14")
    a("v_mul_u32_u24 v14, 20480, v14")
    a("v_and_b32 v6, 7, v1")
    a("v_lshl_add_u32 v14, v6, 4, v14")
    a("s_mul_i32 s13, s3, 327680")
    a("s_lshr_b32 s14, s4, 3")
    a("s_lshl_b32 s14, s14, 10")
    a("s_add_u32 s13, s13, s14")
    a("s_and_b32 s14, s4, 1")
    a("s_lshl_b32 s14, s14, 9")
    a("s_add_u32 s13, s13, s14")
    a("s_bfe_u32 s14, s4, 0x20001")
    a("s_lshl_b32 s14, s14, 7")
    a("s_add_u32 s13, s13, s14")
    a(f"s_sub_u32 s5, s2, {N_LN}")
    fused.setup()
    def fin(hf, Y0, A0):
        o = []
        for i in range(2):
            for par in range(2):
                o.append(f"ds_read_b64_tr_b16 v[{Y0+8*i+2*par}:{Y0+1+8*i+2*par}], v12 offset:{128 + (2*hf+i)*1024 + par*128}")
                o.append(f"ds_read_b64_tr_b16 v[{Y0+4+8*i+2*par}:{Y0+5+8*i+2*par}], v13 offset:{UB + UPAD + (2*hf+i)*8192 + par*64}")
        for i in range(2):
            Y = Y0 + 8 * i; A = A0 + 16 * i
            o.append(("wait", i))
            for q in range(4):
                o.append(f"v_lshlrev_b32 v{A+2*q}, 16, v{Y+q}")
                o.append(f"v_and_b32 v{A+2*q+1}, 0xffff0000, v{Y+q}")
                o.append(f"v_lshlrev_b32 v{A+8+2*q}, 16, v{Y+4+q}")
                o.append(f"v_and_b32 v{A+8+2*q+1}, 0xffff0000, v{Y+4+q}")
            for q in range(8): o.append(f"v_add_f32 v{A+q}, v{A+q}, v{A+8+q}")
            o.append(f"s_add_u32 s14, s13, {i*4*327680 + hf*81920}")
            for q in range(4): o.append(f"v_cvt_pk_bf16_f32 v{Y+q}, v{A+2*q}, v{A+2*q+1}")
            o.append(f"buffer_store_dwordx4 v[{Y}:{Y+3}], v14, s[56:59], s14 offen sc1")
        return o
    fq = []; fc = [0]
    def emit(n):
        for _ in range(n):
            if pend: side(1); continue
            if not fq: return
            t = fq.pop(0)
            if isinstance(t, tuple): ds.wait(("fin", t[1])); continue
            a(t)
            if t.startswith("ds_"): ds.issue(("fin", fc[0] // 4)); fc[0] += 1
    seq = list(range(16)) + list(range(32))
    def gr(n):
        d = seq[n]; g = GR + 4 * (n % NG)
        if d < 16: return
        for h in range(2):
            a(f"ds_read_b64_tr_b16 v[{g+2*h}:{g+2*h+1}], v{17+h} offset:{UB + 1024*d}"); ds.issue(("G", n))
    def run(n0, n1, hook=None):
        for n in range(n0, n1):
            d = seq[n]; lo = 0 if n < 16 else 16; hi = lo + 16
            ds.wait(("G", n))
            g = f"v[{GR+4*(n%NG)}:{GR+4*(n%NG)+3}]" if d >= 16 else f"a[{176+4*d}:{179+4*d}]"
            for T in range(max(d, lo + (d & 1)), hi, 2):
                Q = (T - d) // 2
                c = f"v[{acc(T)}:{acc(T)+3}]"
                a(f"v_mfma_f32_16x16x32_bf16 {c}, v[{FR+4*Q}:{FR+4*Q+3}], {g}, {c if d >= 2 else 0}")
                if not (hook and hook()): emit(ENV("F_EM1", 3) if n < B1 else ENV("F_EM", 2))
            if n + PDG < len(seq): gr(n + PDG)
            if n < 16 and d >= 1: pend.extend(combine(d - 1))
            if n == 16: pend.extend(combine(15))
            if n > 16 and d - 1 >= 16: pend.extend(combine(d - 1))
        if n1 == len(seq):
            pend.extend(combine(31)); emit(200)
    if ENV("F_EARLYW", 0):
        B1 = 16 + ENV("F_B1", 4); D1 = 16 + ENV("F_D1", 10); D2 = 16 + ENV("F_D2", 19); E0 = ENV("F_E0", 8)
        cnt = [0]; nld = [0]
        def hook():
            cnt[0] += 1
            if cnt[0] % ENV("F_WGAP", 5) == 0 and fused.load_one():
                nld[0] += 1; return True
            return False
        fused.poll_issue()
        run(0, E0)
        a("s_waitcnt vmcnt(0)")
        a("v_cmp_ne_u64 vcc, s[90:91], v[10:11]")
        a("s_cbranch_vccz W13K_E")
        fused.wait("E")
        a("s_mov_b32 s33, 1")
        run(E0, B1, hook)
        emit(100)
        a("s_waitcnt lgkmcnt(0)"); ds.q = []
        a("s_barrier")
        fq.extend(fin(0, 120, 136))
        run(B1, D1, hook)
        emit(200)
        nld[0] = 0
        run(D1, D2, hook)
        a(f"s_waitcnt vmcnt({nld[0]})")
        a("s_barrier")
        fused.flag("s5", 192, "HA", 20)
        fused.first = fused.n
        stamp(a, 6)
        run(D2, len(seq), hook)
    else:
        B1 = 16 + ENV("F_B1", 4); D1 = 16 + ENV("F_D1", 8); D2 = 16 + ENV("F_D2", 12)
        run(0, B1)
        if pend: print("conv_split: flushing", len(pend), "at B1")
        emit(100)
        a("s_waitcnt lgkmcnt(0)"); ds.q = []
        cst(0)
        a("s_barrier")
        cst(1)
        fq.extend(fin(0, 120, 136))
        run(B1, D1)
        if fq: print("conv_split: flushing", len(fq), "at D1")
        emit(200)
        cst(2)
        fused.poll_issue()
        run(D1, D2)
        cst(3)
        a("s_waitcnt vmcnt(0)")
        a("s_barrier")
        cst(4)
        fused.flag("s5", 192, "HA", 20)
        stamp(a, 6)
        fused.check("F_NOW13", wait=False)
        sv = (list(pend), list(ds.q))
        cnt = [0]
        def hook():
            cnt[0] += 1
            return cnt[0] % ENV("F_WGAP", 4) == 0 and fused.load_one()
        run(D2, len(seq), hook)
        a("s_branch F_CONVDONE")
        a.label("F_NOW13")
        pend[:] = sv[0]; ds.q = sv[1]
        a("s_mov_b32 s33, 0")
        run(D2, len(seq))
    a.label("F_CONVDONE")
    a("s_waitcnt lgkmcnt(0)"); ds.q = []
    cst(5)
    stamp(a, 4)
    a("s_barrier")
    fc[0] = 0
    fq.extend(fin(1, 24, 64))
    emit(500)
```
